```python
import torch

def _softmax(x, axis=-1):
    return torch.softmax(x, dim=axis)
def _gelu(x):
    return torch.nn.functional.gelu(x, approximate="tanh")
def _silu(x):
    return torch.nn.functional.silu(x)
def _sigmoid(x):
    return torch.sigmoid(x)
def _layernorm(x, axis=-1, eps=1e-5):
    m = x.mean(dim=axis, keepdim=True)
    v = x.var(dim=axis, keepdim=True, unbiased=False)
    return (x - m) / torch.sqrt(v + eps)
def _scatter_add(tgt, idx, src, axis=0):
    return tgt.clone().index_add_(axis, idx, src)
def _segment_sum(src, seg, n):
    out = torch.zeros((n,) + src.shape[1:], dtype=src.dtype)
    return out.index_add_(0, seg, src)
def _pad(x, pw):
    flat = tuple(v for pair in reversed(pw) for v in pair)
    return torch.nn.functional.pad(x, flat)

kernel_name = 'concat_heads__gqa_block_cached__mha_block_cached__decode'

def setup_inputs():

    _w = (lambda a: (lambda t: t.to(torch.bfloat16) if t.is_floating_point() else t)(torch.as_tensor(a)))
    def _A_setup():
        B, Sq, D = 2, 1, 640
        Hq, Hkv, Sk, Dh = 32, 32, 8192, 192
        assert Hq % Hkv == 0, (Hq, Hkv)
        return {
            "x": _w((lambda *s: torch.randn(*s, dtype=torch.bfloat16) * 0.8)(B, Sq, D)),
            "k_cache": _w((lambda *s: torch.randn(*s, dtype=torch.bfloat16) * 0.8)(B, Hkv, Sk, Dh)),
            "v_cache": _w((lambda *s: torch.randn(*s, dtype=torch.bfloat16) * 0.05)(B, Hkv, Sk, Dh)),
            "wq": _w((lambda *s: torch.randn(*s, dtype=torch.bfloat16) * 0.8)(D, Hq * Dh) * (D ** -0.5)),
            "wo": _w((lambda *s: torch.randn(*s, dtype=torch.bfloat16) * 0.05)(Hq * Dh, D) * ((Hq * Dh) ** -0.5)),
        }
    _A_in = _A_setup()

    def _B_setup():
        B, Sq, D = 2, 1, 640
        H, Sk, Dh = 32, 8192, 192
        return {
            "x": _w((lambda *s: torch.randn(*s, dtype=torch.bfloat16) * 0.8)(B, Sq, D)),
            "k_cache": _w((lambda *s: torch.randn(*s, dtype=torch.bfloat16) * 0.8)(B, H, Sk, Dh)),
            "v_cache": _w((lambda *s: torch.randn(*s, dtype=torch.bfloat16) * 0.05)(B, H, Sk, Dh)),
            "wq": _w((lambda *s: torch.randn(*s, dtype=torch.bfloat16) * 0.8)(D, H * Dh) * (D ** -0.5)),
            "wo": _w((lambda *s: torch.randn(*s, dtype=torch.bfloat16) * 0.05)(H * Dh, D) * ((H * Dh) ** -0.5)),
        }
    _B_in = _B_setup()

    return {
        "A_x": _A_in["x"],
        "A_k_cache": _A_in["k_cache"],
        "A_v_cache": _A_in["v_cache"],
        "A_wq": _A_in["wq"],
        "A_wo": _A_in["wo"],
        "B_x": _B_in["x"],
        "B_k_cache": _B_in["k_cache"],
        "B_v_cache": _B_in["v_cache"],
        "B_wq": _B_in["wq"],
        "B_wo": _B_in["wo"],
    }

def reference(A_x, A_k_cache, A_v_cache, A_wq, A_wo, B_x, B_k_cache, B_v_cache, B_wq, B_wo):
    def _A_ref(x, k_cache, v_cache, wq, wo):
        B, Sq, D = x.shape
        Hq, Dh = 32, 192
        Hkv = k_cache.shape[1]
        rep = Hq // Hkv
        q = (lambda x, *d: x.permute(*d))((x @ wq).reshape(B, Sq, Hq, Dh), 0, 2, 1, 3)
        k = (lambda x, n, axis: torch.repeat_interleave(x, n, dim=axis))(k_cache, rep, axis=1)
        v = (lambda x, n, axis: torch.repeat_interleave(x, n, dim=axis))(v_cache, rep, axis=1)
        scores = torch.einsum("bhqd,bhkd->bhqk", q, k) * (Dh ** -0.5)
        p = _softmax(scores, axis=-1)
        o = torch.einsum("bhqk,bhkd->bhqd", p, v)
        return (lambda x, *d: x.permute(*d))(o, 0, 2, 1, 3).reshape(B, Sq, Hq * Dh) @ wo

    def _B_ref(x, k_cache, v_cache, wq, wo):
        B, Sq, D = x.shape
        H, Dh = 32, 192
        q = (lambda x, *d: x.permute(*d))((x @ wq).reshape(B, Sq, H, Dh), 0, 2, 1, 3)
        scores = torch.einsum("bhqd,bhkd->bhqk", q, k_cache) * (Dh ** -0.5)
        p = _softmax(scores, axis=-1)
        o = torch.einsum("bhqk,bhkd->bhqd", p, v_cache)
        return (lambda x, *d: x.permute(*d))(o, 0, 2, 1, 3).reshape(B, Sq, H * Dh) @ wo

    a = _A_ref(A_x, A_k_cache, A_v_cache, A_wq, A_wo)
    b = _B_ref(B_x, B_k_cache, B_v_cache, B_wq, B_wo)
    return torch.concatenate([a, b], axis=-1)
```

```python
import sys, math, struct
KN = "concat_heads__gqa_block_cached__mha_block_cached__decode_kernel"
K2 = "final_reduce_kernel"
WS = 836768768
KVBYTES = 201326592
WBYTES = 7864320
HDR = open("concat_heads__gqa_block_cached__mha_block_cached__decode.s.ref").read().split("; Override launch")[0] if len(sys.argv) > 2 else ""

def f32hex(x): return "0x%08x" % struct.unpack("<I", struct.pack("<f", x))[0]

def gen(name="main.s", R=8, thr=3, thr_wo=7, wo_per=4, kpos=None, stamps=False, wpol="nt", wopol=None, kvpol="nt", free_last=3, thr0=None, header=""):
    wopol = wpol if wopol is None else wopol
    NT = 128
    NIT = NT // R
    L = []; A = L.append
    SROW = 528; SWAVE = 8 * SROW
    L_S = 0
    L_PART = 4 * SWAVE
    L_STG = L_PART + 8 * 192 * 4
    L_MX = L_STG + 4 * 512
    L_SUM = L_MX + 64
    L_Y = L_SUM + 64
    LDS = L_Y + 8 * 640 * 4
    W_Y = 0; W_ML = 4 * 64 * 2560
    vLane, vKV, vWQ, vWO = 1, 2, 3, 4
    vT0, vT1, vT2, vT3 = 5, 6, 7, 8
    vSaddr = 9
    vMid = 10
    vL = 11
    vM = 12
    vB = 16
    vQ = 24
    vD = 36
    vP = 56
    vX = 64
    vRing = 80
    NV = vRing + 12 * R
    assert NV <= 256
    ACC = (NV + 3) // 4 * 4
    def ring(s, t): r = vRing + 12 * s + 4 * t; return r
    A(header + f"; @launch kernel={KN} grid=(256,1,1) block=(256,1,1) lds={LDS}")
    A(f"; @launch kernel={K2} grid=(160,1,1) block=(64,1,1) lds=0")
    A('.amdgcn_target "amdgcn-amd-amdhsa--gfx950"')
    A(".text"); A(f".globl {KN}"); A(".p2align 8"); A(f".type {KN},@function"); A(f"{KN}:")
    A("  s_cmp_ge_u32 s2, 256"); A("  s_cbranch_scc1 L_end")
    if stamps: A("  s_memrealtime s[64:65]")
    A("  s_lshr_b32 s3, s2, 7            ; p")
    A("  s_mul_i32 s4, s3, 40")
    A("  s_add_u32 s4, s0, s4"); A("  s_addc_u32 s5, s1, 0")
    A("  s_load_dwordx8 s[36:43], s[4:5], 8")
    A("  s_load_dwordx2 s[44:45], s[4:5], 0   ; x")
    A("  s_load_dwordx2 s[46:47], s[0:1], 96  ; ws")
    A("  s_lshr_b32 s6, s2, 5"); A("  s_and_b32 s6, s6, 3"); A("  s_lshl_b32 s6, s6, 3")
    A("  s_and_b32 s7, s2, 7"); A("  s_or_b32 s6, s6, s7            ; h")
    A("  s_lshr_b32 s8, s2, 4"); A("  s_and_b32 s8, s8, 1            ; b")
    A("  s_lshr_b32 s9, s2, 3"); A("  s_and_b32 s9, s9, 1")
    A(f"  v_lshrrev_b32 v{vT0}, 6, v0")
    A(f"  v_and_b32 v{vLane}, 63, v0")
    A(f"  v_readfirstlane_b32 s7, v{vT0}     ; wave")
    A(f"  v_lshrrev_b32 v{vT1}, 3, v{vLane}    ; l/8")
    A(f"  v_and_b32 v{vT2}, 7, v{vLane}        ; l%8")
    A(f"  v_lshlrev_b32 v{vT3}, 4, v{vT2}")
    A(f"  v_mul_u32_u24 v{vKV}, 384, v{vT1}")
    A(f"  v_add_u32 v{vKV}, v{vKV}, v{vT3}")
    A(f"  v_mul_u32_u24 v{vWQ}, {20*12288}, v{vT1}")
    A(f"  v_add_u32 v{vWQ}, v{vWQ}, v{vT3}")
    A(f"  v_mul_u32_u24 v{vT0}, 40, v{vT1}")
    A("  s_lshl_b32 s10, s8, 5"); A("  s_add_u32 s10, s10, s6"); A("  s_lshl_b32 s10, s10, 1"); A("  s_add_u32 s10, s10, s9")
    A("  s_lshl_b32 s11, s10, 2"); A("  s_add_u32 s11, s11, s7"); A("  s_mul_i32 s48, s11, 393216")
    A("  s_mov_b32 s49, s48")
    A(f"  s_mul_i32 s50, s7, {160*12288}"); A("  s_mul_i32 s11, s6, 384"); A("  s_add_u32 s50, s50, s11")
    A("  s_mul_i32 s51, s8, 1280"); A("  s_mul_i32 s11, s7, 320"); A("  s_add_u32 s51, s51, s11")
    A(f"  s_mov_b32 s14, {KVBYTES}"); A("  s_mov_b32 s15, 0x20000")
    A(f"  s_mov_b32 s22, {WBYTES}"); A("  s_mov_b32 s23, 0x20000")
    A("  s_mov_b32 s30, 2560"); A("  s_mov_b32 s31, 0x20000")
    A("  s_waitcnt lgkmcnt(0)")
    A("  s_mov_b32 s12, s36"); A("  s_mov_b32 s13, s37")
    A("  s_mov_b32 s20, s40"); A("  s_mov_b32 s21, s41")
    A("  s_mov_b32 s28, s44"); A("  s_mov_b32 s29, s45")
    ops = []
    if kpos is None:
        kpos = [1 + (j * 20) // (R - 2) if j < R - 2 else 20 for j in range(R)]
        kpos = [min(k, 20) for k in kpos]
    seq = []
    kj = 0
    for i in range(21):
        while kj < R and kpos[kj] == i: seq.append(("k", kj)); kj += 1
        if i < 20: seq.append(("q", i))
    assert kj == R
    def issue_kv(slot):
        for t in range(3):
            A(f"  buffer_load_dwordx4 v[{ring(slot,t)}:{ring(slot,t)+3}], v{vKV}, s[12:15], s49 offen offset:{128*t} {kvpol}")
        A("  s_add_u32 s49, s49, 3072")
    def issue_wq(i):
        for t in range(3):
            a = (i * 3 + t) * 4
            A(f"  buffer_load_dwordx4 a[{a}:{a+3}], v{vWQ}, s[20:23], s50 offen offset:{128*t} {wpol}")
        if i < 19: A("  s_add_u32 s50, s50, 12288")
    A(f"  buffer_load_dwordx4 v[{vX}:{vX+3}], v{vT0}, s[28:31], s51 offen")
    A(f"  buffer_load_dwordx4 v[{vX+4}:{vX+7}], v{vT0}, s[28:31], s51 offen offset:16")
    A(f"  buffer_load_dwordx2 v[{vX+8}:{vX+9}], v{vT0}, s[28:31], s51 offen offset:32")
    MAXG = 19
    issued = 0
    def issue_next():
        nonlocal issued
        k, i = seq[issued]
        (issue_kv if k == "k" else issue_wq)(i)
        issued += 1
    while issued < min(MAXG, len(seq)): issue_next()
    A(f"  v_and_b32 v{vT0}, 1, v{vT2}"); A(f"  v_lshlrev_b32 v{vT0}, 4, v{vT0}")
    A(f"  v_mov_b32 v{vT3}, 0xffff"); A(f"  v_lshlrev_b32 v{vT0}, v{vT0}, v{vT3}")
    A(f"  v_lshrrev_b32 v{vT3}, 1, v{vT2}")
    for q in range(4):
        A(f"  v_cmp_eq_u32 vcc, {q}, v{vT3}"); A("  s_nop 1"); A(f"  v_cndmask_b32 v{vM+q}, 0, v{vT0}, vcc")
    A("  s_mov_b32 s52, 0x01000100"); A("  s_mov_b32 s53, 0x03020302")
    A("  s_mov_b32 s54, 0x00ff00ff"); A("  s_mov_b32 s55, 0xff00ff00")
    A(f"  s_mul_i32 s11, s7, {SWAVE}")
    A(f"  v_mul_u32_u24 v{vSaddr}, {SROW}, v{vT1}"); A(f"  v_add_u32 v{vSaddr}, s11, v{vSaddr}")
    A(f"  v_lshlrev_b32 v{vMid}, 4, v{vT2}"); A(f"  v_add_u32 v{vMid}, v{vMid}, v{vSaddr}")
    A(f"  v_lshrrev_b32 v{vT0}, 4, v{vLane}"); A(f"  v_mul_u32_u24 v{vWO}, {12*1280}, v{vT0}")
    A(f"  v_and_b32 v{vT0}, 15, v{vLane}"); A(f"  v_lshl_add_u32 v{vWO}, v{vT0}, 4, v{vWO}")
    A("  s_lshl_b32 s56, s6, 2"); A("  s_add_u32 s56, s56, s7"); A(f"  s_mul_i32 s56, s56, {48*1280}")
    A("  s_mov_b32 s24, s42"); A("  s_mov_b32 s25, s43"); A(f"  s_mov_b32 s26, {WBYTES}"); A("  s_mov_b32 s27, 0x20000")
    A("  s_mov_b32 s32, s46"); A("  s_mov_b32 s33, s47"); A(f"  s_mov_b32 s34, {WS}"); A("  s_mov_b32 s35, 0x20000")
    for i in range(20):
        pos = seq.index(("q", i))
        A(f"  s_waitcnt vmcnt({3*(issued-1-pos)})")
        b = vB + 4 * (i & 1)
        A(f"  v_perm_b32 v{vT0}, v{vX+i//2}, v{vX+i//2}, s{52+(i&1)}")
        for q in range(4): A(f"  v_and_b32 v{b+q}, v{vT0}, v{vM+q}")
        n_before = issued
        while issued < len(seq) and issued - (pos + 1) < MAXG: issue_next()
        if issued == n_before: A("  s_nop 1")
        for t in range(3):
            a = (i * 3 + t) * 4
            c = f"v[{vD+4*t}:{vD+4*t+3}]" if i else "0"
            A(f"  v_mfma_f32_16x16x32_bf16 v[{vD+4*t}:{vD+4*t+3}], v[{b}:{b+3}], a[{a}:{a+3}], {c}")
    assert issued == len(seq)
    def part_write():
        A(f"  v_lshrrev_b32 v{vT0}, 5, v{vLane}"); A(f"  v_mul_u32_u24 v{vT0}, 768, v{vT0}")
        A(f"  v_and_b32 v{vT1}, 7, v{vLane}"); A(f"  v_lshl_add_u32 v{vT0}, v{vT1}, 5, v{vT0}")
        A(f"  v_and_b32 v{vT1}, 16, v{vLane}"); A(f"  v_add_u32 v{vT0}, v{vT0}, v{vT1}")
        A(f"  s_mul_i32 s11, s7, 1536"); A(f"  v_add_u32 v{vT0}, s11, v{vT0}")
        A("  s_nop 1")
        A("  s_mov_b64 exec, s[54:55]")
        for t in range(3): A(f"  ds_write_b128 v{vT0}, v[{vD+4*t}:{vD+4*t+3}] offset:{L_PART + 256*t}")
        A("  s_mov_b64 exec, -1")
    part_write()
    A(f"  v_lshlrev_b32 v{vT1}, 4, v{vLane}")
    A(f"  s_lshl_b32 s11, s7, 9")
    A(f"  v_lshlrev_b32 v{vT2}, 3, v{vLane}"); A(f"  v_add_u32 v{vT2}, s11, v{vT2}")
    A(f"  v_and_b32 v{vT3}, 7, v{vLane}"); A(f"  v_lshlrev_b32 v{vT3}, 4, v{vT3}"); A(f"  v_add_u32 v{vT3}, s11, v{vT3}")
    A("  s_waitcnt lgkmcnt(0)"); A("  s_barrier")
    dst = [vD, vD+4, vD+8, vD+12, vD+16, vX, vX+4, vX+8]
    for k in range(8): A(f"  ds_read_b128 v[{dst[k]}:{dst[k]+3}], v{vT1} offset:{L_PART + 768*k}")
    for k in range(1, 8):
        A(f"  s_waitcnt lgkmcnt({7-k})")
        for r in range(4): A(f"  v_add_f32 v{vD+r}, v{vD+r}, v{dst[k]+r}")
    A(f"  v_cvt_pk_bf16_f32 v{vD+4}, v{vD}, v{vD+1}"); A(f"  v_cvt_pk_bf16_f32 v{vD+5}, v{vD+2}, v{vD+3}")
    A(f"  ds_write_b64 v{vT2}, v[{vD+4}:{vD+5}] offset:{L_STG}")
    for t in range(3): A(f"  ds_read_b128 v[{vQ+4*t}:{vQ+4*t+3}], v{vT3} offset:{L_STG + 128*t}")
    A("  s_waitcnt lgkmcnt(0)")
    if stamps: A("  s_memrealtime s[66:67]")
    wo_i = [0]
    def issue_wo():
        i = wo_i[0]; tp, c = divmod(i, 5)
        A(f"  buffer_load_dwordx4 a[{4*i}:{4*i+3}], v{vWO}, s[24:27], s56 offen offset:{(tp%3)*1280 + 256*c} {wopol}")
        if i % 15 == 14 and i < 59: A("  s_add_u32 s56, s56, 3840")
        wo_i[0] += 1
    def k_body(peeled, tag, thr_here):
        for s in range(R):
            acc = vP + (s % 8)
            A(f"  s_waitcnt vmcnt({3*(R-1)})")
            for k in range(12):
                c = f"v{acc}" if k else "0"
                A(f"  v_dot2_f32_bf16 v{acc}, v{ring(s,0)+k}, v{vQ+k}, {c}")
            if peeled and wo_i[0] < 60:
                A(f"  s_waitcnt vmcnt({thr_wo})")
            elif free_last and s >= R - free_last and not peeled:
                A(f"  s_cbranch_scc1 L_kf{tag}_{s}"); A(f"  s_waitcnt vmcnt({thr_here})"); A(f"L_kf{tag}_{s}:")
            else:
                A(f"  s_waitcnt vmcnt({thr_here})")
            for t in range(3):
                A(f"  buffer_load_dwordx4 v[{ring(s,t)}:{ring(s,t)+3}], v{vKV}, s[12:15], s49 offen offset:{128*t} {kvpol}")
            if peeled:
                for _ in range(wo_per):
                    if wo_i[0] < 60: issue_wo()
            A(f"  v_add_f32_dpp v{acc}, v{acc}, v{acc} quad_perm:[1,0,3,2] row_mask:0xf bank_mask:0xf")
            A("  s_addk_i32 s49, 3072" if peeled or not free_last or s < R - free_last - 1 else "  s_addk_i32 s49, 3072")
            if (not peeled) and free_last and s >= R - free_last - 1: A("  s_cmp_eq_u32 s57, 1")
            else: A("  s_nop 0")
            A(f"  v_add_f32_dpp v{acc}, v{acc}, v{acc} quad_perm:[2,3,0,1] row_mask:0xf bank_mask:0xf")
            A("  s_nop 1")
            A(f"  v_add_f32_dpp v{acc}, v{acc}, v{acc} row_half_mirror row_mask:0xf bank_mask:0xf")
            if s % 4 == 3:
                b = vP + (s % 8) - 3
                A(f"  ds_write_b128 v{vSaddr}, v[{b}:{b+3}] offset:{(s//4)*16}")
        A(f"  v_add_u32 v{vSaddr}, {R*4}, v{vSaddr}")
    npeel = 0
    while wo_i[0] < 60:
        k_body(True, f"p{npeel}", thr if thr0 is None else thr0); npeel += 1
    assert npeel < NIT - 1
    A(f"  s_mov_b32 s57, {NIT - npeel}")
    A("L_kloop:")
    A("  s_cmp_eq_u32 s57, 1")
    A("  s_cselect_b32 s12, s38, s12"); A("  s_cselect_b32 s13, s39, s13"); A("  s_cselect_b32 s49, s48, s49")
    k_body(False, "m", thr)
    A("  s_sub_u32 s57, s57, 1"); A("  s_cmp_lg_u32 s57, 0"); A("  s_cbranch_scc1 L_kloop")
    if stamps: A("  s_memrealtime s[68:69]")
    for i in range(4): A(f"  ds_read_b128 v[{vX+4*i}:{vX+4*i+3}], v{vMid} offset:{128*i}")
    A(f"  v_subrev_u32 v{vSaddr}, {NT*4}, v{vSaddr}")
    A(f"  v_lshrrev_b32 v{vT1}, 4, v{vLane}"); A(f"  v_lshlrev_b32 v{vT1}, 2, v{vT1}")
    A(f"  s_lshl_b32 s11, s7, 4"); A(f"  v_add_u32 v{vT1}, s11, v{vT1}")
    A(f"  v_mov_b32 v{vT2}, 0")
    A(f"  s_mov_b32 s58, {f32hex(192 ** -0.5 * math.log2(math.e))}")
    A("  s_waitcnt lgkmcnt(0)")
    A(f"  v_max3_f32 v{vT0}, v{vX}, v{vX+1}, v{vX+2}")
    for i in range(3, 15, 2): A(f"  v_max3_f32 v{vT0}, v{vT0}, v{vX+i}, v{vX+i+1}")
    A(f"  v_max_f32 v{vT0}, v{vT0}, v{vX+15}")
    for sh in (8, 4, 2, 1):
        A("  s_nop 1"); A(f"  v_max_f32_dpp v{vT0}, v{vT0}, v{vT0} row_ror:{sh} row_mask:0xf bank_mask:0xf")
    A(f"  ds_write_b32 v{vT1}, v{vT0} offset:{L_MX}")
    A("  s_waitcnt lgkmcnt(0)"); A("  s_barrier")
    for i in range(4): A(f"  ds_read_b128 v[{vD+4*i}:{vD+4*i+3}], v{vT2} offset:{L_MX + 16*i}")
    A("  s_waitcnt lgkmcnt(0)")
    A(f"  v_max3_f32 v{vT0}, v{vD}, v{vD+1}, v{vD+2}")
    for i in range(3, 15, 2): A(f"  v_max3_f32 v{vT0}, v{vT0}, v{vD+i}, v{vD+i+1}")
    A(f"  v_max_f32 v{vT0}, v{vT0}, v{vD+15}")
    A(f"  v_mul_f32 v{vT3}, s58, v{vT0}")
    for i in range(16): A(f"  v_fma_f32 v{vX+i}, v{vX+i}, s58, -v{vT3}")
    for i in range(16): A(f"  v_exp_f32 v{vX+i}, v{vX+i}")
    A(f"  v_readfirstlane_b32 s59, v{vT3}")
    A(f"  v_add_f32 v{vL}, v{vX}, v{vX+1}")
    for i in range(2, 16): A(f"  v_add_f32 v{vL}, v{vL}, v{vX+i}")
    for i in range(16): A(f"  v_cvt_pk_bf16_f32 v{vX+i}, v{vX+i}, v{vX+i}")
    for i in range(4): A(f"  ds_write_b128 v{vMid}, v[{vX+4*i}:{vX+4*i+3}] offset:{128*i}")
    A(f"  ds_read_b128 v[{vP}:{vP+3}], v{vSaddr}")
    for sh in (8, 4, 2, 1):
        A(f"  v_add_f32_dpp v{vL}, v{vL}, v{vL} row_ror:{sh} row_mask:0xf bank_mask:0xf"); A("  s_nop 1")
    A(f"  ds_write_b32 v{vT1}, v{vL} offset:{L_SUM}")
    for i in range(12): A(f"  v_mov_b32 v{vD+i}, 0")
    if stamps: A("  s_memrealtime s[70:71]")
    def v_body(last):
        for s in range(R):
            pr = vP + (s % 8)
            b = vB + 4 * (s & 1)
            if s % 4 == 0:
                A("  s_waitcnt lgkmcnt(0)")
                nb = vP + ((s + 4) % 8)
                if not (last and s == R - 4):
                    A(f"  ds_read_b128 v[{nb}:{nb+3}], v{vSaddr} offset:{(s//4+1)*16}")
            for q in range(4): A(f"  v_and_b32 v{b+q}, v{pr}, v{vM+q}")
            A(f"  s_waitcnt vmcnt({3*(R-1-s) if last else 3*(R-1)})")
            A("  s_nop 0")
            for t in range(3):
                A(f"  v_mfma_f32_16x16x32_bf16 v[{vD+4*t}:{vD+4*t+3}], v[{b}:{b+3}], v[{ring(s,t)}:{ring(s,t)+3}], v[{vD+4*t}:{vD+4*t+3}]")
            if not last:
                A(f"  s_waitcnt vmcnt({thr})")
                for t in range(3):
                    A(f"  buffer_load_dwordx4 v[{ring(s,t)}:{ring(s,t)+3}], v{vKV}, s[12:15], s49 offen offset:{128*t} {kvpol}")
                A("  s_addk_i32 s49, 3072")
    A(f"  s_mov_b32 s57, {NIT-1}")
    A("L_vloop:")
    v_body(False)
    A(f"  v_add_u32 v{vSaddr}, {R*4}, v{vSaddr}")
    A("  s_sub_u32 s57, s57, 1"); A("  s_cmp_lg_u32 s57, 0"); A("  s_cbranch_scc1 L_vloop")
    v_body(True)
    if stamps: A("  s_memrealtime s[72:73]")
    part_write()
    A(f"  s_mul_i32 s11, s7, 192"); A(f"  v_lshl_add_u32 v{vT1}, v{vLane}, 2, s11")
    A(f"  s_lshl_b32 s11, s7, 9"); A(f"  v_lshl_add_u32 v{vT2}, v{vLane}, 2, s11")
    A(f"  v_lshrrev_b32 v{vT3}, 4, v{vLane}"); A(f"  v_mul_u32_u24 v{vT3}, 48, v{vT3}")
    A(f"  v_and_b32 v{vT0}, 8, v{vLane}"); A(f"  v_lshl_add_u32 v{vT3}, v{vT0}, 5, v{vT3}"); A(f"  v_add_u32 v{vT3}, s11, v{vT3}")
    A("  s_waitcnt lgkmcnt(0)"); A("  s_barrier")
    for k in range(8): A(f"  ds_read_b32 v{vX+k}, v{vT1} offset:{L_PART + 768*k}")
    A("  s_waitcnt lgkmcnt(0)")
    A(f"  v_add_f32 v{vX}, v{vX}, v{vX+1}"); A(f"  v_add_f32 v{vX+2}, v{vX+2}, v{vX+3}")
    A(f"  v_add_f32 v{vX+4}, v{vX+4}, v{vX+5}"); A(f"  v_add_f32 v{vX+6}, v{vX+6}, v{vX+7}")
    A(f"  v_add_f32 v{vX}, v{vX}, v{vX+2}"); A(f"  v_add_f32 v{vX+4}, v{vX+4}, v{vX+6}")
    A(f"  v_add_f32 v{vX}, v{vX}, v{vX+4}")
    A(f"  v_cvt_pk_bf16_f32 v{vX+1}, v{vX}, v{vX}")
    A(f"  v_and_b32 v{vX+2}, 0xffff0000, v{vX+1}")
    A(f"  v_sub_f32 v{vX+2}, v{vX}, v{vX+2}")
    A(f"  v_cvt_pk_bf16_f32 v{vX+2}, v{vX+2}, v{vX+2}")
    A(f"  ds_write_b32 v{vT2}, v{vX+1} offset:{L_STG}")
    A(f"  ds_write_b32 v{vT2}, v{vX+2} offset:{L_STG + 256}")
    for i in range(3): A(f"  ds_read_b128 v[{vX+4+4*i}:{vX+7+4*i}], v{vT3} offset:{L_STG + 16*i}")
    A(f"  v_lshrrev_b32 v{vT0}, 5, v{vLane}"); A(f"  v_mul_u32_u24 v{vT0}, 2560, v{vT0}")
    A(f"  v_and_b32 v{vT1}, 15, v{vLane}"); A(f"  v_lshl_add_u32 v{vT0}, v{vT1}, 5, v{vT0}")
    A(f"  v_and_b32 v{vT1}, 16, v{vLane}"); A(f"  v_add_u32 v{vT0}, v{vT0}, v{vT1}")
    A(f"  s_mul_i32 s11, s7, 5120"); A(f"  v_add_u32 v{vT0}, s11, v{vT0}")
    A(f"  v_lshlrev_b32 v{vT1}, 4, v0            ; tid*16")
    A("  s_lshl_b32 s60, s3, 1"); A("  s_add_u32 s60, s60, s8"); A("  s_lshl_b32 s60, s60, 5"); A("  s_add_u32 s60, s60, s6")
    A("  s_lshl_b32 s60, s60, 1"); A("  s_add_u32 s60, s60, s9")
    A("  s_mul_i32 s61, s60, 2560"); A("  s_lshl_b32 s62, s60, 3"); A(f"  s_add_u32 s62, s62, {W_ML}")
    A("  s_waitcnt vmcnt(0) lgkmcnt(0)")
    for tp in range(12):
        b = vB + 4 * (tp & 1)
        if tp == 0:
            for q in range(4): A(f"  v_and_b32 v{b+q}, v{vX+4}, v{vM+q}")
            A("  s_nop 1")
        for c in range(5):
            i = tp * 5 + c
            cc = f"v[{vD+4*c}:{vD+4*c+3}]" if tp else "0"
            A(f"  v_mfma_f32_16x16x32_bf16 v[{vD+4*c}:{vD+4*c+3}], v[{b}:{b+3}], a[{4*i}:{4*i+3}], {cc}")
            if tp < 11 and c < 2:
                nb = vB + 4 * ((tp + 1) & 1)
                for q in (2 * c, 2 * c + 1): A(f"  v_and_b32 v{nb+q}, v{vX+5+tp}, v{vM+q}")
    A("  s_nop 3")
    for c in range(5): A(f"  ds_write_b128 v{vT0}, v[{vD+4*c}:{vD+4*c+3}] offset:{L_Y + 512*c}")
    A("  s_waitcnt lgkmcnt(0)"); A("  s_barrier")
    A("  s_cmp_eq_u32 s7, 3"); A("  s_cbranch_scc1 L_ml")
    A("  v_cmp_gt_u32 vcc, 160, v0"); A("  s_and_saveexec_b64 s[16:17], vcc")
    dst = [vD, vD+4, vD+8, vD+12, vD+16, vX, vX+4, vX+8]
    for k in range(8): A(f"  ds_read_b128 v[{dst[k]}:{dst[k]+3}], v{vT1} offset:{L_Y + 2560*k}")
    for k in range(1, 8):
        A(f"  s_waitcnt lgkmcnt({7-k})")
        for r in range(4): A(f"  v_add_f32 v{vD+r}, v{vD+r}, v{dst[k]+r}")
    A(f"  buffer_store_dwordx4 v[{vD}:{vD+3}], v{vT1}, s[32:35], s61 offen")
    A("  s_branch L_fin")
    A("L_ml:")
    A(f"  v_mov_b32 v{vT2}, 0")
    for i in range(4): A(f"  ds_read_b128 v[{vX+4*i}:{vX+4*i+3}], v{vT2} offset:{L_SUM + 16*i}")
    A("  s_waitcnt lgkmcnt(0)")
    for i in range(2, 16): A(f"  v_add_f32 v{vX+1}, v{vX+1}, v{vX+i}")
    A(f"  v_add_f32 v{vX+1}, v{vX+1}, v{vX}")
    A(f"  v_mov_b32 v{vX}, s59")
    A("  s_mov_b64 exec, 1")
    A(f"  buffer_store_dwordx2 v[{vX}:{vX+1}], v{vT2}, s[32:35], s62 offen")
    A("L_fin:")
    if stamps:
        A("  s_mov_b64 exec, 1")
        A("  s_waitcnt vmcnt(0)")
        A("  s_memrealtime s[74:75]")
        A("  s_cmp_lg_u32 s7, 0"); A("  s_cbranch_scc1 L_end")
        A("  s_getreg_b32 s76, hwreg(HW_REG_XCC_ID)"); A("  s_getreg_b32 s77, hwreg(HW_REG_HW_ID)")
        A("  s_waitcnt lgkmcnt(0)")
        A(f"  s_lshl_b32 s11, s2, 6"); A(f"  s_add_u32 s11, s11, {WS - (1<<20)}")
        A(f"  v_mov_b32 v{vT2}, 0")
        regs = [64, 65, 76, 77, 66, 67, 68, 69, 70, 71, 72, 73, 72, 73, 74, 75]
        for i in range(16): A(f"  v_mov_b32 v{vX+i}, s{regs[i]}")
        for i in range(4): A(f"  buffer_store_dwordx4 v[{vX+4*i}:{vX+4*i+3}], v{vT2}, s[32:35], s11 offen offset:{16*i}")
    A("L_end:"); A("  s_endpgm")
    A(f".globl {K2}"); A(".p2align 8"); A(f".type {K2},@function"); A(f"{K2}:")
    A("  s_cmp_ge_u32 s2, 160"); A("  s_cbranch_scc1 L2_end")
    A("  s_load_dwordx2 s[4:5], s[0:1], 96"); A("  s_load_dwordx2 s[8:9], s[0:1], 80")
    A("  s_and_b32 s3, s2, 3              ; pb"); A("  s_lshr_b32 s12, s2, 2")
    A("  v_lshrrev_b32 v1, 2, v0          ; r"); A("  v_and_b32 v2, 3, v0")
    A("  v_mul_u32_u24 v3, 10240, v1"); A("  v_lshl_add_u32 v3, v2, 4, v3")
    A("  v_add_u32 v5, 5120, v3")
    A("  v_lshlrev_b32 v4, 5, v1")
    A(f"  s_mul_i32 s13, s3, {64*2560}"); A("  s_lshl_b32 s14, s12, 6"); A("  s_add_u32 s13, s13, s14")
    A("  s_lshl_b32 s14, s3, 9"); A(f"  s_add_u32 s14, s14, {W_ML}")
    A(f"  s_mov_b32 s6, {WS}"); A("  s_mov_b32 s7, 0x20000"); A("  s_mov_b32 s10, 5120"); A("  s_mov_b32 s11, 0x20000")
    A("  s_and_b32 s15, s3, 1"); A("  s_mul_i32 s15, s15, 2560"); A("  s_lshr_b32 s16, s3, 1"); A("  s_mul_i32 s16, s16, 1280")
    A("  s_add_u32 s15, s15, s16"); A("  s_lshl_b32 s16, s12, 5"); A("  s_add_u32 s15, s15, s16")
    A("  v_lshlrev_b32 v6, 3, v2")
    A("  s_waitcnt lgkmcnt(0)")
    A("  buffer_load_dwordx4 v[8:11], v4, s[4:7], s14 offen")
    A("  buffer_load_dwordx4 v[12:15], v4, s[4:7], s14 offen offset:16")
    A("  buffer_load_dwordx4 v[16:19], v3, s[4:7], s13 offen")
    A("  buffer_load_dwordx4 v[20:23], v3, s[4:7], s13 offen offset:2560")
    A("  buffer_load_dwordx4 v[24:27], v5, s[4:7], s13 offen")
    A("  buffer_load_dwordx4 v[28:31], v5, s[4:7], s13 offen offset:2560")
    A("  s_waitcnt vmcnt(4)")
    for o in (8, 12):
        A(f"  v_max_f32 v7, v{o}, v{o+2}")
        A(f"  v_sub_f32 v{o}, v{o}, v7"); A(f"  v_sub_f32 v{o+2}, v{o+2}, v7")
        A(f"  v_exp_f32 v{o}, v{o}"); A(f"  v_exp_f32 v{o+2}, v{o+2}")
        A("  s_nop 0")
        A(f"  v_mul_f32 v7, v{o}, v{o+1}"); A(f"  v_fmac_f32 v7, v{o+2}, v{o+3}")
        A(f"  v_rcp_f32 v7, v7"); A("  s_nop 0")
        A(f"  v_mul_f32 v{o}, v{o}, v7"); A(f"  v_mul_f32 v{o+2}, v{o+2}, v7")
    A("  s_waitcnt vmcnt(0)")
    for r in range(4):
        A(f"  v_mul_f32 v{16+r}, v8, v{16+r}")
        A(f"  v_fmac_f32 v{16+r}, v10, v{20+r}"); A(f"  v_fmac_f32 v{16+r}, v12, v{24+r}"); A(f"  v_fmac_f32 v{16+r}, v14, v{28+r}")
    A("  s_nop 1")
    for sh in (4, 8):
        for r in range(4): A(f"  v_add_f32_dpp v{16+r}, v{16+r}, v{16+r} row_ror:{sh} row_mask:0xf bank_mask:0xf")
    A("  s_nop 1")
    for r in range(4): A(f"  v_mov_b32 v{20+r}, v{16+r}")
    A("  s_nop 1")
    for r in range(4): A(f"  v_permlane32_swap_b32 v{16+r}, v{20+r}")
    A("  s_nop 1")
    for r in range(4): A(f"  v_add_f32 v{16+r}, v{16+r}, v{20+r}")
    for r in range(4): A(f"  v_mov_b32 v{20+r}, v{16+r}")
    A("  s_nop 1")
    for r in range(4): A(f"  v_permlane16_swap_b32 v{16+r}, v{20+r}")
    A("  s_nop 1")
    for r in range(4): A(f"  v_add_f32 v{16+r}, v{16+r}, v{20+r}")
    A("  v_cvt_pk_bf16_f32 v16, v16, v17"); A("  v_cvt_pk_bf16_f32 v17, v18, v19")
    A("  s_mov_b64 exec, 15")
    A("  buffer_store_dwordx2 v[16:17], v6, s[8:11], s15 offen")
    A("L2_end:"); A("  s_endpgm")
    A('.section .rodata,"a"')
    for kn, nv, acc, ns in ((KN, ACC + 240, ACC, 96), (K2, 32, 32, 24)):
        A(".p2align 6"); A(f".amdhsa_kernel {kn}")
        A(f"  .amdhsa_next_free_vgpr {nv}"); A(f"  .amdhsa_next_free_sgpr {ns}"); A(f"  .amdhsa_accum_offset {acc}")
        A("  .amdhsa_group_segment_fixed_size 0"); A("  .amdhsa_kernarg_size 104"); A("  .amdhsa_user_sgpr_count 2")
        A("  .amdhsa_user_sgpr_kernarg_segment_ptr 1"); A("  .amdhsa_system_sgpr_workgroup_id_x 1")
        A(".end_amdhsa_kernel")
    open(name, "w").write("\n".join(L) + "\n")
    return name
if __name__ == "__main__":
    if len(sys.argv) > 2:
        kw = eval(sys.argv[1]); print(gen(name=sys.argv[2], header=HDR, **kw))
    else:
        print(" ".join(gen(**kw) for kw in eval(sys.argv[1])))
```

```python
import sys, math, struct
KN = "concat_heads__gqa_block_cached__mha_block_cached__decode_kernel"
K2 = "final_reduce_kernel"
WS = 836768768
KVBYTES = 201326592
WBYTES = 7864320
HDR = open("concat_heads__gqa_block_cached__mha_block_cached__decode.s.ref").read().split("; Override launch")[0] if len(sys.argv) > 2 else ""

def f32hex(x): return "0x%08x" % struct.unpack("<I", struct.pack("<f", x))[0]

def gen(name="main.s", R=8, thr=3, thr_wo=7, wo_per=4, kpos=None, stamps=False, wpol="nt", wopol=None, kvpol="nt", free_last=3, thr0=None, header="", rot=True, nok2=False, maxg=19):
    wopol = wpol if wopol is None else wopol
    NT = 128
    NIT = NT // R
    L = []; A = L.append
    SROW = 528; SWAVE = 8 * SROW
    L_S = 0
    L_PART = 4 * SWAVE
    L_STG = L_PART + 8 * 192 * 4
    L_MX = L_STG + 4 * 512
    L_SUM = L_MX + 64
    L_Y = L_SUM + 64
    LDS = L_Y + 8 * 640 * 4
    W_Y = 0; W_ML = 4 * 64 * 2560
    vLane, vKV, vWQ, vWO = 1, 2, 3, 4
    vT0, vT1, vT2, vT3 = 5, 6, 7, 8
    vSaddr = 9
    vMid = 10
    vL = 11
    vM = 12
    vB = 16
    vQ = 24
    vD = 36
    vP = 56
    vX = 64
    vRing = 80
    NV = vRing + 12 * R
    assert NV <= 256
    ACC = (NV + 3) // 4 * 4
    def ring(s, t): r = vRing + 12 * s + 4 * t; return r
    stamp_names = []
    def stamp(nm, level=1):
        if stamps >= level:
            k = len(stamp_names); assert k < 15
            stamp_names.append(nm)
            A(f"  s_memrealtime s[{70+2*k}:{71+2*k}]")
    A(header + f"; @launch kernel={KN} grid=(256,1,1) block=(256,1,1) lds={LDS}")
    A(f"; @launch kernel={K2} grid=(160,1,1) block=(64,1,1) lds=0" if not nok2 else "; (second launch disabled)")
    A('.amdgcn_target "amdgcn-amd-amdhsa--gfx950"')
    A(".text"); A(f".globl {KN}"); A(".p2align 8"); A(f".type {KN},@function"); A(f"{KN}:")
    A("  s_cmp_ge_u32 s2, 256"); A("  s_cbranch_scc1 L_end")
    stamp("start")
    A("  s_lshr_b32 s3, s2, 7            ; p")
    A("  s_mul_i32 s4, s3, 40")
    A("  s_add_u32 s4, s0, s4"); A("  s_addc_u32 s5, s1, 0")
    A("  s_load_dwordx8 s[36:43], s[4:5], 8")
    A("  s_load_dwordx2 s[44:45], s[4:5], 0   ; x")
    A("  s_load_dwordx2 s[46:47], s[0:1], 96  ; ws")
    A("  s_lshr_b32 s6, s2, 5"); A("  s_and_b32 s6, s6, 3"); A("  s_lshl_b32 s6, s6, 3")
    A("  s_and_b32 s7, s2, 7"); A("  s_or_b32 s6, s6, s7            ; h")
    A("  s_lshr_b32 s8, s2, 4"); A("  s_and_b32 s8, s8, 1            ; b")
    A("  s_lshr_b32 s9, s2, 3"); A("  s_and_b32 s9, s9, 1")
    A(f"  v_lshrrev_b32 v{vT0}, 6, v0")
    A(f"  v_and_b32 v{vLane}, 63, v0")
    A(f"  v_readfirstlane_b32 s7, v{vT0}     ; wave")
    A(f"  v_lshrrev_b32 v{vT1}, 3, v{vLane}    ; l/8")
    A(f"  v_and_b32 v{vT2}, 7, v{vLane}        ; l%8")
    A(f"  v_lshlrev_b32 v{vT3}, 4, v{vT2}")
    A(f"  v_mul_u32_u24 v{vKV}, 384, v{vT1}")
    A(f"  v_add_u32 v{vKV}, v{vKV}, v{vT3}")
    A(f"  v_mul_u32_u24 v{vWQ}, {4*12288}, v{vT1}")
    A(f"  v_add_u32 v{vWQ}, v{vWQ}, v{vT3}")
    A(f"  v_lshlrev_b32 v{vT0}, 3, v{vT1}")
    A("  s_lshl_b32 s10, s8, 5"); A("  s_add_u32 s10, s10, s6"); A("  s_lshl_b32 s10, s10, 1"); A("  s_add_u32 s10, s10, s9")
    A("  s_lshl_b32 s11, s10, 2"); A("  s_add_u32 s11, s11, s7"); A("  s_mul_i32 s48, s11, 393216")
    A("  s_mov_b32 s49, s48")
    A("  s_lshr_b32 s63, s2, 3"); A(f"  s_and_b32 s63, s63, {3 if rot else 0}")
    for j in range(1, 5):
        A(f"  s_add_u32 s{63+j}, s{62+j}, 1"); A(f"  s_cmp_eq_u32 s{63+j}, 5"); A(f"  s_cselect_b32 s{63+j}, 0, s{63+j}")
    A(f"  s_mul_i32 s68, s7, {32*12288}"); A("  s_mul_i32 s11, s6, 384"); A("  s_add_u32 s68, s68, s11")
    A("  s_mul_i32 s51, s8, 1280"); A("  s_lshl_b32 s11, s7, 6"); A("  s_add_u32 s51, s51, s11")
    A(f"  s_mov_b32 s14, {KVBYTES}"); A("  s_mov_b32 s15, 0x20000")
    A(f"  s_mov_b32 s22, {WBYTES}"); A("  s_mov_b32 s23, 0x20000")
    A("  s_mov_b32 s30, 2560"); A("  s_mov_b32 s31, 0x20000")
    A("  s_waitcnt lgkmcnt(0)")
    A("  s_mov_b32 s12, s36"); A("  s_mov_b32 s13, s37")
    A("  s_mov_b32 s20, s40"); A("  s_mov_b32 s21, s41")
    A("  s_mov_b32 s28, s44"); A("  s_mov_b32 s29, s45")
    ops = []
    if kpos is None:
        kpos = [1 + (j * 20) // (R - 2) if j < R - 2 else 20 for j in range(R)]
        kpos = [min(k, 20) for k in kpos]
    seq = []
    kj = 0
    for i in range(21):
        while kj < R and kpos[kj] == i: seq.append(("k", kj)); kj += 1
        if i < 20: seq.append(("q", i))
    assert kj == R
    def issue_kv(slot):
        for t in range(3):
            A(f"  buffer_load_dwordx4 v[{ring(slot,t)}:{ring(slot,t)+3}], v{vKV}, s[12:15], s49 offen offset:{128*t} {kvpol}")
        A("  s_add_u32 s49, s49, 3072")
    def issue_wq(i):
        if i % 4 == 0:
            A(f"  s_mul_i32 s50, s{63+i//4}, {128*12288}"); A("  s_add_u32 s50, s50, s68")
        else:
            A("  s_add_u32 s50, s50, 12288")
        for t in range(3):
            a = (i * 3 + t) * 4
            A(f"  buffer_load_dwordx4 a[{a}:{a+3}], v{vWQ}, s[20:23], s50 offen offset:{128*t} {wpol}")
    def issue_x():
        for j in range(5):
            A(f"  s_lshl_b32 s11, s{63+j}, 8"); A("  s_add_u32 s11, s11, s51")
            A(f"  buffer_load_dwordx2 v[{vX+2*j}:{vX+2*j+1}], v{vT0}, s[28:31], s11 offen nt")
    issue_x()
    MAXG = maxg
    issued = 0
    def issue_next():
        nonlocal issued
        k, i = seq[issued]
        (issue_kv if k == "k" else issue_wq)(i)
        issued += 1
    while issued < min(MAXG, len(seq)): issue_next()
    stamp("issued", 2)
    A(f"  v_and_b32 v{vT0}, 1, v{vT2}"); A(f"  v_lshlrev_b32 v{vT0}, 4, v{vT0}")
    A(f"  v_mov_b32 v{vT3}, 0xffff"); A(f"  v_lshlrev_b32 v{vT0}, v{vT0}, v{vT3}")
    A(f"  v_lshrrev_b32 v{vT3}, 1, v{vT2}")
    for q in range(4):
        A(f"  v_cmp_eq_u32 vcc, {q}, v{vT3}"); A("  s_nop 1"); A(f"  v_cndmask_b32 v{vM+q}, 0, v{vT0}, vcc")
    A("  s_mov_b32 s52, 0x01000100"); A("  s_mov_b32 s53, 0x03020302")
    A("  s_mov_b32 s54, 0x00ff00ff"); A("  s_mov_b32 s55, 0xff00ff00")
    A(f"  s_mul_i32 s11, s7, {SWAVE}")
    A(f"  v_mul_u32_u24 v{vSaddr}, {SROW}, v{vT1}"); A(f"  v_add_u32 v{vSaddr}, s11, v{vSaddr}")
    A(f"  v_lshlrev_b32 v{vMid}, 4, v{vT2}"); A(f"  v_add_u32 v{vMid}, v{vMid}, v{vSaddr}")
    A(f"  v_lshrrev_b32 v{vT0}, 4, v{vLane}"); A(f"  v_mul_u32_u24 v{vWO}, {12*1280}, v{vT0}")
    A(f"  v_and_b32 v{vT0}, 15, v{vLane}"); A(f"  v_lshl_add_u32 v{vWO}, v{vT0}, 4, v{vWO}")
    A("  s_lshl_b32 s56, s6, 2"); A("  s_add_u32 s56, s56, s7"); A(f"  s_mul_i32 s56, s56, {48*1280}")
    A("  s_mov_b32 s24, s42"); A("  s_mov_b32 s25, s43"); A(f"  s_mov_b32 s26, {WBYTES}"); A("  s_mov_b32 s27, 0x20000")
    A("  s_mov_b32 s32, s46"); A("  s_mov_b32 s33, s47"); A(f"  s_mov_b32 s34, {WS}"); A("  s_mov_b32 s35, 0x20000")
    for i in range(20):
        pos = seq.index(("q", i))
        A(f"  s_waitcnt vmcnt({3*(issued-1-pos)})")
        if i in (0, 3, 7, 11, 15, 19): stamp(f"wq{i}", 2)
        b = vB + 4 * (i & 1)
        A(f"  v_perm_b32 v{vT0}, v{vX+i//2}, v{vX+i//2}, s{52+(i&1)}")
        for q in range(4): A(f"  v_and_b32 v{b+q}, v{vT0}, v{vM+q}")
        n_before = issued
        while issued < len(seq) and issued - (pos + 1) < MAXG: issue_next()
        if issued == n_before: A("  s_nop 1")
        for t in range(3):
            a = (i * 3 + t) * 4
            c = f"v[{vD+4*t}:{vD+4*t+3}]" if i else "0"
            A(f"  v_mfma_f32_16x16x32_bf16 v[{vD+4*t}:{vD+4*t+3}], v[{b}:{b+3}], a[{a}:{a+3}], {c}")
    assert issued == len(seq)
    def part_write():
        A(f"  v_lshrrev_b32 v{vT0}, 5, v{vLane}"); A(f"  v_mul_u32_u24 v{vT0}, 768, v{vT0}")
        A(f"  v_and_b32 v{vT1}, 7, v{vLane}"); A(f"  v_lshl_add_u32 v{vT0}, v{vT1}, 5, v{vT0}")
        A(f"  v_and_b32 v{vT1}, 16, v{vLane}"); A(f"  v_add_u32 v{vT0}, v{vT0}, v{vT1}")
        A(f"  s_mul_i32 s11, s7, 1536"); A(f"  v_add_u32 v{vT0}, s11, v{vT0}")
        A("  s_nop 1")
        A("  s_mov_b64 exec, s[54:55]")
        for t in range(3): A(f"  ds_write_b128 v{vT0}, v[{vD+4*t}:{vD+4*t+3}] offset:{L_PART + 256*t}")
        A("  s_mov_b64 exec, -1")
    part_write()
    A(f"  v_lshlrev_b32 v{vT1}, 4, v{vLane}")
    A(f"  s_lshl_b32 s11, s7, 9")
    A(f"  v_lshlrev_b32 v{vT2}, 3, v{vLane}"); A(f"  v_add_u32 v{vT2}, s11, v{vT2}")
    A(f"  v_and_b32 v{vT3}, 7, v{vLane}"); A(f"  v_lshlrev_b32 v{vT3}, 4, v{vT3}"); A(f"  v_add_u32 v{vT3}, s11, v{vT3}")
    A("  s_waitcnt lgkmcnt(0)"); A("  s_barrier")
    stamp("qbar", 2)
    if stamps >= 2: A("  s_waitcnt lgkmcnt(0)")
    dst = [vD, vD+4, vD+8, vD+12, vD+16, vX, vX+4, vX+8]
    for k in range(8): A(f"  ds_read_b128 v[{dst[k]}:{dst[k]+3}], v{vT1} offset:{L_PART + 768*k}")
    for k in range(1, 8):
        A(f"  s_waitcnt lgkmcnt({7-k})")
        for r in range(4): A(f"  v_add_f32 v{vD+r}, v{vD+r}, v{dst[k]+r}")
    A(f"  v_cvt_pk_bf16_f32 v{vD+4}, v{vD}, v{vD+1}"); A(f"  v_cvt_pk_bf16_f32 v{vD+5}, v{vD+2}, v{vD+3}")
    A(f"  ds_write_b64 v{vT2}, v[{vD+4}:{vD+5}] offset:{L_STG}")
    for t in range(3): A(f"  ds_read_b128 v[{vQ+4*t}:{vQ+4*t+3}], v{vT3} offset:{L_STG + 128*t}")
    A("  s_waitcnt lgkmcnt(0)")
    stamp("qready")
    wo_i = [0]
    def issue_wo():
        i = wo_i[0]; tp, c = divmod(i, 5)
        A(f"  buffer_load_dwordx4 a[{4*i}:{4*i+3}], v{vWO}, s[24:27], s56 offen offset:{(tp%3)*1280 + 256*c} {wopol}")
        if i % 15 == 14 and i < 59: A("  s_add_u32 s56, s56, 3840")
        wo_i[0] += 1
    def k_body(peeled, tag, thr_here):
        for s in range(R):
            acc = vP + (s % 8)
            A(f"  s_waitcnt vmcnt({3*(R-1)})")
            for k in range(12):
                c = f"v{acc}" if k else "0"
                A(f"  v_dot2_f32_bf16 v{acc}, v{ring(s,0)+k}, v{vQ+k}, {c}")
            if peeled and wo_i[0] < 60:
                A(f"  s_waitcnt vmcnt({thr_wo})")
            elif free_last and s >= R - free_last and not peeled:
                A(f"  s_cbranch_scc1 L_kf{tag}_{s}"); A(f"  s_waitcnt vmcnt({thr_here})"); A(f"L_kf{tag}_{s}:")
            else:
                A(f"  s_waitcnt vmcnt({thr_here})")
            for t in range(3):
                A(f"  buffer_load_dwordx4 v[{ring(s,t)}:{ring(s,t)+3}], v{vKV}, s[12:15], s49 offen offset:{128*t} {kvpol}")
            if peeled:
                for _ in range(wo_per):
                    if wo_i[0] < 60: issue_wo()
            A(f"  v_add_f32_dpp v{acc}, v{acc}, v{acc} quad_perm:[1,0,3,2] row_mask:0xf bank_mask:0xf")
            A("  s_addk_i32 s49, 3072" if peeled or not free_last or s < R - free_last - 1 else "  s_addk_i32 s49, 3072")
            if (not peeled) and free_last and s >= R - free_last - 1: A("  s_cmp_eq_u32 s57, 1")
            else: A("  s_nop 0")
            A(f"  v_add_f32_dpp v{acc}, v{acc}, v{acc} quad_perm:[2,3,0,1] row_mask:0xf bank_mask:0xf")
            A("  s_nop 1")
            A(f"  v_add_f32_dpp v{acc}, v{acc}, v{acc} row_half_mirror row_mask:0xf bank_mask:0xf")
            if s % 4 == 3:
                b = vP + (s % 8) - 3
                A(f"  ds_write_b128 v{vSaddr}, v[{b}:{b+3}] offset:{(s//4)*16}")
        A(f"  v_add_u32 v{vSaddr}, {R*4}, v{vSaddr}")
    npeel = 0
    while wo_i[0] < 60:
        k_body(True, f"p{npeel}", thr if thr0 is None else thr0); npeel += 1
    assert npeel < NIT - 1
    A(f"  s_mov_b32 s57, {NIT - npeel}")
    A("L_kloop:")
    A("  s_cmp_eq_u32 s57, 1")
    A("  s_cselect_b32 s12, s38, s12"); A("  s_cselect_b32 s13, s39, s13"); A("  s_cselect_b32 s49, s48, s49")
    k_body(False, "m", thr)
    A("  s_sub_u32 s57, s57, 1"); A("  s_cmp_lg_u32 s57, 0"); A("  s_cbranch_scc1 L_kloop")
    stamp("kend")
    for i in range(4): A(f"  ds_read_b128 v[{vX+4*i}:{vX+4*i+3}], v{vMid} offset:{128*i}")
    A(f"  v_subrev_u32 v{vSaddr}, {NT*4}, v{vSaddr}")
    A(f"  v_lshrrev_b32 v{vT1}, 4, v{vLane}"); A(f"  v_lshlrev_b32 v{vT1}, 2, v{vT1}")
    A(f"  s_lshl_b32 s11, s7, 4"); A(f"  v_add_u32 v{vT1}, s11, v{vT1}")
    A(f"  v_mov_b32 v{vT2}, 0")
    A(f"  s_mov_b32 s58, {f32hex(192 ** -0.5 * math.log2(math.e))}")
    A("  s_waitcnt lgkmcnt(0)")
    A(f"  v_max3_f32 v{vT0}, v{vX}, v{vX+1}, v{vX+2}")
    for i in range(3, 15, 2): A(f"  v_max3_f32 v{vT0}, v{vT0}, v{vX+i}, v{vX+i+1}")
    A(f"  v_max_f32 v{vT0}, v{vT0}, v{vX+15}")
    for sh in (8, 4, 2, 1):
        A("  s_nop 1"); A(f"  v_max_f32_dpp v{vT0}, v{vT0}, v{vT0} row_ror:{sh} row_mask:0xf bank_mask:0xf")
    A(f"  ds_write_b32 v{vT1}, v{vT0} offset:{L_MX}")
    A("  s_waitcnt lgkmcnt(0)"); A("  s_barrier")
    for i in range(4): A(f"  ds_read_b128 v[{vD+4*i}:{vD+4*i+3}], v{vT2} offset:{L_MX + 16*i}")
    A("  s_waitcnt lgkmcnt(0)")
    A(f"  v_max3_f32 v{vT0}, v{vD}, v{vD+1}, v{vD+2}")
    for i in range(3, 15, 2): A(f"  v_max3_f32 v{vT0}, v{vT0}, v{vD+i}, v{vD+i+1}")
    A(f"  v_max_f32 v{vT0}, v{vT0}, v{vD+15}")
    A(f"  v_mul_f32 v{vT3}, s58, v{vT0}")
    for i in range(16): A(f"  v_fma_f32 v{vX+i}, v{vX+i}, s58, -v{vT3}")
    for i in range(16): A(f"  v_exp_f32 v{vX+i}, v{vX+i}")
    A(f"  v_readfirstlane_b32 s59, v{vT3}")
    A(f"  v_add_f32 v{vL}, v{vX}, v{vX+1}")
    for i in range(2, 16): A(f"  v_add_f32 v{vL}, v{vL}, v{vX+i}")
    for i in range(16): A(f"  v_cvt_pk_bf16_f32 v{vX+i}, v{vX+i}, v{vX+i}")
    for i in range(4): A(f"  ds_write_b128 v{vMid}, v[{vX+4*i}:{vX+4*i+3}] offset:{128*i}")
    A(f"  ds_read_b128 v[{vP}:{vP+3}], v{vSaddr}")
    for sh in (8, 4, 2, 1):
        A(f"  v_add_f32_dpp v{vL}, v{vL}, v{vL} row_ror:{sh} row_mask:0xf bank_mask:0xf"); A("  s_nop 1")
    A(f"  ds_write_b32 v{vT1}, v{vL} offset:{L_SUM}")
    for i in range(12): A(f"  v_mov_b32 v{vD+i}, 0")
    stamp("midend")
    def v_body(last):
        for s in range(R):
            pr = vP + (s % 8)
            b = vB + 4 * (s & 1)
            if s % 4 == 0:
                A("  s_waitcnt lgkmcnt(0)")
                nb = vP + ((s + 4) % 8)
                if not (last and s == R - 4):
                    A(f"  ds_read_b128 v[{nb}:{nb+3}], v{vSaddr} offset:{(s//4+1)*16}")
            for q in range(4): A(f"  v_and_b32 v{b+q}, v{pr}, v{vM+q}")
            A(f"  s_waitcnt vmcnt({3*(R-1-s) if last else 3*(R-1)})")
            A("  s_nop 0")
            for t in range(3):
                A(f"  v_mfma_f32_16x16x32_bf16 v[{vD+4*t}:{vD+4*t+3}], v[{b}:{b+3}], v[{ring(s,t)}:{ring(s,t)+3}], v[{vD+4*t}:{vD+4*t+3}]")
            if not last:
                A(f"  s_waitcnt vmcnt({thr})")
                for t in range(3):
                    A(f"  buffer_load_dwordx4 v[{ring(s,t)}:{ring(s,t)+3}], v{vKV}, s[12:15], s49 offen offset:{128*t} {kvpol}")
                A("  s_addk_i32 s49, 3072")
    A(f"  s_mov_b32 s57, {NIT-1}")
    A("L_vloop:")
    v_body(False)
    A(f"  v_add_u32 v{vSaddr}, {R*4}, v{vSaddr}")
    A("  s_sub_u32 s57, s57, 1"); A("  s_cmp_lg_u32 s57, 0"); A("  s_cbranch_scc1 L_vloop")
    v_body(True)
    stamp("vend")
    part_write()
    A(f"  s_mul_i32 s11, s7, 192"); A(f"  v_lshl_add_u32 v{vT1}, v{vLane}, 2, s11")
    A(f"  s_lshl_b32 s11, s7, 9"); A(f"  v_lshl_add_u32 v{vT2}, v{vLane}, 2, s11")
    A(f"  v_lshrrev_b32 v{vT3}, 4, v{vLane}"); A(f"  v_mul_u32_u24 v{vT3}, 48, v{vT3}")
    A(f"  v_and_b32 v{vT0}, 8, v{vLane}"); A(f"  v_lshl_add_u32 v{vT3}, v{vT0}, 5, v{vT3}"); A(f"  v_add_u32 v{vT3}, s11, v{vT3}")
    A("  s_waitcnt lgkmcnt(0)"); A("  s_barrier")
    for k in range(8): A(f"  ds_read_b32 v{vX+k}, v{vT1} offset:{L_PART + 768*k}")
    A("  s_waitcnt lgkmcnt(0)")
    A(f"  v_add_f32 v{vX}, v{vX}, v{vX+1}"); A(f"  v_add_f32 v{vX+2}, v{vX+2}, v{vX+3}")
    A(f"  v_add_f32 v{vX+4}, v{vX+4}, v{vX+5}"); A(f"  v_add_f32 v{vX+6}, v{vX+6}, v{vX+7}")
    A(f"  v_add_f32 v{vX}, v{vX}, v{vX+2}"); A(f"  v_add_f32 v{vX+4}, v{vX+4}, v{vX+6}")
    A(f"  v_add_f32 v{vX}, v{vX}, v{vX+4}")
    A(f"  v_cvt_pk_bf16_f32 v{vX+1}, v{vX}, v{vX}")
    A(f"  v_and_b32 v{vX+2}, 0xffff0000, v{vX+1}")
    A(f"  v_sub_f32 v{vX+2}, v{vX}, v{vX+2}")
    A(f"  v_cvt_pk_bf16_f32 v{vX+2}, v{vX+2}, v{vX+2}")
    A(f"  ds_write_b32 v{vT2}, v{vX+1} offset:{L_STG}")
    A(f"  ds_write_b32 v{vT2}, v{vX+2} offset:{L_STG + 256}")
    for i in range(3): A(f"  ds_read_b128 v[{vX+4+4*i}:{vX+7+4*i}], v{vT3} offset:{L_STG + 16*i}")
    A(f"  v_lshrrev_b32 v{vT0}, 5, v{vLane}"); A(f"  v_mul_u32_u24 v{vT0}, 2560, v{vT0}")
    A(f"  v_and_b32 v{vT1}, 15, v{vLane}"); A(f"  v_lshl_add_u32 v{vT0}, v{vT1}, 5, v{vT0}")
    A(f"  v_and_b32 v{vT1}, 16, v{vLane}"); A(f"  v_add_u32 v{vT0}, v{vT0}, v{vT1}")
    A(f"  s_mul_i32 s11, s7, 5120"); A(f"  v_add_u32 v{vT0}, s11, v{vT0}")
    A(f"  v_lshlrev_b32 v{vT1}, 4, v0            ; tid*16")
    A("  s_lshl_b32 s60, s3, 1"); A("  s_add_u32 s60, s60, s8"); A("  s_lshl_b32 s60, s60, 5"); A("  s_add_u32 s60, s60, s6")
    A("  s_lshl_b32 s60, s60, 1"); A("  s_add_u32 s60, s60, s9")
    A("  s_mul_i32 s61, s60, 2560"); A("  s_lshl_b32 s62, s60, 3"); A(f"  s_add_u32 s62, s62, {W_ML}")
    A("  s_waitcnt vmcnt(0) lgkmcnt(0)")
    for tp in range(12):
        b = vB + 4 * (tp & 1)
        if tp == 0:
            for q in range(4): A(f"  v_and_b32 v{b+q}, v{vX+4}, v{vM+q}")
            A("  s_nop 1")
        for c in range(5):
            i = tp * 5 + c
            cc = f"v[{vD+4*c}:{vD+4*c+3}]" if tp else "0"
            A(f"  v_mfma_f32_16x16x32_bf16 v[{vD+4*c}:{vD+4*c+3}], v[{b}:{b+3}], a[{4*i}:{4*i+3}], {cc}")
            if tp < 11 and c < 2:
                nb = vB + 4 * ((tp + 1) & 1)
                for q in (2 * c, 2 * c + 1): A(f"  v_and_b32 v{nb+q}, v{vX+5+tp}, v{vM+q}")
    A("  s_nop 3")
    for c in range(5): A(f"  ds_write_b128 v{vT0}, v[{vD+4*c}:{vD+4*c+3}] offset:{L_Y + 512*c}")
    A("  s_waitcnt lgkmcnt(0)"); A("  s_barrier")
    A("  s_cmp_eq_u32 s7, 3"); A("  s_cbranch_scc1 L_ml")
    A("  v_cmp_gt_u32 vcc, 160, v0"); A("  s_and_saveexec_b64 s[16:17], vcc")
    dst = [vD, vD+4, vD+8, vD+12, vD+16, vX, vX+4, vX+8]
    for k in range(8): A(f"  ds_read_b128 v[{dst[k]}:{dst[k]+3}], v{vT1} offset:{L_Y + 2560*k}")
    for k in range(1, 8):
        A(f"  s_waitcnt lgkmcnt({7-k})")
        for r in range(4): A(f"  v_add_f32 v{vD+r}, v{vD+r}, v{dst[k]+r}")
    A(f"  buffer_store_dwordx4 v[{vD}:{vD+3}], v{vT1}, s[32:35], s61 offen")
    A("  s_branch L_fin")
    A("L_ml:")
    A(f"  v_mov_b32 v{vT2}, 0")
    for i in range(4): A(f"  ds_read_b128 v[{vX+4*i}:{vX+4*i+3}], v{vT2} offset:{L_SUM + 16*i}")
    A("  s_waitcnt lgkmcnt(0)")
    for i in range(2, 16): A(f"  v_add_f32 v{vX+1}, v{vX+1}, v{vX+i}")
    A(f"  v_add_f32 v{vX+1}, v{vX+1}, v{vX}")
    A(f"  v_mov_b32 v{vX}, s59")
    A("  s_mov_b64 exec, 1")
    A(f"  buffer_store_dwordx2 v[{vX}:{vX+1}], v{vT2}, s[32:35], s62 offen")
    A("L_fin:")
    if stamps:
        A("  s_mov_b64 exec, 1")
        A("  s_waitcnt vmcnt(0)")
        stamp("end")
        A("  s_cmp_lg_u32 s7, 0"); A("  s_cbranch_scc1 L_end")
        A("  s_getreg_b32 s100, hwreg(HW_REG_XCC_ID)"); A("  s_getreg_b32 s101, hwreg(HW_REG_HW_ID)")
        A("  s_waitcnt lgkmcnt(0)")
        A(f"  s_lshl_b32 s11, s2, 7"); A(f"  s_add_u32 s11, s11, {WS - (1<<20)}")
        A(f"  v_mov_b32 v{vT2}, 0")
        n = len(stamp_names)
        regs = [70, 71, 100, 101]
        for k in range(1, 15):
            kk = min(k, n - 1); regs += [70 + 2 * kk, 71 + 2 * kk]
        for h in range(2):
            for i in range(16): A(f"  v_mov_b32 v{vX+i}, s{regs[16*h+i]}")
            for i in range(4): A(f"  buffer_store_dwordx4 v[{vX+4*i}:{vX+4*i+3}], v{vT2}, s[32:35], s11 offen offset:{64*h+16*i}")
            A("  s_waitcnt vmcnt(0)")
        L.insert(2, "; stamps: start id " + " ".join(stamp_names[1:]))
    A("L_end:"); A("  s_endpgm")
    A(f".globl {K2}"); A(".p2align 8"); A(f".type {K2},@function"); A(f"{K2}:")
    A("  s_cmp_ge_u32 s2, 160"); A("  s_cbranch_scc1 L2_end")
    A("  s_load_dwordx2 s[4:5], s[0:1], 96"); A("  s_load_dwordx2 s[8:9], s[0:1], 80")
    A("  s_and_b32 s3, s2, 3              ; pb"); A("  s_lshr_b32 s12, s2, 2")
    A("  v_lshrrev_b32 v1, 2, v0          ; r"); A("  v_and_b32 v2, 3, v0")
    A("  v_mul_u32_u24 v3, 10240, v1"); A("  v_lshl_add_u32 v3, v2, 4, v3")
    A("  v_add_u32 v5, 5120, v3")
    A("  v_lshlrev_b32 v4, 5, v1")
    A(f"  s_mul_i32 s13, s3, {64*2560}"); A("  s_lshl_b32 s14, s12, 6"); A("  s_add_u32 s13, s13, s14")
    A("  s_lshl_b32 s14, s3, 9"); A(f"  s_add_u32 s14, s14, {W_ML}")
    A(f"  s_mov_b32 s6, {WS}"); A("  s_mov_b32 s7, 0x20000"); A("  s_mov_b32 s10, 5120"); A("  s_mov_b32 s11, 0x20000")
    A("  s_and_b32 s15, s3, 1"); A("  s_mul_i32 s15, s15, 2560"); A("  s_lshr_b32 s16, s3, 1"); A("  s_mul_i32 s16, s16, 1280")
    A("  s_add_u32 s15, s15, s16"); A("  s_lshl_b32 s16, s12, 5"); A("  s_add_u32 s15, s15, s16")
    A("  v_lshlrev_b32 v6, 3, v2")
    A("  s_waitcnt lgkmcnt(0)")
    A("  buffer_load_dwordx4 v[8:11], v4, s[4:7], s14 offen")
    A("  buffer_load_dwordx4 v[12:15], v4, s[4:7], s14 offen offset:16")
    A("  buffer_load_dwordx4 v[16:19], v3, s[4:7], s13 offen")
    A("  buffer_load_dwordx4 v[20:23], v3, s[4:7], s13 offen offset:2560")
    A("  buffer_load_dwordx4 v[24:27], v5, s[4:7], s13 offen")
    A("  buffer_load_dwordx4 v[28:31], v5, s[4:7], s13 offen offset:2560")
    A("  s_waitcnt vmcnt(4)")
    for o in (8, 12):
        A(f"  v_max_f32 v7, v{o}, v{o+2}")
        A(f"  v_sub_f32 v{o}, v{o}, v7"); A(f"  v_sub_f32 v{o+2}, v{o+2}, v7")
        A(f"  v_exp_f32 v{o}, v{o}"); A(f"  v_exp_f32 v{o+2}, v{o+2}")
        A("  s_nop 0")
        A(f"  v_mul_f32 v7, v{o}, v{o+1}"); A(f"  v_fmac_f32 v7, v{o+2}, v{o+3}")
        A(f"  v_rcp_f32 v7, v7"); A("  s_nop 0")
        A(f"  v_mul_f32 v{o}, v{o}, v7"); A(f"  v_mul_f32 v{o+2}, v{o+2}, v7")
    A("  s_waitcnt vmcnt(0)")
    for r in range(4):
        A(f"  v_mul_f32 v{16+r}, v8, v{16+r}")
        A(f"  v_fmac_f32 v{16+r}, v10, v{20+r}"); A(f"  v_fmac_f32 v{16+r}, v12, v{24+r}"); A(f"  v_fmac_f32 v{16+r}, v14, v{28+r}")
    A("  s_nop 1")
    for sh in (4, 8):
        for r in range(4): A(f"  v_add_f32_dpp v{16+r}, v{16+r}, v{16+r} row_ror:{sh} row_mask:0xf bank_mask:0xf")
    A("  s_nop 1")
    for r in range(4): A(f"  v_mov_b32 v{20+r}, v{16+r}")
    A("  s_nop 1")
    for r in range(4): A(f"  v_permlane32_swap_b32 v{16+r}, v{20+r}")
    A("  s_nop 1")
    for r in range(4): A(f"  v_add_f32 v{16+r}, v{16+r}, v{20+r}")
    for r in range(4): A(f"  v_mov_b32 v{20+r}, v{16+r}")
    A("  s_nop 1")
    for r in range(4): A(f"  v_permlane16_swap_b32 v{16+r}, v{20+r}")
    A("  s_nop 1")
    for r in range(4): A(f"  v_add_f32 v{16+r}, v{16+r}, v{20+r}")
    A("  v_cvt_pk_bf16_f32 v16, v16, v17"); A("  v_cvt_pk_bf16_f32 v17, v18, v19")
    A("  s_mov_b64 exec, 15")
    A("  buffer_store_dwordx2 v[16:17], v6, s[8:11], s15 offen")
    A("L2_end:"); A("  s_endpgm")
    A('.section .rodata,"a"')
    for kn, nv, acc, ns in ((KN, ACC + 240, ACC, 102 if stamps else 70), (K2, 32, 32, 24)):
        A(".p2align 6"); A(f".amdhsa_kernel {kn}")
        A(f"  .amdhsa_next_free_vgpr {nv}"); A(f"  .amdhsa_next_free_sgpr {ns}"); A(f"  .amdhsa_accum_offset {acc}")
        A("  .amdhsa_group_segment_fixed_size 0"); A("  .amdhsa_kernarg_size 104"); A("  .amdhsa_user_sgpr_count 2")
        A("  .amdhsa_user_sgpr_kernarg_segment_ptr 1"); A("  .amdhsa_system_sgpr_workgroup_id_x 1")
        A(".end_amdhsa_kernel")
    open(name, "w").write("\n".join(L) + "\n")
    return name
if __name__ == "__main__":
    if len(sys.argv) > 2:
        kw = eval(sys.argv[1]); print(gen(name=sys.argv[2], header=HDR, **kw))
    else:
        print(" ".join(gen(**kw) for kw in eval(sys.argv[1])))
```

```python
import sys, math, struct
KN = "concat_heads__gqa_block_cached__mha_block_cached__decode_kernel"
K2 = "final_reduce_kernel"
WS = 836768768
KVBYTES = 201326592
WBYTES = 7864320
def f32hex(x): return "0x%08x" % struct.unpack("<I", struct.pack("<f", x))[0]

def gen(name="z.s", header="", stamps=0, lo=3, mid=4, hi=5, d0=7, dl=5, pace=2, slp=32, ta=480, tb=160, gbias=480,
        t_ml=193, t_w=216, t_f=238, wqpol="nt", wopol="nt", nok2=False, mode0=1, SPIN=200000, nslp=8):
    L = []; A = L.append
    L_CTL = 0
    L_W = 64
    L_E = L_W + 256
    L_ML = L_E + 256
    L_Q = L_ML + 512
    L_P = L_Q + 17 * 384
    PROW = 272; PWAVE = 8 * PROW
    L_Y = L_P + 4 * PWAVE + 64
    L_O = L_Y + 20480
    LDS = L_O + 16 * 6144
    assert L_Y % 16 == 0 and L_O % 16 == 0 and L_Q % 16 == 0 and L_P % 16 == 0
    W_Y = 0
    W_O = 2 << 20
    W_Q = 6 << 20
    W_ML = W_Q + (128 << 10)
    W_B = W_ML + (128 << 10)
    W_G = W_B + (128 << 10)
    vLane, vKV, vW, vZero = 1, 2, 3, 4
    vT0, vT1, vT2, vT3 = 5, 6, 7, 8
    vPa, vQa, vDa, vMLa, vCa, vProg, vMode = 9, 10, 11, 12, 13, 14, 15
    vM = 16; vB = 20; vQ = 28; vS = 40; vD = 48; vRing = 68
    vX = vQ
    NV = vRing + 96
    ACC = (NV + 3) // 4 * 4
    NA = 80
    def ring(s, t): return vRing + 12 * s + 4 * t
    names = {"s": [], "h": []}
    def stamp(who, nm, level=1):
        if stamps >= level:
            k = len(names[who]); assert k < 8, nm
            names[who].append(nm)
            A(f"  s_memrealtime s[{84+2*k}:{85+2*k}]")
    def dump_stamps(who, rec):
        n = len(names[who])
        A("  s_getreg_b32 s100, hwreg(HW_REG_XCC_ID)"); A("  s_getreg_b32 s101, hwreg(HW_REG_HW_ID)")
        A("  s_waitcnt vmcnt(0) lgkmcnt(0)")
        A(f"  s_lshl_b32 s47, s2, 7"); A(f"  s_add_u32 s47, s47, {WS - (1<<20) + 64*rec}")
        if who == "s": regs = [84, 85, 100, 101] + sum([[84+2*min(k, n-1), 85+2*min(k, n-1)] for k in range(1, 7)], [])
        else: regs = sum([[84+2*min(k, n-1), 85+2*min(k, n-1)] for k in range(8)], [])
        A("  s_mov_b64 exec, 1")
        for i in range(16): A(f"  v_mov_b32 v{vRing+i}, s{regs[i]}")
        for i in range(4): A(f"  buffer_store_dwordx4 v[{vRing+4*i}:{vRing+4*i+3}], v{vZero}, s[36:39], s47 offen offset:{16*i}")

    A(header + f"; @launch kernel={KN} grid=(256,1,1) block=(320,1,1) lds={LDS}")
    A(f"; @launch kernel={K2} grid=(160,1,1) block=(64,1,1) lds=0" if not nok2 else "; (second launch disabled)")
    A('.amdgcn_target "amdgcn-amd-amdhsa--gfx950"')
    A(".text"); A(f".globl {KN}"); A(".p2align 8"); A(f".type {KN},@function"); A(f"{KN}:")
    A("  s_cmp_ge_u32 s2, 256"); A("  s_cbranch_scc1 L_end")
    A("  s_load_dwordx16 s[64:79], s[0:1], 0")
    A("  s_load_dwordx4 s[80:83], s[0:1], 64")
    A("  s_load_dwordx4 s[40:43], s[0:1], 88")
    stamp("s", "start"); names["h"] = ["hstart"] if stamps else []
    A("  s_and_b32 s3, s2, 7             ; x"); A("  s_lshr_b32 s4, s2, 3            ; j")
    A(f"  v_lshrrev_b32 v{vT0}, 6, v0"); A(f"  v_and_b32 v{vLane}, 63, v0")
    A(f"  v_readfirstlane_b32 s5, v{vT0}     ; wave")
    A(f"  v_mov_b32 v{vZero}, 0")
    A(f"  v_lshrrev_b32 v{vT1}, 3, v{vLane}    ; l/8"); A(f"  v_and_b32 v{vT2}, 7, v{vLane}        ; l%8")
    A(f"  s_mov_b32 s38, {WS}"); A("  s_mov_b32 s39, 0x20000")
    A("  s_cmp_eq_u32 s5, 4"); A("  s_cbranch_scc1 L_helper")
    A(f"  v_lshlrev_b32 v{vT3}, 4, v{vT2}")
    A(f"  v_mul_u32_u24 v{vKV}, 384, v{vT1}"); A(f"  v_add_u32 v{vKV}, v{vKV}, v{vT3}")
    A(f"  v_mul_u32_u24 v{vW}, {20*12288}, v{vT1}"); A(f"  v_add_u32 v{vW}, v{vW}, v{vT3}")
    A(f"  v_mul_u32_u24 v{vT0}, 40, v{vT1}")
    A("  s_lshl_b32 s13, s4, 2"); A("  s_add_u32 s13, s13, s5"); A("  s_mul_i32 s13, s13, 3072")
    A("  s_mul_i32 s47, s3, 3145728"); A("  s_add_u32 s13, s13, s47"); A("  s_mov_b32 s12, s13")
    A("  s_mul_i32 s47, s4, 171"); A("  s_lshr_b32 s47, s47, 9          ; sigma")
    A("  s_mul_i32 s48, s47, 3"); A("  s_sub_u32 s48, s4, s48          ; c")
    A("  s_and_b32 s49, s47, 3"); A("  s_lshl_b32 s49, s49, 3"); A("  s_add_u32 s49, s49, s3          ; h")
    A("  s_mul_i32 s49, s49, 384"); A("  s_lshl_b32 s48, s48, 7"); A("  s_add_u32 s28, s49, s48")
    A(f"  s_mul_i32 s48, s5, {160*12288}"); A("  s_add_u32 s28, s28, s48")
    A("  s_mul_i32 s29, s5, 320")
    A(f"  s_mov_b32 s10, {KVBYTES}"); A("  s_mov_b32 s11, 0x20000")
    A(f"  s_mov_b32 s26, {WBYTES}"); A("  s_mov_b32 s27, 0x20000")
    A("  s_mov_b32 s34, 2560"); A("  s_mov_b32 s35, 0x20000")
    A("  s_cmp_ge_u32 s4, 12")
    A("  s_waitcnt lgkmcnt(0)")
    A("  s_cselect_b32 s24, s80, s70"); A("  s_cselect_b32 s25, s81, s71")
    A("  s_cselect_b32 s32, s74, s64"); A("  s_cselect_b32 s33, s75, s65")
    A("  s_mov_b32 s8, s66"); A("  s_mov_b32 s9, s67")
    HEADJ = 393216 + 7 * 3145728
    def kv_load(n):
        s, t = divmod(n, 3)
        A(f"  buffer_load_dwordx4 v[{ring(s,t)}:{ring(s,t)+3}], v{vKV}, s[8:11], s12 offen offset:{128*t} nt")
        if t == 2: A(f"  s_add_u32 s12, s12, {HEADJ if s == 7 else 393216}")
    def consts():
        A(f"  v_and_b32 v{vT0}, 1, v{vT2}"); A(f"  v_lshlrev_b32 v{vT0}, 4, v{vT0}")
        A(f"  v_mov_b32 v{vT3}, 0xffff"); A(f"  v_lshlrev_b32 v{vT0}, v{vT0}, v{vT3}")
        A(f"  v_lshrrev_b32 v{vT3}, 1, v{vT2}")
        for q in range(4):
            A(f"  v_cmp_eq_u32 vcc, {q}, v{vT3}"); A("  s_nop 1"); A(f"  v_cndmask_b32 v{vM+q}, 0, v{vT0}, vcc")
        A("  s_mov_b32 s54, 0x00ff00ff"); A("  s_mov_b32 s55, 0xff00ff00")
    A("  s_cmp_ge_u32 s4, 24"); A("  s_cbranch_scc1 L_noq")
    for b in range(2):
        A(f"  buffer_load_dwordx4 v[{vX+10*b}:{vX+10*b+3}], v{vT0}, s[32:35], s29 offen offset:{1280*b}")
        A(f"  buffer_load_dwordx4 v[{vX+10*b+4}:{vX+10*b+7}], v{vT0}, s[32:35], s29 offen offset:{1280*b+16}")
        A(f"  buffer_load_dwordx2 v[{vX+10*b+8}:{vX+10*b+9}], v{vT0}, s[32:35], s29 offen offset:{1280*b+32}")
    for i in range(20):
        A(f"  buffer_load_dwordx4 a[{4*i}:{4*i+3}], v{vW}, s[24:27], s28 offen {wqpol}")
        if i < 19: A("  s_add_u32 s28, s28, 12288")
    consts()
    A("  s_mov_b32 s52, 0x01000100"); A("  s_mov_b32 s53, 0x03020302")
    nk = 0
    for i in range(20):
        A(f"  s_waitcnt vmcnt({19 - i + nk})")
        while (19 - i + nk) < d0: kv_load(nk); nk += 1
        for b in range(2):
            A(f"  v_perm_b32 v{vT0}, v{vX+10*b+i//2}, v{vX+10*b+i//2}, s{52+(i&1)}")
            for q in range(4): A(f"  v_and_b32 v{vB+4*b+q}, v{vT0}, v{vM+q}")
        for b in range(2):
            if b == 1: A("  s_nop 0")
            c = f"v[{vD+4*b}:{vD+4*b+3}]" if i else "0"
            A(f"  v_mfma_f32_16x16x32_bf16 v[{vD+4*b}:{vD+4*b+3}], v[{vB+4*b}:{vB+4*b+3}], a[{4*i}:{4*i+3}], {c}")
    assert nk == d0
    A(f"  v_lshrrev_b32 v{vT0}, 5, v{vLane}"); A(f"  v_lshlrev_b32 v{vT0}, 9, v{vT0}")
    A(f"  v_lshl_add_u32 v{vT0}, v{vT2}, 5, v{vT0}")
    A(f"  v_and_b32 v{vT3}, 16, v{vLane}"); A(f"  v_add_u32 v{vT0}, v{vT0}, v{vT3}")
    A("  s_lshl_b32 s47, s5, 10"); A(f"  v_add_u32 v{vT0}, s47, v{vT0}")
    A("  s_nop 0")
    A("  s_mov_b64 exec, s[54:55]")
    for b in range(2): A(f"  ds_write_b128 v{vT0}, v[{vD+4*b}:{vD+4*b+3}] offset:{L_Y + 256*b}")
    A("  s_mov_b64 exec, -1")
    A("  s_branch L_qdone")
    A("L_noq:")
    for n in range(d0): kv_load(n)
    consts()
    A("L_qdone:")
    A("  s_waitcnt lgkmcnt(0)"); A("  s_barrier                       ; B1: q partials")
    stamp("s", "B1")
    rest = []
    R = rest.append
    R([f"  s_mul_i32 s47, s5, {PWAVE}", f"  s_add_u32 s47, s47, {L_P}", f"  v_mul_u32_u24 v{vPa}, {PROW}, v{vT1}", f"  v_add_u32 v{vPa}, s47, v{vPa}"])
    R([f"  v_lshlrev_b32 v{vQa}, 4, v{vT2}", f"  s_lshl_b32 s47, s5, 3", f"  v_mov_b32 v{vMLa}, s47", f"  s_lshl_b32 s47, s5, 2", f"  v_mov_b32 v{vCa}, s47", f"  v_mov_b32 v{vProg}, 0"])
    R([f"  v_lshrrev_b32 v{vDa}, 5, v{vLane}", f"  v_mul_u32_u24 v{vDa}, 768, v{vDa}", f"  v_lshl_add_u32 v{vDa}, v{vT2}, 5, v{vDa}",
       f"  v_and_b32 v{vT3}, 16, v{vLane}", f"  v_add_u32 v{vDa}, v{vDa}, v{vT3}", "  s_mul_i32 s47, s5, 1536", f"  s_add_u32 s47, s47, {L_O}", f"  v_add_u32 v{vDa}, s47, v{vDa}"])
    R(["  s_mov_b32 s16, s68", "  s_mov_b32 s17, s69", "  s_mov_b32 s18, s76", "  s_mov_b32 s19, s77", "  s_mov_b32 s20, s78", "  s_mov_b32 s21, s79"])
    R(["  s_cmp_ge_u32 s4, 16", "  s_cselect_b32 s24, s82, s72", "  s_cselect_b32 s25, s83, s73", "  s_mov_b32 s36, s42", "  s_mov_b32 s37, s43"])
    R(["  s_lshr_b32 s47, s4, 2", "  s_and_b32 s47, s47, 3", "  s_lshl_b32 s48, s47, 3", "  s_add_u32 s48, s48, s3", "  s_mul_i32 s48, s48, 192",
       "  s_and_b32 s49, s4, 3", "  s_lshl_b32 s49, s49, 2", "  s_add_u32 s49, s49, s5", "  s_lshl_b32 s49, s49, 2      ; 16qd+4w",
       "  s_add_u32 s28, s48, s49", "  s_mul_i32 s28, s28, 1280"])
    R(["  s_lshr_b32 s48, s4, 4", "  s_lshl_b32 s48, s48, 3", "  s_add_u32 s48, s48, s47", "  s_lshl_b32 s48, s48, 15", "  s_lshl_b32 s49, s49, 4", "  s_add_u32 s48, s48, s49",
       "  s_lshl_b32 s49, s3, 19", "  s_add_u32 s48, s48, s49", f"  s_add_u32 s60, s48, {W_O}", "  s_add_u32 s61, s60, 8192", "  s_add_u32 s62, s60, 16384", "  s_add_u32 s63, s60, 24576"])
    R([f"  v_lshrrev_b32 v{vT0}, 4, v{vLane}", f"  v_mul_u32_u24 v{vW}, 1280, v{vT0}", f"  v_and_b32 v{vT3}, 15, v{vLane}", f"  v_lshl_add_u32 v{vW}, v{vT3}, 4, v{vW}"])
    R([f"  s_mov_b32 s58, {f32hex(192 ** -0.5 * math.log2(math.e))}", "  s_mov_b32 s44, 0", f"  s_mov_b32 s45, {mode0}"])
    for n in range(d0, 24):
        A(f"  s_waitcnt vmcnt({d0-1})")
        kv_load(n)
        if rest:
            for x in rest.pop(0): A(x)
    assert not rest
    stamp("s", "ring")
    A("  s_barrier")
    for t in range(3): A(f"  ds_read_b128 v[{vQ+4*t}:{vQ+4*t+3}], v{vQa} offset:{L_Q + 128*t}")
    stamp("s", "B2")
    A("  s_waitcnt lgkmcnt(0)")
    def throttle(tag):
        A(f"  s_waitcnt vmcnt({hi})")
        if pace:
            A("  s_cmp_eq_u32 s45, 2"); A(f"  s_cbranch_scc1 {tag}")
        A(f"  s_waitcnt vmcnt({mid})")
        if pace and lo != mid:
            A("  s_cmp_eq_u32 s45, 1"); A(f"  s_cbranch_scc1 {tag}")
            A(f"  s_waitcnt vmcnt({lo})")
        A(f"{tag}:")
    def switch(tag):
        A("  s_and_b32 s47, s44, 7"); A("  s_cmp_lg_u32 s47, 7"); A(f"  s_cbranch_scc1 {tag}")
        A("  s_mov_b32 s12, s13"); A("  s_mov_b32 s8, s16"); A("  s_mov_b32 s9, s17")
        for k in range(4): A(f"  s_mov_b32 s{16+k}, s{18+k}")
        A(f"{tag}:")
    def body(tag, gaps):
        for n in range(24):
            s, j = divmod(n, 3)
            for x in gaps.get(n, []): A(x)
            if j == 2 and pace:
                A("  s_waitcnt lgkmcnt(0)"); A(f"  v_readfirstlane_b32 s45, v{vMode}")
            throttle(f"{tag}_{n}")
            kv_load(n)
            if j == 1 and pace: A(f"  ds_read_b32 v{vMode}, v{vZero} offset:{L_CTL}")
            if j == 2:
                A(f"  v_add_u32 v{vProg}, 1, v{vProg}"); A(f"  ds_write_b32 v{vCa}, v{vProg} offset:{L_CTL+16}")
    def xred(op, t, u):
        return [f"  s_nop 1", f"  {op}_dpp v{t}, v{t}, v{t} row_ror:8 row_mask:0xf bank_mask:0xf",
                f"  v_mov_b32 v{u}, v{t}", "  s_nop 1", f"  v_permlane16_swap_b32 v{t}, v{u}", "  s_nop 0", f"  {op} v{t}, v{t}, v{u}",
                f"  v_mov_b32 v{u}, v{t}", "  s_nop 1", f"  v_permlane32_swap_b32 v{t}, v{u}", "  s_nop 0", f"  {op} v{t}, v{t}, v{u}"]
    kg = {}
    for s in range(4):
        for j in range(2):
            T = 2 * s + j
            kg[3*s+j] = [f"  s_waitcnt vmcnt({3*(7-T) + 3*s + j})"] + \
                        [f"  v_dot2_f32_bf16 v{vS+T}, v{ring(T,0)+k}, v{vQ+k}, {('v%d' % (vS+T)) if k else '0'}" for k in range(12)]
        g = []
        for pat in ("quad_perm:[1,0,3,2]", "quad_perm:[2,3,0,1]", "row_half_mirror"):
            g += ["  s_nop 0"] + [f"  v_add_f32_dpp v{vS+T}, v{vS+T}, v{vS+T} {pat} row_mask:0xf bank_mask:0xf" for T in (2*s, 2*s+1)]
        kg[3*s+2] = g
    kg[12] = [f"  v_add_u32 v{vQa}, 384, v{vQa}",
              f"  v_max3_f32 v{vT0}, v{vS}, v{vS+1}, v{vS+2}", f"  v_max3_f32 v{vT0}, v{vT0}, v{vS+3}, v{vS+4}",
              f"  v_max3_f32 v{vT0}, v{vT0}, v{vS+5}, v{vS+6}", f"  v_max_f32 v{vT0}, v{vT0}, v{vS+7}"] + \
             [f"  ds_read_b128 v[{vQ+4*t}:{vQ+4*t+3}], v{vQa} offset:{L_Q + 128*t}" for t in range(3)]
    kg[13] = xred("v_max_f32", vT0, vT1) + [f"  v_mul_f32 v{vD}, s58, v{vT0}"]
    kg[14] = [f"  v_fma_f32 v{vS+i}, v{vS+i}, s58, -v{vD}" for i in range(8)]
    kg[15] = [f"  v_exp_f32 v{vS+i}, v{vS+i}" for i in range(8)]
    kg[16] = [f"  v_add_f32 v{vD+1}, v{vS}, v{vS+1}"] + [f"  v_add_f32 v{vD+1}, v{vD+1}, v{vS+i}" for i in range(2, 8)]
    kg[17] = [f"  v_cvt_pk_bf16_f32 v{vS+i}, v{vS+i}, v{vS+i}" for i in range(8)]
    kg[18] = [f"  ds_write_b128 v{vPa}, v[{vS}:{vS+3}]", f"  ds_write_b128 v{vPa}, v[{vS+4}:{vS+7}] offset:16", f"  v_add_u32 v{vPa}, 32, v{vPa}"]
    kg[19] = xred("v_add_f32", vD+1, vT1)
    kg[21] = [f"  ds_write_b64 v{vMLa}, v[{vD}:{vD+1}] offset:{L_ML}", f"  v_add_u32 v{vMLa}, 32, v{vMLa}"]
    def vtile(T, wait):
        b = vB + 4 * (T & 1)
        g = [f"  v_and_b32 v{b+q}, v{vS+T}, v{vM+q}" for q in range(4)] + [f"  s_waitcnt vmcnt({wait})", "  s_nop 0"]
        for t in range(3):
            c = f"v[{vD+4*t}:{vD+4*t+3}]" if T else "0"
            g.append(f"  v_mfma_f32_16x16x32_bf16 v[{vD+4*t}:{vD+4*t+3}], v[{b}:{b+3}], v[{ring(T,t)}:{ring(T,t)+3}], {c}")
        return g
    dump = ["  s_mov_b64 exec, s[54:55]"] + [f"  ds_write_b128 v{vDa}, v[{vD+4*t}:{vD+4*t+3}] offset:{256*t}" for t in range(3)] + ["  s_mov_b64 exec, -1"]
    pread = [f"  ds_read_b128 v[{vS}:{vS+3}], v{vPa}", f"  ds_read_b128 v[{vS+4}:{vS+7}], v{vPa} offset:16"]
    vg = {}
    for s in range(4):
        for j in range(2): vg[3*s+j] = vtile(2*s+j, 3*(7-(2*s+j)) + 3*s + j)
    vg[12] = ["  s_nop 7"] + dump + [f"  v_add_u32 v{vDa}, 6144, v{vDa}", f"  v_add_u32 v{vPa}, 32, v{vPa}"]
    vg[13] = pread
    vg[20] = ["  s_waitcnt lgkmcnt(0)"]
    kg[20] = ["  s_waitcnt lgkmcnt(0)"]
    A("L_kloop:")
    switch("L_ksw")
    body("L_k", kg)
    A("  s_add_u32 s44, s44, 1"); A("  s_and_b32 s47, s44, 7"); A("  s_cbranch_scc1 L_kloop")
    A(f"  v_subrev_u32 v{vPa}, 256, v{vPa}")
    for x in pread: A(x)
    A("  s_waitcnt lgkmcnt(0)")
    A("L_vloop:")
    switch("L_vsw")
    body("L_v", vg)
    A("  s_add_u32 s44, s44, 1")
    A("  s_cmp_eq_u32 s44, 31"); A("  s_cbranch_scc1 L_last")
    A("  s_and_b32 s47, s44, 7"); A("  s_cbranch_scc1 L_vloop")
    A(f"  v_subrev_u32 v{vPa}, 256, v{vPa}")
    A("  s_branch L_kloop")
    A("L_last:")
    def wo_load(i):
        tp, c = divmod(i, 5)
        A(f"  s_waitcnt vmcnt({dl-1})")
        A(f"  buffer_load_dwordx4 a[{4*i}:{4*i+3}], v{vW}, s[24:27], s28 offen offset:{256*c} {wopol}")
        if c == 4 and tp < 2: A("  s_add_u32 s28, s28, 81920")
    sched = {1: [0, 1], 2: [2, 3], 3: [4, 5], dl - 1: [6], dl: [7]}
    if dl - 1 == 3: sched = {1: [0, 1, 2], 2: [3, 4, 5], 3: [6], 4: [7]}
    for i in range(15):
        for T in sched.get(i, []):
            for x in vtile(T, 3*(7-T) + i): A(x)
        if i == dl:
            A(f"  v_add_u32 v{vProg}, 8, v{vProg}"); A("  s_nop 5")
            for x in dump: A(x)
            A(f"  ds_write_b32 v{vCa}, v{vProg} offset:{L_CTL+16}")
            stamp("s", "vend")
        if i == dl + 1:
            A(f"  v_and_b32 v{vT0}, 8, v{vLane}"); A(f"  v_lshlrev_b32 v{vT0}, 14, v{vT0}")
            A(f"  v_and_b32 v{vT2}, 7, v{vLane}"); A(f"  v_lshl_add_u32 v{vT0}, v{vT2}, 10, v{vT0}")
            A(f"  v_and_b32 v{vT3}, 48, v{vLane}"); A(f"  v_add_u32 v{vT0}, v{vT0}, v{vT3}")
            A(f"  v_and_b32 v{vT2}, 15, v{vLane}"); A(f"  v_lshlrev_b32 v{vT1}, 4, v{vT2}")
        if i == dl + 2:
            A(f"  v_lshrrev_b32 v{vDa}, 5, v{vLane}"); A(f"  v_mul_u32_u24 v{vDa}, 2560, v{vDa}")
            A(f"  v_lshl_add_u32 v{vDa}, v{vT2}, 5, v{vDa}")
            A(f"  v_and_b32 v{vT3}, 16, v{vLane}"); A(f"  v_add_u32 v{vDa}, v{vDa}, v{vT3}")
            A("  s_mul_i32 s47, s5, 5120"); A(f"  v_add_u32 v{vDa}, s47, v{vDa}")
        if i == dl + 3:
            A(f"  s_mov_b32 s50, {SPIN*8}")
            A("L_wwait:")
            A(f"  ds_read_b64 v[{vS}:{vS+1}], v{vZero} offset:{L_CTL+8}")
            A("  s_waitcnt lgkmcnt(0)")
            A(f"  v_readfirstlane_b32 s47, v{vS}"); A(f"  v_readfirstlane_b32 s46, v{vS+1}")
            A("  s_sub_u32 s50, s50, 1"); A("  s_cbranch_scc1 L_wgo")
            A("  s_cmp_eq_u32 s47, 0"); A("  s_cbranch_scc1 L_wwait")
            A("L_wgo:")
            A(f"  ds_read_b128 v[{vS}:{vS+3}], v{vT1} offset:{L_W}")
        wo_load(i)
    G = vRing
    A(f"  s_mov_b32 s50, {SPIN}")
    A("L_gather:")
    for k in range(4): A(f"  buffer_load_dwordx4 v[{G+4*k}:{G+4*k+3}], v{vT0}, s[36:39], s{60+k} offen sc1")
    A("  s_waitcnt vmcnt(0) lgkmcnt(0)")
    A(f"  v_cmp_ne_u32 s[48:49], s46, v{G+3}")
    for k in range(1, 4):
        A(f"  v_cmp_ne_u32 vcc, s46, v{G+4*k+3}"); A("  s_or_b64 s[48:49], s[48:49], vcc")
    A("  s_sub_u32 s50, s50, 1"); A("  s_cbranch_scc1 L_ggo")
    A("  s_cmp_eq_u64 s[48:49], 0"); A("  s_cbranch_scc0 L_gather")
    A("L_ggo:")
    stamp("s", "gath")
    for t in range(3): A(f"  v_mul_f32 v{G+t}, v{vS}, v{G+t}")
    for k in range(1, 4):
        for t in range(3): A(f"  v_fmac_f32 v{G+t}, v{vS+k}, v{G+4*k+t}")
    for pat in ("quad_perm:[1,0,3,2]", "quad_perm:[2,3,0,1]", "row_half_mirror"):
        for t in range(3): A(f"  v_add_f32_dpp v{G+t}, v{G+t}, v{G+t} {pat} row_mask:0xf bank_mask:0xf")
    for t in range(3): A(f"  v_cvt_pk_bf16_f32 v{G+t}, v{G+t}, v{G+t}")
    for t in range(3):
        for q in range(4): A(f"  v_and_b32 v{G+4+4*t+q}, v{G+t}, v{vM+q}")
    for tp in range(3):
        for c in range(5):
            i = tp * 5 + c
            cc = f"v[{vD+4*c}:{vD+4*c+3}]" if tp else "0"
            A(f"  v_mfma_f32_16x16x32_bf16 v[{vD+4*c}:{vD+4*c+3}], v[{G+4+4*tp}:{G+7+4*tp}], a[{4*i}:{4*i+3}], {cc}")
    A("  s_nop 3")
    for c in range(5): A(f"  ds_write_b128 v{vDa}, v[{vD+4*c}:{vD+4*c+3}] offset:{L_Y + 512*c}")
    A("L_yred:")
    A(f"  v_lshlrev_b32 v{vT1}, 4, v0")
    A(f"  v_mov_b32 v{vT2}, {327680 - 2560}"); A("  v_cmp_le_u32 vcc, 160, v0")
    A("  s_lshr_b32 s47, s4, 4"); A(f"  s_mul_i32 s47, s47, {2*327680}")
    A(f"  v_cndmask_b32 v{vT2}, 0, v{vT2}, vcc"); A(f"  v_add_u32 v{vT2}, v{vT2}, v{vT1}")
    A("  s_and_b32 s48, s2, 127"); A("  s_mul_i32 s48, s48, 2560"); A("  s_add_u32 s47, s47, s48")
    A("  s_waitcnt lgkmcnt(0)"); A("  s_barrier                       ; B3: y partials")
    for k in range(4): A(f"  ds_read_b128 v[{vD+4*k}:{vD+4*k+3}], v{vT1} offset:{L_Y + 5120*k}")
    for k in range(1, 4):
        A(f"  s_waitcnt lgkmcnt({3-k})")
        for r in range(4): A(f"  v_add_f32 v{vD+r}, v{vD+r}, v{vD+4*k+r}")
    A(f"  buffer_store_dwordx4 v[{vD}:{vD+3}], v{vT2}, s[36:39], s47 offen")
    if stamps:
        A("  s_cmp_eq_u32 s5, 4"); A("  s_cbranch_scc1 L_hst")
        A("  s_cmp_lg_u32 s5, 0"); A("  s_cbranch_scc1 L_end")
        A("  s_waitcnt vmcnt(0)")
        stamp("s", "end")
        dump_stamps("s", 0)
    A("L_end:"); A("  s_endpgm")
    H = vRing
    A("L_helper:")
    A(f"  v_mov_b32 v{H}, {mode0}"); A(f"  v_mov_b32 v{H+1}, 0"); A(f"  v_mov_b32 v{H+2}, 0"); A(f"  v_mov_b32 v{H+3}, 0"); A(f"  v_mov_b32 v{H+4}, 0"); A(f"  v_mov_b32 v{H+5}, 0")
    A(f"  ds_write_b128 v{vZero}, v[{H}:{H+3}] offset:{L_CTL}"); A(f"  ds_write_b128 v{vZero}, v[{H+2}:{H+5}] offset:{L_CTL+16}")
    A("  s_memrealtime s[48:49]")
    A("  s_mov_b32 s10, 256"); A("  s_mov_b32 s11, 0x20000")
    A("  s_waitcnt lgkmcnt(0)")
    A("  s_mov_b32 s36, s42"); A("  s_mov_b32 s37, s43"); A("  s_mov_b32 s8, s40"); A("  s_mov_b32 s9, s41")
    A("  s_or_b32 s46, s48, 1")
    A("  s_cmp_lg_u32 s2, 0"); A("  s_cbranch_scc1 L_npoll")
    A(f"  v_mov_b32 v{H}, s46"); A("  s_mov_b64 exec, 1")
    A(f"  buffer_store_dword v{H}, v{vZero}, s[8:11], 0 offen sc1")
    A("  s_mov_b64 exec, -1"); A("  s_branch L_nhave")
    A("L_npoll:")
    A(f"  s_mov_b32 s50, {SPIN}")
    A("L_nloop:")
    A(f"  s_sleep {nslp}")
    A(f"  buffer_load_dword v{H}, v{vZero}, s[8:11], 0 offen sc1"); A("  s_waitcnt vmcnt(0)")
    A(f"  v_readfirstlane_b32 s46, v{H}")
    A("  s_sub_u32 s50, s50, 1"); A("  s_cbranch_scc1 L_nhave")
    A("  s_cmp_eq_u32 s46, 0"); A("  s_cbranch_scc1 L_nloop")
    A("L_nhave:")
    stamp("h", "nonce")
    A(f"  v_mov_b32 v{H}, s46"); A(f"  ds_write_b32 v{vZero}, v{H} offset:{L_CTL+12}")
    A(f"  v_lshlrev_b32 v{vT0}, 3, v{vLane}      ; lane*8"); A(f"  v_lshlrev_b32 v{vT3}, 4, v{vLane}      ; lane*16")
    A(f"  s_mul_i32 s12, s3, {24*512}"); A(f"  s_add_u32 s12, s12, {W_Q}")
    A("  s_lshl_b32 s13, s4, 9"); A("  s_add_u32 s13, s13, s12")
    A("  s_add_u32 s14, s12, 4096"); A("  s_add_u32 s15, s12, 8192")
    A("  s_waitcnt lgkmcnt(0)"); A("  s_barrier                       ; B1")
    A("  s_cmp_ge_u32 s4, 24"); A("  s_cbranch_scc1 L_hq2")
    for k in range(8): A(f"  ds_read_b64 v[{H+2*k}:{H+2*k+1}], v{vT0} offset:{L_Y + 512*k}")
    for k in range(1, 8):
        A(f"  s_waitcnt lgkmcnt({7-k})")
        for r in range(2): A(f"  v_add_f32 v{H+r}, v{H+r}, v{H+2*k+r}")
    A(f"  v_cvt_pk_bf16_f32 v{H}, v{H}, v{H+1}"); A(f"  v_mov_b32 v{H+1}, s46")
    A(f"  buffer_store_dwordx2 v[{H}:{H+1}], v{vT0}, s[36:39], s13 offen sc1")
    A("L_hq2:")
    A(f"  v_and_b32 v{vT1}, 16, v{vLane}"); A(f"  v_mul_u32_u24 v{vT1}, 96, v{vT1}")
    A(f"  v_and_b32 v{vT2}, 15, v{vLane}"); A(f"  v_lshl_add_u32 v{vT1}, v{vT2}, 3, v{vT1}")
    A(f"  v_lshrrev_b32 v{vT2}, 5, v{vLane}")
    A(f"  s_mov_b32 s50, {SPIN}")
    A("L_qg:")
    for k in range(12):
        A(f"  buffer_load_dwordx4 v[{H+4*k}:{H+4*k+3}], v{vT3}, s[36:39], s{(12,14,15)[k//4]} offen offset:{1024*(k%4)} sc1")
    A("  s_mov_b64 s[48:49], 0")
    for k in range(12):
        A(f"  s_waitcnt vmcnt({11-k})")
        for r in (1, 3):
            A(f"  v_cmp_ne_u32 vcc, s46, v{H+4*k+r}"); A("  s_or_b64 s[48:49], s[48:49], vcc")
    A("  s_sub_u32 s50, s50, 1"); A("  s_cbranch_scc1 L_qgo")
    A("  s_cmp_eq_u64 s[48:49], 0"); A("  s_cbranch_scc0 L_qg")
    A("L_qgo:")
    def qconst(item):
        sg, c = divmod(item, 3); return ((sg >> 2) * 8 + (sg & 3)) * 384 + c * 128
    for k in range(12):
        c0, c1 = qconst(2 * k), qconst(2 * k + 1)
        A(f"  v_mov_b32 v{H+4*k+1}, v{H+4*k+2}")
        if k == 0 or (c1 - c0) != (qconst(2*k-1) - qconst(2*k-2)):
            A(f"  v_mul_u32_u24 v{vPa}, {c1-c0}, v{vT2}"); A(f"  v_add_u32 v{vPa}, v{vPa}, v{vT1}")
        A(f"  ds_write_b64 v{vPa}, v[{H+4*k}:{H+4*k+1}] offset:{L_Q + c0}")
    A("  s_waitcnt lgkmcnt(0)")
    stamp("h", "qtab")
    A("  s_barrier                       ; B2")
    A("  s_getreg_b32 s56, hwreg(HW_REG_XCC_ID)"); A("  s_and_b32 s56, s56, 7")
    A("  s_mul_i32 s57, s56, 8448"); A(f"  s_add_u32 s57, s57, {W_B}")
    A("  s_lshl_b32 s59, s4, 2"); A("  s_add_u32 s59, s59, s57")
    A("  s_mul_i32 s62, s56, 4352"); A(f"  s_add_u32 s62, s62, {W_G}")
    A(f"  s_add_u32 s16, s42, {W_G}"); A("  s_addc_u32 s17, s43, 0")
    A("  s_and_b32 s51, s46, 0xffff0000   ; tag")
    A(f"  v_lshlrev_b32 v{vQa}, 2, v{vLane}")
    A("  s_mov_b32 s18, -1"); A("  s_mov_b32 s19, 1")
    A(f"  s_mov_b32 s44, {t_ml}")
    A("L_pace:")
    A(f"  s_sleep {slp}")
    A(f"  ds_read_b128 v[{H}:{H+3}], v{vZero} offset:{L_CTL+16}"); A("  s_waitcnt lgkmcnt(0)")
    A(f"  v_min3_u32 v{H+4}, v{H}, v{H+1}, v{H+2}"); A(f"  v_min_u32 v{H+4}, v{H+4}, v{H+3}")
    A(f"  v_add3_u32 v{H+5}, v{H}, v{H+1}, v{H+2}"); A(f"  v_add_u32 v{H+5}, v{H+5}, v{H+3}")
    A(f"  v_readfirstlane_b32 s20, v{H+4}")
    A("  s_cmp_ge_u32 s20, s44"); A("  s_cbranch_scc1 L_event")
    if pace:
        A(f"  v_or_b32 v{H+6}, s51, v{H+5}"); A(f"  v_mov_b32 v{H+7}, 0")
        A("  s_mov_b64 exec, 1")
        A(f"  buffer_store_dword v{H+6}, v{vZero}, s[36:39], s59 offen")
        A("  s_mov_b64 exec, s[18:19]")
        A(f"  buffer_load_dword v{H+7}, v{vQa}, s[36:39], s57 offen sc1")
        A("  s_mov_b64 exec, -1")
        A(f"  v_readfirstlane_b32 s21, v{H+5}")
        A("  s_waitcnt vmcnt(0)")
        A(f"  v_readlane_b32 s22, v{H+7}, 32")
        A(f"  v_xor_b32 v{H+7}, s51, v{H+7}")
        A(f"  v_cmp_gt_u32 vcc, 0x10000, v{H+7}"); A("  s_xor_b32 s22, s22, s51"); A("  s_nop 0")
        A(f"  v_cndmask_b32 v{H+7}, v{H+5}, v{H+7}, vcc")
        for sh in (1, 2, 4, 8):
            A("  s_nop 1"); A(f"  v_add_u32_dpp v{H+7}, v{H+7}, v{H+7} row_ror:{sh} row_mask:0xf bank_mask:0xf")
        A("  s_cmp_lt_u32 s22, 0x10000"); A("  s_cselect_b32 s22, s22, 0x8000")
        A(f"  v_readlane_b32 s23, v{H+7}, 0"); A(f"  v_readlane_b32 s24, v{H+7}, 16")
        A("  s_add_u32 s23, s23, s24")
        A("  s_lshl_b32 s24, s21, 5"); A("  s_sub_u32 s24, s24, s23"); A("  s_sub_u32 s24, s24, s22"); A("  s_add_u32 s24, s24, 0x8000")
        A(f"  s_cmp_lt_i32 s24, {tb}"); A("  s_cselect_b32 s25, 2, 1")
        A(f"  s_cmp_gt_i32 s24, {ta}"); A("  s_cselect_b32 s25, 0, s25")
        A(f"  v_mov_b32 v{H+6}, s25"); A(f"  ds_write_b32 v{vZero}, v{H+6} offset:{L_CTL}")
        if pace >= 2:
            A("  s_cmp_lg_u32 s4, 0"); A("  s_cbranch_scc1 L_pace")
            A("  s_or_b32 s24, s23, s51"); A(f"  v_mov_b32 v{H+6}, s24")
            A("  s_mov_b64 exec, 1")
            A(f"  buffer_store_dword v{H+6}, v{vZero}, s[36:39], s62 offen sc1")
            A("  s_mov_b64 exec, -1")
            for k in range(8): A(f"  s_load_dword s{64+k}, s[16:17], {k*4352} glc")
            A("  s_waitcnt lgkmcnt(0)")
            for k in range(8): A(f"  s_xor_b32 s{64+k}, s{64+k}, s51")
            A("  s_or_b32 s24, s64, s65"); A("  s_add_u32 s25, s64, s65")
            for k in range(2, 8): A(f"  s_or_b32 s24, s24, s{64+k}"); A(f"  s_add_u32 s25, s25, s{64+k}")
            A("  s_cmp_ge_u32 s24, 0x10000"); A("  s_cbranch_scc1 L_pace")
            A("  s_lshr_b32 s25, s25, 3"); A("  s_sub_u32 s25, s25, s23"); A(f"  s_add_u32 s25, s25, {0x8000 + gbias}")
            A("  s_and_b32 s25, s25, 0xffff"); A("  s_or_b32 s25, s25, s51"); A(f"  v_mov_b32 v{H+6}, s25")
            A("  s_mov_b64 exec, 1")
            A(f"  buffer_store_dword v{H+6}, v{vZero}, s[36:39], s57 offen offset:128")
            A("  s_mov_b64 exec, -1")
    A("  s_branch L_pace")
    A("L_event:")
    A(f"  s_cmp_eq_u32 s44, {t_w}"); A("  s_cbranch_scc1 L_evw")
    A(f"  s_cmp_eq_u32 s44, {t_f}"); A("  s_cbranch_scc1 L_flush")
    A(f"  v_and_b32 v{vT1}, 15, v{vLane}"); A(f"  v_lshlrev_b32 v{vT2}, 5, v{vT1}"); A(f"  v_lshlrev_b32 v{vT1}, 4, v{vT1}")
    A(f"  ds_read_b128 v[{H}:{H+3}], v{vT2} offset:{L_ML}"); A(f"  ds_read_b128 v[{H+4}:{H+7}], v{vT2} offset:{L_ML+16}")
    A("  s_lshl_b32 s47, s3, 5"); A("  s_add_u32 s47, s47, s4"); A("  s_lshl_b32 s47, s47, 8"); A(f"  s_add_u32 s47, s47, {W_ML}")
    A("  s_waitcnt lgkmcnt(0)")
    A(f"  v_max3_f32 v{H+8}, v{H}, v{H+2}, v{H+4}"); A(f"  v_max_f32 v{H+8}, v{H+8}, v{H+6}")
    for w in range(4): A(f"  v_sub_f32 v{H+12+w}, v{H+2*w}, v{H+8}")
    for w in range(4): A(f"  v_exp_f32 v{H+12+w}, v{H+12+w}")
    A(f"  v_mov_b32 v{H+10}, 0"); A(f"  v_mov_b32 v{H+11}, s46")
    A(f"  v_mul_f32 v{H+9}, v{H+12}, v{H+1}")
    for w in range(1, 4): A(f"  v_fmac_f32 v{H+9}, v{H+12+w}, v{H+2*w+1}")
    A(f"  ds_write_b128 v{vT1}, v[{H+12}:{H+15}] offset:{L_E}")
    A("  s_mov_b64 exec, 0xffff")
    A(f"  buffer_store_dwordx4 v[{H+8}:{H+11}], v{vT1}, s[36:39], s47 offen sc1")
    A("  s_mov_b64 exec, -1")
    A(f"  s_mov_b32 s44, {t_w}"); A("  s_branch L_pace")
    A("L_evw:")
    A(f"  v_and_b32 v{vT1}, 31, v{vLane}"); A(f"  v_lshlrev_b32 v{vT1}, 8, v{vT1}")
    A(f"  v_and_b32 v{vT2}, 32, v{vLane}"); A(f"  v_lshl_add_u32 v{vT1}, v{vT2}, 1, v{vT1}      ; producer*256 + b*64")
    A("  s_lshr_b32 s47, s4, 4"); A("  s_lshl_b32 s47, s47, 3"); A("  s_lshr_b32 s48, s4, 2"); A("  s_and_b32 s48, s48, 3"); A("  s_add_u32 s47, s47, s48")
    A("  s_lshl_b32 s47, s47, 4"); A("  s_lshl_b32 s48, s3, 13"); A("  s_add_u32 s47, s47, s48"); A(f"  s_add_u32 s47, s47, {W_ML}")
    A(f"  s_mov_b32 s50, {SPIN}")
    A("L_wg:")
    A(f"  buffer_load_dwordx4 v[{H}:{H+3}], v{vT1}, s[36:39], s47 offen sc1"); A("  s_waitcnt vmcnt(0)")
    A(f"  v_cmp_ne_u32 vcc, s46, v{H+3}")
    A("  s_sub_u32 s50, s50, 1"); A("  s_cbranch_scc1 L_wgo2")
    A("  s_cmp_eq_u64 vcc, 0"); A("  s_cbranch_scc1 L_wgo2")
    A("  s_sleep 16"); A("  s_branch L_wg")
    A("L_wgo2:")
    def red32(op, t, u):
        for sh in (1, 2, 4, 8):
            A("  s_nop 1"); A(f"  {op}_dpp v{t}, v{t}, v{t} row_ror:{sh} row_mask:0xf bank_mask:0xf")
        A(f"  v_mov_b32 v{u}, v{t}"); A("  s_nop 1"); A(f"  v_permlane16_swap_b32 v{t}, v{u}"); A("  s_nop 0"); A(f"  {op} v{t}, v{t}, v{u}")
    A(f"  v_mov_b32 v{H+4}, v{H}")
    red32("v_max_f32", H+4, H+5)
    A(f"  v_sub_f32 v{H}, v{H}, v{H+4}"); A(f"  v_exp_f32 v{H}, v{H}"); A("  s_nop 0")
    A(f"  v_mul_f32 v{H+4}, v{H}, v{H+1}")
    red32("v_add_f32", H+4, H+5)
    A(f"  v_rcp_f32 v{H+4}, v{H+4}")
    A(f"  v_and_b32 v{vT1}, 7, v{vLane}"); A(f"  v_lshlrev_b32 v{vT1}, 4, v{vT1}"); A(f"  v_lshl_add_u32 v{vT1}, v{vT2}, 2, v{vT1}")
    A(f"  v_and_b32 v{vT2}, 24, v{vLane}"); A(f"  v_lshrrev_b32 v{vT2}, 1, v{vT2}"); A(f"  v_add_u32 v{vT1}, v{vT1}, v{vT2}")
    A(f"  v_mul_f32 v{H}, v{H}, v{H+4}"); A(f"  v_mov_b32 v{H+1}, 1")
    A(f"  ds_write_b32 v{vT1}, v{H} offset:{L_W}"); A(f"  ds_write_b32 v{vZero}, v{H+1} offset:{L_CTL+8}")
    A(f"  s_mov_b32 s44, {t_f}"); A("  s_branch L_pace")
    A("L_flush:")
    stamp("h", "flush0")
    A(f"  v_mov_b32 v{H+6}, 1"); A(f"  ds_write_b32 v{vZero}, v{H+6} offset:{L_CTL}")
    A(f"  v_add_u32 v{vDa}, {L_O}, v{vQa}"); A(f"  v_mov_b32 v{vMLa}, {L_E}")
    A("  s_lshl_b32 s47, s3, 19"); A("  s_lshl_b32 s48, s4, 10"); A("  s_add_u32 s47, s47, s48"); A(f"  s_add_u32 s47, s47, {W_O}")
    A("  s_mov_b32 s44, 0")
    A(f"  v_mov_b32 v{H+35}, s46")
    A("L_fl:")
    A("  s_cmp_ge_u32 s44, 8"); A("  s_cselect_b32 s48, 16, 8"); A("  s_add_u32 s48, s48, s44"); A("  s_lshl_b32 s48, s48, 3"); A("  s_add_u32 s48, s48, 5")
    A(f"  ds_read_b128 v[{H+28}:{H+31}], v{vMLa}")
    A("L_flw:")
    A(f"  ds_read_b128 v[{H}:{H+3}], v{vZero} offset:{L_CTL+16}"); A("  s_waitcnt lgkmcnt(0)")
    A(f"  v_min3_u32 v{H+4}, v{H}, v{H+1}, v{H+2}"); A(f"  v_min_u32 v{H+4}, v{H+4}, v{H+3}"); A("  s_nop 0")
    A(f"  v_readfirstlane_b32 s20, v{H+4}")
    A("  s_cmp_lt_u32 s20, s48"); A("  s_cbranch_scc1 L_flw")
    for k in range(12): A(f"  ds_read2st64_b32 v[{H+2*k}:{H+2*k+1}], v{vDa} offset0:{2*k} offset1:{2*k+1}")
    for w in range(4):
        A(f"  s_waitcnt lgkmcnt({9-3*w})")
        for t in range(3): A(f"  v_add_f32 v{H+6*w+t}, v{H+6*w+t}, v{H+6*w+3+t}")
        for t in range(3):
            A(f"  v_mul_f32 v{H+32+t}, v{H+28}, v{H+t}" if w == 0 else f"  v_fmac_f32 v{H+32+t}, v{H+28+w}, v{H+6*w+t}")
    A(f"  buffer_store_dwordx4 v[{H+32}:{H+35}], v{vT3}, s[36:39], s47 offen sc1")
    A(f"  v_add_u32 v{vDa}, 6144, v{vDa}"); A(f"  v_add_u32 v{vMLa}, 16, v{vMLa}")
    A("  s_add_u32 s47, s47, 32768"); A("  s_add_u32 s44, s44, 1"); A("  s_cmp_lt_u32 s44, 16"); A("  s_cbranch_scc1 L_fl")
    stamp("h", "flushed")
    A("  s_branch L_yred")
    if stamps:
        A("L_hst:")
        A("  s_waitcnt vmcnt(0)")
        stamp("h", "hend")
        dump_stamps("h", 1)
        A("  s_endpgm")
        sn = names["s"]; hn = names["h"]
        L.insert(2, "; stamps: start id " + " ".join((sn[1:] + ["id"] * 6)[:6]) + " " + " ".join((hn + ["id"] * 8)[:7]) + " last")
    A(f".globl {K2}"); A(".p2align 8"); A(f".type {K2},@function"); A(f"{K2}:")
    A("  s_cmp_ge_u32 s2, 160"); A("  s_cbranch_scc1 L2_end")
    A("  s_load_dwordx2 s[4:5], s[0:1], 96"); A("  s_load_dwordx2 s[8:9], s[0:1], 80")
    A("  s_and_b32 s3, s2, 3              ; pb"); A("  s_lshr_b32 s12, s2, 2")
    A("  v_lshrrev_b32 v1, 2, v0"); A("  v_and_b32 v2, 3, v0")
    A("  v_mul_u32_u24 v3, 5120, v1"); A("  v_lshl_add_u32 v3, v2, 4, v3")
    A("  s_mul_i32 s13, s3, 327680"); A("  s_lshl_b32 s14, s12, 6"); A("  s_add_u32 s13, s13, s14")
    A("  s_add_u32 s17, s13, 81920"); A("  s_add_u32 s18, s13, 163840"); A("  s_add_u32 s19, s13, 245760")
    A(f"  s_mov_b32 s6, {WS}"); A("  s_mov_b32 s7, 0x20000"); A("  s_mov_b32 s10, 5120"); A("  s_mov_b32 s11, 0x20000")
    A("  s_and_b32 s15, s3, 1"); A("  s_mul_i32 s15, s15, 2560"); A("  s_lshr_b32 s16, s3, 1"); A("  s_mul_i32 s16, s16, 1280")
    A("  s_add_u32 s15, s15, s16"); A("  s_lshl_b32 s16, s12, 5"); A("  s_add_u32 s15, s15, s16")
    A("  v_lshlrev_b32 v6, 3, v2")
    A("  s_waitcnt lgkmcnt(0)")
    for k in range(8):
        A(f"  buffer_load_dwordx4 v[{8+4*k}:{11+4*k}], v3, s[4:7], s{(13,17,18,19)[k//2]} offen offset:{2560*(k%2)}")
    for k in range(1, 8):
        A(f"  s_waitcnt vmcnt({7-k})")
        for r in range(4): A(f"  v_add_f32 v{8+r}, v{8+r}, v{8+4*k+r}")
    for sh in (4, 8):
        for r in range(4): A(f"  v_add_f32_dpp v{8+r}, v{8+r}, v{8+r} row_ror:{sh} row_mask:0xf bank_mask:0xf")
    for sw in ("v_permlane32_swap_b32", "v_permlane16_swap_b32"):
        for r in range(4): A(f"  v_mov_b32 v{12+r}, v{8+r}")
        for r in range(4): A(f"  {sw} v{8+r}, v{12+r}")
        for r in range(4): A(f"  v_add_f32 v{8+r}, v{8+r}, v{12+r}")
    A("  v_cvt_pk_bf16_f32 v8, v8, v9"); A("  v_cvt_pk_bf16_f32 v9, v10, v11")
    A("  s_mov_b64 exec, 15")
    A("  buffer_store_dwordx2 v[8:9], v6, s[8:11], s15 offen")
    A("L2_end:"); A("  s_endpgm")
    A('.section .rodata,"a"')
    for kn, nv, acc, ns in ((KN, ACC + NA, ACC, 102), (K2, 40, 40, 24)):
        A(".p2align 6"); A(f".amdhsa_kernel {kn}")
        A(f"  .amdhsa_next_free_vgpr {nv}"); A(f"  .amdhsa_next_free_sgpr {ns}"); A(f"  .amdhsa_accum_offset {acc}")
        A("  .amdhsa_group_segment_fixed_size 0"); A("  .amdhsa_kernarg_size 104"); A("  .amdhsa_user_sgpr_count 2")
        A("  .amdhsa_user_sgpr_kernarg_segment_ptr 1"); A("  .amdhsa_system_sgpr_workgroup_id_x 1")
        A(".end_amdhsa_kernel")
    open(name, "w").write("\n".join(L) + "\n")
    return name
if __name__ == "__main__":
    if len(sys.argv) > 2:
        hdr = open("concat_heads__gqa_block_cached__mha_block_cached__decode.s.ref").read().split("; Override launch")[0]
        print(gen(name=sys.argv[2], header=hdr, **eval(sys.argv[1])))
    else:
        print(" ".join(gen(**kw) for kw in eval(sys.argv[1])))
```

```python
import sys, math, struct
KN = "concat_heads__gqa_block_cached__mha_block_cached__decode_kernel"
K2 = "final_reduce_kernel"
WS = 836768768
KVBYTES = 201326592
WBYTES = 7864320
def f32hex(x): return "0x%08x" % struct.unpack("<I", struct.pack("<f", x))[0]

def gen(name="z.s", header="", stamps=0, lo=3, mid=4, hi=5, d0=5, dl=5, pace=2, slp=32, ta=200, tb=-100, lper=8, kap=202,
        t_ml=193, t_w=216, t_f=238, wqpol="nt", wopol="nt", nok2=False, mode0=1, SPIN=200000, nslp=8, curve=False, dry=False, wqd=6, nslp0=16, rot=0, loc=True, nloc=24, fuse=True, fslp=0):
    L = []; A = L.append
    L_CTL = 0
    L_W = 64
    L_E = L_W + 256
    L_ML = L_E + 256
    L_Q = L_ML + 512
    L_P = L_Q + 17 * 384
    PROW = 272; PWAVE = 8 * PROW
    L_Y = L_P + 4 * PWAVE + 64
    L_O = L_Y + 20480
    LDS = L_O + 16 * 6144
    assert L_Y % 16 == 0 and L_O % 16 == 0 and L_Q % 16 == 0 and L_P % 16 == 0
    W_Y = 0
    W_O = 2 << 20
    W_Q = 6 << 20
    W_ML = W_Q + (128 << 10)
    W_B = W_ML + (128 << 10)
    W_G = W_B + (128 << 10)
    QLOC = 512 << 10
    W_OL = 7 << 20
    vLane, vKV, vW, vZero = 1, 2, 3, 4
    vT0, vT1, vT2, vT3 = 5, 6, 7, 8
    vPa, vQa, vDa, vMLa, vCa, vProg, vMode = 9, 10, 11, 12, 13, 14, 15
    vM = 16; vB = 20; vQ = 28; vS = 40; vD = 48; vRing = 68
    vX = vQ
    NV = vRing + 96
    if curve: vCv = NV; NV += 2
    ACC = (NV + 3) // 4 * 4
    NA = 80
    def ring(s, t): return vRing + 12 * s + 4 * t
    names = {"s": [], "h": []}
    def stamp(who, nm, level=1):
        if stamps >= level:
            k = len(names[who]); assert k < 8, nm
            names[who].append(nm)
            A(f"  s_memrealtime s[{84+2*k}:{85+2*k}]")
    def dump_stamps(who, rec):
        n = len(names[who])
        A("  s_getreg_b32 s100, hwreg(HW_REG_XCC_ID)"); A("  s_getreg_b32 s101, hwreg(HW_REG_HW_ID)")
        A("  s_waitcnt vmcnt(0) lgkmcnt(0)")
        A(f"  s_lshl_b32 s47, s2, 7"); A(f"  s_add_u32 s47, s47, {WS - (1<<20) + 64*rec}")
        if who == "s": regs = [84, 85, 100, 101] + sum([[84+2*min(k, n-1), 85+2*min(k, n-1)] for k in range(1, 7)], [])
        else: regs = sum([[84+2*min(k, n-1), 85+2*min(k, n-1)] for k in range(8)], [])
        A("  s_mov_b64 exec, 1")
        for i in range(16): A(f"  v_mov_b32 v{vRing+i}, s{regs[i]}")
        for i in range(4): A(f"  buffer_store_dwordx4 v[{vRing+4*i}:{vRing+4*i+3}], v{vZero}, s[36:39], s47 offen offset:{16*i}")

    if fuse:
        A(header + f"; @launch grid=(256,1,1) block=(320,1,1) lds={LDS}"); A("; single launch")
    else:
        A(header + f"; @launch kernel={KN} grid=(256,1,1) block=(320,1,1) lds={LDS}")
        A(f"; @launch kernel={K2} grid=(160,1,1) block=(64,1,1) lds=0" if not nok2 else "; (second launch disabled)")
    A('.amdgcn_target "amdgcn-amd-amdhsa--gfx950"')
    A(".text"); A(f".globl {KN}"); A(".p2align 8"); A(f".type {KN},@function"); A(f"{KN}:")
    A("  s_cmp_ge_u32 s2, 256"); A("  s_cbranch_scc1 L_end")
    A("  s_load_dwordx16 s[64:79], s[0:1], 0")
    A("  s_load_dwordx4 s[80:83], s[0:1], 64")
    A("  s_load_dwordx4 s[40:43], s[0:1], 88")
    if curve: A("  s_memrealtime s[96:97]"); A(f"  v_mov_b32 v{vCv}, 0"); A(f"  v_mov_b32 v{vCv+1}, 0")
    stamp("s", "start"); names["h"] = ["hstart"] if stamps else []
    A("  s_and_b32 s3, s2, 7             ; x"); A("  s_lshr_b32 s4, s2, 3            ; j")
    A(f"  v_lshrrev_b32 v{vT0}, 6, v0"); A(f"  v_and_b32 v{vLane}, 63, v0")
    A(f"  v_readfirstlane_b32 s5, v{vT0}     ; wave")
    A(f"  v_mov_b32 v{vZero}, 0")
    A(f"  v_lshrrev_b32 v{vT1}, 3, v{vLane}    ; l/8"); A(f"  v_and_b32 v{vT2}, 7, v{vLane}        ; l%8")
    A(f"  s_mov_b32 s38, {WS}"); A("  s_mov_b32 s39, 0x20000")
    A("  s_cmp_lg_u32 s5, 4"); A("  s_cbranch_scc1 L_stream")
    A("  s_memrealtime s[48:49]")
    A("  s_mov_b32 s10, 256"); A("  s_mov_b32 s11, 0x20000")
    A("  s_waitcnt lgkmcnt(0)")
    A("  s_mov_b32 s8, s40"); A("  s_mov_b32 s9, s41")
    A("  s_or_b32 s46, s48, 1")
    A("  s_cmp_lg_u32 s2, 0"); A("  s_cbranch_scc1 L_helper")
    A(f"  v_mov_b32 v{vT0}, s46"); A("  s_mov_b64 exec, 1")
    A(f"  buffer_store_dword v{vT0}, v{vZero}, s[8:11], 0 offen sc1")
    A("  s_mov_b64 exec, -1"); A("  s_branch L_helper")
    A("L_stream:")
    A(f"  v_lshlrev_b32 v{vT3}, 4, v{vT2}")
    A(f"  v_mul_u32_u24 v{vKV}, 384, v{vT1}"); A(f"  v_add_u32 v{vKV}, v{vKV}, v{vT3}")
    A(f"  v_mul_u32_u24 v{vW}, {20*12288}, v{vT1}"); A(f"  v_add_u32 v{vW}, v{vW}, v{vT3}")
    A(f"  v_mul_u32_u24 v{vT0}, 40, v{vT1}")
    A("  s_lshl_b32 s13, s4, 2"); A("  s_add_u32 s13, s13, s5"); A("  s_mul_i32 s13, s13, 3072")
    A("  s_mul_i32 s47, s3, 3145728"); A("  s_add_u32 s12, s13, s47")
    A("  s_mul_i32 s47, s4, 171"); A("  s_lshr_b32 s47, s47, 9          ; sigma")
    A("  s_mul_i32 s48, s47, 3"); A("  s_sub_u32 s48, s4, s48          ; c")
    A("  s_and_b32 s49, s47, 3"); A("  s_lshl_b32 s49, s49, 3"); A(f"  s_mul_i32 s47, s47, {rot}"); A("  s_add_u32 s47, s47, s3"); A("  s_and_b32 s47, s47, 7"); A("  s_add_u32 s49, s49, s47         ; h")
    A("  s_mul_i32 s49, s49, 384"); A("  s_lshl_b32 s48, s48, 7"); A("  s_add_u32 s28, s49, s48")
    A(f"  s_mul_i32 s48, s5, {160*12288}"); A("  s_add_u32 s28, s28, s48")
    A("  s_mul_i32 s29, s5, 320")
    A(f"  s_mov_b32 s10, {KVBYTES}"); A("  s_mov_b32 s11, 0x20000")
    A(f"  s_mov_b32 s26, {WBYTES}"); A("  s_mov_b32 s27, 0x20000")
    A("  s_mov_b32 s34, 2560"); A("  s_mov_b32 s35, 0x20000")
    A("  s_cmp_ge_u32 s4, 12")
    A("  s_waitcnt lgkmcnt(0)")
    A("  s_cselect_b32 s24, s80, s70"); A("  s_cselect_b32 s25, s81, s71")
    A("  s_cselect_b32 s32, s74, s64"); A("  s_cselect_b32 s33, s75, s65")
    A("  s_mov_b32 s8, s66"); A("  s_mov_b32 s9, s67")
    HEADJ = 393216 + 7 * 3145728
    def kv_load(n):
        s, t = divmod(n, 3)
        A(f"  buffer_load_dwordx4 v[{ring(s,t)}:{ring(s,t)+3}], v{vKV}, s[8:11], s12 offen offset:{128*t} nt")
        if t == 2 and s < 7: A("  s_add_u32 s12, s12, 393216")
    def consts():
        A(f"  v_and_b32 v{vT0}, 1, v{vT2}"); A(f"  v_lshlrev_b32 v{vT0}, 4, v{vT0}")
        A(f"  v_mov_b32 v{vT3}, 0xffff"); A(f"  v_lshlrev_b32 v{vT0}, v{vT0}, v{vT3}")
        A(f"  v_lshrrev_b32 v{vT3}, 1, v{vT2}")
        for q in range(4):
            A(f"  v_cmp_eq_u32 vcc, {q}, v{vT3}"); A("  s_nop 1"); A(f"  v_cndmask_b32 v{vM+q}, 0, v{vT0}, vcc")
        A("  s_mov_b32 s54, 0x00ff00ff"); A("  s_mov_b32 s55, 0xff00ff00")
    A("  s_cmp_ge_u32 s4, 24"); A("  s_cbranch_scc1 L_noq")
    for b in range(2):
        A(f"  buffer_load_dwordx4 v[{vX+10*b}:{vX+10*b+3}], v{vT0}, s[32:35], s29 offen offset:{1280*b}")
        A(f"  buffer_load_dwordx4 v[{vX+10*b+4}:{vX+10*b+7}], v{vT0}, s[32:35], s29 offen offset:{1280*b+16}")
        A(f"  buffer_load_dwordx2 v[{vX+10*b+8}:{vX+10*b+9}], v{vT0}, s[32:35], s29 offen offset:{1280*b+32}")
    def wq_load(i):
        A(f"  buffer_load_dwordx4 a[{4*i}:{4*i+3}], v{vW}, s[24:27], s28 offen {wqpol}")
        if i < 19: A("  s_add_u32 s28, s28, 12288")
    nq = wqd or 20
    for i in range(nq): wq_load(i)
    consts()
    A("  s_mov_b32 s52, 0x01000100"); A("  s_mov_b32 s53, 0x03020302")
    nk = 0
    for i in range(20):
        A(f"  s_waitcnt vmcnt({nq - 1 - i + nk})")
        if nq < 20: wq_load(nq); nq += 1
        else:
            while (19 - i + nk) < d0: kv_load(nk); nk += 1
        for b in range(2):
            A(f"  v_perm_b32 v{vT0}, v{vX+10*b+i//2}, v{vX+10*b+i//2}, s{52+(i&1)}")
            for q in range(4): A(f"  v_and_b32 v{vB+4*b+q}, v{vT0}, v{vM+q}")
        for b in range(2):
            if b == 1: A("  s_nop 0")
            c = f"v[{vD+4*b}:{vD+4*b+3}]" if i else "0"
            A(f"  v_mfma_f32_16x16x32_bf16 v[{vD+4*b}:{vD+4*b+3}], v[{vB+4*b}:{vB+4*b+3}], a[{4*i}:{4*i+3}], {c}")
    assert nk == d0
    A(f"  v_lshrrev_b32 v{vT0}, 5, v{vLane}"); A(f"  v_lshlrev_b32 v{vT0}, 9, v{vT0}")
    A(f"  v_lshl_add_u32 v{vT0}, v{vT2}, 5, v{vT0}")
    A(f"  v_and_b32 v{vT3}, 16, v{vLane}"); A(f"  v_add_u32 v{vT0}, v{vT0}, v{vT3}")
    A("  s_lshl_b32 s47, s5, 10"); A(f"  v_add_u32 v{vT0}, s47, v{vT0}")
    A("  s_nop 0")
    A("  s_mov_b64 exec, s[54:55]")
    for b in range(2): A(f"  ds_write_b128 v{vT0}, v[{vD+4*b}:{vD+4*b+3}] offset:{L_Y + 256*b}")
    A("  s_mov_b64 exec, -1")
    A("  s_branch L_qdone")
    A("L_noq:")
    for n in range(d0): kv_load(n)
    consts()
    A("L_qdone:")
    stamp("s", "preB1")
    A("  s_waitcnt lgkmcnt(0)"); A("  s_barrier                       ; B1: q partials")
    rest = []
    R = rest.append
    R([f"  s_mul_i32 s47, s5, {PWAVE}", f"  s_add_u32 s47, s47, {L_P}", f"  v_mul_u32_u24 v{vPa}, {PROW}, v{vT1}", f"  v_add_u32 v{vPa}, s47, v{vPa}"])
    R([f"  v_lshlrev_b32 v{vQa}, 4, v{vT2}", f"  s_lshl_b32 s47, s5, 3", f"  v_mov_b32 v{vMLa}, s47", f"  s_lshl_b32 s47, s5, 2", f"  v_mov_b32 v{vCa}, s47", f"  v_mov_b32 v{vProg}, 0"])
    R([f"  v_lshrrev_b32 v{vDa}, 5, v{vLane}", f"  v_mul_u32_u24 v{vDa}, 768, v{vDa}", f"  v_lshl_add_u32 v{vDa}, v{vT2}, 5, v{vDa}",
       f"  v_and_b32 v{vT3}, 16, v{vLane}", f"  v_add_u32 v{vDa}, v{vDa}, v{vT3}", "  s_mul_i32 s47, s5, 1536", f"  s_add_u32 s47, s47, {L_O}", f"  v_add_u32 v{vDa}, s47, v{vDa}"])
    R(["  s_mov_b32 s16, s68", "  s_mov_b32 s17, s69", "  s_mov_b32 s18, s76", "  s_mov_b32 s19, s77", "  s_mov_b32 s20, s78", "  s_mov_b32 s21, s79"])
    R(["  s_cmp_ge_u32 s4, 16", "  s_cselect_b32 s24, s82, s72", "  s_cselect_b32 s25, s83, s73", "  s_mov_b32 s36, s42", "  s_mov_b32 s37, s43"])
    R(["  s_lshr_b32 s47, s4, 2", f"  s_mul_i32 s49, s47, {rot}", "  s_add_u32 s49, s49, s3", "  s_and_b32 s49, s49, 7", "  s_and_b32 s47, s47, 3", "  s_lshl_b32 s48, s47, 3", "  s_add_u32 s48, s48, s49", "  s_mul_i32 s48, s48, 192",
       "  s_and_b32 s49, s4, 3", "  s_lshl_b32 s49, s49, 2", "  s_add_u32 s49, s49, s5", "  s_lshl_b32 s49, s49, 2      ; 16qd+4w",
       "  s_add_u32 s28, s48, s49", "  s_mul_i32 s28, s28, 1280"])
    R(["  s_lshr_b32 s48, s4, 4", "  s_lshl_b32 s48, s48, 3", "  s_add_u32 s48, s48, s47", "  s_lshl_b32 s48, s48, 15", "  s_lshl_b32 s49, s49, 4", "  s_add_u32 s48, s48, s49",
       "  s_lshl_b32 s49, s3, 19", "  s_add_u32 s48, s48, s49", f"  s_add_u32 s60, s48, {W_O}", "  s_add_u32 s61, s60, 8192", "  s_add_u32 s62, s60, 16384", "  s_add_u32 s63, s60, 24576"])
    R([f"  v_lshrrev_b32 v{vT0}, 4, v{vLane}", f"  v_mul_u32_u24 v{vW}, 1280, v{vT0}", f"  v_and_b32 v{vT3}, 15, v{vLane}", f"  v_lshl_add_u32 v{vW}, v{vT3}, 4, v{vW}"])
    R([f"  s_mov_b32 s58, {f32hex(192 ** -0.5 * math.log2(math.e))}", "  s_mov_b32 s44, 0", f"  s_mov_b32 s45, {mode0}"])
    for n in range(d0, 24):
        A(f"  s_waitcnt vmcnt({d0-1})")
        kv_load(n)
        if rest:
            for x in rest.pop(0): A(x)
    assert not rest
    stamp("s", "ring")
    A("  s_barrier")
    for t in range(3): A(f"  ds_read_b128 v[{vQ+4*t}:{vQ+4*t+3}], v{vQa} offset:{L_Q + 128*t}")
    stamp("s", "B2")
    A("  s_waitcnt lgkmcnt(0)")
    def throttle(tag):
        A(f"  s_waitcnt vmcnt({hi})")
        if pace:
            A("  s_cmp_eq_u32 s45, 2"); A(f"  s_cbranch_scc1 {tag}")
        A(f"  s_waitcnt vmcnt({mid})")
        if pace and lo != mid:
            A("  s_cmp_eq_u32 s45, 1"); A(f"  s_cbranch_scc1 {tag}")
            A(f"  s_waitcnt vmcnt({lo})")
        A(f"{tag}:")
    def switch(tag):
        A("  s_add_u32 s47, s44, 1"); A("  s_lshr_b32 s48, s47, 4"); A("  s_lshl_b32 s48, s48, 2"); A("  s_and_b32 s49, s47, 3"); A("  s_add_u32 s48, s48, s49")
        A(f"  s_mul_i32 s48, s48, {rot}"); A("  s_add_u32 s48, s48, s3"); A("  s_and_b32 s48, s48, 7")
        A("  s_and_b32 s47, s47, 7"); A(f"  s_cbranch_scc1 {tag}")
        A("  s_mov_b32 s8, s16"); A("  s_mov_b32 s9, s17")
        for k in range(4): A(f"  s_mov_b32 s{16+k}, s{18+k}")
        A(f"{tag}:")
        A("  s_lshl_b32 s47, s47, 3"); A("  s_add_u32 s48, s48, s47"); A("  s_mul_i32 s48, s48, 3145728"); A("  s_add_u32 s12, s13, s48")
    def body(tag, gaps):
        for n in range(24):
            s, j = divmod(n, 3)
            for x in gaps.get(n, []): A(x)
            if j == 2 and pace:
                A("  s_waitcnt lgkmcnt(0)"); A(f"  v_readfirstlane_b32 s45, v{vMode}")
            throttle(f"{tag}_{n}")
            kv_load(n)
            if j == 1 and pace: A(f"  ds_read_b32 v{vMode}, v{vZero} offset:{L_CTL}")
            if j == 2:
                A(f"  v_add_u32 v{vProg}, 1, v{vProg}"); A(f"  ds_write_b32 v{vCa}, v{vProg} offset:{L_CTL+16}")
    def xred(op, t, u):
        return [f"  s_nop 1", f"  {op}_dpp v{t}, v{t}, v{t} row_ror:8 row_mask:0xf bank_mask:0xf",
                f"  v_mov_b32 v{u}, v{t}", "  s_nop 1", f"  v_permlane16_swap_b32 v{t}, v{u}", "  s_nop 0", f"  {op} v{t}, v{t}, v{u}",
                f"  v_mov_b32 v{u}, v{t}", "  s_nop 1", f"  v_permlane32_swap_b32 v{t}, v{u}", "  s_nop 0", f"  {op} v{t}, v{t}, v{u}"]
    kg = {}
    for s in range(4):
        for j in range(2):
            T = 2 * s + j
            kg[3*s+j] = [f"  s_waitcnt vmcnt({3*(7-T) + 3*s + j})"] + \
                        [f"  v_dot2_f32_bf16 v{vS+T}, v{ring(T,0)+k}, v{vQ+k}, {('v%d' % (vS+T)) if k else '0'}" for k in range(12)]
        g = []
        for pat in ("quad_perm:[1,0,3,2]", "quad_perm:[2,3,0,1]", "row_half_mirror"):
            g += ["  s_nop 0"] + [f"  v_add_f32_dpp v{vS+T}, v{vS+T}, v{vS+T} {pat} row_mask:0xf bank_mask:0xf" for T in (2*s, 2*s+1)]
        kg[3*s+2] = g
    kg[12] = [f"  v_add_u32 v{vQa}, 384, v{vQa}",
              f"  v_max3_f32 v{vT0}, v{vS}, v{vS+1}, v{vS+2}", f"  v_max3_f32 v{vT0}, v{vT0}, v{vS+3}, v{vS+4}",
              f"  v_max3_f32 v{vT0}, v{vT0}, v{vS+5}, v{vS+6}", f"  v_max_f32 v{vT0}, v{vT0}, v{vS+7}"] + \
             [f"  ds_read_b128 v[{vQ+4*t}:{vQ+4*t+3}], v{vQa} offset:{L_Q + 128*t}" for t in range(3)]
    kg[13] = xred("v_max_f32", vT0, vT1) + [f"  v_mul_f32 v{vD}, s58, v{vT0}"]
    kg[14] = [f"  v_fma_f32 v{vS+i}, v{vS+i}, s58, -v{vD}" for i in range(8)]
    kg[15] = [f"  v_exp_f32 v{vS+i}, v{vS+i}" for i in range(8)]
    kg[16] = [f"  v_add_f32 v{vD+1}, v{vS}, v{vS+1}"] + [f"  v_add_f32 v{vD+1}, v{vD+1}, v{vS+i}" for i in range(2, 8)]
    kg[17] = [f"  v_cvt_pk_bf16_f32 v{vS+i}, v{vS+i}, v{vS+i}" for i in range(8)]
    kg[18] = [f"  ds_write_b128 v{vPa}, v[{vS}:{vS+3}]", f"  ds_write_b128 v{vPa}, v[{vS+4}:{vS+7}] offset:16", f"  v_add_u32 v{vPa}, 32, v{vPa}"]
    kg[19] = xred("v_add_f32", vD+1, vT1)
    kg[21] = [f"  ds_write_b64 v{vMLa}, v[{vD}:{vD+1}] offset:{L_ML}", f"  v_add_u32 v{vMLa}, 32, v{vMLa}"]
    def vtile(T, wait):
        b = vB + 4 * (T & 1)
        g = [f"  v_and_b32 v{b+q}, v{vS+T}, v{vM+q}" for q in range(4)] + [f"  s_waitcnt vmcnt({wait})", "  s_nop 0"]
        for t in range(3):
            c = f"v[{vD+4*t}:{vD+4*t+3}]" if T else "0"
            g.append(f"  v_mfma_f32_16x16x32_bf16 v[{vD+4*t}:{vD+4*t+3}], v[{b}:{b+3}], v[{ring(T,t)}:{ring(T,t)+3}], {c}")
        return g
    dump = ["  s_mov_b64 exec, s[54:55]"] + [f"  ds_write_b128 v{vDa}, v[{vD+4*t}:{vD+4*t+3}] offset:{256*t}" for t in range(3)] + ["  s_mov_b64 exec, -1"]
    pread = [f"  ds_read_b128 v[{vS}:{vS+3}], v{vPa}", f"  ds_read_b128 v[{vS+4}:{vS+7}], v{vPa} offset:16"]
    vg = {}
    for s in range(4):
        for j in range(2): vg[3*s+j] = vtile(2*s+j, 3*(7-(2*s+j)) + 3*s + j)
    vg[12] = ["  s_nop 7"] + dump + [f"  v_add_u32 v{vDa}, 6144, v{vDa}", f"  v_add_u32 v{vPa}, 32, v{vPa}"]
    vg[13] = pread
    vg[20] = ["  s_waitcnt lgkmcnt(0)"]
    kg[20] = ["  s_waitcnt lgkmcnt(0)"]
    def cstamp():
        if not curve: return
        A("  s_memrealtime s[98:99]"); A("  s_mov_b32 m0, s44"); A("  s_waitcnt lgkmcnt(0)")
        A(f"  v_writelane_b32 v{vCv}, s98, m0"); A(f"  v_writelane_b32 v{vCv+1}, s99, m0")
    A("L_kloop:")
    switch("L_ksw")
    body("L_k", kg); cstamp()
    A("  s_add_u32 s44, s44, 1"); A("  s_and_b32 s47, s44, 7"); A("  s_cbranch_scc1 L_kloop")
    A(f"  v_subrev_u32 v{vPa}, 256, v{vPa}")
    for x in pread: A(x)
    A("  s_waitcnt lgkmcnt(0)")
    A("L_vloop:")
    switch("L_vsw")
    body("L_v", vg); cstamp()
    A("  s_add_u32 s44, s44, 1")
    A("  s_cmp_eq_u32 s44, 31"); A("  s_cbranch_scc1 L_last")
    A("  s_and_b32 s47, s44, 7"); A("  s_cbranch_scc1 L_vloop")
    A(f"  v_subrev_u32 v{vPa}, 256, v{vPa}")
    A("  s_branch L_kloop")
    A("L_last:")
    def wo_load(i):
        tp, c = divmod(i, 5)
        A(f"  s_waitcnt vmcnt({dl-1})")
        A(f"  buffer_load_dwordx4 a[{4*i}:{4*i+3}], v{vW}, s[24:27], s28 offen offset:{256*c} {wopol}")
        if c == 4 and tp < 2: A("  s_add_u32 s28, s28, 81920")
    sched = {1: [0, 1], 2: [2, 3], 3: [4, 5], dl - 1: [6], dl: [7]}
    if dl - 1 == 3: sched = {1: [0, 1, 2], 2: [3, 4, 5], 3: [6], 4: [7]}
    for i in range(15):
        for T in sched.get(i, []):
            for x in vtile(T, 3*(7-T) + i): A(x)
        if i == dl:
            A(f"  v_add_u32 v{vProg}, 8, v{vProg}"); A("  s_nop 5")
            for x in dump: A(x)
            A(f"  ds_write_b32 v{vCa}, v{vProg} offset:{L_CTL+16}")
            stamp("s", "vend")
        if i == dl + 1:
            A(f"  v_and_b32 v{vT0}, 8, v{vLane}"); A(f"  v_lshlrev_b32 v{vT0}, 14, v{vT0}")
            A(f"  v_and_b32 v{vT2}, 7, v{vLane}"); A(f"  v_lshl_add_u32 v{vT0}, v{vT2}, 10, v{vT0}")
            A(f"  v_and_b32 v{vT3}, 48, v{vLane}"); A(f"  v_add_u32 v{vT0}, v{vT0}, v{vT3}")
            A(f"  v_and_b32 v{vT2}, 15, v{vLane}"); A(f"  v_lshlrev_b32 v{vT1}, 4, v{vT2}")
        if i == dl + 2 and loc:
            A(f"  s_mul_i32 s59, s3, {32768 - 524288}"); A(f"  s_add_u32 s59, s59, {W_OL - W_O - 15*32768}")
            A("  s_cmp_ge_u32 s4, 28"); A("  s_cselect_b32 s59, s59, 0")
            A(f"  v_bfe_u32 v{vMode}, v{vLane}, 3, 1")
        if i == dl + 2:
            A(f"  v_lshrrev_b32 v{vDa}, 5, v{vLane}"); A(f"  v_mul_u32_u24 v{vDa}, 2560, v{vDa}")
            A(f"  v_lshl_add_u32 v{vDa}, v{vT2}, 5, v{vDa}")
            A(f"  v_and_b32 v{vT3}, 16, v{vLane}"); A(f"  v_add_u32 v{vDa}, v{vDa}, v{vT3}")
            A("  s_mul_i32 s47, s5, 5120"); A(f"  v_add_u32 v{vDa}, s47, v{vDa}")
        if i == dl + 3:
            A(f"  s_mov_b32 s50, {SPIN*8}")
            A("L_wwait:")
            A(f"  ds_read_b64 v[{vS}:{vS+1}], v{vZero} offset:{L_CTL+8}")
            A("  s_waitcnt lgkmcnt(0)")
            A(f"  v_readfirstlane_b32 s47, v{vS}"); A(f"  v_readfirstlane_b32 s46, v{vS+1}")
            A("  s_sub_u32 s50, s50, 1"); A("  s_cbranch_scc1 L_wgo")
            A("  s_cmp_eq_u32 s47, 0"); A("  s_cbranch_scc1 L_wwait")
            A("L_wgo:")
            A(f"  ds_read_b128 v[{vS}:{vS+3}], v{vT1} offset:{L_W}")
        wo_load(i)
    G = vRing
    A(f"  s_mov_b32 s50, {SPIN}")
    A("L_gather:")
    if loc:
        A(f"  s_cmp_gt_u32 s50, {SPIN - nloc}"); A("  s_cselect_b32 s47, s59, 0")
        A(f"  v_mad_u32_u24 v{vT3}, v{vMode}, s47, v{vT0}")
    for k in range(4): A(f"  buffer_load_dwordx4 v[{G+4*k}:{G+4*k+3}], v{vT3 if loc else vT0}, s[36:39], s{60+k} offen sc1")
    A("  s_waitcnt vmcnt(0) lgkmcnt(0)")
    A(f"  v_cmp_ne_u32 s[48:49], s46, v{G+3}")
    for k in range(1, 4):
        A(f"  v_cmp_ne_u32 vcc, s46, v{G+4*k+3}"); A("  s_or_b64 s[48:49], s[48:49], vcc")
    A("  s_sub_u32 s50, s50, 1"); A("  s_cbranch_scc1 L_ggo")
    A("  s_cmp_eq_u64 s[48:49], 0"); A("  s_cbranch_scc0 L_gather")
    A("L_ggo:")
    stamp("s", "gath")
    for t in range(3): A(f"  v_mul_f32 v{G+t}, v{vS}, v{G+t}")
    for k in range(1, 4):
        for t in range(3): A(f"  v_fmac_f32 v{G+t}, v{vS+k}, v{G+4*k+t}")
    for pat in ("quad_perm:[1,0,3,2]", "quad_perm:[2,3,0,1]", "row_half_mirror"):
        for t in range(3): A(f"  v_add_f32_dpp v{G+t}, v{G+t}, v{G+t} {pat} row_mask:0xf bank_mask:0xf")
    for t in range(3): A(f"  v_cvt_pk_bf16_f32 v{G+t}, v{G+t}, v{G+t}")
    for t in range(3):
        for q in range(4): A(f"  v_and_b32 v{G+4+4*t+q}, v{G+t}, v{vM+q}")
    for tp in range(3):
        for c in range(5):
            i = tp * 5 + c
            cc = f"v[{vD+4*c}:{vD+4*c+3}]" if tp else "0"
            A(f"  v_mfma_f32_16x16x32_bf16 v[{vD+4*c}:{vD+4*c+3}], v[{G+4+4*tp}:{G+7+4*tp}], a[{4*i}:{4*i+3}], {cc}")
    A("  s_nop 3")
    for c in range(5): A(f"  ds_write_b128 v{vDa}, v[{vD+4*c}:{vD+4*c+3}] offset:{L_Y + 512*c}")
    A("L_yred:")
    A(f"  v_lshlrev_b32 v{vT1}, 4, v0")
    A(f"  v_mov_b32 v{vT2}, {327680 - 2560}"); A("  v_cmp_le_u32 vcc, 160, v0")
    A("  s_lshr_b32 s47, s4, 4"); A(f"  s_mul_i32 s47, s47, {2*327680}")
    A(f"  v_cndmask_b32 v{vT2}, 0, v{vT2}, vcc"); A(f"  v_add_u32 v{vT2}, v{vT2}, v{vT1}")
    A("  s_and_b32 s48, s2, 127"); A("  s_mul_i32 s48, s48, 2560"); A("  s_add_u32 s47, s47, s48")
    if fuse:
        A(f"  v_mov_b32 v{vT0}, s46")
        for i in range(4): A(f"  s_mov_b32 s{52+i}, 0x0706050{i}")
    A("  s_waitcnt lgkmcnt(0)"); A("  s_barrier                       ; B3: y partials")
    for k in range(4): A(f"  ds_read_b128 v[{vD+4*k}:{vD+4*k+3}], v{vT1} offset:{L_Y + 5120*k}")
    for k in range(1, 4):
        A(f"  s_waitcnt lgkmcnt({3-k})")
        for r in range(4): A(f"  v_add_f32 v{vD+r}, v{vD+r}, v{vD+4*k+r}")
    if fuse:
        for r in range(4): A(f"  v_perm_b32 v{vD+r}, v{vD+r}, v{vT0}, s{52+r}")
    A(f"  buffer_store_dwordx4 v[{vD}:{vD+3}], v{vT2}, s[36:39], s47 offen{' sc1' if fuse else ''}")
    if fuse:
        A("  s_cmp_eq_u32 s5, 4"); A("  s_cbranch_scc1 L_final")
    if curve:
        A("  s_cmp_lg_u32 s5, 0"); A("  s_cbranch_scc1 L_end")
        A("  s_getreg_b32 s100, hwreg(HW_REG_XCC_ID)")
        A(f"  s_mul_i32 s47, s2, 144"); A(f"  s_add_u32 s47, s47, {WS - (1<<20)}")
        A(f"  v_lshlrev_b32 v{vT0}, 2, v{vLane}"); A(f"  v_add_u32 v{vT0}, 16, v{vT0}")
        A("  s_mov_b32 exec_lo, 0x55555555"); A("  s_mov_b32 exec_hi, 0")
        A(f"  buffer_store_dwordx2 v[{vCv}:{vCv+1}], v{vT0}, s[36:39], s47 offen")
        A("  s_mov_b64 exec, 1")
        A(f"  v_mov_b32 v{vRing}, s96"); A(f"  v_mov_b32 v{vRing+1}, s97"); A(f"  v_mov_b32 v{vRing+2}, s100"); A(f"  v_mov_b32 v{vRing+3}, 0")
        A(f"  buffer_store_dwordx4 v[{vRing}:{vRing+3}], v{vZero}, s[36:39], s47 offen")
    if stamps:
        A("  s_cmp_eq_u32 s5, 4"); A("  s_cbranch_scc1 L_hst")
        A("  s_cmp_lg_u32 s5, 0"); A("  s_cbranch_scc1 L_end")
        A("  s_waitcnt vmcnt(0)")
        stamp("s", "end")
        dump_stamps("s", 0)
    A("L_end:"); A("  s_endpgm")
    H = vRing
    A("L_helper:")
    A(f"  v_mov_b32 v{H}, {mode0}"); A(f"  v_mov_b32 v{H+1}, 0"); A(f"  v_mov_b32 v{H+2}, 0"); A(f"  v_mov_b32 v{H+3}, 0"); A(f"  v_mov_b32 v{H+4}, 0"); A(f"  v_mov_b32 v{H+5}, 0")
    A(f"  ds_write_b128 v{vZero}, v[{H}:{H+3}] offset:{L_CTL}"); A(f"  ds_write_b128 v{vZero}, v[{H+2}:{H+5}] offset:{L_CTL+16}")
    A("  s_mov_b32 s36, s42"); A("  s_mov_b32 s37, s43")
    A(f"  v_lshlrev_b32 v{vT0}, 3, v{vLane}      ; lane*8"); A(f"  v_lshlrev_b32 v{vT3}, 4, v{vLane}      ; lane*16")
    A(f"  s_mul_i32 s12, s3, {24*512}"); A(f"  s_add_u32 s12, s12, {W_Q}")
    A("  s_lshl_b32 s13, s4, 9"); A("  s_add_u32 s13, s13, s12")
    A("  s_add_u32 s14, s12, 4096"); A("  s_add_u32 s15, s12, 8192")
    if dry:
        A("  s_mov_b32 s38, 0")
        A("  s_mov_b32 s45, 0"); A("  s_branch L_hq1")
    A("L_hreal:")
    A(f"  s_mov_b32 s38, {WS}"); A(f"  s_mov_b32 s45, {SPIN}")
    A("  s_cmp_eq_u32 s2, 0"); A("  s_cbranch_scc1 L_nhave")
    A(f"  s_mov_b32 s50, {SPIN}")
    if nslp0: A(f"  s_sleep {nslp0}")
    A("L_nloop:")
    A(f"  buffer_load_dword v{H}, v{vZero}, s[8:11], 0 offen sc1"); A("  s_waitcnt vmcnt(0)")
    A(f"  v_readfirstlane_b32 s46, v{H}")
    A("  s_sub_u32 s50, s50, 1"); A("  s_cbranch_scc1 L_nhave")
    A("  s_cmp_lg_u32 s46, 0"); A("  s_cbranch_scc1 L_nhave")
    A(f"  s_sleep {nslp}"); A("  s_branch L_nloop")
    A("L_nhave:")
    stamp("h", "nonce")
    A(f"  v_mov_b32 v{H}, s46"); A(f"  ds_write_b32 v{vZero}, v{H} offset:{L_CTL+12}")
    A("  s_waitcnt lgkmcnt(0)"); A("  s_barrier                       ; B1")
    A("L_hq1:")
    A("  s_cmp_ge_u32 s4, 24"); A("  s_cbranch_scc1 L_hq2")
    for k in range(8): A(f"  ds_read_b64 v[{H+2*k}:{H+2*k+1}], v{vT0} offset:{L_Y + 512*k}")
    for k in range(1, 8):
        A(f"  s_waitcnt lgkmcnt({7-k})")
        for r in range(2): A(f"  v_add_f32 v{H+r}, v{H+r}, v{H+2*k+r}")
    A(f"  v_cvt_pk_bf16_f32 v{vD}, v{H}, v{H+1}"); A(f"  v_mov_b32 v{vD+1}, s46")
    def qglob(tag):
        A("  s_cmp_ge_u32 s4, 24"); A(f"  s_cbranch_scc1 {tag}")
        A(f"  buffer_store_dwordx2 v[{vD}:{vD+1}], v{vT0}, s[36:39], s13 offen sc1")
        A(f"{tag}:")
    if loc:
        A(f"  s_add_u32 s47, s13, {QLOC}")
        A(f"  buffer_store_dwordx2 v[{vD}:{vD+1}], v{vT0}, s[36:39], s47 offen")
    else:
        A(f"  buffer_store_dwordx2 v[{vD}:{vD+1}], v{vT0}, s[36:39], s13 offen sc1")
    A("L_hq2:")
    A(f"  v_and_b32 v{vT1}, 16, v{vLane}"); A(f"  v_mul_u32_u24 v{vT1}, 96, v{vT1}")
    A(f"  v_and_b32 v{vT2}, 15, v{vLane}"); A(f"  v_lshl_add_u32 v{vT1}, v{vT2}, 3, v{vT1}")
    A(f"  v_lshrrev_b32 v{vT2}, 5, v{vLane}")
    A(f"  s_mov_b32 s50, s45")
    A("L_qg:")
    if loc:
        A(f"  s_cmp_lg_u32 s50, {SPIN - nloc}"); A("  s_cbranch_scc1 L_qg1"); qglob("L_qg1")
    A(f"  s_cmp_gt_u32 s50, {SPIN - nloc}"); A(f"  s_cselect_b32 s47, {QLOC if loc else 0}, 0")
    A(f"  v_add_u32 v{vDa}, s47, v{vT3}")
    for k in range(12):
        A(f"  buffer_load_dwordx4 v[{H+4*k}:{H+4*k+3}], v{vDa}, s[36:39], s{(12,14,15)[k//4]} offen offset:{1024*(k%4)} sc1")
    A("  s_mov_b64 s[48:49], 0")
    for k in range(12):
        A(f"  s_waitcnt vmcnt({11-k})")
        for r in (1, 3):
            A(f"  v_cmp_ne_u32 vcc, s46, v{H+4*k+r}"); A("  s_or_b64 s[48:49], s[48:49], vcc")
    A("  s_sub_u32 s50, s50, 1"); A("  s_cbranch_scc1 L_qgo")
    A("  s_cmp_eq_u64 s[48:49], 0"); A("  s_cbranch_scc0 L_qg")
    A("L_qgo:")
    def qconst(item):
        sg, c = divmod(item, 3); return ((sg >> 2) * 8 + (sg & 3)) * 384 + c * 128
    for k in range(12):
        c0, c1 = qconst(2 * k), qconst(2 * k + 1)
        A(f"  v_mov_b32 v{H+4*k+1}, v{H+4*k+2}")
        if k == 0 or (c1 - c0) != (qconst(2*k-1) - qconst(2*k-2)):
            A(f"  v_mul_u32_u24 v{vPa}, {c1-c0}, v{vT2}"); A(f"  v_add_u32 v{vPa}, v{vPa}, v{vT1}")
        A(f"  ds_write_b64 v{vPa}, v[{H+4*k}:{H+4*k+1}] offset:{L_Q + c0}")
    A("  s_waitcnt lgkmcnt(0)")
    if dry: A("  s_cmp_eq_u32 s45, 0"); A("  s_cbranch_scc1 L_hreal")
    stamp("h", "qtab")
    A("  s_barrier                       ; B2")
    if loc: qglob("L_qg2")
    A("  s_getreg_b32 s56, hwreg(HW_REG_XCC_ID)"); A("  s_and_b32 s56, s56, 7")
    A("  s_mul_i32 s57, s56, 8448"); A(f"  s_add_u32 s57, s57, {W_B}")
    A("  s_lshl_b32 s59, s4, 2"); A("  s_add_u32 s59, s59, s57")
    A("  s_lshl_b32 s62, s56, 2"); A(f"  s_add_u32 s62, s62, {W_G}"); A(f"  s_mov_b32 s28, {lper-1}")
    A(f"  s_add_u32 s16, s42, {W_G}"); A("  s_addc_u32 s17, s43, 0")
    A("  s_and_b32 s51, s46, 0xffff0000   ; tag")
    A(f"  v_lshlrev_b32 v{vQa}, 2, v{vLane}")
    A("  s_mov_b32 s18, -1"); A("  s_mov_b32 s19, 1")
    A(f"  s_mov_b32 s44, {t_ml}")
    A("L_pace:")
    A(f"  s_sleep {slp}")
    if pace: A("  s_memrealtime s[26:27]")
    A(f"  ds_read_b128 v[{H}:{H+3}], v{vZero} offset:{L_CTL+16}"); A("  s_waitcnt lgkmcnt(0)")
    A(f"  v_min3_u32 v{H+4}, v{H}, v{H+1}, v{H+2}"); A(f"  v_min_u32 v{H+4}, v{H+4}, v{H+3}")
    A(f"  v_add3_u32 v{H+5}, v{H}, v{H+1}, v{H+2}"); A(f"  v_add_u32 v{H+5}, v{H+5}, v{H+3}")
    A(f"  v_readfirstlane_b32 s20, v{H+4}")
    A("  s_cmp_ge_u32 s20, s44"); A("  s_cbranch_scc1 L_event")
    if pace:
        A(f"  v_readfirstlane_b32 s21, v{H+5}")
        A(f"  s_mul_i32 s22, s26, {kap}"); A("  s_lshr_b32 s22, s22, 6")
        A("  s_lshl_b32 s21, s21, 5"); A("  s_sub_u32 s21, s21, s22"); A("  s_and_b32 s21, s21, 0xffff")
        A("  s_or_b32 s22, s21, s51")
        A(f"  v_mov_b32 v{H+6}, s22"); A(f"  v_mov_b32 v{H+7}, 0")
        A("  s_mov_b64 exec, 1")
        A(f"  buffer_store_dword v{H+6}, v{vZero}, s[36:39], s59 offen")
        A("  s_mov_b64 exec, s[18:19]")
        A(f"  buffer_load_dword v{H+7}, v{vQa}, s[36:39], s57 offen sc1")
        A("  s_mov_b64 exec, -1")
        A("  s_waitcnt vmcnt(0)")
        A(f"  v_readlane_b32 s22, v{H+7}, 32")
        A(f"  v_xor_b32 v{H+7}, s51, v{H+7}")
        A(f"  v_cmp_gt_u32 vcc, 0x10000, v{H+7}")
        A(f"  v_subrev_u32 v{H+7}, s21, v{H+7}"); A(f"  v_bfe_i32 v{H+7}, v{H+7}, 0, 16")
        A(f"  v_cndmask_b32 v{H+7}, 0, v{H+7}, vcc")
        for sh in (1, 2, 4, 8):
            A("  s_nop 1"); A(f"  v_add_u32_dpp v{H+7}, v{H+7}, v{H+7} row_ror:{sh} row_mask:0xf bank_mask:0xf")
        A("  s_xor_b32 s22, s22, s51"); A("  s_cmp_lt_u32 s22, 0x10000"); A("  s_cselect_b32 s22, s22, 0"); A("  s_sext_i32_i16 s22, s22")
        A(f"  v_readlane_b32 s23, v{H+7}, 0"); A(f"  v_readlane_b32 s24, v{H+7}, 16")
        A("  s_add_u32 s23, s23, s24"); A("  s_ashr_i32 s23, s23, 5")
        A("  s_add_u32 s24, s23, s22")
        A(f"  s_cmp_gt_i32 s24, {-tb}"); A("  s_cselect_b32 s25, 2, 1")
        A(f"  s_cmp_lt_i32 s24, {-ta}"); A("  s_cselect_b32 s25, 0, s25")
        A(f"  v_mov_b32 v{H+6}, s25"); A(f"  ds_write_b32 v{vZero}, v{H+6} offset:{L_CTL}")
        if pace >= 2:
            A("  s_cmp_lg_u32 s4, 0"); A("  s_cbranch_scc1 L_pace")
            A("  s_add_u32 s28, s28, 1"); A(f"  s_cmp_lt_u32 s28, {lper}"); A("  s_cbranch_scc1 L_pace")
            A("  s_mov_b32 s28, 0")
            A("  s_load_dwordx8 s[64:71], s[16:17], 0 glc")
            A("  s_add_u32 s23, s23, s21"); A("  s_and_b32 s23, s23, 0xffff")
            A("  s_or_b32 s24, s23, s51"); A(f"  v_mov_b32 v{H+6}, s24")
            A("  s_waitcnt lgkmcnt(0)")
            A("  s_mov_b64 exec, 1")
            A(f"  buffer_store_dword v{H+6}, v{vZero}, s[36:39], s62 offen sc1")
            A("  s_mov_b32 s25, 0")
            for k in range(8):
                A(f"  s_xor_b32 s{64+k}, s{64+k}, s51"); A(f"  s_cmp_lt_u32 s{64+k}, 0x10000"); A(f"  s_cselect_b32 s{64+k}, s{64+k}, s23")
                A(f"  s_sub_u32 s{64+k}, s{64+k}, s23"); A(f"  s_sext_i32_i16 s{64+k}, s{64+k}"); A(f"  s_add_u32 s25, s25, s{64+k}")
            A("  s_ashr_i32 s25, s25, 3")
            A("  s_and_b32 s25, s25, 0xffff"); A("  s_or_b32 s25, s25, s51"); A(f"  v_mov_b32 v{H+6}, s25")
            A(f"  buffer_store_dword v{H+6}, v{vZero}, s[36:39], s57 offen offset:128")
            A("  s_mov_b64 exec, -1")
    A("  s_branch L_pace")
    A("L_event:")
    A(f"  s_cmp_eq_u32 s44, {t_w}"); A("  s_cbranch_scc1 L_evw")
    A(f"  s_cmp_eq_u32 s44, {t_f}"); A("  s_cbranch_scc1 L_flush")
    A(f"  v_and_b32 v{vT1}, 15, v{vLane}"); A(f"  v_lshlrev_b32 v{vT2}, 5, v{vT1}"); A(f"  v_lshlrev_b32 v{vT1}, 4, v{vT1}")
    A(f"  ds_read_b128 v[{H}:{H+3}], v{vT2} offset:{L_ML}"); A(f"  ds_read_b128 v[{H+4}:{H+7}], v{vT2} offset:{L_ML+16}")
    A("  s_lshl_b32 s47, s3, 5"); A("  s_add_u32 s47, s47, s4"); A("  s_lshl_b32 s47, s47, 8"); A(f"  s_add_u32 s47, s47, {W_ML}")
    A("  s_waitcnt lgkmcnt(0)")
    A(f"  v_max3_f32 v{H+8}, v{H}, v{H+2}, v{H+4}"); A(f"  v_max_f32 v{H+8}, v{H+8}, v{H+6}")
    for w in range(4): A(f"  v_sub_f32 v{H+12+w}, v{H+2*w}, v{H+8}")
    for w in range(4): A(f"  v_exp_f32 v{H+12+w}, v{H+12+w}")
    A(f"  v_mov_b32 v{H+10}, 0"); A(f"  v_mov_b32 v{H+11}, s46")
    A(f"  v_mul_f32 v{H+9}, v{H+12}, v{H+1}")
    for w in range(1, 4): A(f"  v_fmac_f32 v{H+9}, v{H+12+w}, v{H+2*w+1}")
    A(f"  ds_write_b128 v{vT1}, v[{H+12}:{H+15}] offset:{L_E}")
    A("  s_mov_b64 exec, 0xffff")
    A(f"  buffer_store_dwordx4 v[{H+8}:{H+11}], v{vT1}, s[36:39], s47 offen sc1")
    A("  s_mov_b64 exec, -1")
    A(f"  s_mov_b32 s44, {t_w}"); A("  s_branch L_pace")
    A("L_evw:")
    A(f"  v_and_b32 v{vT1}, 31, v{vLane}"); A(f"  v_lshlrev_b32 v{vT1}, 8, v{vT1}")
    A(f"  v_and_b32 v{vT2}, 32, v{vLane}"); A(f"  v_lshl_add_u32 v{vT1}, v{vT2}, 1, v{vT1}      ; producer*256 + b*64")
    A("  s_lshr_b32 s47, s4, 4"); A("  s_lshl_b32 s47, s47, 3"); A("  s_lshr_b32 s48, s4, 2"); A("  s_and_b32 s48, s48, 3"); A("  s_add_u32 s47, s47, s48")
    A("  s_lshl_b32 s47, s47, 4"); A("  s_lshl_b32 s48, s3, 13"); A("  s_add_u32 s47, s47, s48"); A(f"  s_add_u32 s47, s47, {W_ML}")
    A(f"  s_mov_b32 s50, {SPIN}")
    A("L_wg:")
    A(f"  buffer_load_dwordx4 v[{H}:{H+3}], v{vT1}, s[36:39], s47 offen sc1"); A("  s_waitcnt vmcnt(0)")
    A(f"  v_cmp_ne_u32 vcc, s46, v{H+3}")
    A("  s_sub_u32 s50, s50, 1"); A("  s_cbranch_scc1 L_wgo2")
    A("  s_cmp_eq_u64 vcc, 0"); A("  s_cbranch_scc1 L_wgo2")
    A("  s_sleep 16"); A("  s_branch L_wg")
    A("L_wgo2:")
    def red32(op, t, u):
        for sh in (1, 2, 4, 8):
            A("  s_nop 1"); A(f"  {op}_dpp v{t}, v{t}, v{t} row_ror:{sh} row_mask:0xf bank_mask:0xf")
        A(f"  v_mov_b32 v{u}, v{t}"); A("  s_nop 1"); A(f"  v_permlane16_swap_b32 v{t}, v{u}"); A("  s_nop 0"); A(f"  {op} v{t}, v{t}, v{u}")
    A(f"  v_mov_b32 v{H+4}, v{H}")
    red32("v_max_f32", H+4, H+5)
    A(f"  v_sub_f32 v{H}, v{H}, v{H+4}"); A(f"  v_exp_f32 v{H}, v{H}"); A("  s_nop 0")
    A(f"  v_mul_f32 v{H+4}, v{H}, v{H+1}")
    red32("v_add_f32", H+4, H+5)
    A(f"  v_rcp_f32 v{H+4}, v{H+4}")
    A(f"  v_and_b32 v{vT1}, 7, v{vLane}"); A(f"  v_lshlrev_b32 v{vT1}, 4, v{vT1}"); A(f"  v_lshl_add_u32 v{vT1}, v{vT2}, 2, v{vT1}")
    A(f"  v_and_b32 v{vT2}, 24, v{vLane}"); A(f"  v_lshrrev_b32 v{vT2}, 1, v{vT2}"); A(f"  v_add_u32 v{vT1}, v{vT1}, v{vT2}")
    A(f"  v_mul_f32 v{H}, v{H}, v{H+4}"); A(f"  v_mov_b32 v{H+1}, 1")
    A(f"  ds_write_b32 v{vT1}, v{H} offset:{L_W}"); A(f"  ds_write_b32 v{vZero}, v{H+1} offset:{L_CTL+8}")
    A(f"  s_mov_b32 s44, {t_f}"); A("  s_branch L_pace")
    A("L_flush:")
    stamp("h", "flush0")
    A(f"  v_mov_b32 v{H+6}, 1"); A(f"  ds_write_b32 v{vZero}, v{H+6} offset:{L_CTL}")
    A(f"  v_add_u32 v{vDa}, {L_O}, v{vQa}"); A(f"  v_mov_b32 v{vMLa}, {L_E}")
    A("  s_lshl_b32 s47, s3, 19"); A("  s_lshl_b32 s48, s4, 10"); A("  s_add_u32 s47, s47, s48"); A(f"  s_add_u32 s47, s47, {W_O}")
    A("  s_mov_b32 s44, 0")
    A(f"  v_mov_b32 v{H+35}, s46")
    A("L_fl:")
    A("  s_cmp_ge_u32 s44, 8"); A("  s_cselect_b32 s48, 16, 8"); A("  s_add_u32 s48, s48, s44"); A("  s_lshl_b32 s48, s48, 3"); A("  s_add_u32 s48, s48, 5")
    A(f"  ds_read_b128 v[{H+28}:{H+31}], v{vMLa}")
    A("L_flw:")
    A(f"  ds_read_b128 v[{H}:{H+3}], v{vZero} offset:{L_CTL+16}"); A("  s_waitcnt lgkmcnt(0)")
    A(f"  v_min3_u32 v{H+4}, v{H}, v{H+1}, v{H+2}"); A(f"  v_min_u32 v{H+4}, v{H+4}, v{H+3}"); A("  s_nop 0")
    A(f"  v_readfirstlane_b32 s20, v{H+4}")
    A("  s_cmp_lt_u32 s20, s48"); A("  s_cbranch_scc1 L_flw")
    for k in range(12): A(f"  ds_read2st64_b32 v[{H+2*k}:{H+2*k+1}], v{vDa} offset0:{2*k} offset1:{2*k+1}")
    for w in range(4):
        A(f"  s_waitcnt lgkmcnt({9-3*w})")
        for t in range(3): A(f"  v_add_f32 v{H+6*w+t}, v{H+6*w+t}, v{H+6*w+3+t}")
        for t in range(3):
            A(f"  v_mul_f32 v{H+32+t}, v{H+28}, v{H+t}" if w == 0 else f"  v_fmac_f32 v{H+32+t}, v{H+28+w}, v{H+6*w+t}")
    if loc:
        A("  s_cmp_lg_u32 s44, 15"); A("  s_cbranch_scc1 L_flg")
        A("  s_lshl_b32 s48, s3, 5"); A("  s_add_u32 s48, s48, s4"); A("  s_lshl_b32 s48, s48, 10"); A(f"  s_add_u32 s48, s48, {W_OL}")
        A(f"  buffer_store_dwordx4 v[{H+32}:{H+35}], v{vT3}, s[36:39], s48 offen")
        A("L_flg:")
    A(f"  buffer_store_dwordx4 v[{H+32}:{H+35}], v{vT3}, s[36:39], s47 offen sc1")
    A(f"  v_add_u32 v{vDa}, 6144, v{vDa}"); A(f"  v_add_u32 v{vMLa}, 16, v{vMLa}")
    A("  s_add_u32 s47, s47, 32768"); A("  s_add_u32 s44, s44, 1"); A("  s_cmp_lt_u32 s44, 16"); A("  s_cbranch_scc1 L_fl")
    stamp("h", "flushed")
    if fuse:
        A("  s_load_dwordx2 s[12:13], s[0:1], 80")
        A("  s_and_b32 s20, s2, 3"); A("  s_lshr_b32 s21, s2, 2")
        A(f"  v_lshrrev_b32 v{vPa}, 2, v{vLane}"); A(f"  v_and_b32 v{vQa}, 3, v{vLane}")
        A(f"  v_mul_u32_u24 v{vPa}, 5120, v{vPa}"); A(f"  v_lshl_add_u32 v{vPa}, v{vQa}, 4, v{vPa}"); A(f"  v_lshlrev_b32 v{vQa}, 3, v{vQa}")
        A("  s_mul_i32 s60, s20, 327680"); A("  s_lshl_b32 s22, s21, 6"); A("  s_add_u32 s60, s60, s22")
        A("  s_add_u32 s61, s60, 81920"); A("  s_add_u32 s62, s60, 163840"); A("  s_add_u32 s63, s60, 245760")
        A("  s_and_b32 s22, s20, 1"); A("  s_mul_i32 s22, s22, 2560"); A("  s_lshr_b32 s23, s20, 1"); A("  s_mul_i32 s23, s23, 1280")
        A("  s_add_u32 s22, s22, s23"); A("  s_lshl_b32 s23, s21, 5"); A("  s_add_u32 s22, s22, s23")
        A("  s_mov_b32 s14, 5120"); A("  s_mov_b32 s15, 0x20000")
        A("  s_mov_b32 s24, 0x0c0c0400"); A("  s_mov_b32 s25, 0x04000c0c"); A("  s_mov_b32 s26, 0xffffff00")
        for k in range(8): A(f"  s_mov_b64 s[{64+2*k}:{65+2*k}], -1")
    A("  s_branch L_yred")
    if fuse:
        A("L_final:")
        if stamps: A(f"  s_memrealtime s[{84+2*len(names['h'])}:{85+2*len(names['h'])}]"); A("  s_waitcnt lgkmcnt(0)")
        A(f"  s_cmp_ge_u32 s2, 160"); A(f"  s_cbranch_scc1 {'L_hst' if stamps else 'L_end'}")
        A(f"  s_mov_b32 s50, {SPIN}")
        A("L_fin:")
        if fslp: A(f"  s_sleep {fslp}")
        for k in range(8):
            A(f"  s_mov_b64 exec, s[{64+2*k}:{65+2*k}]"); A(f"  s_cbranch_execz L_fin{k}")
            A(f"  buffer_load_dwordx4 v[{H+4*k}:{H+4*k+3}], v{vPa}, s[36:39], s{60+k//2} offen offset:{2560*(k%2)} sc1")
            A(f"L_fin{k}:")
        A("  s_mov_b64 exec, -1")
        A("  s_waitcnt vmcnt(0)")
        for k in range(8):
            A(f"  v_perm_b32 v{vS}, v{H+4*k+1}, v{H+4*k}, s24"); A(f"  v_perm_b32 v{vS+1}, v{H+4*k+3}, v{H+4*k+2}, s25")
            A(f"  v_or_b32 v{vS}, v{vS}, v{vS+1}"); A(f"  v_cmp_ne_u32 s[{64+2*k}:{65+2*k}], s46, v{vS}")
        A("  s_or_b64 s[48:49], s[64:65], s[66:67]")
        for k in range(2, 8): A(f"  s_or_b64 s[48:49], s[48:49], s[{64+2*k}:{65+2*k}]")
        A("  s_sub_u32 s50, s50, 1"); A("  s_cbranch_scc1 L_fgo")
        A("  s_cmp_eq_u64 s[48:49], 0"); A("  s_cbranch_scc0 L_fin")
        A("L_fgo:")
        stamp("h", "ygot")
        for i in range(32): A(f"  v_and_b32 v{H+i}, s26, v{H+i}")
        for st in (16, 8, 4):
            for i in range(st): A(f"  v_add_f32 v{H+i}, v{H+i}, v{H+st+i}")
        for sh in (4, 8):
            for r in range(4): A(f"  v_add_f32_dpp v{H+r}, v{H+r}, v{H+r} row_ror:{sh} row_mask:0xf bank_mask:0xf")
        for sw in ("v_permlane32_swap_b32", "v_permlane16_swap_b32"):
            for r in range(4): A(f"  v_mov_b32 v{H+4+r}, v{H+r}")
            for r in range(4): A(f"  {sw} v{H+r}, v{H+4+r}")
            for r in range(4): A(f"  v_add_f32 v{H+r}, v{H+r}, v{H+4+r}")
        A(f"  v_cvt_pk_bf16_f32 v{H}, v{H}, v{H+1}"); A(f"  v_cvt_pk_bf16_f32 v{H+1}, v{H+2}, v{H+3}")
        A("  s_mov_b64 exec, 15")
        A(f"  buffer_store_dwordx2 v[{H}:{H+1}], v{vQa}, s[12:15], s22 offen")
        if not stamps: A("  s_endpgm")
    if stamps:
        A("L_hst:")
        A("  s_waitcnt vmcnt(0)")
        stamp("h", "hend")
        dump_stamps("h", 1)
        A("  s_endpgm")
        sn = names["s"]; hn = names["h"]
        L.insert(2, "; stamps: start id " + " ".join((sn[1:] + ["id"] * 6)[:6]) + " " + " ".join((hn + ["id"] * 8)[:7]) + " last")
    n_k2 = len(L)
    A(f".globl {K2}"); A(".p2align 8"); A(f".type {K2},@function"); A(f"{K2}:")
    A("  s_cmp_ge_u32 s2, 160"); A("  s_cbranch_scc1 L2_end")
    A("  s_load_dwordx2 s[4:5], s[0:1], 96"); A("  s_load_dwordx2 s[8:9], s[0:1], 80")
    A("  s_and_b32 s3, s2, 3              ; pb"); A("  s_lshr_b32 s12, s2, 2")
    A("  v_lshrrev_b32 v1, 2, v0"); A("  v_and_b32 v2, 3, v0")
    A("  v_mul_u32_u24 v3, 5120, v1"); A("  v_lshl_add_u32 v3, v2, 4, v3")
    A("  s_mul_i32 s13, s3, 327680"); A("  s_lshl_b32 s14, s12, 6"); A("  s_add_u32 s13, s13, s14")
    A("  s_add_u32 s17, s13, 81920"); A("  s_add_u32 s18, s13, 163840"); A("  s_add_u32 s19, s13, 245760")
    A(f"  s_mov_b32 s6, {WS}"); A("  s_mov_b32 s7, 0x20000"); A("  s_mov_b32 s10, 5120"); A("  s_mov_b32 s11, 0x20000")
    A("  s_and_b32 s15, s3, 1"); A("  s_mul_i32 s15, s15, 2560"); A("  s_lshr_b32 s16, s3, 1"); A("  s_mul_i32 s16, s16, 1280")
    A("  s_add_u32 s15, s15, s16"); A("  s_lshl_b32 s16, s12, 5"); A("  s_add_u32 s15, s15, s16")
    A("  v_lshlrev_b32 v6, 3, v2")
    A("  s_waitcnt lgkmcnt(0)")
    for k in range(8):
        A(f"  buffer_load_dwordx4 v[{8+4*k}:{11+4*k}], v3, s[4:7], s{(13,17,18,19)[k//2]} offen offset:{2560*(k%2)}")
    for k in range(1, 8):
        A(f"  s_waitcnt vmcnt({7-k})")
        for r in range(4): A(f"  v_add_f32 v{8+r}, v{8+r}, v{8+4*k+r}")
    for sh in (4, 8):
        for r in range(4): A(f"  v_add_f32_dpp v{8+r}, v{8+r}, v{8+r} row_ror:{sh} row_mask:0xf bank_mask:0xf")
    for sw in ("v_permlane32_swap_b32", "v_permlane16_swap_b32"):
        for r in range(4): A(f"  v_mov_b32 v{12+r}, v{8+r}")
        for r in range(4): A(f"  {sw} v{8+r}, v{12+r}")
        for r in range(4): A(f"  v_add_f32 v{8+r}, v{8+r}, v{12+r}")
    A("  v_cvt_pk_bf16_f32 v8, v8, v9"); A("  v_cvt_pk_bf16_f32 v9, v10, v11")
    A("  s_mov_b64 exec, 15")
    A("  buffer_store_dwordx2 v[8:9], v6, s[8:11], s15 offen")
    A("L2_end:"); A("  s_endpgm")
    if fuse: del L[n_k2:]
    A('.section .rodata,"a"')
    for kn, nv, acc, ns in ((KN, ACC + NA, ACC, 102), (K2, 40, 40, 24))[:1 if fuse else 2]:
        A(".p2align 6"); A(f".amdhsa_kernel {kn}")
        A(f"  .amdhsa_next_free_vgpr {nv}"); A(f"  .amdhsa_next_free_sgpr {ns}"); A(f"  .amdhsa_accum_offset {acc}")
        A("  .amdhsa_group_segment_fixed_size 0"); A("  .amdhsa_kernarg_size 104"); A("  .amdhsa_user_sgpr_count 2")
        A("  .amdhsa_user_sgpr_kernarg_segment_ptr 1"); A("  .amdhsa_system_sgpr_workgroup_id_x 1")
        A(".end_amdhsa_kernel")
    open(name, "w").write("\n".join(L) + "\n")
    return name
if __name__ == "__main__":
    if len(sys.argv) > 2:
        hdr = open("concat_heads__gqa_block_cached__mha_block_cached__decode.s.ref").read().split("; Override launch")[0]
        print(gen(name=sys.argv[2], header=hdr, **eval(sys.argv[1])))
    else:
        print(" ".join(gen(**kw) for kw in eval(sys.argv[1])))
```

```python
import sys, math, struct
KN = "concat_heads__gqa_block_cached__mha_block_cached__decode_kernel"
K2 = "final_reduce_kernel"
WS = 836768768
KVBYTES = 201326592
WBYTES = 7864320
def f32hex(x): return "0x%08x" % struct.unpack("<I", struct.pack("<f", x))[0]

def gen(name="z.s", header="", stamps=0, lo=3, mid=4, hi=5, d0=5, dl=5, pace=2, slp=32, ta=200, tb=-100, lper=8, kap=202,
        t_ml=193, t_w=216, t_f=238, wqpol="nt", wopol="nt", nok2=False, mode0=1, SPIN=200000, nslp=8, curve=False, dry=False, wqd=6, nslp0=16, rot=0, loc=True, nloc=24, fuse=True, fslp=0, dbg=False):
    L = []; A = L.append
    L_CTL = 0
    L_W = 64
    L_E = L_W + 256
    L_ML = L_E + 256
    L_Q = L_ML + 512
    L_P = L_Q + 17 * 384
    PROW = 272; PWAVE = 8 * PROW
    L_Y = L_P + 4 * PWAVE + 64
    L_O = L_Y + 20480
    LDS = L_O + 16 * 6144
    assert L_Y % 16 == 0 and L_O % 16 == 0 and L_Q % 16 == 0 and L_P % 16 == 0
    W_Y = 0
    W_O = 2 << 20
    W_Q = 6 << 20
    W_ML = W_Q + (128 << 10)
    W_B = W_ML + (128 << 10)
    W_G = W_B + (128 << 10)
    QLOC = 512 << 10
    W_OL = 7 << 20
    vLane, vKV, vW, vZero = 1, 2, 3, 4
    vT0, vT1, vT2, vT3 = 5, 6, 7, 8
    vPa, vQa, vDa, vMLa, vCa, vProg, vMode = 9, 10, 11, 12, 13, 14, 15
    vM = 16; vB = 20; vQ = 28; vS = 40; vD = 48; vRing = 68
    vX = vQ
    NV = vRing + 96
    if curve: vCv = NV; NV += 2
    ACC = (NV + 3) // 4 * 4
    NA = 80
    def ring(s, t): return vRing + 12 * s + 4 * t
    names = {"s": [], "h": []}
    def stamp(who, nm, level=1):
        if stamps >= level:
            k = len(names[who]); assert k < 8, nm
            names[who].append(nm)
            A(f"  s_memrealtime s[{84+2*k}:{85+2*k}]")
    def dump_stamps(who, rec):
        n = len(names[who])
        if dbg:
            A("  s_waitcnt vmcnt(0) lgkmcnt(0)")
            A("  s_mov_b32 s64, s40"); A("  s_mov_b32 s65, s41"); A("  s_mov_b32 s66, 256"); A("  s_mov_b32 s67, 0x20000")
            A("  s_mov_b64 exec, 1")
            for k in range(n):
                A(f"  s_sub_u32 s47, s{84+2*k}, s46"); A("  s_add_u32 s47, s47, 100"); A(f"  v_mov_b32 v{vRing+k}, s47")
                A(f"  buffer_atomic_umax v{vRing+k}, v{vZero}, s[64:67], 0 offen offset:{4*(1 + k + (7 if who == 'h' else 0))}")
            return
        A("  s_getreg_b32 s100, hwreg(HW_REG_XCC_ID)"); A("  s_getreg_b32 s101, hwreg(HW_REG_HW_ID)")
        A("  s_waitcnt vmcnt(0) lgkmcnt(0)")
        A(f"  s_lshl_b32 s47, s2, 7"); A(f"  s_add_u32 s47, s47, {WS - (1<<20) + 64*rec}")
        if who == "s": regs = [84, 85, 100, 101] + sum([[84+2*min(k, n-1), 85+2*min(k, n-1)] for k in range(1, 7)], [])
        else: regs = sum([[84+2*min(k, n-1), 85+2*min(k, n-1)] for k in range(8)], [])
        A("  s_mov_b64 exec, 1")
        for i in range(16): A(f"  v_mov_b32 v{vRing+i}, s{regs[i]}")
        for i in range(4): A(f"  buffer_store_dwordx4 v[{vRing+4*i}:{vRing+4*i+3}], v{vZero}, s[36:39], s47 offen offset:{16*i}")

    if fuse:
        A(header + f"; @launch grid=(256,1,1) block=(320,1,1) lds={LDS}"); A("; single launch")
    else:
        A(header + f"; @launch kernel={KN} grid=(256,1,1) block=(320,1,1) lds={LDS}")
        A(f"; @launch kernel={K2} grid=(160,1,1) block=(64,1,1) lds=0" if not nok2 else "; (second launch disabled)")
    A('.amdgcn_target "amdgcn-amd-amdhsa--gfx950"')
    A(".text"); A(f".globl {KN}"); A(".p2align 8"); A(f".type {KN},@function"); A(f"{KN}:")
    A("  s_cmp_ge_u32 s2, 256"); A("  s_cbranch_scc1 L_end")
    A("  s_load_dwordx16 s[64:79], s[0:1], 0")
    A("  s_load_dwordx4 s[80:83], s[0:1], 64")
    A("  s_load_dwordx4 s[40:43], s[0:1], 88")
    if curve: A("  s_memrealtime s[96:97]"); A(f"  v_mov_b32 v{vCv}, 0"); A(f"  v_mov_b32 v{vCv+1}, 0")
    stamp("s", "start"); names["h"] = ["hstart"] if stamps else []
    A("  s_and_b32 s3, s2, 7             ; x"); A("  s_lshr_b32 s4, s2, 3            ; j")
    A(f"  v_lshrrev_b32 v{vT0}, 6, v0"); A(f"  v_and_b32 v{vLane}, 63, v0")
    A(f"  v_readfirstlane_b32 s5, v{vT0}     ; wave")
    A(f"  v_mov_b32 v{vZero}, 0")
    A(f"  v_lshrrev_b32 v{vT1}, 3, v{vLane}    ; l/8"); A(f"  v_and_b32 v{vT2}, 7, v{vLane}        ; l%8")
    A(f"  s_mov_b32 s38, {WS}"); A("  s_mov_b32 s39, 0x20000")
    A("  s_cmp_lg_u32 s5, 4"); A("  s_cbranch_scc1 L_stream")
    A("  s_memrealtime s[48:49]")
    A("  s_mov_b32 s10, 256"); A("  s_mov_b32 s11, 0x20000")
    A("  s_waitcnt lgkmcnt(0)")
    A("  s_mov_b32 s8, s40"); A("  s_mov_b32 s9, s41")
    A("  s_or_b32 s46, s48, 1")
    A("  s_cmp_lg_u32 s2, 0"); A("  s_cbranch_scc1 L_helper")
    A(f"  v_mov_b32 v{vT0}, s46"); A("  s_mov_b64 exec, 1")
    A(f"  buffer_store_dword v{vT0}, v{vZero}, s[8:11], 0 offen sc1")
    A("  s_mov_b64 exec, -1"); A("  s_branch L_helper")
    A("L_stream:")
    A(f"  v_lshlrev_b32 v{vT3}, 4, v{vT2}")
    A(f"  v_mul_u32_u24 v{vKV}, 384, v{vT1}"); A(f"  v_add_u32 v{vKV}, v{vKV}, v{vT3}")
    A(f"  v_mul_u32_u24 v{vW}, {20*12288}, v{vT1}"); A(f"  v_add_u32 v{vW}, v{vW}, v{vT3}")
    A(f"  v_mul_u32_u24 v{vT0}, 40, v{vT1}")
    A("  s_lshl_b32 s13, s4, 2"); A("  s_add_u32 s13, s13, s5"); A("  s_mul_i32 s13, s13, 3072")
    A("  s_mul_i32 s47, s3, 3145728"); A("  s_add_u32 s12, s13, s47")
    A("  s_mul_i32 s47, s4, 171"); A("  s_lshr_b32 s47, s47, 9          ; sigma")
    A("  s_mul_i32 s48, s47, 3"); A("  s_sub_u32 s48, s4, s48          ; c")
    A("  s_and_b32 s49, s47, 3"); A("  s_lshl_b32 s49, s49, 3"); A(f"  s_mul_i32 s47, s47, {rot}"); A("  s_add_u32 s47, s47, s3"); A("  s_and_b32 s47, s47, 7"); A("  s_add_u32 s49, s49, s47         ; h")
    A("  s_mul_i32 s49, s49, 384"); A("  s_lshl_b32 s48, s48, 7"); A("  s_add_u32 s28, s49, s48")
    A(f"  s_mul_i32 s48, s5, {160*12288}"); A("  s_add_u32 s28, s28, s48")
    A("  s_mul_i32 s29, s5, 320")
    A(f"  s_mov_b32 s10, {KVBYTES}"); A("  s_mov_b32 s11, 0x20000")
    A(f"  s_mov_b32 s26, {WBYTES}"); A("  s_mov_b32 s27, 0x20000")
    A("  s_mov_b32 s34, 2560"); A("  s_mov_b32 s35, 0x20000")
    A("  s_cmp_ge_u32 s4, 12")
    A("  s_waitcnt lgkmcnt(0)")
    A("  s_cselect_b32 s24, s80, s70"); A("  s_cselect_b32 s25, s81, s71")
    A("  s_cselect_b32 s32, s74, s64"); A("  s_cselect_b32 s33, s75, s65")
    A("  s_mov_b32 s8, s66"); A("  s_mov_b32 s9, s67")
    HEADJ = 393216 + 7 * 3145728
    def kv_load(n):
        s, t = divmod(n, 3)
        A(f"  buffer_load_dwordx4 v[{ring(s,t)}:{ring(s,t)+3}], v{vKV}, s[8:11], s12 offen offset:{128*t} nt")
        if t == 2 and s < 7: A("  s_add_u32 s12, s12, 393216")
    def consts():
        A(f"  v_and_b32 v{vT0}, 1, v{vT2}"); A(f"  v_lshlrev_b32 v{vT0}, 4, v{vT0}")
        A(f"  v_mov_b32 v{vT3}, 0xffff"); A(f"  v_lshlrev_b32 v{vT0}, v{vT0}, v{vT3}")
        A(f"  v_lshrrev_b32 v{vT3}, 1, v{vT2}")
        for q in range(4):
            A(f"  v_cmp_eq_u32 vcc, {q}, v{vT3}"); A("  s_nop 1"); A(f"  v_cndmask_b32 v{vM+q}, 0, v{vT0}, vcc")
        A("  s_mov_b32 s54, 0x00ff00ff"); A("  s_mov_b32 s55, 0xff00ff00")
    A("  s_cmp_ge_u32 s4, 24"); A("  s_cbranch_scc1 L_noq")
    for b in range(2):
        A(f"  buffer_load_dwordx4 v[{vX+10*b}:{vX+10*b+3}], v{vT0}, s[32:35], s29 offen offset:{1280*b}")
        A(f"  buffer_load_dwordx4 v[{vX+10*b+4}:{vX+10*b+7}], v{vT0}, s[32:35], s29 offen offset:{1280*b+16}")
        A(f"  buffer_load_dwordx2 v[{vX+10*b+8}:{vX+10*b+9}], v{vT0}, s[32:35], s29 offen offset:{1280*b+32}")
    def wq_load(i):
        A(f"  buffer_load_dwordx4 a[{4*i}:{4*i+3}], v{vW}, s[24:27], s28 offen {wqpol}")
        if i < 19: A("  s_add_u32 s28, s28, 12288")
    nq = wqd or 20
    for i in range(nq): wq_load(i)
    consts()
    A("  s_mov_b32 s52, 0x01000100"); A("  s_mov_b32 s53, 0x03020302")
    nk = 0
    for i in range(20):
        A(f"  s_waitcnt vmcnt({nq - 1 - i + nk})")
        if nq < 20: wq_load(nq); nq += 1
        else:
            while (19 - i + nk) < d0: kv_load(nk); nk += 1
        for b in range(2):
            A(f"  v_perm_b32 v{vT0}, v{vX+10*b+i//2}, v{vX+10*b+i//2}, s{52+(i&1)}")
            for q in range(4): A(f"  v_and_b32 v{vB+4*b+q}, v{vT0}, v{vM+q}")
        for b in range(2):
            if b == 1: A("  s_nop 0")
            c = f"v[{vD+4*b}:{vD+4*b+3}]" if i else "0"
            A(f"  v_mfma_f32_16x16x32_bf16 v[{vD+4*b}:{vD+4*b+3}], v[{vB+4*b}:{vB+4*b+3}], a[{4*i}:{4*i+3}], {c}")
    assert nk == d0
    A(f"  v_lshrrev_b32 v{vT0}, 5, v{vLane}"); A(f"  v_lshlrev_b32 v{vT0}, 9, v{vT0}")
    A(f"  v_lshl_add_u32 v{vT0}, v{vT2}, 5, v{vT0}")
    A(f"  v_and_b32 v{vT3}, 16, v{vLane}"); A(f"  v_add_u32 v{vT0}, v{vT0}, v{vT3}")
    A("  s_lshl_b32 s47, s5, 10"); A(f"  v_add_u32 v{vT0}, s47, v{vT0}")
    A("  s_nop 0")
    A("  s_mov_b64 exec, s[54:55]")
    for b in range(2): A(f"  ds_write_b128 v{vT0}, v[{vD+4*b}:{vD+4*b+3}] offset:{L_Y + 256*b}")
    A("  s_mov_b64 exec, -1")
    A("  s_branch L_qdone")
    A("L_noq:")
    for n in range(d0): kv_load(n)
    consts()
    A("L_qdone:")
    stamp("s", "preB1")
    A("  s_waitcnt lgkmcnt(0)"); A("  s_barrier                       ; B1: q partials")
    rest = []
    R = rest.append
    R([f"  s_mul_i32 s47, s5, {PWAVE}", f"  s_add_u32 s47, s47, {L_P}", f"  v_mul_u32_u24 v{vPa}, {PROW}, v{vT1}", f"  v_add_u32 v{vPa}, s47, v{vPa}"])
    R([f"  v_lshlrev_b32 v{vQa}, 4, v{vT2}", f"  s_lshl_b32 s47, s5, 3", f"  v_mov_b32 v{vMLa}, s47", f"  s_lshl_b32 s47, s5, 2", f"  v_mov_b32 v{vCa}, s47", f"  v_mov_b32 v{vProg}, 0"])
    R([f"  v_lshrrev_b32 v{vDa}, 5, v{vLane}", f"  v_mul_u32_u24 v{vDa}, 768, v{vDa}", f"  v_lshl_add_u32 v{vDa}, v{vT2}, 5, v{vDa}",
       f"  v_and_b32 v{vT3}, 16, v{vLane}", f"  v_add_u32 v{vDa}, v{vDa}, v{vT3}", "  s_mul_i32 s47, s5, 1536", f"  s_add_u32 s47, s47, {L_O}", f"  v_add_u32 v{vDa}, s47, v{vDa}"])
    R(["  s_mov_b32 s16, s68", "  s_mov_b32 s17, s69", "  s_mov_b32 s18, s76", "  s_mov_b32 s19, s77", "  s_mov_b32 s20, s78", "  s_mov_b32 s21, s79"])
    R(["  s_cmp_ge_u32 s4, 16", "  s_cselect_b32 s24, s82, s72", "  s_cselect_b32 s25, s83, s73", "  s_mov_b32 s36, s42", "  s_mov_b32 s37, s43"])
    R(["  s_lshr_b32 s47, s4, 2", f"  s_mul_i32 s49, s47, {rot}", "  s_add_u32 s49, s49, s3", "  s_and_b32 s49, s49, 7", "  s_and_b32 s47, s47, 3", "  s_lshl_b32 s48, s47, 3", "  s_add_u32 s48, s48, s49", "  s_mul_i32 s48, s48, 192",
       "  s_and_b32 s49, s4, 3", "  s_lshl_b32 s49, s49, 2", "  s_add_u32 s49, s49, s5", "  s_lshl_b32 s49, s49, 2      ; 16qd+4w",
       "  s_add_u32 s28, s48, s49", "  s_mul_i32 s28, s28, 1280"])
    R(["  s_lshr_b32 s48, s4, 4", "  s_lshl_b32 s48, s48, 3", "  s_add_u32 s48, s48, s47", "  s_lshl_b32 s48, s48, 15", "  s_lshl_b32 s49, s49, 4", "  s_add_u32 s48, s48, s49",
       "  s_lshl_b32 s49, s3, 19", "  s_add_u32 s48, s48, s49", f"  s_add_u32 s60, s48, {W_O}", "  s_add_u32 s61, s60, 8192", "  s_add_u32 s62, s60, 16384", "  s_add_u32 s63, s60, 24576"])
    R([f"  v_lshrrev_b32 v{vT0}, 4, v{vLane}", f"  v_mul_u32_u24 v{vW}, 1280, v{vT0}", f"  v_and_b32 v{vT3}, 15, v{vLane}", f"  v_lshl_add_u32 v{vW}, v{vT3}, 4, v{vW}"])
    R([f"  s_mov_b32 s58, {f32hex(192 ** -0.5 * math.log2(math.e))}", "  s_mov_b32 s44, 0", f"  s_mov_b32 s45, {mode0}"])
    for n in range(d0, 24):
        A(f"  s_waitcnt vmcnt({d0-1})")
        kv_load(n)
        if rest:
            for x in rest.pop(0): A(x)
    assert not rest
    stamp("s", "ring")
    A("  s_barrier")
    for t in range(3): A(f"  ds_read_b128 v[{vQ+4*t}:{vQ+4*t+3}], v{vQa} offset:{L_Q + 128*t}")
    stamp("s", "B2")
    A("  s_waitcnt lgkmcnt(0)")
    def throttle(tag):
        A(f"  s_waitcnt vmcnt({hi})")
        if pace:
            A("  s_cmp_eq_u32 s45, 2"); A(f"  s_cbranch_scc1 {tag}")
        A(f"  s_waitcnt vmcnt({mid})")
        if pace and lo != mid:
            A("  s_cmp_eq_u32 s45, 1"); A(f"  s_cbranch_scc1 {tag}")
            A(f"  s_waitcnt vmcnt({lo})")
        A(f"{tag}:")
    def switch(tag):
        A("  s_add_u32 s47, s44, 1"); A("  s_lshr_b32 s48, s47, 4"); A("  s_lshl_b32 s48, s48, 2"); A("  s_and_b32 s49, s47, 3"); A("  s_add_u32 s48, s48, s49")
        A(f"  s_mul_i32 s48, s48, {rot}"); A("  s_add_u32 s48, s48, s3"); A("  s_and_b32 s48, s48, 7")
        A("  s_and_b32 s47, s47, 7"); A(f"  s_cbranch_scc1 {tag}")
        A("  s_mov_b32 s8, s16"); A("  s_mov_b32 s9, s17")
        for k in range(4): A(f"  s_mov_b32 s{16+k}, s{18+k}")
        A(f"{tag}:")
        A("  s_lshl_b32 s47, s47, 3"); A("  s_add_u32 s48, s48, s47"); A("  s_mul_i32 s48, s48, 3145728"); A("  s_add_u32 s12, s13, s48")
    def body(tag, gaps):
        for n in range(24):
            s, j = divmod(n, 3)
            for x in gaps.get(n, []): A(x)
            if j == 2 and pace:
                A("  s_waitcnt lgkmcnt(0)"); A(f"  v_readfirstlane_b32 s45, v{vMode}")
            throttle(f"{tag}_{n}")
            kv_load(n)
            if j == 1 and pace: A(f"  ds_read_b32 v{vMode}, v{vZero} offset:{L_CTL}")
            if j == 2:
                A(f"  v_add_u32 v{vProg}, 1, v{vProg}"); A(f"  ds_write_b32 v{vCa}, v{vProg} offset:{L_CTL+16}")
    def xred(op, t, u):
        return [f"  s_nop 1", f"  {op}_dpp v{t}, v{t}, v{t} row_ror:8 row_mask:0xf bank_mask:0xf",
                f"  v_mov_b32 v{u}, v{t}", "  s_nop 1", f"  v_permlane16_swap_b32 v{t}, v{u}", "  s_nop 0", f"  {op} v{t}, v{t}, v{u}",
                f"  v_mov_b32 v{u}, v{t}", "  s_nop 1", f"  v_permlane32_swap_b32 v{t}, v{u}", "  s_nop 0", f"  {op} v{t}, v{t}, v{u}"]
    kg = {}
    for s in range(4):
        for j in range(2):
            T = 2 * s + j
            kg[3*s+j] = [f"  s_waitcnt vmcnt({3*(7-T) + 3*s + j})"] + \
                        [f"  v_dot2_f32_bf16 v{vS+T}, v{ring(T,0)+k}, v{vQ+k}, {('v%d' % (vS+T)) if k else '0'}" for k in range(12)]
        g = []
        for pat in ("quad_perm:[1,0,3,2]", "quad_perm:[2,3,0,1]", "row_half_mirror"):
            g += ["  s_nop 0"] + [f"  v_add_f32_dpp v{vS+T}, v{vS+T}, v{vS+T} {pat} row_mask:0xf bank_mask:0xf" for T in (2*s, 2*s+1)]
        kg[3*s+2] = g
    kg[12] = [f"  v_add_u32 v{vQa}, 384, v{vQa}",
              f"  v_max3_f32 v{vT0}, v{vS}, v{vS+1}, v{vS+2}", f"  v_max3_f32 v{vT0}, v{vT0}, v{vS+3}, v{vS+4}",
              f"  v_max3_f32 v{vT0}, v{vT0}, v{vS+5}, v{vS+6}", f"  v_max_f32 v{vT0}, v{vT0}, v{vS+7}"] + \
             [f"  ds_read_b128 v[{vQ+4*t}:{vQ+4*t+3}], v{vQa} offset:{L_Q + 128*t}" for t in range(3)]
    kg[13] = xred("v_max_f32", vT0, vT1) + [f"  v_mul_f32 v{vD}, s58, v{vT0}"]
    kg[14] = [f"  v_fma_f32 v{vS+i}, v{vS+i}, s58, -v{vD}" for i in range(8)]
    kg[15] = [f"  v_exp_f32 v{vS+i}, v{vS+i}" for i in range(8)]
    kg[16] = [f"  v_add_f32 v{vD+1}, v{vS}, v{vS+1}"] + [f"  v_add_f32 v{vD+1}, v{vD+1}, v{vS+i}" for i in range(2, 8)]
    kg[17] = [f"  v_cvt_pk_bf16_f32 v{vS+i}, v{vS+i}, v{vS+i}" for i in range(8)]
    kg[18] = [f"  ds_write_b128 v{vPa}, v[{vS}:{vS+3}]", f"  ds_write_b128 v{vPa}, v[{vS+4}:{vS+7}] offset:16", f"  v_add_u32 v{vPa}, 32, v{vPa}"]
    kg[19] = xred("v_add_f32", vD+1, vT1)
    kg[21] = [f"  ds_write_b64 v{vMLa}, v[{vD}:{vD+1}] offset:{L_ML}", f"  v_add_u32 v{vMLa}, 32, v{vMLa}"]
    def vtile(T, wait):
        b = vB + 4 * (T & 1)
        g = [f"  v_and_b32 v{b+q}, v{vS+T}, v{vM+q}" for q in range(4)] + [f"  s_waitcnt vmcnt({wait})", "  s_nop 0"]
        for t in range(3):
            c = f"v[{vD+4*t}:{vD+4*t+3}]" if T else "0"
            g.append(f"  v_mfma_f32_16x16x32_bf16 v[{vD+4*t}:{vD+4*t+3}], v[{b}:{b+3}], v[{ring(T,t)}:{ring(T,t)+3}], {c}")
        return g
    dump = ["  s_mov_b64 exec, s[54:55]"] + [f"  ds_write_b128 v{vDa}, v[{vD+4*t}:{vD+4*t+3}] offset:{256*t}" for t in range(3)] + ["  s_mov_b64 exec, -1"]
    pread = [f"  ds_read_b128 v[{vS}:{vS+3}], v{vPa}", f"  ds_read_b128 v[{vS+4}:{vS+7}], v{vPa} offset:16"]
    vg = {}
    for s in range(4):
        for j in range(2): vg[3*s+j] = vtile(2*s+j, 3*(7-(2*s+j)) + 3*s + j)
    vg[12] = ["  s_nop 7"] + dump + [f"  v_add_u32 v{vDa}, 6144, v{vDa}", f"  v_add_u32 v{vPa}, 32, v{vPa}"]
    vg[13] = pread
    vg[20] = ["  s_waitcnt lgkmcnt(0)"]
    kg[20] = ["  s_waitcnt lgkmcnt(0)"]
    def cstamp():
        if not curve: return
        A("  s_memrealtime s[98:99]"); A("  s_mov_b32 m0, s44"); A("  s_waitcnt lgkmcnt(0)")
        A(f"  v_writelane_b32 v{vCv}, s98, m0"); A(f"  v_writelane_b32 v{vCv+1}, s99, m0")
    A("L_kloop:")
    switch("L_ksw")
    body("L_k", kg); cstamp()
    A("  s_add_u32 s44, s44, 1"); A("  s_and_b32 s47, s44, 7"); A("  s_cbranch_scc1 L_kloop")
    A(f"  v_subrev_u32 v{vPa}, 256, v{vPa}")
    for x in pread: A(x)
    A("  s_waitcnt lgkmcnt(0)")
    A("L_vloop:")
    switch("L_vsw")
    body("L_v", vg); cstamp()
    A("  s_add_u32 s44, s44, 1")
    A("  s_cmp_eq_u32 s44, 31"); A("  s_cbranch_scc1 L_last")
    A("  s_and_b32 s47, s44, 7"); A("  s_cbranch_scc1 L_vloop")
    A(f"  v_subrev_u32 v{vPa}, 256, v{vPa}")
    A("  s_branch L_kloop")
    A("L_last:")
    def wo_load(i):
        tp, c = divmod(i, 5)
        A(f"  s_waitcnt vmcnt({dl-1})")
        A(f"  buffer_load_dwordx4 a[{4*i}:{4*i+3}], v{vW}, s[24:27], s28 offen offset:{256*c} {wopol}")
        if c == 4 and tp < 2: A("  s_add_u32 s28, s28, 81920")
    sched = {1: [0, 1], 2: [2, 3], 3: [4, 5], dl - 1: [6], dl: [7]}
    if dl - 1 == 3: sched = {1: [0, 1, 2], 2: [3, 4, 5], 3: [6], 4: [7]}
    for i in range(15):
        for T in sched.get(i, []):
            for x in vtile(T, 3*(7-T) + i): A(x)
        if i == dl:
            A(f"  v_add_u32 v{vProg}, 8, v{vProg}"); A("  s_nop 5")
            for x in dump: A(x)
            A(f"  ds_write_b32 v{vCa}, v{vProg} offset:{L_CTL+16}")
            stamp("s", "vend")
        if i == dl + 1:
            A(f"  v_and_b32 v{vT0}, 8, v{vLane}"); A(f"  v_lshlrev_b32 v{vT0}, 14, v{vT0}")
            A(f"  v_and_b32 v{vT2}, 7, v{vLane}"); A(f"  v_lshl_add_u32 v{vT0}, v{vT2}, 10, v{vT0}")
            A(f"  v_and_b32 v{vT3}, 48, v{vLane}"); A(f"  v_add_u32 v{vT0}, v{vT0}, v{vT3}")
            A(f"  v_and_b32 v{vT2}, 15, v{vLane}"); A(f"  v_lshlrev_b32 v{vT1}, 4, v{vT2}")
        if i == dl + 2 and loc:
            A(f"  s_mul_i32 s59, s3, {32768 - 524288}"); A(f"  s_add_u32 s59, s59, {W_OL - W_O - 15*32768}")
            A("  s_cmp_ge_u32 s4, 28"); A("  s_cselect_b32 s59, s59, 0")
            A(f"  v_bfe_u32 v{vMode}, v{vLane}, 3, 1")
        if i == dl + 2:
            A(f"  v_lshrrev_b32 v{vDa}, 5, v{vLane}"); A(f"  v_mul_u32_u24 v{vDa}, 2560, v{vDa}")
            A(f"  v_lshl_add_u32 v{vDa}, v{vT2}, 5, v{vDa}")
            A(f"  v_and_b32 v{vT3}, 16, v{vLane}"); A(f"  v_add_u32 v{vDa}, v{vDa}, v{vT3}")
            A("  s_mul_i32 s47, s5, 5120"); A(f"  v_add_u32 v{vDa}, s47, v{vDa}")
        if i == dl + 3:
            A(f"  s_mov_b32 s50, {SPIN*8}")
            A("L_wwait:")
            A(f"  ds_read_b64 v[{vS}:{vS+1}], v{vZero} offset:{L_CTL+8}")
            A("  s_waitcnt lgkmcnt(0)")
            A(f"  v_readfirstlane_b32 s47, v{vS}"); A(f"  v_readfirstlane_b32 s46, v{vS+1}")
            A("  s_sub_u32 s50, s50, 1"); A("  s_cbranch_scc1 L_wgo")
            A("  s_cmp_eq_u32 s47, 0"); A("  s_cbranch_scc1 L_wwait")
            A("L_wgo:")
            A(f"  ds_read_b128 v[{vS}:{vS+3}], v{vT1} offset:{L_W}")
        wo_load(i)
    G = vRing
    A(f"  s_mov_b32 s50, {SPIN}")
    A("L_gather:")
    if loc:
        A(f"  s_cmp_gt_u32 s50, {SPIN - nloc}"); A("  s_cselect_b32 s47, s59, 0")
        A(f"  v_mad_u32_u24 v{vT3}, v{vMode}, s47, v{vT0}")
    for k in range(4): A(f"  buffer_load_dwordx4 v[{G+4*k}:{G+4*k+3}], v{vT3 if loc else vT0}, s[36:39], s{60+k} offen sc1")
    A("  s_waitcnt vmcnt(0) lgkmcnt(0)")
    A(f"  v_cmp_ne_u32 s[48:49], s46, v{G+3}")
    for k in range(1, 4):
        A(f"  v_cmp_ne_u32 vcc, s46, v{G+4*k+3}"); A("  s_or_b64 s[48:49], s[48:49], vcc")
    A("  s_sub_u32 s50, s50, 1"); A("  s_cbranch_scc1 L_ggo")
    A("  s_cmp_eq_u64 s[48:49], 0"); A("  s_cbranch_scc0 L_gather")
    A("L_ggo:")
    stamp("s", "gath")
    for t in range(3): A(f"  v_mul_f32 v{G+t}, v{vS}, v{G+t}")
    for k in range(1, 4):
        for t in range(3): A(f"  v_fmac_f32 v{G+t}, v{vS+k}, v{G+4*k+t}")
    for pat in ("quad_perm:[1,0,3,2]", "quad_perm:[2,3,0,1]", "row_half_mirror"):
        for t in range(3): A(f"  v_add_f32_dpp v{G+t}, v{G+t}, v{G+t} {pat} row_mask:0xf bank_mask:0xf")
    for t in range(3): A(f"  v_cvt_pk_bf16_f32 v{G+t}, v{G+t}, v{G+t}")
    for t in range(3):
        for q in range(4): A(f"  v_and_b32 v{G+4+4*t+q}, v{G+t}, v{vM+q}")
    for tp in range(3):
        for c in range(5):
            i = tp * 5 + c
            cc = f"v[{vD+4*c}:{vD+4*c+3}]" if tp else "0"
            A(f"  v_mfma_f32_16x16x32_bf16 v[{vD+4*c}:{vD+4*c+3}], v[{G+4+4*tp}:{G+7+4*tp}], a[{4*i}:{4*i+3}], {cc}")
    A("  s_nop 3")
    for c in range(5): A(f"  ds_write_b128 v{vDa}, v[{vD+4*c}:{vD+4*c+3}] offset:{L_Y + 512*c}")
    A("L_yred:")
    A(f"  v_lshlrev_b32 v{vT1}, 4, v0")
    A(f"  v_mov_b32 v{vT2}, {327680 - 2560}"); A("  v_cmp_le_u32 vcc, 160, v0")
    A("  s_lshr_b32 s47, s4, 4"); A(f"  s_mul_i32 s47, s47, {2*327680}")
    A(f"  v_cndmask_b32 v{vT2}, 0, v{vT2}, vcc"); A(f"  v_add_u32 v{vT2}, v{vT2}, v{vT1}")
    A("  s_and_b32 s48, s2, 127"); A("  s_mul_i32 s48, s48, 2560"); A("  s_add_u32 s47, s47, s48")
    if fuse:
        A(f"  v_mov_b32 v{vT0}, s46")
        for i in range(4): A(f"  s_mov_b32 s{52+i}, 0x0706050{i}")
    A("  s_waitcnt lgkmcnt(0)"); A("  s_barrier                       ; B3: y partials")
    for k in range(4): A(f"  ds_read_b128 v[{vD+4*k}:{vD+4*k+3}], v{vT1} offset:{L_Y + 5120*k}")
    for k in range(1, 4):
        A(f"  s_waitcnt lgkmcnt({3-k})")
        for r in range(4): A(f"  v_add_f32 v{vD+r}, v{vD+r}, v{vD+4*k+r}")
    if fuse:
        for r in range(4): A(f"  v_perm_b32 v{vD+r}, v{vD+r}, v{vT0}, s{52+r}")
    A(f"  buffer_store_dwordx4 v[{vD}:{vD+3}], v{vT2}, s[36:39], s47 offen{' sc1' if fuse else ''}")
    if fuse:
        A("  s_cmp_eq_u32 s5, 4"); A("  s_cbranch_scc1 L_final")
    if curve:
        A("  s_cmp_lg_u32 s5, 0"); A("  s_cbranch_scc1 L_end")
        A("  s_getreg_b32 s100, hwreg(HW_REG_XCC_ID)")
        A(f"  s_mul_i32 s47, s2, 144"); A(f"  s_add_u32 s47, s47, {WS - (1<<20)}")
        A(f"  v_lshlrev_b32 v{vT0}, 2, v{vLane}"); A(f"  v_add_u32 v{vT0}, 16, v{vT0}")
        A("  s_mov_b32 exec_lo, 0x55555555"); A("  s_mov_b32 exec_hi, 0")
        A(f"  buffer_store_dwordx2 v[{vCv}:{vCv+1}], v{vT0}, s[36:39], s47 offen")
        A("  s_mov_b64 exec, 1")
        A(f"  v_mov_b32 v{vRing}, s96"); A(f"  v_mov_b32 v{vRing+1}, s97"); A(f"  v_mov_b32 v{vRing+2}, s100"); A(f"  v_mov_b32 v{vRing+3}, 0")
        A(f"  buffer_store_dwordx4 v[{vRing}:{vRing+3}], v{vZero}, s[36:39], s47 offen")
    if stamps:
        A("  s_cmp_eq_u32 s5, 4"); A("  s_cbranch_scc1 L_hst")
        A("  s_cmp_lg_u32 s5, 0"); A("  s_cbranch_scc1 L_end")
        A("  s_waitcnt vmcnt(0)")
        stamp("s", "end")
        dump_stamps("s", 0)
    A("L_end:"); A("  s_endpgm")
    H = vRing
    A("L_helper:")
    A(f"  v_mov_b32 v{H}, {mode0}"); A(f"  v_mov_b32 v{H+1}, 0"); A(f"  v_mov_b32 v{H+2}, 0"); A(f"  v_mov_b32 v{H+3}, 0"); A(f"  v_mov_b32 v{H+4}, 0"); A(f"  v_mov_b32 v{H+5}, 0")
    A(f"  ds_write_b128 v{vZero}, v[{H}:{H+3}] offset:{L_CTL}"); A(f"  ds_write_b128 v{vZero}, v[{H+2}:{H+5}] offset:{L_CTL+16}")
    A("  s_mov_b32 s36, s42"); A("  s_mov_b32 s37, s43")
    A(f"  v_lshlrev_b32 v{vT0}, 3, v{vLane}      ; lane*8"); A(f"  v_lshlrev_b32 v{vT3}, 4, v{vLane}      ; lane*16")
    A(f"  s_mul_i32 s12, s3, {24*512}"); A(f"  s_add_u32 s12, s12, {W_Q}")
    A("  s_lshl_b32 s13, s4, 9"); A("  s_add_u32 s13, s13, s12")
    A("  s_add_u32 s14, s12, 4096"); A("  s_add_u32 s15, s12, 8192")
    if dry:
        A("  s_mov_b32 s38, 0")
        A("  s_mov_b32 s45, 0"); A("  s_branch L_hq1")
    A("L_hreal:")
    A(f"  s_mov_b32 s38, {WS}"); A(f"  s_mov_b32 s45, {SPIN}")
    A("  s_cmp_eq_u32 s2, 0"); A("  s_cbranch_scc1 L_nhave")
    A(f"  s_mov_b32 s50, {SPIN}")
    if nslp0: A(f"  s_sleep {nslp0}")
    A("L_nloop:")
    A(f"  buffer_load_dword v{H}, v{vZero}, s[8:11], 0 offen sc1"); A("  s_waitcnt vmcnt(0)")
    A(f"  v_readfirstlane_b32 s46, v{H}")
    A("  s_sub_u32 s50, s50, 1"); A("  s_cbranch_scc1 L_nhave")
    A("  s_cmp_lg_u32 s46, 0"); A("  s_cbranch_scc1 L_nhave")
    A(f"  s_sleep {nslp}"); A("  s_branch L_nloop")
    A("L_nhave:")
    stamp("h", "nonce")
    A(f"  v_mov_b32 v{H}, s46"); A(f"  ds_write_b32 v{vZero}, v{H} offset:{L_CTL+12}")
    A("  s_waitcnt lgkmcnt(0)"); A("  s_barrier                       ; B1")
    A("L_hq1:")
    A("  s_cmp_ge_u32 s4, 24"); A("  s_cbranch_scc1 L_hq2")
    for k in range(8): A(f"  ds_read_b64 v[{H+2*k}:{H+2*k+1}], v{vT0} offset:{L_Y + 512*k}")
    for k in range(1, 8):
        A(f"  s_waitcnt lgkmcnt({7-k})")
        for r in range(2): A(f"  v_add_f32 v{H+r}, v{H+r}, v{H+2*k+r}")
    A(f"  v_cvt_pk_bf16_f32 v{vD}, v{H}, v{H+1}"); A(f"  v_mov_b32 v{vD+1}, s46")
    def qglob(tag):
        A("  s_cmp_ge_u32 s4, 24"); A(f"  s_cbranch_scc1 {tag}")
        A(f"  buffer_store_dwordx2 v[{vD}:{vD+1}], v{vT0}, s[36:39], s13 offen sc1")
        A(f"{tag}:")
    if loc:
        A(f"  s_add_u32 s47, s13, {QLOC}")
        A(f"  buffer_store_dwordx2 v[{vD}:{vD+1}], v{vT0}, s[36:39], s47 offen")
    else:
        A(f"  buffer_store_dwordx2 v[{vD}:{vD+1}], v{vT0}, s[36:39], s13 offen sc1")
    A("L_hq2:")
    A(f"  v_and_b32 v{vT1}, 16, v{vLane}"); A(f"  v_mul_u32_u24 v{vT1}, 96, v{vT1}")
    A(f"  v_and_b32 v{vT2}, 15, v{vLane}"); A(f"  v_lshl_add_u32 v{vT1}, v{vT2}, 3, v{vT1}")
    A(f"  v_lshrrev_b32 v{vT2}, 5, v{vLane}")
    A(f"  s_mov_b32 s50, s45")
    A("L_qg:")
    if loc:
        A(f"  s_cmp_lg_u32 s50, {SPIN - nloc}"); A("  s_cbranch_scc1 L_qg1"); qglob("L_qg1")
    A(f"  s_cmp_gt_u32 s50, {SPIN - nloc}"); A(f"  s_cselect_b32 s47, {QLOC if loc else 0}, 0")
    A(f"  v_add_u32 v{vDa}, s47, v{vT3}")
    for k in range(12):
        A(f"  buffer_load_dwordx4 v[{H+4*k}:{H+4*k+3}], v{vDa}, s[36:39], s{(12,14,15)[k//4]} offen offset:{1024*(k%4)} sc1")
    A("  s_mov_b64 s[48:49], 0")
    for k in range(12):
        A(f"  s_waitcnt vmcnt({11-k})")
        for r in (1, 3):
            A(f"  v_cmp_ne_u32 vcc, s46, v{H+4*k+r}"); A("  s_or_b64 s[48:49], s[48:49], vcc")
    A("  s_sub_u32 s50, s50, 1"); A("  s_cbranch_scc1 L_qgo")
    A("  s_cmp_eq_u64 s[48:49], 0"); A("  s_cbranch_scc0 L_qg")
    A("L_qgo:")
    def qconst(item):
        sg, c = divmod(item, 3); return ((sg >> 2) * 8 + (sg & 3)) * 384 + c * 128
    for k in range(12):
        c0, c1 = qconst(2 * k), qconst(2 * k + 1)
        A(f"  v_mov_b32 v{H+4*k+1}, v{H+4*k+2}")
        if k == 0 or (c1 - c0) != (qconst(2*k-1) - qconst(2*k-2)):
            A(f"  v_mul_u32_u24 v{vPa}, {c1-c0}, v{vT2}"); A(f"  v_add_u32 v{vPa}, v{vPa}, v{vT1}")
        A(f"  ds_write_b64 v{vPa}, v[{H+4*k}:{H+4*k+1}] offset:{L_Q + c0}")
    A("  s_waitcnt lgkmcnt(0)")
    if dry: A("  s_cmp_eq_u32 s45, 0"); A("  s_cbranch_scc1 L_hreal")
    stamp("h", "qtab")
    A("  s_barrier                       ; B2")
    if loc: qglob("L_qg2")
    A("  s_getreg_b32 s56, hwreg(HW_REG_XCC_ID)"); A("  s_and_b32 s56, s56, 7")
    A("  s_mul_i32 s57, s56, 8448"); A(f"  s_add_u32 s57, s57, {W_B}")
    A("  s_lshl_b32 s59, s4, 2"); A("  s_add_u32 s59, s59, s57")
    A("  s_lshl_b32 s62, s56, 2"); A(f"  s_add_u32 s62, s62, {W_G}"); A(f"  s_mov_b32 s28, {lper-1}")
    A(f"  s_add_u32 s16, s42, {W_G}"); A("  s_addc_u32 s17, s43, 0")
    A("  s_and_b32 s51, s46, 0xffff0000   ; tag")
    A(f"  v_lshlrev_b32 v{vQa}, 2, v{vLane}")
    A("  s_mov_b32 s18, -1"); A("  s_mov_b32 s19, 1")
    A(f"  s_mov_b32 s44, {t_ml}")
    A("L_pace:")
    A(f"  s_sleep {slp}")
    if pace: A("  s_memrealtime s[26:27]")
    A(f"  ds_read_b128 v[{H}:{H+3}], v{vZero} offset:{L_CTL+16}"); A("  s_waitcnt lgkmcnt(0)")
    A(f"  v_min3_u32 v{H+4}, v{H}, v{H+1}, v{H+2}"); A(f"  v_min_u32 v{H+4}, v{H+4}, v{H+3}")
    A(f"  v_add3_u32 v{H+5}, v{H}, v{H+1}, v{H+2}"); A(f"  v_add_u32 v{H+5}, v{H+5}, v{H+3}")
    A(f"  v_readfirstlane_b32 s20, v{H+4}")
    A("  s_cmp_ge_u32 s20, s44"); A("  s_cbranch_scc1 L_event")
    if pace:
        A(f"  v_readfirstlane_b32 s21, v{H+5}")
        A(f"  s_mul_i32 s22, s26, {kap}"); A("  s_lshr_b32 s22, s22, 6")
        A("  s_lshl_b32 s21, s21, 5"); A("  s_sub_u32 s21, s21, s22"); A("  s_and_b32 s21, s21, 0xffff")
        A("  s_or_b32 s22, s21, s51")
        A(f"  v_mov_b32 v{H+6}, s22"); A(f"  v_mov_b32 v{H+7}, 0")
        A("  s_mov_b64 exec, 1")
        A(f"  buffer_store_dword v{H+6}, v{vZero}, s[36:39], s59 offen")
        A("  s_mov_b64 exec, s[18:19]")
        A(f"  buffer_load_dword v{H+7}, v{vQa}, s[36:39], s57 offen sc1")
        A("  s_mov_b64 exec, -1")
        A("  s_waitcnt vmcnt(0)")
        A(f"  v_readlane_b32 s22, v{H+7}, 32")
        A(f"  v_xor_b32 v{H+7}, s51, v{H+7}")
        A(f"  v_cmp_gt_u32 vcc, 0x10000, v{H+7}")
        A(f"  v_subrev_u32 v{H+7}, s21, v{H+7}"); A(f"  v_bfe_i32 v{H+7}, v{H+7}, 0, 16")
        A(f"  v_cndmask_b32 v{H+7}, 0, v{H+7}, vcc")
        for sh in (1, 2, 4, 8):
            A("  s_nop 1"); A(f"  v_add_u32_dpp v{H+7}, v{H+7}, v{H+7} row_ror:{sh} row_mask:0xf bank_mask:0xf")
        A("  s_xor_b32 s22, s22, s51"); A("  s_cmp_lt_u32 s22, 0x10000"); A("  s_cselect_b32 s22, s22, 0"); A("  s_sext_i32_i16 s22, s22")
        A(f"  v_readlane_b32 s23, v{H+7}, 0"); A(f"  v_readlane_b32 s24, v{H+7}, 16")
        A("  s_add_u32 s23, s23, s24"); A("  s_ashr_i32 s23, s23, 5")
        A("  s_add_u32 s24, s23, s22")
        A(f"  s_cmp_gt_i32 s24, {-tb}"); A("  s_cselect_b32 s25, 2, 1")
        A(f"  s_cmp_lt_i32 s24, {-ta}"); A("  s_cselect_b32 s25, 0, s25")
        A(f"  v_mov_b32 v{H+6}, s25"); A(f"  ds_write_b32 v{vZero}, v{H+6} offset:{L_CTL}")
        if pace >= 2:
            A("  s_cmp_lg_u32 s4, 0"); A("  s_cbranch_scc1 L_pace")
            A("  s_add_u32 s28, s28, 1"); A(f"  s_cmp_lt_u32 s28, {lper}"); A("  s_cbranch_scc1 L_pace")
            A("  s_mov_b32 s28, 0")
            A("  s_load_dwordx8 s[64:71], s[16:17], 0 glc")
            A("  s_add_u32 s23, s23, s21"); A("  s_and_b32 s23, s23, 0xffff")
            A("  s_or_b32 s24, s23, s51"); A(f"  v_mov_b32 v{H+6}, s24")
            A("  s_waitcnt lgkmcnt(0)")
            A("  s_mov_b64 exec, 1")
            A(f"  buffer_store_dword v{H+6}, v{vZero}, s[36:39], s62 offen sc1")
            A("  s_mov_b32 s25, 0")
            for k in range(8):
                A(f"  s_xor_b32 s{64+k}, s{64+k}, s51"); A(f"  s_cmp_lt_u32 s{64+k}, 0x10000"); A(f"  s_cselect_b32 s{64+k}, s{64+k}, s23")
                A(f"  s_sub_u32 s{64+k}, s{64+k}, s23"); A(f"  s_sext_i32_i16 s{64+k}, s{64+k}"); A(f"  s_add_u32 s25, s25, s{64+k}")
            A("  s_ashr_i32 s25, s25, 3")
            A("  s_and_b32 s25, s25, 0xffff"); A("  s_or_b32 s25, s25, s51"); A(f"  v_mov_b32 v{H+6}, s25")
            A(f"  buffer_store_dword v{H+6}, v{vZero}, s[36:39], s57 offen offset:128")
            A("  s_mov_b64 exec, -1")
    A("  s_branch L_pace")
    A("L_event:")
    A(f"  s_cmp_eq_u32 s44, {t_w}"); A("  s_cbranch_scc1 L_evw")
    A(f"  s_cmp_eq_u32 s44, {t_f}"); A("  s_cbranch_scc1 L_flush")
    A(f"  v_and_b32 v{vT1}, 15, v{vLane}"); A(f"  v_lshlrev_b32 v{vT2}, 5, v{vT1}"); A(f"  v_lshlrev_b32 v{vT1}, 4, v{vT1}")
    A(f"  ds_read_b128 v[{H}:{H+3}], v{vT2} offset:{L_ML}"); A(f"  ds_read_b128 v[{H+4}:{H+7}], v{vT2} offset:{L_ML+16}")
    A("  s_lshl_b32 s47, s3, 5"); A("  s_add_u32 s47, s47, s4"); A("  s_lshl_b32 s47, s47, 8"); A(f"  s_add_u32 s47, s47, {W_ML}")
    A("  s_waitcnt lgkmcnt(0)")
    A(f"  v_max3_f32 v{H+8}, v{H}, v{H+2}, v{H+4}"); A(f"  v_max_f32 v{H+8}, v{H+8}, v{H+6}")
    for w in range(4): A(f"  v_sub_f32 v{H+12+w}, v{H+2*w}, v{H+8}")
    for w in range(4): A(f"  v_exp_f32 v{H+12+w}, v{H+12+w}")
    A(f"  v_mov_b32 v{H+10}, 0"); A(f"  v_mov_b32 v{H+11}, s46")
    A(f"  v_mul_f32 v{H+9}, v{H+12}, v{H+1}")
    for w in range(1, 4): A(f"  v_fmac_f32 v{H+9}, v{H+12+w}, v{H+2*w+1}")
    A(f"  ds_write_b128 v{vT1}, v[{H+12}:{H+15}] offset:{L_E}")
    A("  s_mov_b64 exec, 0xffff")
    A(f"  buffer_store_dwordx4 v[{H+8}:{H+11}], v{vT1}, s[36:39], s47 offen sc1")
    A("  s_mov_b64 exec, -1")
    A(f"  s_mov_b32 s44, {t_w}"); A("  s_branch L_pace")
    A("L_evw:")
    A(f"  v_and_b32 v{vT1}, 31, v{vLane}"); A(f"  v_lshlrev_b32 v{vT1}, 8, v{vT1}")
    A(f"  v_and_b32 v{vT2}, 32, v{vLane}"); A(f"  v_lshl_add_u32 v{vT1}, v{vT2}, 1, v{vT1}      ; producer*256 + b*64")
    A("  s_lshr_b32 s47, s4, 4"); A("  s_lshl_b32 s47, s47, 3"); A("  s_lshr_b32 s48, s4, 2"); A("  s_and_b32 s48, s48, 3"); A("  s_add_u32 s47, s47, s48")
    A("  s_lshl_b32 s47, s47, 4"); A("  s_lshl_b32 s48, s3, 13"); A("  s_add_u32 s47, s47, s48"); A(f"  s_add_u32 s47, s47, {W_ML}")
    A(f"  s_mov_b32 s50, {SPIN}")
    A("L_wg:")
    A(f"  buffer_load_dwordx4 v[{H}:{H+3}], v{vT1}, s[36:39], s47 offen sc1"); A("  s_waitcnt vmcnt(0)")
    A(f"  v_cmp_ne_u32 vcc, s46, v{H+3}")
    A("  s_sub_u32 s50, s50, 1"); A("  s_cbranch_scc1 L_wgo2")
    A("  s_cmp_eq_u64 vcc, 0"); A("  s_cbranch_scc1 L_wgo2")
    A("  s_sleep 16"); A("  s_branch L_wg")
    A("L_wgo2:")
    def red32(op, t, u):
        for sh in (1, 2, 4, 8):
            A("  s_nop 1"); A(f"  {op}_dpp v{t}, v{t}, v{t} row_ror:{sh} row_mask:0xf bank_mask:0xf")
        A(f"  v_mov_b32 v{u}, v{t}"); A("  s_nop 1"); A(f"  v_permlane16_swap_b32 v{t}, v{u}"); A("  s_nop 0"); A(f"  {op} v{t}, v{t}, v{u}")
    A(f"  v_mov_b32 v{H+4}, v{H}")
    red32("v_max_f32", H+4, H+5)
    A(f"  v_sub_f32 v{H}, v{H}, v{H+4}"); A(f"  v_exp_f32 v{H}, v{H}"); A("  s_nop 0")
    A(f"  v_mul_f32 v{H+4}, v{H}, v{H+1}")
    red32("v_add_f32", H+4, H+5)
    A(f"  v_rcp_f32 v{H+4}, v{H+4}")
    A(f"  v_and_b32 v{vT1}, 7, v{vLane}"); A(f"  v_lshlrev_b32 v{vT1}, 4, v{vT1}"); A(f"  v_lshl_add_u32 v{vT1}, v{vT2}, 2, v{vT1}")
    A(f"  v_and_b32 v{vT2}, 24, v{vLane}"); A(f"  v_lshrrev_b32 v{vT2}, 1, v{vT2}"); A(f"  v_add_u32 v{vT1}, v{vT1}, v{vT2}")
    A(f"  v_mul_f32 v{H}, v{H}, v{H+4}"); A(f"  v_mov_b32 v{H+1}, 1")
    A(f"  ds_write_b32 v{vT1}, v{H} offset:{L_W}"); A(f"  ds_write_b32 v{vZero}, v{H+1} offset:{L_CTL+8}")
    A(f"  s_mov_b32 s44, {t_f}"); A("  s_branch L_pace")
    A("L_flush:")
    stamp("h", "flush0")
    A(f"  v_mov_b32 v{H+6}, 1"); A(f"  ds_write_b32 v{vZero}, v{H+6} offset:{L_CTL}")
    A(f"  v_add_u32 v{vDa}, {L_O}, v{vQa}"); A(f"  v_mov_b32 v{vMLa}, {L_E}")
    A("  s_lshl_b32 s47, s3, 19"); A("  s_lshl_b32 s48, s4, 10"); A("  s_add_u32 s47, s47, s48"); A(f"  s_add_u32 s47, s47, {W_O}")
    A("  s_mov_b32 s44, 0")
    A(f"  v_mov_b32 v{H+35}, s46")
    A("L_fl:")
    A("  s_cmp_ge_u32 s44, 8"); A("  s_cselect_b32 s48, 16, 8"); A("  s_add_u32 s48, s48, s44"); A("  s_lshl_b32 s48, s48, 3"); A("  s_add_u32 s48, s48, 5")
    A(f"  ds_read_b128 v[{H+28}:{H+31}], v{vMLa}")
    A("L_flw:")
    A(f"  ds_read_b128 v[{H}:{H+3}], v{vZero} offset:{L_CTL+16}"); A("  s_waitcnt lgkmcnt(0)")
    A(f"  v_min3_u32 v{H+4}, v{H}, v{H+1}, v{H+2}"); A(f"  v_min_u32 v{H+4}, v{H+4}, v{H+3}"); A("  s_nop 0")
    A(f"  v_readfirstlane_b32 s20, v{H+4}")
    A("  s_cmp_lt_u32 s20, s48"); A("  s_cbranch_scc1 L_flw")
    for k in range(12): A(f"  ds_read2st64_b32 v[{H+2*k}:{H+2*k+1}], v{vDa} offset0:{2*k} offset1:{2*k+1}")
    for w in range(4):
        A(f"  s_waitcnt lgkmcnt({9-3*w})")
        for t in range(3): A(f"  v_add_f32 v{H+6*w+t}, v{H+6*w+t}, v{H+6*w+3+t}")
        for t in range(3):
            A(f"  v_mul_f32 v{H+32+t}, v{H+28}, v{H+t}" if w == 0 else f"  v_fmac_f32 v{H+32+t}, v{H+28+w}, v{H+6*w+t}")
    if loc:
        A("  s_cmp_lg_u32 s44, 15"); A("  s_cbranch_scc1 L_flg")
        A("  s_lshl_b32 s48, s3, 5"); A("  s_add_u32 s48, s48, s4"); A("  s_lshl_b32 s48, s48, 10"); A(f"  s_add_u32 s48, s48, {W_OL}")
        A(f"  buffer_store_dwordx4 v[{H+32}:{H+35}], v{vT3}, s[36:39], s48 offen")
        A("L_flg:")
    A(f"  buffer_store_dwordx4 v[{H+32}:{H+35}], v{vT3}, s[36:39], s47 offen sc1")
    A(f"  v_add_u32 v{vDa}, 6144, v{vDa}"); A(f"  v_add_u32 v{vMLa}, 16, v{vMLa}")
    A("  s_add_u32 s47, s47, 32768"); A("  s_add_u32 s44, s44, 1"); A("  s_cmp_lt_u32 s44, 16"); A("  s_cbranch_scc1 L_fl")
    stamp("h", "flushed")
    if fuse:
        A("  s_load_dwordx2 s[12:13], s[0:1], 80")
        A("  s_and_b32 s20, s2, 3"); A("  s_lshr_b32 s21, s2, 2")
        A(f"  v_lshrrev_b32 v{vPa}, 2, v{vLane}"); A(f"  v_and_b32 v{vQa}, 3, v{vLane}")
        A(f"  v_mul_u32_u24 v{vPa}, 5120, v{vPa}"); A(f"  v_lshl_add_u32 v{vPa}, v{vQa}, 4, v{vPa}"); A(f"  v_lshlrev_b32 v{vQa}, 3, v{vQa}")
        A("  s_mul_i32 s60, s20, 327680"); A("  s_lshl_b32 s22, s21, 6"); A("  s_add_u32 s60, s60, s22")
        A("  s_add_u32 s61, s60, 81920"); A("  s_add_u32 s62, s60, 163840"); A("  s_add_u32 s63, s60, 245760")
        A("  s_and_b32 s22, s20, 1"); A("  s_mul_i32 s22, s22, 2560"); A("  s_lshr_b32 s23, s20, 1"); A("  s_mul_i32 s23, s23, 1280")
        A("  s_add_u32 s22, s22, s23"); A("  s_lshl_b32 s23, s21, 5"); A("  s_add_u32 s22, s22, s23")
        A("  s_mov_b32 s14, 5120"); A("  s_mov_b32 s15, 0x20000")
        A("  s_mov_b32 s24, 0x0c0c0400"); A("  s_mov_b32 s25, 0x04000c0c"); A("  s_mov_b32 s26, 0xffffff00")
        for k in range(8): A(f"  s_mov_b64 s[{64+2*k}:{65+2*k}], -1")
    A("  s_branch L_yred")
    if fuse:
        A("L_final:")
        if stamps: A(f"  s_memrealtime s[{84+2*len(names['h'])}:{85+2*len(names['h'])}]"); A("  s_waitcnt lgkmcnt(0)")
        A(f"  s_cmp_ge_u32 s2, 160"); A(f"  s_cbranch_scc1 {'L_hst' if stamps else 'L_end'}")
        A(f"  s_mov_b32 s50, {SPIN}")
        A("L_fin:")
        if fslp: A(f"  s_sleep {fslp}")
        for k in range(8):
            A(f"  s_mov_b64 exec, s[{64+2*k}:{65+2*k}]"); A(f"  s_cbranch_execz L_fin{k}")
            A(f"  buffer_load_dwordx4 v[{H+4*k}:{H+4*k+3}], v{vPa}, s[36:39], s{60+k//2} offen offset:{2560*(k%2)} sc1")
            A(f"L_fin{k}:")
        A("  s_mov_b64 exec, -1")
        A("  s_waitcnt vmcnt(0)")
        for k in range(8):
            A(f"  v_perm_b32 v{vS}, v{H+4*k+1}, v{H+4*k}, s24"); A(f"  v_perm_b32 v{vS+1}, v{H+4*k+3}, v{H+4*k+2}, s25")
            A(f"  v_or_b32 v{vS}, v{vS}, v{vS+1}"); A(f"  v_cmp_ne_u32 s[{64+2*k}:{65+2*k}], s46, v{vS}")
        A("  s_or_b64 s[48:49], s[64:65], s[66:67]")
        for k in range(2, 8): A(f"  s_or_b64 s[48:49], s[48:49], s[{64+2*k}:{65+2*k}]")
        A("  s_sub_u32 s50, s50, 1"); A("  s_cbranch_scc1 L_fgo")
        A("  s_cmp_eq_u64 s[48:49], 0"); A("  s_cbranch_scc0 L_fin")
        A("L_fgo:")
        stamp("h", "ygot")
        for i in range(32): A(f"  v_and_b32 v{H+i}, s26, v{H+i}")
        for st in (16, 8, 4):
            for i in range(st): A(f"  v_add_f32 v{H+i}, v{H+i}, v{H+st+i}")
        for sh in (4, 8):
            for r in range(4): A(f"  v_add_f32_dpp v{H+r}, v{H+r}, v{H+r} row_ror:{sh} row_mask:0xf bank_mask:0xf")
        for sw in ("v_permlane32_swap_b32", "v_permlane16_swap_b32"):
            for r in range(4): A(f"  v_mov_b32 v{H+4+r}, v{H+r}")
            for r in range(4): A(f"  {sw} v{H+r}, v{H+4+r}")
            for r in range(4): A(f"  v_add_f32 v{H+r}, v{H+r}, v{H+4+r}")
        A(f"  v_cvt_pk_bf16_f32 v{H}, v{H}, v{H+1}"); A(f"  v_cvt_pk_bf16_f32 v{H+1}, v{H+2}, v{H+3}")
        A("  s_mov_b64 exec, 15")
        A(f"  buffer_store_dwordx2 v[{H}:{H+1}], v{vQa}, s[12:15], s22 offen")
        if not stamps: A("  s_endpgm")
    if stamps:
        A("L_hst:")
        A("  s_waitcnt vmcnt(0)")
        stamp("h", "hend")
        dump_stamps("h", 1)
        A("  s_endpgm")
        sn = names["s"]; hn = names["h"]
        L.insert(2, "; stamps: start id " + " ".join((sn[1:] + ["id"] * 6)[:6]) + " " + " ".join((hn + ["id"] * 8)[:7]) + " last")
    n_k2 = len(L)
    A(f".globl {K2}"); A(".p2align 8"); A(f".type {K2},@function"); A(f"{K2}:")
    A("  s_cmp_ge_u32 s2, 160"); A("  s_cbranch_scc1 L2_end")
    A("  s_load_dwordx2 s[4:5], s[0:1], 96"); A("  s_load_dwordx2 s[8:9], s[0:1], 80")
    A("  s_and_b32 s3, s2, 3              ; pb"); A("  s_lshr_b32 s12, s2, 2")
    A("  v_lshrrev_b32 v1, 2, v0"); A("  v_and_b32 v2, 3, v0")
    A("  v_mul_u32_u24 v3, 5120, v1"); A("  v_lshl_add_u32 v3, v2, 4, v3")
    A("  s_mul_i32 s13, s3, 327680"); A("  s_lshl_b32 s14, s12, 6"); A("  s_add_u32 s13, s13, s14")
    A("  s_add_u32 s17, s13, 81920"); A("  s_add_u32 s18, s13, 163840"); A("  s_add_u32 s19, s13, 245760")
    A(f"  s_mov_b32 s6, {WS}"); A("  s_mov_b32 s7, 0x20000"); A("  s_mov_b32 s10, 5120"); A("  s_mov_b32 s11, 0x20000")
    A("  s_and_b32 s15, s3, 1"); A("  s_mul_i32 s15, s15, 2560"); A("  s_lshr_b32 s16, s3, 1"); A("  s_mul_i32 s16, s16, 1280")
    A("  s_add_u32 s15, s15, s16"); A("  s_lshl_b32 s16, s12, 5"); A("  s_add_u32 s15, s15, s16")
    A("  v_lshlrev_b32 v6, 3, v2")
    A("  s_waitcnt lgkmcnt(0)")
    for k in range(8):
        A(f"  buffer_load_dwordx4 v[{8+4*k}:{11+4*k}], v3, s[4:7], s{(13,17,18,19)[k//2]} offen offset:{2560*(k%2)}")
    for k in range(1, 8):
        A(f"  s_waitcnt vmcnt({7-k})")
        for r in range(4): A(f"  v_add_f32 v{8+r}, v{8+r}, v{8+4*k+r}")
    for sh in (4, 8):
        for r in range(4): A(f"  v_add_f32_dpp v{8+r}, v{8+r}, v{8+r} row_ror:{sh} row_mask:0xf bank_mask:0xf")
    for sw in ("v_permlane32_swap_b32", "v_permlane16_swap_b32"):
        for r in range(4): A(f"  v_mov_b32 v{12+r}, v{8+r}")
        for r in range(4): A(f"  {sw} v{8+r}, v{12+r}")
        for r in range(4): A(f"  v_add_f32 v{8+r}, v{8+r}, v{12+r}")
    A("  v_cvt_pk_bf16_f32 v8, v8, v9"); A("  v_cvt_pk_bf16_f32 v9, v10, v11")
    A("  s_mov_b64 exec, 15")
    A("  buffer_store_dwordx2 v[8:9], v6, s[8:11], s15 offen")
    A("L2_end:"); A("  s_endpgm")
    if fuse: del L[n_k2:]
    A('.section .rodata,"a"')
    for kn, nv, acc, ns in ((KN, ACC + NA, ACC, 102), (K2, 40, 40, 24))[:1 if fuse else 2]:
        A(".p2align 6"); A(f".amdhsa_kernel {kn}")
        A(f"  .amdhsa_next_free_vgpr {nv}"); A(f"  .amdhsa_next_free_sgpr {ns}"); A(f"  .amdhsa_accum_offset {acc}")
        A("  .amdhsa_group_segment_fixed_size 0"); A("  .amdhsa_kernarg_size 104"); A("  .amdhsa_user_sgpr_count 2")
        A("  .amdhsa_user_sgpr_kernarg_segment_ptr 1"); A("  .amdhsa_system_sgpr_workgroup_id_x 1")
        A(".end_amdhsa_kernel")
    open(name, "w").write("\n".join(L) + "\n")
    return name
if __name__ == "__main__":
    if len(sys.argv) > 2:
        hdr = open("concat_heads__gqa_block_cached__mha_block_cached__decode.s.ref").read().split("; Override launch")[0]
        print(gen(name=sys.argv[2], header=hdr, **eval(sys.argv[1])))
    else:
        print(" ".join(gen(**kw) for kw in eval(sys.argv[1])))
```

```python
import sys, math, struct
KN = "concat_heads__gqa_block_cached__mha_block_cached__decode_kernel"
K2 = "final_reduce_kernel"
WS = 836768768
KVBYTES = 201326592
WBYTES = 7864320
def f32hex(x): return "0x%08x" % struct.unpack("<I", struct.pack("<f", x))[0]

def gen(name="z.s", header="", stamps=0, lo=3, mid=4, hi=5, d0=5, dl=5, pace=2, slp=32, ta=200, tb=-100, lper=8, kap=202,
        t_ml=193, t_w=212, t_f=241, wqpol="nt", wopol="nt", nok2=False, mode0=1, SPIN=200000, nslp=8, curve=False, dry=False, wqd=6, nslp0=16, rot=0, loc=True, nloc=24, fuse=True, fslp=0, dbg=False, nfl=2, usepure=True, t_q=16, wb=0, rstmode=False, pack=True, wbj=31, pw=True, gpos=11, YS=2688, OS=640, fslp0=20, gcrit=False):
    L = []; A = L.append
    L_CTL = 0
    L_W = 64
    L_E = L_W + 256
    L_ML = L_E + 256
    L_Q = L_ML + 512
    L_P = L_Q + 17 * 384
    PROW = 272; PWAVE = 8 * PROW
    L_Y = L_P + 4 * PWAVE + 64
    L_O = L_Y + 20480
    LDS = L_O + 16 * 6144
    assert L_Y % 16 == 0 and L_O % 16 == 0 and L_Q % 16 == 0 and L_P % 16 == 0
    W_Y = 0
    W_O = 2 << 20
    W_Q = 6 << 20
    W_ML = W_Q + (128 << 10)
    W_B = W_ML + (128 << 10)
    W_G = W_B + (128 << 10)
    QLOC = 512 << 10
    W_OL = 7 << 20
    vLane, vKV, vW, vZero = 1, 2, 3, 4
    vT0, vT1, vT2, vT3 = 5, 6, 7, 8
    vPa, vQa, vDa, vMLa, vCa, vProg, vMode = 9, 10, 11, 12, 13, 14, 15
    vM = 16; vB = 20; vQ = 28; vS = 40; vD = 48; vRing = 68
    vX = vQ
    NV = vRing + 96
    if curve: vCv = NV; NV += 2
    ACC = (NV + 3) // 4 * 4
    NA = 80
    def ring(s, t): return vRing + 12 * s + 4 * t
    names = {"s": [], "h": []}
    def stamp(who, nm, level=1):
        if stamps == level or (stamps and level == 1 and nm not in ("preB1", "ring", "B2", "end", "nonce", "qtab")):
            k = len(names[who]); assert k < 8, nm
            names[who].append(nm)
            A(f"  s_memrealtime s[{84+2*k}:{85+2*k}]")
    def dump_stamps(who, rec):
        n = len(names[who])
        if dbg:
            A("  s_waitcnt vmcnt(0) lgkmcnt(0)")
            A("  s_mov_b32 s64, s40"); A("  s_mov_b32 s65, s41"); A("  s_mov_b32 s66, 256"); A("  s_mov_b32 s67, 0x20000")
            A("  s_mov_b64 exec, 1")
            for k in range(n):
                A(f"  s_sub_u32 s47, s{84+2*k}, s46"); A("  s_add_u32 s47, s47, 100"); A(f"  v_mov_b32 v{vRing+k}, s47")
                A(f"  buffer_atomic_umax v{vRing+k}, v{vZero}, s[64:67], 0 offen offset:{4*(1 + k + (7 if who == 'h' else 0))}")
            return
        A("  s_getreg_b32 s100, hwreg(HW_REG_XCC_ID)"); A("  s_getreg_b32 s101, hwreg(HW_REG_HW_ID)")
        A("  s_waitcnt vmcnt(0) lgkmcnt(0)")
        A(f"  s_lshl_b32 s47, s2, 7"); A(f"  s_add_u32 s47, s47, {WS - (1<<20) + 64*rec}")
        if who == "s": regs = [84, 85, 100, 101] + sum([[84+2*min(k, n-1), 85+2*min(k, n-1)] for k in range(1, 7)], [])
        else: regs = sum([[84+2*min(k, n-1), 85+2*min(k, n-1)] for k in range(8)], [])
        A("  s_mov_b64 exec, 1")
        for i in range(16): A(f"  v_mov_b32 v{vRing+i}, s{regs[i]}")
        for i in range(4): A(f"  buffer_store_dwordx4 v[{vRing+4*i}:{vRing+4*i+3}], v{vZero}, s[36:39], s47 offen offset:{16*i}")

    assert fuse or YS == 2560
    if fuse:
        A(header + f"; @launch grid=(256,1,1) block=(320,1,1) lds={LDS}"); A("; single launch")
    else:
        A(header + f"; @launch kernel={KN} grid=(256,1,1) block=(320,1,1) lds={LDS}")
        A(f"; @launch kernel={K2} grid=(160,1,1) block=(64,1,1) lds=0" if not nok2 else "; (second launch disabled)")
    A('.amdgcn_target "amdgcn-amd-amdhsa--gfx950"')
    A(".text"); A(f".globl {KN}"); A(".p2align 8"); A(f".type {KN},@function"); A(f"{KN}:")
    A("  s_cmp_ge_u32 s2, 256"); A("  s_cbranch_scc1 L_end")
    A("  s_load_dwordx16 s[64:79], s[0:1], 0")
    A("  s_load_dwordx4 s[80:83], s[0:1], 64")
    A("  s_load_dwordx4 s[40:43], s[0:1], 88")
    if curve: A("  s_memrealtime s[96:97]"); A(f"  v_mov_b32 v{vCv}, 0"); A(f"  v_mov_b32 v{vCv+1}, 0")
    stamp("s", "start"); names["h"] = ["hstart"] if stamps else []
    A("  s_and_b32 s3, s2, 7             ; x"); A("  s_lshr_b32 s4, s2, 3            ; j")
    A(f"  v_lshrrev_b32 v{vT0}, 6, v0"); A(f"  v_and_b32 v{vLane}, 63, v0")
    A(f"  v_readfirstlane_b32 s5, v{vT0}     ; wave")
    A(f"  v_mov_b32 v{vZero}, 0")
    A(f"  v_lshrrev_b32 v{vT1}, 3, v{vLane}    ; l/8"); A(f"  v_and_b32 v{vT2}, 7, v{vLane}        ; l%8")
    A(f"  s_mov_b32 s38, {WS}"); A("  s_mov_b32 s39, 0x20000")
    A("  s_cmp_lg_u32 s5, 4"); A("  s_cbranch_scc1 L_stream")
    A("  s_memrealtime s[48:49]")
    A("  s_mov_b32 s10, 256"); A("  s_mov_b32 s11, 0x20000")
    A("  s_waitcnt lgkmcnt(0)")
    A("  s_mov_b32 s8, s40"); A("  s_mov_b32 s9, s41")
    A("  s_or_b32 s46, s48, 1")
    if not dbg: A("  s_mul_i32 s46, s46, 0x9e3779b1")
    A("  s_cmp_lg_u32 s2, 0"); A("  s_cbranch_scc1 L_helper")
    A(f"  v_mov_b32 v{vT0}, s46"); A("  s_mov_b64 exec, 1")
    A(f"  buffer_store_dword v{vT0}, v{vZero}, s[8:11], 0 offen sc1")
    A("  s_mov_b64 exec, -1"); A("  s_branch L_helper")
    A("L_stream:")
    A(f"  v_lshlrev_b32 v{vT3}, 4, v{vT2}")
    A(f"  v_mul_u32_u24 v{vKV}, 384, v{vT1}"); A(f"  v_add_u32 v{vKV}, v{vKV}, v{vT3}")
    A(f"  v_mul_u32_u24 v{vW}, {20*12288}, v{vT1}"); A(f"  v_add_u32 v{vW}, v{vW}, v{vT3}")
    A(f"  v_mul_u32_u24 v{vT0}, 40, v{vT1}")
    A("  s_lshl_b32 s13, s4, 2"); A("  s_add_u32 s13, s13, s5"); A("  s_mul_i32 s13, s13, 3072")
    A("  s_mul_i32 s47, s3, 3145728"); A("  s_add_u32 s12, s13, s47")
    A("  s_mul_i32 s47, s4, 171"); A("  s_lshr_b32 s47, s47, 9          ; sigma")
    A("  s_mul_i32 s48, s47, 3"); A("  s_sub_u32 s48, s4, s48          ; c")
    A("  s_and_b32 s49, s47, 3"); A("  s_lshl_b32 s49, s49, 3"); A(f"  s_mul_i32 s47, s47, {rot}"); A("  s_add_u32 s47, s47, s3"); A("  s_and_b32 s47, s47, 7"); A("  s_add_u32 s49, s49, s47         ; h")
    A("  s_mul_i32 s49, s49, 384"); A("  s_lshl_b32 s48, s48, 7"); A("  s_add_u32 s28, s49, s48")
    A(f"  s_mul_i32 s48, s5, {160*12288}"); A("  s_add_u32 s28, s28, s48")
    A("  s_mul_i32 s29, s5, 320")
    A(f"  s_mov_b32 s10, {KVBYTES}"); A("  s_mov_b32 s11, 0x20000")
    A(f"  s_mov_b32 s26, {WBYTES}"); A("  s_mov_b32 s27, 0x20000")
    A("  s_mov_b32 s34, 2560"); A("  s_mov_b32 s35, 0x20000")
    A("  s_cmp_ge_u32 s4, 12")
    A("  s_waitcnt lgkmcnt(0)")
    A("  s_cselect_b32 s24, s80, s70"); A("  s_cselect_b32 s25, s81, s71")
    A("  s_cselect_b32 s32, s74, s64"); A("  s_cselect_b32 s33, s75, s65")
    A("  s_mov_b32 s8, s66"); A("  s_mov_b32 s9, s67")
    HEADJ = 393216 + 7 * 3145728
    def kv_load(n):
        s, t = divmod(n, 3)
        A(f"  buffer_load_dwordx4 v[{ring(s,t)}:{ring(s,t)+3}], v{vKV}, s[8:11], s12 offen offset:{128*t} nt")
        if t == 2 and s < 7: A("  s_add_u32 s12, s12, 393216")
    def consts():
        A(f"  v_and_b32 v{vT0}, 1, v{vT2}"); A(f"  v_lshlrev_b32 v{vT0}, 4, v{vT0}")
        A(f"  v_mov_b32 v{vT3}, 0xffff"); A(f"  v_lshlrev_b32 v{vT0}, v{vT0}, v{vT3}")
        A(f"  v_lshrrev_b32 v{vT3}, 1, v{vT2}")
        for q in range(4):
            A(f"  v_cmp_eq_u32 vcc, {q}, v{vT3}"); A("  s_nop 1"); A(f"  v_cndmask_b32 v{vM+q}, 0, v{vT0}, vcc")
        A("  s_mov_b32 s54, 0x00ff00ff"); A("  s_mov_b32 s55, 0xff00ff00")
    A("  s_cmp_ge_u32 s4, 24"); A("  s_cbranch_scc1 L_noq")
    for b in range(2):
        A(f"  buffer_load_dwordx4 v[{vX+10*b}:{vX+10*b+3}], v{vT0}, s[32:35], s29 offen offset:{1280*b}")
        A(f"  buffer_load_dwordx4 v[{vX+10*b+4}:{vX+10*b+7}], v{vT0}, s[32:35], s29 offen offset:{1280*b+16}")
        A(f"  buffer_load_dwordx2 v[{vX+10*b+8}:{vX+10*b+9}], v{vT0}, s[32:35], s29 offen offset:{1280*b+32}")
    def wq_load(i):
        A(f"  buffer_load_dwordx4 a[{4*i}:{4*i+3}], v{vW}, s[24:27], s28 offen {wqpol}")
        if i < 19: A("  s_add_u32 s28, s28, 12288")
    nq = wqd or 20
    for i in range(nq): wq_load(i)
    consts()
    A("  s_mov_b32 s52, 0x01000100"); A("  s_mov_b32 s53, 0x03020302")
    nk = 0
    for i in range(20):
        A(f"  s_waitcnt vmcnt({nq - 1 - i + nk})")
        if nq < 20: wq_load(nq); nq += 1
        else:
            while (19 - i + nk) < d0: kv_load(nk); nk += 1
        for b in range(2):
            A(f"  v_perm_b32 v{vT0}, v{vX+10*b+i//2}, v{vX+10*b+i//2}, s{52+(i&1)}")
            for q in range(4): A(f"  v_and_b32 v{vB+4*b+q}, v{vT0}, v{vM+q}")
        for b in range(2):
            if b == 1: A("  s_nop 0")
            c = f"v[{vD+4*b}:{vD+4*b+3}]" if i else "0"
            A(f"  v_mfma_f32_16x16x32_bf16 v[{vD+4*b}:{vD+4*b+3}], v[{vB+4*b}:{vB+4*b+3}], a[{4*i}:{4*i+3}], {c}")
    assert nk == d0
    A(f"  v_lshrrev_b32 v{vT0}, 5, v{vLane}"); A(f"  v_lshlrev_b32 v{vT0}, 9, v{vT0}")
    A(f"  v_lshl_add_u32 v{vT0}, v{vT2}, 5, v{vT0}")
    A(f"  v_and_b32 v{vT3}, 16, v{vLane}"); A(f"  v_add_u32 v{vT0}, v{vT0}, v{vT3}")
    A("  s_lshl_b32 s47, s5, 10"); A(f"  v_add_u32 v{vT0}, s47, v{vT0}")
    A("  s_nop 0")
    A("  s_mov_b64 exec, s[54:55]")
    for b in range(2): A(f"  ds_write_b128 v{vT0}, v[{vD+4*b}:{vD+4*b+3}] offset:{L_Y + 256*b}")
    A("  s_mov_b64 exec, -1")
    A("  s_branch L_qdone")
    A("L_noq:")
    for n in range(d0): kv_load(n)
    consts()
    A("L_qdone:")
    stamp("s", "preB1")
    A("  s_waitcnt lgkmcnt(0)"); A("  s_barrier                       ; B1: q partials")
    rest = []
    R = rest.append
    R([f"  s_mul_i32 s47, s5, {PWAVE}", f"  s_add_u32 s47, s47, {L_P}", f"  v_mul_u32_u24 v{vPa}, {PROW}, v{vT1}", f"  v_add_u32 v{vPa}, s47, v{vPa}"])
    R([f"  v_lshlrev_b32 v{vQa}, 4, v{vT2}", f"  s_lshl_b32 s47, s5, 3", f"  v_mov_b32 v{vMLa}, s47", f"  s_lshl_b32 s47, s5, 2", f"  v_mov_b32 v{vCa}, s47", f"  v_mov_b32 v{vProg}, 0"])
    R([f"  v_lshrrev_b32 v{vDa}, 5, v{vLane}", f"  v_mul_u32_u24 v{vDa}, 768, v{vDa}", f"  v_lshl_add_u32 v{vDa}, v{vT2}, 5, v{vDa}",
       f"  v_and_b32 v{vT3}, 16, v{vLane}", f"  v_add_u32 v{vDa}, v{vDa}, v{vT3}", "  s_mul_i32 s47, s5, 1536", f"  s_add_u32 s47, s47, {L_O}", f"  v_add_u32 v{vDa}, s47, v{vDa}"])
    R(["  s_mov_b32 s16, s68", "  s_mov_b32 s17, s69", "  s_mov_b32 s18, s76", "  s_mov_b32 s19, s77", "  s_mov_b32 s20, s78", "  s_mov_b32 s21, s79"])
    R(["  s_cmp_ge_u32 s4, 16", "  s_cselect_b32 s24, s82, s72", "  s_cselect_b32 s25, s83, s73", "  s_mov_b32 s36, s42", "  s_mov_b32 s37, s43"])
    R(["  s_lshr_b32 s47, s4, 2", f"  s_mul_i32 s49, s47, {rot}", "  s_add_u32 s49, s49, s3", "  s_and_b32 s49, s49, 7", "  s_and_b32 s47, s47, 3", "  s_lshl_b32 s48, s47, 3", "  s_add_u32 s48, s48, s49", "  s_mul_i32 s48, s48, 192",
       "  s_and_b32 s49, s4, 3", "  s_lshl_b32 s49, s49, 2", "  s_add_u32 s49, s49, s5", "  s_lshl_b32 s49, s49, 2      ; 16qd+4w",
       "  s_add_u32 s28, s48, s49", "  s_mul_i32 s28, s28, 1280"])
    pk = 1 if pack else 0
    assert not (pack and loc and not usepure)
    R(["  s_lshr_b32 s48, s4, 4", "  s_lshl_b32 s48, s48, 3", "  s_add_u32 s48, s48, s47", f"  s_mul_i32 s48, s48, {32*OS}", "  s_lshl_b32 s49, s49, 3", "  s_add_u32 s48, s48, s49",
       f"  s_mul_i32 s49, s3, {512*OS}", "  s_add_u32 s48, s48, s49", f"  s_add_u32 s60, s48, {W_O}", f"  s_add_u32 s61, s60, {8*OS}", f"  s_add_u32 s62, s60, {16*OS}", f"  s_add_u32 s63, s60, {24*OS}"])
    R([f"  v_lshrrev_b32 v{vT0}, 4, v{vLane}", f"  v_mul_u32_u24 v{vW}, 1280, v{vT0}", f"  v_and_b32 v{vT3}, 15, v{vLane}", f"  v_lshl_add_u32 v{vW}, v{vT3}, 4, v{vW}"])
    R([f"  s_mov_b32 s58, {f32hex(192 ** -0.5 * math.log2(math.e))}", "  s_mov_b32 s44, 0", f"  s_mov_b32 s45, {mode0}"])
    for n in range(d0, 24):
        A(f"  s_waitcnt vmcnt({d0-1})")
        kv_load(n)
        if rest:
            for x in rest.pop(0): A(x)
    assert not rest
    stamp("s", "ring")
    A("  s_barrier                       ; B2: q table ready")
    for t in range(3): A(f"  ds_read_b128 v[{vQ+4*t}:{vQ+4*t+3}], v{vQa} offset:{L_Q + 128*t}")
    stamp("s", "B2")
    A("  s_waitcnt lgkmcnt(0)")
    def throttle(tag):
        A(f"  s_waitcnt vmcnt({hi})")
        if pace:
            A("  s_cmp_eq_u32 s45, 2"); A(f"  s_cbranch_scc1 {tag}")
        A(f"  s_waitcnt vmcnt({mid})")
        if pace and lo != mid:
            A("  s_cmp_eq_u32 s45, 1"); A(f"  s_cbranch_scc1 {tag}")
            A(f"  s_waitcnt vmcnt({lo})")
        A(f"{tag}:")
    def switch(tag):
        A("  s_add_u32 s47, s44, 1"); A("  s_lshr_b32 s48, s47, 4"); A("  s_lshl_b32 s48, s48, 2"); A("  s_and_b32 s49, s47, 3"); A("  s_add_u32 s48, s48, s49")
        A(f"  s_mul_i32 s48, s48, {rot}"); A("  s_add_u32 s48, s48, s3"); A("  s_and_b32 s48, s48, 7")
        A("  s_and_b32 s47, s47, 7"); A(f"  s_cbranch_scc1 {tag}")
        A("  s_mov_b32 s8, s16"); A("  s_mov_b32 s9, s17")
        for k in range(4): A(f"  s_mov_b32 s{16+k}, s{18+k}")
        A(f"{tag}:")
        A("  s_lshl_b32 s47, s47, 3"); A("  s_add_u32 s48, s48, s47"); A("  s_mul_i32 s48, s48, 3145728"); A("  s_add_u32 s12, s13, s48")
    def body(tag, gaps):
        for n in range(24):
            s, j = divmod(n, 3)
            for x in gaps.get(n, []): A(x)
            if j == 2 and pace:
                A("  s_waitcnt lgkmcnt(0)"); A(f"  v_readfirstlane_b32 s45, v{vMode}")
            throttle(f"{tag}_{n}")
            kv_load(n)
            if j == 1 and pace: A(f"  ds_read_b32 v{vMode}, v{vCa} offset:{L_CTL+32}")
            if j == 2:
                A(f"  v_add_u32 v{vProg}, 1, v{vProg}"); A(f"  ds_write_b32 v{vCa}, v{vProg} offset:{L_CTL+16}")
    def xred(op, t, u):
        return [f"  s_nop 1", f"  {op}_dpp v{t}, v{t}, v{t} row_ror:8 row_mask:0xf bank_mask:0xf",
                f"  v_mov_b32 v{u}, v{t}", "  s_nop 1", f"  v_permlane16_swap_b32 v{t}, v{u}", "  s_nop 0", f"  {op} v{t}, v{t}, v{u}",
                f"  v_mov_b32 v{u}, v{t}", "  s_nop 1", f"  v_permlane32_swap_b32 v{t}, v{u}", "  s_nop 0", f"  {op} v{t}, v{t}, v{u}"]
    kg = {}
    for s in range(4):
        for j in range(2):
            T = 2 * s + j
            kg[3*s+j] = [f"  s_waitcnt vmcnt({3*(7-T) + 3*s + j})"] + \
                        [f"  v_dot2_f32_bf16 v{vS+T}, v{ring(T,0)+k}, v{vQ+k}, {('v%d' % (vS+T)) if k else '0'}" for k in range(12)]
        g = []
        for pat in ("quad_perm:[1,0,3,2]", "quad_perm:[2,3,0,1]", "row_half_mirror"):
            g += ["  s_nop 0"] + [f"  v_add_f32_dpp v{vS+T}, v{vS+T}, v{vS+T} {pat} row_mask:0xf bank_mask:0xf" for T in (2*s, 2*s+1)]
        kg[3*s+2] = g
    kg[12] = [f"  v_add_u32 v{vQa}, 384, v{vQa}",
              f"  v_max3_f32 v{vT0}, v{vS}, v{vS+1}, v{vS+2}", f"  v_max3_f32 v{vT0}, v{vT0}, v{vS+3}, v{vS+4}",
              f"  v_max3_f32 v{vT0}, v{vT0}, v{vS+5}, v{vS+6}", f"  v_max_f32 v{vT0}, v{vT0}, v{vS+7}"] + \
             [f"  ds_read_b128 v[{vQ+4*t}:{vQ+4*t+3}], v{vQa} offset:{L_Q + 128*t}" for t in range(3)]
    kg[13] = xred("v_max_f32", vT0, vT1) + [f"  v_mul_f32 v{vD}, s58, v{vT0}"]
    kg[14] = [f"  v_fma_f32 v{vS+i}, v{vS+i}, s58, -v{vD}" for i in range(8)]
    kg[15] = [f"  v_exp_f32 v{vS+i}, v{vS+i}" for i in range(8)]
    kg[16] = [f"  v_add_f32 v{vD+1}, v{vS}, v{vS+1}"] + [f"  v_add_f32 v{vD+1}, v{vD+1}, v{vS+i}" for i in range(2, 8)]
    kg[17] = [f"  v_cvt_pk_bf16_f32 v{vS+i}, v{vS+i}, v{vS+i}" for i in range(8)]
    kg[18] = [f"  ds_write_b128 v{vPa}, v[{vS}:{vS+3}]", f"  ds_write_b128 v{vPa}, v[{vS+4}:{vS+7}] offset:16", f"  v_add_u32 v{vPa}, 32, v{vPa}"]
    kg[19] = xred("v_add_f32", vD+1, vT1)
    kg[21] = [f"  ds_write_b64 v{vMLa}, v[{vD}:{vD+1}] offset:{L_ML}", f"  v_add_u32 v{vMLa}, 32, v{vMLa}"]
    def vtile(T, wait):
        b = vB + 4 * (T & 1)
        g = [f"  v_and_b32 v{b+q}, v{vS+T}, v{vM+q}" for q in range(4)] + [f"  s_waitcnt vmcnt({wait})", "  s_nop 0"]
        for t in range(3):
            c = f"v[{vD+4*t}:{vD+4*t+3}]" if T else "0"
            g.append(f"  v_mfma_f32_16x16x32_bf16 v[{vD+4*t}:{vD+4*t+3}], v[{b}:{b+3}], v[{ring(T,t)}:{ring(T,t)+3}], {c}")
        return g
    dump = ["  s_mov_b64 exec, s[54:55]"] + [f"  ds_write_b128 v{vDa}, v[{vD+4*t}:{vD+4*t+3}] offset:{256*t}" for t in range(3)] + ["  s_mov_b64 exec, -1"]
    pread = [f"  ds_read_b128 v[{vS}:{vS+3}], v{vPa}", f"  ds_read_b128 v[{vS+4}:{vS+7}], v{vPa} offset:16"]
    vg = {}
    for s in range(4):
        for j in range(2): vg[3*s+j] = vtile(2*s+j, 3*(7-(2*s+j)) + 3*s + j)
    vg[12] = ["  s_nop 7"] + dump + [f"  v_add_u32 v{vDa}, 6144, v{vDa}", f"  v_add_u32 v{vPa}, 32, v{vPa}"]
    vg[13] = pread
    vg[20] = ["  s_waitcnt lgkmcnt(0)"]
    kg[20] = ["  s_waitcnt lgkmcnt(0)"]
    def cstamp():
        if not curve: return
        A("  s_memrealtime s[98:99]"); A("  s_mov_b32 m0, s44"); A("  s_waitcnt lgkmcnt(0)")
        A(f"  v_writelane_b32 v{vCv}, s98, m0"); A(f"  v_writelane_b32 v{vCv+1}, s99, m0")
    A("L_kloop:")
    switch("L_ksw")
    body("L_k", kg); cstamp()
    A("  s_add_u32 s44, s44, 1"); A("  s_and_b32 s47, s44, 7"); A("  s_cbranch_scc1 L_kloop")
    A(f"  v_subrev_u32 v{vPa}, 256, v{vPa}")
    for x in pread: A(x)
    A("  s_waitcnt lgkmcnt(0)")
    A("L_vloop:")
    switch("L_vsw")
    body("L_v", vg); cstamp()
    A("  s_add_u32 s44, s44, 1")
    A("  s_cmp_eq_u32 s44, 31"); A("  s_cbranch_scc1 L_last")
    A("  s_and_b32 s47, s44, 7"); A("  s_cbranch_scc1 L_vloop")
    A(f"  v_subrev_u32 v{vPa}, 256, v{vPa}")
    A("  s_branch L_kloop")
    A("L_last:")
    def wo_load(i, extra=0):
        tp, c = divmod(i, 5)
        A(f"  s_waitcnt vmcnt({dl-1+extra})")
        A(f"  buffer_load_dwordx4 a[{4*i}:{4*i+3}], v{vW}, s[24:27], s28 offen offset:{256*c} {wopol}")
        if c == 4 and tp < 2: A("  s_add_u32 s28, s28, 81920")
    sched = {1: [0, 1], 2: [2, 3], 3: [4, 5], dl - 1: [6], dl: [7]}
    if dl - 1 == 3: sched = {1: [0, 1, 2], 2: [3, 4, 5], 3: [6], 4: [7]}
    for i in range(15):
        for T in sched.get(i, []):
            for x in vtile(T, 3*(7-T) + i): A(x)
        if i == dl:
            A(f"  v_add_u32 v{vProg}, 8, v{vProg}"); A("  s_nop 5")
            for x in dump: A(x)
            A(f"  ds_write_b32 v{vCa}, v{vProg} offset:{L_CTL+16}")
            stamp("s", "vend")
        if i == dl + 1:
            A(f"  v_and_b32 v{vT0}, 8, v{vLane}"); A(f"  v_and_b32 v{vT2}, 7, v{vLane}"); A(f"  v_lshl_add_u32 v{vT0}, v{vT0}, 4, v{vT2}     ; 128*b + producer")
            A(f"  v_mul_u32_u24 v{vT0}, {OS}, v{vT0}")
            A(f"  v_lshrrev_b32 v{vT3}, 4, v{vLane}"); A(f"  v_lshl_add_u32 v{vT0}, v{vT3}, 3, v{vT0}")
            A(f"  v_and_b32 v{vT2}, 15, v{vLane}"); A(f"  v_lshlrev_b32 v{vT1}, 4, v{vT2}")
        if i == dl + 2 and loc and not usepure:
            A(f"  s_mul_i32 s59, s3, {32768 - 524288}"); A(f"  s_add_u32 s59, s59, {W_OL - W_O - 15*32768}")
            A("  s_cmp_ge_u32 s4, 28"); A("  s_cselect_b32 s59, s59, 0")
            A(f"  v_bfe_u32 v{vMode}, v{vLane}, 3, 1")
        if i == dl + 2:
            A(f"  v_lshrrev_b32 v{vDa}, 5, v{vLane}"); A(f"  v_mul_u32_u24 v{vDa}, 2560, v{vDa}")
            A(f"  v_lshl_add_u32 v{vDa}, v{vT2}, 5, v{vDa}")
            A(f"  v_and_b32 v{vT3}, 16, v{vLane}"); A(f"  v_add_u32 v{vDa}, v{vDa}, v{vT3}")
            A("  s_mul_i32 s47, s5, 5120"); A(f"  v_add_u32 v{vDa}, s47, v{vDa}")
        if i == dl + 3:
            A(f"  s_mov_b32 s50, {SPIN*8}")
            A("L_wwait:")
            A(f"  ds_read_b64 v[{vS}:{vS+1}], v{vZero} offset:{L_CTL+8}")
            A("  s_waitcnt lgkmcnt(0)")
            A(f"  v_readfirstlane_b32 s47, v{vS}"); A(f"  v_readfirstlane_b32 s46, v{vS+1}")
            A("  s_sub_u32 s50, s50, 1"); A("  s_cbranch_scc1 L_wgo")
            A("  s_cmp_eq_u32 s47, 0"); A("  s_cbranch_scc1 L_wwait")
            A("L_wgo:")
            A(f"  ds_read_b128 v[{vS}:{vS+3}], v{vT1} offset:{L_W}")
            if pack:
                A(f"  v_and_b32 v{vMode}, 16, v{vLane}"); A(f"  v_lshrrev_b32 v{vMode}, v{vMode}, s46"); A(f"  v_and_b32 v{vMode}, 0xffff, v{vMode}")
        if i == gpos:
            for k in range(4): A(f"  buffer_load_dwordx2 v[{vRing+4*k}:{vRing+4*k+1}], v{vT0}, s[36:39], s{60+k} offen sc1")
        wo_load(i, extra=4 if gpos <= i < gpos + dl else 0)
    G = vRing
    assert pack and gpos >= dl + 4
    stamp("s", "woiss", 2)
    A(f"  s_mov_b32 s50, {SPIN}")
    if gpos < 15:
        if gcrit: A("  s_cmp_ge_u32 s4, 28"); A("  s_cbranch_scc1 L_gather")
        A(f"  s_waitcnt vmcnt({15-gpos}) lgkmcnt(0)"); A("  s_branch L_gchk")
    A("L_gather:")
    for k in range(4): A(f"  buffer_load_dwordx2 v[{G+4*k}:{G+4*k+1}], v{vT0}, s[36:39], s{60+k} offen sc1")
    A("  s_waitcnt vmcnt(0) lgkmcnt(0)")
    A("L_gchk:")
    for k in range(4): A(f"  v_lshrrev_b32 v{G+4*k+3}, 16, v{G+4*k+1}")
    A(f"  v_cmp_ne_u32 s[48:49], v{vMode}, v{G+3}")
    for k in range(1, 4):
        A(f"  v_cmp_ne_u32 vcc, v{vMode}, v{G+4*k+3}"); A("  s_or_b64 s[48:49], s[48:49], vcc")
    A("  s_sub_u32 s50, s50, 1"); A("  s_cbranch_scc1 L_ggo")
    A("  s_cmp_eq_u64 s[48:49], 0"); A("  s_cbranch_scc0 L_gather")
    A("L_ggo:")
    stamp("s", "gath")
    for k in range(4):
        A(f"  v_lshlrev_b32 v{G+4*k+2}, 16, v{G+4*k+1}"); A(f"  v_and_b32 v{G+4*k+1}, 0xffff0000, v{G+4*k}"); A(f"  v_lshlrev_b32 v{G+4*k}, 16, v{G+4*k}")
    for t in range(3): A(f"  v_mul_f32 v{G+t}, v{vS}, v{G+t}")
    for k in range(1, 4):
        for t in range(3): A(f"  v_fmac_f32 v{G+t}, v{vS+k}, v{G+4*k+t}")
    for pat in ("quad_perm:[1,0,3,2]", "quad_perm:[2,3,0,1]", "row_half_mirror"):
        for t in range(3): A(f"  v_add_f32_dpp v{G+t}, v{G+t}, v{G+t} {pat} row_mask:0xf bank_mask:0xf")
    for t in range(3): A(f"  v_cvt_pk_bf16_f32 v{G+t}, v{G+t}, v{G+t}")
    for t in range(3):
        for q in range(4): A(f"  v_and_b32 v{G+4+4*t+q}, v{G+t}, v{vM+q}")
    for tp in range(3):
        for c in range(5):
            i = tp * 5 + c
            cc = f"v[{vD+4*c}:{vD+4*c+3}]" if tp else "0"
            if i >= gpos: A(f"  s_waitcnt vmcnt({14-i})")
            A(f"  v_mfma_f32_16x16x32_bf16 v[{vD+4*c}:{vD+4*c+3}], v[{G+4+4*tp}:{G+7+4*tp}], a[{4*i}:{4*i+3}], {cc}")
    A("  s_nop 3")
    for c in range(5): A(f"  ds_write_b128 v{vDa}, v[{vD+4*c}:{vD+4*c+3}] offset:{L_Y + 512*c}")
    stamp("s", "mfma", 2)
    A("L_yred:")
    A(f"  v_lshlrev_b32 v{vT1}, 4, v0")
    A(f"  v_mov_b32 v{vT2}, {128*YS - 2560}"); A("  v_cmp_le_u32 vcc, 160, v0")
    A("  s_lshr_b32 s47, s4, 4"); A(f"  s_mul_i32 s47, s47, {256*YS}")
    A(f"  v_cndmask_b32 v{vT2}, 0, v{vT2}, vcc"); A(f"  v_add_u32 v{vT2}, v{vT2}, v{vT1}")
    A("  s_and_b32 s48, s2, 127"); A(f"  s_mul_i32 s48, s48, {YS}"); A("  s_add_u32 s47, s47, s48")
    if fuse:
        A(f"  v_mov_b32 v{vT0}, s46")
        for i in range(4): A(f"  s_mov_b32 s{52+i}, 0x0706050{i}")
    A("  s_waitcnt lgkmcnt(0)"); A("  s_barrier                       ; B3: y partials")
    for k in range(4): A(f"  ds_read_b128 v[{vD+4*k}:{vD+4*k+3}], v{vT1} offset:{L_Y + 5120*k}")
    for k in range(1, 4):
        A(f"  s_waitcnt lgkmcnt({3-k})")
        for r in range(4): A(f"  v_add_f32 v{vD+r}, v{vD+r}, v{vD+4*k+r}")
    if fuse:
        for r in range(4): A(f"  v_perm_b32 v{vD+r}, v{vD+r}, v{vT0}, s{52+r}")
    A(f"  buffer_store_dwordx4 v[{vD}:{vD+3}], v{vT2}, s[36:39], s47 offen{' sc1' if fuse else ''}")
    if fuse:
        A("  s_cmp_eq_u32 s5, 4"); A("  s_cbranch_scc1 L_final")
    if curve:
        A("  s_cmp_lg_u32 s5, 0"); A("  s_cbranch_scc1 L_end")
        A("  s_getreg_b32 s100, hwreg(HW_REG_XCC_ID)")
        A(f"  s_mul_i32 s47, s2, 144"); A(f"  s_add_u32 s47, s47, {WS - (1<<20)}")
        A(f"  v_lshlrev_b32 v{vT0}, 2, v{vLane}"); A(f"  v_add_u32 v{vT0}, 16, v{vT0}")
        A("  s_mov_b32 exec_lo, 0x55555555"); A("  s_mov_b32 exec_hi, 0")
        A(f"  buffer_store_dwordx2 v[{vCv}:{vCv+1}], v{vT0}, s[36:39], s47 offen")
        A("  s_mov_b64 exec, 1")
        A(f"  v_mov_b32 v{vRing}, s96"); A(f"  v_mov_b32 v{vRing+1}, s97"); A(f"  v_mov_b32 v{vRing+2}, s100"); A(f"  v_mov_b32 v{vRing+3}, 0")
        A(f"  buffer_store_dwordx4 v[{vRing}:{vRing+3}], v{vZero}, s[36:39], s47 offen")
    if stamps:
        A("  s_cmp_eq_u32 s5, 4"); A("  s_cbranch_scc1 L_hst")
        A("  s_cmp_lg_u32 s5, 0"); A("  s_cbranch_scc1 L_end")
        stamp("s", "ystore", 2)
        A("  s_waitcnt vmcnt(0)")
        stamp("s", "end"); stamp("s", "yack", 2)
        dump_stamps("s", 0)
    A("L_end:"); A("  s_endpgm")
    H = vRing
    A("L_helper:")
    A(f"  v_mov_b32 v{H}, {mode0}"); A(f"  v_mov_b32 v{H+1}, 0"); A(f"  v_mov_b32 v{H+2}, 0"); A(f"  v_mov_b32 v{H+3}, 0"); A(f"  v_mov_b32 v{H+4}, 0"); A(f"  v_mov_b32 v{H+5}, 0")
    A(f"  ds_write_b128 v{vZero}, v[{H}:{H+3}] offset:{L_CTL}"); A(f"  ds_write_b128 v{vZero}, v[{H+2}:{H+5}] offset:{L_CTL+16}")
    A(f"  v_and_b32 v{vCa}, 3, v{vLane}"); A(f"  v_lshlrev_b32 v{vCa}, 2, v{vCa}")
    A(f"  ds_write_b32 v{vCa}, v{H} offset:{L_CTL+32}")
    A("  s_mov_b32 s36, s42"); A("  s_mov_b32 s37, s43")
    A(f"  v_lshlrev_b32 v{vT0}, 3, v{vLane}      ; lane*8"); A(f"  v_lshlrev_b32 v{vT3}, 4, v{vLane}      ; lane*16")
    A(f"  s_mul_i32 s12, s3, {24*512}"); A(f"  s_add_u32 s12, s12, {W_Q}")
    A("  s_lshl_b32 s13, s4, 9"); A("  s_add_u32 s13, s13, s12")
    A("  s_add_u32 s14, s12, 4096"); A("  s_add_u32 s15, s12, 8192")
    if dry:
        A("  s_mov_b32 s38, 0                ; first pass: empty descriptor, only brings the code in")
        A("  s_mov_b32 s45, 0"); A("  s_branch L_hq1")
    A("L_hreal:")
    A(f"  s_mov_b32 s38, {WS}"); A(f"  s_mov_b32 s45, {SPIN}")
    A("  s_cmp_eq_u32 s2, 0"); A("  s_cbranch_scc1 L_nhave")
    A(f"  s_mov_b32 s50, {SPIN}")
    if nslp0: A(f"  s_sleep {nslp0}")
    A("L_nloop:")
    A(f"  buffer_load_dword v{H}, v{vZero}, s[8:11], 0 offen sc1"); A("  s_waitcnt vmcnt(0)")
    A(f"  v_readfirstlane_b32 s46, v{H}")
    A("  s_sub_u32 s50, s50, 1"); A("  s_cbranch_scc1 L_nhave")
    A("  s_cmp_lg_u32 s46, 0"); A("  s_cbranch_scc1 L_nhave")
    A(f"  s_sleep {nslp}"); A("  s_branch L_nloop")
    A("L_nhave:")
    stamp("h", "nonce")
    A(f"  v_mov_b32 v{H}, s46"); A(f"  ds_write_b32 v{vZero}, v{H} offset:{L_CTL+12}")
    A("  s_waitcnt lgkmcnt(0)"); A("  s_barrier                       ; B1")
    A("L_hq1:")
    A("  s_cmp_ge_u32 s4, 24"); A("  s_cbranch_scc1 L_hq2")
    for k in range(8): A(f"  ds_read_b64 v[{H+2*k}:{H+2*k+1}], v{vT0} offset:{L_Y + 512*k}")
    for k in range(1, 8):
        A(f"  s_waitcnt lgkmcnt({7-k})")
        for r in range(2): A(f"  v_add_f32 v{H+r}, v{H+r}, v{H+2*k+r}")
    A(f"  v_cvt_pk_bf16_f32 v{vD}, v{H}, v{H+1}"); A(f"  v_mov_b32 v{vD+1}, s46")
    def qglob(tag):
        A("  s_cmp_ge_u32 s4, 24"); A(f"  s_cbranch_scc1 {tag}")
        A(f"  buffer_store_dwordx2 v[{vD}:{vD+1}], v{vT0}, s[36:39], s13 offen sc1")
        A(f"{tag}:")
    if loc:
        A(f"  s_add_u32 s47, s13, {QLOC}")
        A(f"  buffer_store_dwordx2 v[{vD}:{vD+1}], v{vT0}, s[36:39], s47 offen")
    else:
        A(f"  buffer_store_dwordx2 v[{vD}:{vD+1}], v{vT0}, s[36:39], s13 offen sc1")
    A("L_hq2:")
    A(f"  v_and_b32 v{vT1}, 16, v{vLane}"); A(f"  v_mul_u32_u24 v{vT1}, 96, v{vT1}")
    A(f"  v_and_b32 v{vT2}, 15, v{vLane}"); A(f"  v_lshl_add_u32 v{vT1}, v{vT2}, 3, v{vT1}")
    A(f"  v_lshrrev_b32 v{vT2}, 5, v{vLane}")
    A(f"  s_mov_b32 s50, s45")
    A("L_qg:")
    if loc:
        A(f"  s_cmp_lg_u32 s50, {SPIN - nloc}"); A("  s_cbranch_scc1 L_qg1"); qglob("L_qg1")
    A(f"  s_cmp_gt_u32 s50, {SPIN - nloc}"); A(f"  s_cselect_b32 s47, {QLOC if loc else 0}, 0")
    A(f"  v_add_u32 v{vDa}, s47, v{vT3}")
    for k in range(12):
        A(f"  buffer_load_dwordx4 v[{H+4*k}:{H+4*k+3}], v{vDa}, s[36:39], s{(12,14,15)[k//4]} offen offset:{1024*(k%4)} sc1")
    A("  s_mov_b64 s[48:49], 0")
    for k in range(12):
        A(f"  s_waitcnt vmcnt({11-k})")
        for r in (1, 3):
            A(f"  v_cmp_ne_u32 vcc, s46, v{H+4*k+r}"); A("  s_or_b64 s[48:49], s[48:49], vcc")
    A("  s_sub_u32 s50, s50, 1"); A("  s_cbranch_scc1 L_qgo")
    A("  s_cmp_eq_u64 s[48:49], 0"); A("  s_cbranch_scc0 L_qg")
    A("L_qgo:")
    def qconst(item):
        sg, c = divmod(item, 3); return ((sg >> 2) * 8 + (sg & 3)) * 384 + c * 128
    for k in range(12):
        c0, c1 = qconst(2 * k), qconst(2 * k + 1)
        A(f"  v_mov_b32 v{H+4*k+1}, v{H+4*k+2}")
        if k == 0 or (c1 - c0) != (qconst(2*k-1) - qconst(2*k-2)):
            A(f"  v_mul_u32_u24 v{vPa}, {c1-c0}, v{vT2}"); A(f"  v_add_u32 v{vPa}, v{vPa}, v{vT1}")
        A(f"  ds_write_b64 v{vPa}, v[{H+4*k}:{H+4*k+1}] offset:{L_Q + c0}")
    A("  s_waitcnt lgkmcnt(0)")
    if dry: A("  s_cmp_eq_u32 s45, 0"); A("  s_cbranch_scc1 L_hreal")
    stamp("h", "qtab")
    A("  s_barrier                       ; B2")
    if loc and not usepure: qglob("L_qg2")
    A("  s_getreg_b32 s56, hwreg(HW_REG_XCC_ID)"); A("  s_and_b32 s56, s56, 7")
    A("  s_lshl_b32 s57, s56, 3"); A("  s_add_u32 s57, s57, s3"); A("  s_mul_i32 s57, s57, 1152"); A(f"  s_add_u32 s57, s57, {W_B}")
    A("  s_lshl_b32 s59, s4, 3"); A("  s_add_u32 s59, s59, s57")
    A("  s_mov_b32 s31, 0")
    A("  s_mov_b32 s30, 16"); A("  s_mov_b32 s29, 0")
    A(f"  v_mov_b32 v{H+35}, s46")
    A("  s_lshl_b32 s62, s56, 2"); A(f"  s_add_u32 s62, s62, {W_G}"); A(f"  s_mov_b32 s28, {lper-1}")
    A(f"  s_add_u32 s16, s42, {W_G}"); A("  s_addc_u32 s17, s43, 0")
    A("  s_and_b32 s51, s46, 0xffff0000   ; tag")
    A(f"  v_lshlrev_b32 v{vQa}, 2, v{vLane}")
    A("  s_mov_b32 s18, -1"); A("  s_mov_b32 s19, 1")
    A(f"  s_mov_b32 s44, {t_q}")
    A("L_pace:")
    A(f"  s_sleep {slp}")
    if pace: A("  s_memrealtime s[26:27]"); A(f"  ds_read_b32 v{H+10}, v{vCa} offset:{L_CTL+16}")
    A(f"  ds_read_b128 v[{H}:{H+3}], v{vZero} offset:{L_CTL+16}"); A("  s_waitcnt lgkmcnt(0)")
    A(f"  v_min3_u32 v{H+4}, v{H}, v{H+1}, v{H+2}"); A(f"  v_min_u32 v{H+4}, v{H+4}, v{H+3}")
    A(f"  v_add3_u32 v{H+5}, v{H}, v{H+1}, v{H+2}"); A(f"  v_add_u32 v{H+5}, v{H+5}, v{H+3}")
    A(f"  v_readfirstlane_b32 s20, v{H+4}")
    A("  s_cmp_ge_u32 s20, s44"); A("  s_cbranch_scc1 L_event")
    if pace:
        A(f"  v_readfirstlane_b32 s21, v{H+5}")
        A(f"  s_mul_i32 s22, s26, {kap}"); A("  s_lshr_b32 s22, s22, 6")
        A("  s_lshl_b32 s21, s21, 5"); A("  s_sub_u32 s21, s21, s22"); A("  s_and_b32 s21, s21, 0xffff")
        A(f"  v_mov_b32 v{H+34}, s21"); A(f"  v_mov_b32 v{H+8}, 0"); A(f"  v_mov_b32 v{H+9}, 0")
        A("  s_mov_b64 exec, 1")
        A(f"  buffer_store_dwordx2 v[{H+34}:{H+35}], v{vZero}, s[36:39], s59 offen")
        A("  s_mov_b64 exec, s[18:19]")
        A(f"  buffer_load_dwordx2 v[{H+8}:{H+9}], v{vT0}, s[36:39], s57 offen sc1")
        A("  s_mov_b64 exec, -1")
        A("  s_waitcnt vmcnt(0)")
        A(f"  v_readlane_b32 s22, v{H+8}, 32")
        A(f"  v_cmp_eq_u32 vcc, s46, v{H+9}")
        A(f"  v_subrev_u32 v{H+7}, s21, v{H+8}"); A(f"  v_bfe_i32 v{H+7}, v{H+7}, 0, 16")
        A(f"  v_cndmask_b32 v{H+7}, 0, v{H+7}, vcc")
        if usepure: A("  s_cmp_eq_u32 vcc_lo, -1"); A("  s_cselect_b32 s31, 1, s31")
        for sh in (1, 2, 4, 8):
            A("  s_nop 1"); A(f"  v_add_u32_dpp v{H+7}, v{H+7}, v{H+7} row_ror:{sh} row_mask:0xf bank_mask:0xf")
        A("  s_bitcmp1_b32 vcc_hi, 0"); A("  s_cselect_b32 s22, s22, 0")
        A(f"  v_readlane_b32 s23, v{H+7}, 0"); A(f"  v_readlane_b32 s24, v{H+7}, 16")
        A("  s_add_u32 s23, s23, s24"); A("  s_ashr_i32 s23, s23, 5")
        A("  s_add_u32 s24, s23, s22")
        if pw:
            A(f"  v_lshlrev_b32 v{H+10}, 2, v{H+10}"); A(f"  v_sub_u32 v{H+10}, v{H+5}, v{H+10}"); A(f"  v_lshl_add_u32 v{H+10}, v{H+10}, 5, s24")
        else:
            A(f"  v_mov_b32 v{H+10}, s24")
        A(f"  v_cmp_lt_i32 vcc, {-tb}, v{H+10}"); A(f"  v_mov_b32 v{H+6}, 1"); A("  s_nop 0"); A(f"  v_cndmask_b32 v{H+6}, v{H+6}, 2, vcc")
        A(f"  v_cmp_gt_i32 vcc, {-ta}, v{H+10}"); A("  s_nop 1"); A(f"  v_cndmask_b32 v{H+6}, v{H+6}, 0, vcc")
        A(f"  ds_write_b32 v{vCa}, v{H+6} offset:{L_CTL+32}")
        if pace >= 2:
            A("  s_cmp_lg_u32 s4, 0"); A("  s_cbranch_scc1 L_paced")
            A("  s_add_u32 s28, s28, 1"); A(f"  s_cmp_lt_u32 s28, {lper}"); A("  s_cbranch_scc1 L_paced")
            A("  s_mov_b32 s28, 0")
            A("  s_load_dwordx8 s[64:71], s[16:17], 0 glc")
            A("  s_add_u32 s23, s23, s21"); A("  s_and_b32 s23, s23, 0xffff")
            A("  s_or_b32 s24, s23, s51"); A(f"  v_mov_b32 v{H+6}, s24")
            A("  s_waitcnt lgkmcnt(0)")
            A("  s_mov_b64 exec, 1")
            A(f"  buffer_store_dword v{H+6}, v{vZero}, s[36:39], s62 offen sc1")
            A("  s_mov_b32 s25, 0")
            for k in range(8):
                A(f"  s_xor_b32 s{64+k}, s{64+k}, s51"); A(f"  s_cmp_lt_u32 s{64+k}, 0x10000"); A(f"  s_cselect_b32 s{64+k}, s{64+k}, s23")
                A(f"  s_sub_u32 s{64+k}, s{64+k}, s23"); A(f"  s_sext_i32_i16 s{64+k}, s{64+k}"); A(f"  s_add_u32 s25, s25, s{64+k}")
            A("  s_ashr_i32 s25, s25, 3")
            A(f"  v_mov_b32 v{H+34}, s25")
            A(f"  buffer_store_dwordx2 v[{H+34}:{H+35}], v{vZero}, s[36:39], s57 offen offset:256")
            A("  s_mov_b64 exec, -1")
    A("L_paced:")
    A(f"  s_mov_b32 s27, {nfl}"); A("  s_branch L_fl")
    A("L_event:")
    A(f"  s_cmp_eq_u32 s44, {t_w}"); A("  s_cbranch_scc1 L_evw")
    A(f"  s_cmp_eq_u32 s44, {t_f}"); A("  s_cbranch_scc1 L_flush")
    A(f"  s_cmp_eq_u32 s44, {t_ml}"); A("  s_cbranch_scc1 L_evm")
    A(f"  s_mov_b32 s44, {t_ml}")
    if loc and usepure:
        A("  s_cmp_eq_u32 s31, 1"); A("  s_cbranch_scc1 L_pace"); qglob("L_qg2")
    A("  s_branch L_pace")
    A("L_evm:")
    def pub(instr, tag):
        if usepure:
            A("  s_cmp_eq_u32 s31, 1"); A(f"  s_cbranch_scc1 {tag}a")
        A(instr + " sc1")
        if usepure:
            A(f"  s_branch {tag}b"); A(f"{tag}a:"); A(instr); A(f"{tag}b:")
    A(f"  v_and_b32 v{vT1}, 15, v{vLane}"); A(f"  v_lshlrev_b32 v{vT2}, 5, v{vT1}"); A(f"  v_lshlrev_b32 v{vT1}, 4, v{vT1}")
    A(f"  ds_read_b128 v[{H}:{H+3}], v{vT2} offset:{L_ML}"); A(f"  ds_read_b128 v[{H+4}:{H+7}], v{vT2} offset:{L_ML+16}")
    A("  s_lshl_b32 s47, s3, 5"); A("  s_add_u32 s47, s47, s4"); A("  s_lshl_b32 s47, s47, 8"); A(f"  s_add_u32 s47, s47, {W_ML}")
    A("  s_waitcnt lgkmcnt(0)")
    A(f"  v_max3_f32 v{H+8}, v{H}, v{H+2}, v{H+4}"); A(f"  v_max_f32 v{H+8}, v{H+8}, v{H+6}")
    for w in range(4): A(f"  v_sub_f32 v{H+12+w}, v{H+2*w}, v{H+8}")
    for w in range(4): A(f"  v_exp_f32 v{H+12+w}, v{H+12+w}")
    A(f"  v_mov_b32 v{H+10}, 0"); A(f"  v_mov_b32 v{H+11}, s46")
    A(f"  v_mul_f32 v{H+9}, v{H+12}, v{H+1}")
    for w in range(1, 4): A(f"  v_fmac_f32 v{H+9}, v{H+12+w}, v{H+2*w+1}")
    A(f"  ds_write_b128 v{vT1}, v[{H+12}:{H+15}] offset:{L_E}")
    A("  s_mov_b64 exec, 0xffff")
    pub(f"  buffer_store_dwordx4 v[{H+8}:{H+11}], v{vT1}, s[36:39], s47 offen", "L_pm")
    A("  s_mov_b64 exec, -1")
    A(f"  v_add_u32 v{vDa}, {L_O}, v{vQa}"); A(f"  v_mov_b32 v{vMLa}, {L_E}")
    if pack:
        A(f"  v_and_b32 v{vMode}, 1, v{vLane}"); A(f"  v_lshlrev_b32 v{vMode}, 4, v{vMode}"); A(f"  v_lshrrev_b32 v{vMode}, v{vMode}, s46"); A(f"  v_lshlrev_b32 v{vMode}, 16, v{vMode}")
        A("  s_mov_b32 s33, 0xffff")
    A(f"  s_mul_i32 s58, s3, {512*OS}"); A(f"  s_mul_i32 s48, s4, {OS}"); A("  s_add_u32 s58, s58, s48"); A(f"  s_add_u32 s58, s58, {W_O}")
    A("  s_mov_b32 s30, 0")
    A(f"  s_mov_b32 s44, {t_w}"); A("  s_branch L_pace")
    A("L_evw:")
    A(f"  v_and_b32 v{vT1}, 31, v{vLane}"); A(f"  v_lshlrev_b32 v{vT1}, 8, v{vT1}")
    A(f"  v_and_b32 v{vT2}, 32, v{vLane}"); A(f"  v_lshl_add_u32 v{vT1}, v{vT2}, 1, v{vT1}      ; producer*256 + b*64")
    A("  s_lshr_b32 s47, s4, 4"); A("  s_lshl_b32 s47, s47, 3"); A("  s_lshr_b32 s48, s4, 2"); A("  s_and_b32 s48, s48, 3"); A("  s_add_u32 s47, s47, s48")
    A("  s_lshl_b32 s47, s47, 4"); A("  s_lshl_b32 s48, s3, 13"); A("  s_add_u32 s47, s47, s48"); A(f"  s_add_u32 s47, s47, {W_ML}")
    A(f"  s_mov_b32 s50, {SPIN}")
    A("L_wg:")
    A(f"  buffer_load_dwordx4 v[{H}:{H+3}], v{vT1}, s[36:39], s47 offen sc1"); A("  s_waitcnt vmcnt(0)")
    A(f"  v_cmp_ne_u32 vcc, s46, v{H+3}")
    A("  s_sub_u32 s50, s50, 1"); A("  s_cbranch_scc1 L_wgo2")
    A("  s_cmp_eq_u64 vcc, 0"); A("  s_cbranch_scc1 L_wgo2")
    A("  s_sleep 16"); A("  s_branch L_wg")
    A("L_wgo2:")
    def red32(op, t, u):
        for sh in (1, 2, 4, 8):
            A("  s_nop 1"); A(f"  {op}_dpp v{t}, v{t}, v{t} row_ror:{sh} row_mask:0xf bank_mask:0xf")
        A(f"  v_mov_b32 v{u}, v{t}"); A("  s_nop 1"); A(f"  v_permlane16_swap_b32 v{t}, v{u}"); A("  s_nop 0"); A(f"  {op} v{t}, v{t}, v{u}")
    A(f"  v_mov_b32 v{H+4}, v{H}")
    red32("v_max_f32", H+4, H+5)
    A(f"  v_sub_f32 v{H}, v{H}, v{H+4}"); A(f"  v_exp_f32 v{H}, v{H}"); A("  s_nop 0")
    A(f"  v_mul_f32 v{H+4}, v{H}, v{H+1}")
    red32("v_add_f32", H+4, H+5)
    A(f"  v_rcp_f32 v{H+4}, v{H+4}")
    A(f"  v_and_b32 v{vT1}, 7, v{vLane}"); A(f"  v_lshlrev_b32 v{vT1}, 4, v{vT1}"); A(f"  v_lshl_add_u32 v{vT1}, v{vT2}, 2, v{vT1}")
    A(f"  v_and_b32 v{vT2}, 24, v{vLane}"); A(f"  v_lshrrev_b32 v{vT2}, 1, v{vT2}"); A(f"  v_add_u32 v{vT1}, v{vT1}, v{vT2}")
    A(f"  v_mul_f32 v{H}, v{H}, v{H+4}"); A(f"  v_mov_b32 v{H+1}, 1")
    A(f"  ds_write_b32 v{vT1}, v{H} offset:{L_W}"); A(f"  ds_write_b32 v{vZero}, v{H+1} offset:{L_CTL+8}")
    A(f"  s_mov_b32 s44, {t_f}"); A("  s_branch L_pace")
    A("L_flush:")
    stamp("h", "flush0")
    if rstmode: A(f"  v_mov_b32 v{H+6}, 1"); A(f"  ds_write_b32 v{vCa}, v{H+6} offset:{L_CTL+32}")
    A("  s_mov_b32 s29, 1")
    A("L_fl:")
    A("  s_cmp_ge_u32 s30, 8"); A("  s_cselect_b32 s48, 16, 8"); A("  s_add_u32 s48, s48, s30"); A("  s_lshl_b32 s48, s48, 3"); A("  s_add_u32 s48, s48, 5")
    A("  s_cmp_eq_u32 s29, 1"); A("  s_cbranch_scc1 L_fl1")
    A("  s_cmp_lt_u32 s20, s48"); A("  s_cbranch_scc1 L_pace")
    A("  s_sub_u32 s27, s27, 1"); A("  s_cbranch_scc1 L_pace")
    A("L_fl1:")
    A(f"  ds_read_b128 v[{H+28}:{H+31}], v{vMLa}")
    A("L_flw:")
    A(f"  ds_read_b128 v[{H}:{H+3}], v{vZero} offset:{L_CTL+16}"); A("  s_waitcnt lgkmcnt(0)")
    A(f"  v_min3_u32 v{H+4}, v{H}, v{H+1}, v{H+2}"); A(f"  v_min_u32 v{H+4}, v{H+4}, v{H+3}"); A("  s_nop 0")
    A(f"  v_readfirstlane_b32 s20, v{H+4}")
    A("  s_cmp_lt_u32 s20, s48"); A("  s_cbranch_scc1 L_flw")
    for k in range(12): A(f"  ds_read2st64_b32 v[{H+2*k}:{H+2*k+1}], v{vDa} offset0:{2*k} offset1:{2*k+1}")
    for w in range(4):
        A(f"  s_waitcnt lgkmcnt({9-3*w})")
        for t in range(3): A(f"  v_add_f32 v{H+6*w+t}, v{H+6*w+t}, v{H+6*w+3+t}")
        for t in range(3):
            A(f"  v_mul_f32 v{H+32+t}, v{H+28}, v{H+t}" if w == 0 else f"  v_fmac_f32 v{H+32+t}, v{H+28+w}, v{H+6*w+t}")
    if loc and not usepure:
        A("  s_cmp_lg_u32 s30, 15"); A("  s_cbranch_scc1 L_flg")
        A("  s_lshl_b32 s48, s3, 5"); A("  s_add_u32 s48, s48, s4"); A("  s_lshl_b32 s48, s48, 10"); A(f"  s_add_u32 s48, s48, {W_OL}")
        A(f"  buffer_store_dwordx4 v[{H+32}:{H+35}], v{vT3}, s[36:39], s48 offen")
        A("L_flg:")
    if pack:
        A(f"  v_cvt_pk_bf16_f32 v{H+32}, v{H+32}, v{H+33}"); A(f"  v_cvt_pk_bf16_f32 v{H+33}, v{H+34}, v{H+34}")
        A(f"  v_and_or_b32 v{H+33}, v{H+33}, s33, v{vMode}")
        pub(f"  buffer_store_dwordx2 v[{H+32}:{H+33}], v{vT0}, s[36:39], s58 offen", "L_po")
    else:
        pub(f"  buffer_store_dwordx4 v[{H+32}:{H+35}], v{vT3}, s[36:39], s58 offen", "L_po")
    A(f"  v_add_u32 v{vDa}, 6144, v{vDa}"); A(f"  v_add_u32 v{vMLa}, 16, v{vMLa}")
    A(f"  s_add_u32 s58, s58, {32*OS}"); A("  s_add_u32 s30, s30, 1"); A("  s_cmp_lt_u32 s30, 16"); A("  s_cbranch_scc1 L_fl")
    if wb == 1:
        A("  s_cmp_lg_u32 s4, 31"); A("  s_cbranch_scc1 L_nowb"); A("  buffer_wbl2 sc1"); A("L_nowb:")
    stamp("h", "flushed")
    if fuse:
        A("  s_load_dwordx2 s[12:13], s[0:1], 80")
        A("  s_and_b32 s20, s2, 3"); A("  s_lshr_b32 s21, s2, 2")
        A(f"  v_lshrrev_b32 v{vPa}, 2, v{vLane}"); A(f"  v_and_b32 v{vQa}, 3, v{vLane}")
        A(f"  v_mul_u32_u24 v{vPa}, {YS}, v{vPa}"); A(f"  v_lshl_add_u32 v{vPa}, v{vQa}, 4, v{vPa}"); A(f"  v_lshlrev_b32 v{vQa}, 3, v{vQa}")
        A(f"  s_mul_i32 s27, s20, {128*YS}"); A("  s_lshl_b32 s22, s21, 6"); A("  s_add_u32 s27, s27, s22")
        for k in range(1, 8): A(f"  s_add_u32 s{27+k}, s27, {16*k*YS}")
        A("  s_and_b32 s22, s20, 1"); A("  s_mul_i32 s22, s22, 2560"); A("  s_lshr_b32 s23, s20, 1"); A("  s_mul_i32 s23, s23, 1280")
        A("  s_add_u32 s22, s22, s23"); A("  s_lshl_b32 s23, s21, 5"); A("  s_add_u32 s22, s22, s23")
        A("  s_mov_b32 s14, 5120"); A("  s_mov_b32 s15, 0x20000")
        A("  s_mov_b32 s24, 0x0c0c0400"); A("  s_mov_b32 s25, 0x04000c0c"); A("  s_mov_b32 s26, 0xffffff00")
        for k in range(8): A(f"  s_mov_b64 s[{64+2*k}:{65+2*k}], -1")
    A("  s_branch L_yred")
    if fuse:
        A("L_final:")
        stamp("h", "final0", 2)
        if stamps: A(f"  s_memrealtime s[{84+2*len(names['h'])}:{85+2*len(names['h'])}]"); A("  s_waitcnt lgkmcnt(0)")
        if wb == 2:
            A(f"  s_cmp_lt_u32 s4, {wbj}"); A("  s_cbranch_scc1 L_nowb"); A("  buffer_wbl2 sc1"); A("  s_waitcnt vmcnt(0)"); A("L_nowb:")
        A(f"  s_cmp_ge_u32 s2, 160"); A(f"  s_cbranch_scc1 {'L_hst' if stamps else 'L_end'}")
        A(f"  s_mov_b32 s50, {SPIN}")
        if fslp0: A(f"  s_sleep {fslp0}")
        A("L_fin:")
        if fslp: A(f"  s_sleep {fslp}")
        for k in range(8):
            A(f"  s_mov_b64 exec, s[{64+2*k}:{65+2*k}]"); A(f"  s_cbranch_execz L_fin{k}")
            A(f"  buffer_load_dwordx4 v[{H+4*k}:{H+4*k+3}], v{vPa}, s[36:39], s{27+k} offen sc1")
            A(f"L_fin{k}:")
        A("  s_mov_b64 exec, -1")
        A("  s_waitcnt vmcnt(0)")
        for k in range(8):
            A(f"  v_perm_b32 v{vS}, v{H+4*k+1}, v{H+4*k}, s24"); A(f"  v_perm_b32 v{vS+1}, v{H+4*k+3}, v{H+4*k+2}, s25")
            A(f"  v_or_b32 v{vS}, v{vS}, v{vS+1}"); A(f"  v_cmp_ne_u32 s[{64+2*k}:{65+2*k}], s46, v{vS}")
        A("  s_or_b64 s[48:49], s[64:65], s[66:67]")
        for k in range(2, 8): A(f"  s_or_b64 s[48:49], s[48:49], s[{64+2*k}:{65+2*k}]")
        A("  s_sub_u32 s50, s50, 1"); A("  s_cbranch_scc1 L_fgo")
        A("  s_cmp_eq_u64 s[48:49], 0"); A("  s_cbranch_scc0 L_fin")
        A("L_fgo:")
        stamp("h", "ygot")
        for i in range(32): A(f"  v_and_b32 v{H+i}, s26, v{H+i}")
        for st in (16, 8, 4):
            for i in range(st): A(f"  v_add_f32 v{H+i}, v{H+i}, v{H+st+i}")
        for sh in (4, 8):
            for r in range(4): A(f"  v_add_f32_dpp v{H+r}, v{H+r}, v{H+r} row_ror:{sh} row_mask:0xf bank_mask:0xf")
        for sw in ("v_permlane32_swap_b32", "v_permlane16_swap_b32"):
            for r in range(4): A(f"  v_mov_b32 v{H+4+r}, v{H+r}")
            for r in range(4): A(f"  {sw} v{H+r}, v{H+4+r}")
            for r in range(4): A(f"  v_add_f32 v{H+r}, v{H+r}, v{H+4+r}")
        A(f"  v_cvt_pk_bf16_f32 v{H}, v{H}, v{H+1}"); A(f"  v_cvt_pk_bf16_f32 v{H+1}, v{H+2}, v{H+3}")
        A("  s_mov_b64 exec, 15")
        A(f"  buffer_store_dwordx2 v[{H}:{H+1}], v{vQa}, s[12:15], s22 offen")
        if not stamps: A("  s_endpgm")
    if stamps:
        A("L_hst:")
        A("  s_waitcnt vmcnt(0)")
        stamp("h", "hend")
        dump_stamps("h", 1)
        A("  s_endpgm")
        sn = names["s"]; hn = names["h"]
        L.insert(2, "; stamps: start id " + " ".join((sn[1:] + ["id"] * 6)[:6]) + " " + " ".join((hn + ["id"] * 8)[:7]) + " last")
    n_k2 = len(L)
    A(f".globl {K2}"); A(".p2align 8"); A(f".type {K2},@function"); A(f"{K2}:")
    A("  s_cmp_ge_u32 s2, 160"); A("  s_cbranch_scc1 L2_end")
    A("  s_load_dwordx2 s[4:5], s[0:1], 96"); A("  s_load_dwordx2 s[8:9], s[0:1], 80")
    A("  s_and_b32 s3, s2, 3              ; pb"); A("  s_lshr_b32 s12, s2, 2")
    A("  v_lshrrev_b32 v1, 2, v0"); A("  v_and_b32 v2, 3, v0")
    A("  v_mul_u32_u24 v3, 5120, v1"); A("  v_lshl_add_u32 v3, v2, 4, v3")
    A("  s_mul_i32 s13, s3, 327680"); A("  s_lshl_b32 s14, s12, 6"); A("  s_add_u32 s13, s13, s14")
    A("  s_add_u32 s17, s13, 81920"); A("  s_add_u32 s18, s13, 163840"); A("  s_add_u32 s19, s13, 245760")
    A(f"  s_mov_b32 s6, {WS}"); A("  s_mov_b32 s7, 0x20000"); A("  s_mov_b32 s10, 5120"); A("  s_mov_b32 s11, 0x20000")
    A("  s_and_b32 s15, s3, 1"); A("  s_mul_i32 s15, s15, 2560"); A("  s_lshr_b32 s16, s3, 1"); A("  s_mul_i32 s16, s16, 1280")
    A("  s_add_u32 s15, s15, s16"); A("  s_lshl_b32 s16, s12, 5"); A("  s_add_u32 s15, s15, s16")
    A("  v_lshlrev_b32 v6, 3, v2")
    A("  s_waitcnt lgkmcnt(0)")
    for k in range(8):
        A(f"  buffer_load_dwordx4 v[{8+4*k}:{11+4*k}], v3, s[4:7], s{(13,17,18,19)[k//2]} offen offset:{2560*(k%2)}")
    for k in range(1, 8):
        A(f"  s_waitcnt vmcnt({7-k})")
        for r in range(4): A(f"  v_add_f32 v{8+r}, v{8+r}, v{8+4*k+r}")
    for sh in (4, 8):
        for r in range(4): A(f"  v_add_f32_dpp v{8+r}, v{8+r}, v{8+r} row_ror:{sh} row_mask:0xf bank_mask:0xf")
    for sw in ("v_permlane32_swap_b32", "v_permlane16_swap_b32"):
        for r in range(4): A(f"  v_mov_b32 v{12+r}, v{8+r}")
        for r in range(4): A(f"  {sw} v{8+r}, v{12+r}")
        for r in range(4): A(f"  v_add_f32 v{8+r}, v{8+r}, v{12+r}")
    A("  v_cvt_pk_bf16_f32 v8, v8, v9"); A("  v_cvt_pk_bf16_f32 v9, v10, v11")
    A("  s_mov_b64 exec, 15")
    A("  buffer_store_dwordx2 v[8:9], v6, s[8:11], s15 offen")
    A("L2_end:"); A("  s_endpgm")
    if fuse: del L[n_k2:]
    A('.section .rodata,"a"')
    for kn, nv, acc, ns in ((KN, ACC + NA, ACC, 102), (K2, 40, 40, 24))[:1 if fuse else 2]:
        A(".p2align 6"); A(f".amdhsa_kernel {kn}")
        A(f"  .amdhsa_next_free_vgpr {nv}"); A(f"  .amdhsa_next_free_sgpr {ns}"); A(f"  .amdhsa_accum_offset {acc}")
        A("  .amdhsa_group_segment_fixed_size 0"); A("  .amdhsa_kernarg_size 104"); A("  .amdhsa_user_sgpr_count 2")
        A("  .amdhsa_user_sgpr_kernarg_segment_ptr 1"); A("  .amdhsa_system_sgpr_workgroup_id_x 1")
        A(".end_amdhsa_kernel")
    open(name, "w").write("\n".join(L) + "\n")
    return name
if __name__ == "__main__":
    if len(sys.argv) > 2:
        hdr = open("concat_heads__gqa_block_cached__mha_block_cached__decode.s.ref").read().split("; Override launch")[0]
        print(gen(name=sys.argv[2], header=hdr, **eval(sys.argv[1])))
    else:
        print(" ".join(gen(**kw) for kw in eval(sys.argv[1])))
```

```python
import sys, math, struct
KN = "concat_heads__gqa_block_cached__mha_block_cached__decode_kernel"
K2 = "final_reduce_kernel"
WS = 836768768
KVBYTES = 201326592
WBYTES = 7864320
def f32hex(x): return "0x%08x" % struct.unpack("<I", struct.pack("<f", x))[0]

def gen(name="z.s", header="", stamps=0, lo=3, mid=4, hi=5, d0=5, dl=5, pace=2, slp=32, ta=260, tb=-40, lper=8, kap=202,
        t_ml=193, t_w=212, t_f=241, wqpol="nt", wopol="nt", nok2=False, mode0=1, SPIN=200000, nslp=8, curve=False, dry=False, wqd=6, nslp0=16, rot=0, loc=True, nloc=24, fuse=True, fslp=0, dbg=False, nfl=2, usepure=True, t_q=16, wb=0, rstmode=False, pack=True, wbj=31, pw=True, gpos=11, YS=2688, OS=640, fslp0=20, gcrit=False, sstep=3, tmap=0, fake=0, ne=0, early=False, warm=0, hopb=56):
    L = []; A = L.append
    L_CTL = 0
    L_W = 64
    L_E = L_W + 256
    L_ML = L_E + 256
    L_Q = L_ML + 512
    L_P = L_Q + 17 * 384
    PROW = 272; PWAVE = 8 * PROW
    L_Y = L_P + 4 * PWAVE + 64
    L_O = L_Y + 20480
    LDS = L_O + 16 * 6144
    assert L_Y % 16 == 0 and L_O % 16 == 0 and L_Q % 16 == 0 and L_P % 16 == 0
    W_Y = 0
    W_O = 2 << 20
    W_Q = 6 << 20
    W_ML = W_Q + (128 << 10)
    W_B = W_ML + (128 << 10)
    W_G = W_B + (128 << 10)
    QLOC = 512 << 10
    W_OL = 7 << 20
    vLane, vKV, vW, vZero = 1, 2, 3, 4
    vT0, vT1, vT2, vT3 = 5, 6, 7, 8
    vPa, vQa, vDa, vMLa, vCa, vProg, vMode = 9, 10, 11, 12, 13, 14, 15
    vM = 16; vB = 20; vQ = 28; vS = 40; vD = 48; vRing = 68
    vX = vQ
    NV = vRing + 96
    if curve: vCv = NV; NV += 2
    ACC = (NV + 3) // 4 * 4
    NA = 80
    def ring(s, t): return vRing + 12 * s + 4 * t
    names = {"s": [], "h": []}
    def stamp(who, nm, level=1):
        skip = {1: (), 2: ("preB1", "ring", "B2", "end", "nonce", "qtab"), 3: ("flush0", "flushed", "ygot")}.get(stamps, ())
        if stamps == level or (stamps and level == 1 and nm not in skip):
            k = len(names[who]); assert k < 8, nm
            names[who].append(nm)
            A(f"  s_memrealtime s[{84+2*k}:{85+2*k}]")
    def dump_stamps(who, rec):
        n = len(names[who])
        if dbg:
            A("  s_waitcnt vmcnt(0) lgkmcnt(0)")
            A("  s_mov_b32 s64, s40"); A("  s_mov_b32 s65, s41"); A("  s_mov_b32 s66, 256"); A("  s_mov_b32 s67, 0x20000")
            A("  s_mov_b64 exec, 1")
            for k in range(n):
                A(f"  s_sub_u32 s47, s{84+2*k}, s46"); A("  s_add_u32 s47, s47, 100"); A(f"  v_mov_b32 v{vRing+k}, s47")
                A(f"  buffer_atomic_umax v{vRing+k}, v{vZero}, s[64:67], 0 offen offset:{4*(1 + k + (7 if who == 'h' else 0))}")
            return
        A("  s_getreg_b32 s100, hwreg(HW_REG_XCC_ID)"); A("  s_getreg_b32 s101, hwreg(HW_REG_HW_ID)")
        A("  s_waitcnt vmcnt(0) lgkmcnt(0)")
        A(f"  s_lshl_b32 s47, s2, 7"); A(f"  s_add_u32 s47, s47, {WS - (1<<20) + 64*rec}")
        if who == "s": regs = [84, 85, 100, 101] + sum([[84+2*min(k, n-1), 85+2*min(k, n-1)] for k in range(1, 7)], [])
        else: regs = sum([[84+2*min(k, n-1), 85+2*min(k, n-1)] for k in range(8)], [])
        A("  s_mov_b64 exec, 1")
        for i in range(16): A(f"  v_mov_b32 v{vRing+i}, s{regs[i]}")
        for i in range(4): A(f"  buffer_store_dwordx4 v[{vRing+4*i}:{vRing+4*i+3}], v{vZero}, s[36:39], s47 offen offset:{16*i}")

    assert fuse or YS == 2560
    if fuse:
        A(header + f"; @launch grid=(256,1,1) block=(320,1,1) lds={LDS}"); A("; single launch")
    else:
        A(header + f"; @launch kernel={KN} grid=(256,1,1) block=(320,1,1) lds={LDS}")
        A(f"; @launch kernel={K2} grid=(160,1,1) block=(64,1,1) lds=0" if not nok2 else "; (second launch disabled)")
    A('.amdgcn_target "amdgcn-amd-amdhsa--gfx950"')
    A(".text"); A(f".globl {KN}"); A(".p2align 8"); A(f".type {KN},@function"); A(f"{KN}:")
    A("  s_cmp_ge_u32 s2, 256"); A("  s_cbranch_scc1 L_end")
    A("  s_load_dwordx16 s[64:79], s[0:1], 0")
    A("  s_load_dwordx4 s[80:83], s[0:1], 64")
    A("  s_load_dwordx4 s[40:43], s[0:1], 88")
    if curve: A("  s_memrealtime s[96:97]"); A(f"  v_mov_b32 v{vCv}, 0"); A(f"  v_mov_b32 v{vCv+1}, 0")
    stamp("s", "start"); names["h"] = ["hstart"] if stamps else []
    A("  s_and_b32 s3, s2, 7             ; x"); A("  s_lshr_b32 s4, s2, 3            ; j")
    A(f"  v_lshrrev_b32 v{vT0}, 6, v0"); A(f"  v_and_b32 v{vLane}, 63, v0")
    A(f"  v_readfirstlane_b32 s5, v{vT0}     ; wave")
    A(f"  v_mov_b32 v{vZero}, 0")
    A(f"  v_lshrrev_b32 v{vT1}, 3, v{vLane}    ; l/8"); A(f"  v_and_b32 v{vT2}, 7, v{vLane}        ; l%8")
    A(f"  s_mov_b32 s38, {WS}"); A("  s_mov_b32 s39, 0x20000")
    A("  s_cmp_lg_u32 s5, 4"); A("  s_cbranch_scc1 L_stream")
    A("  s_memrealtime s[48:49]")
    A("  s_mov_b32 s10, 256"); A("  s_mov_b32 s11, 0x20000")
    A("  s_waitcnt lgkmcnt(0)")
    A("  s_mov_b32 s8, s40"); A("  s_mov_b32 s9, s41")
    A("  s_or_b32 s46, s48, 1")
    if not dbg: A("  s_mul_i32 s46, s46, 0x9e3779b1")
    A("  s_cmp_lg_u32 s2, 0"); A("  s_cbranch_scc1 L_helper")
    A(f"  v_mov_b32 v{vT0}, s46"); A("  s_mov_b64 exec, 1")
    A(f"  buffer_store_dword v{vT0}, v{vZero}, s[8:11], 0 offen sc1")
    A("  s_mov_b64 exec, -1"); A("  s_branch L_helper")
    A("L_stream:")
    A(f"  v_lshlrev_b32 v{vT3}, 4, v{vT2}")
    A(f"  v_mul_u32_u24 v{vKV}, 384, v{vT1}"); A(f"  v_add_u32 v{vKV}, v{vKV}, v{vT3}")
    A(f"  v_mul_u32_u24 v{vW}, {20*12288}, v{vT1}"); A(f"  v_add_u32 v{vW}, v{vW}, v{vT3}")
    A(f"  v_mul_u32_u24 v{vT0}, 40, v{vT1}")
    if tmap == 0: A("  s_lshl_b32 s13, s4, 2"); A("  s_add_u32 s13, s13, s5")
    elif tmap == 1: A("  s_lshl_b32 s13, s5, 5"); A("  s_add_u32 s13, s13, s4")
    else:
        A("  s_lshr_b32 s13, s5, 1"); A("  s_lshl_b32 s13, s13, 5"); A("  s_add_u32 s13, s13, s4"); A("  s_lshl_b32 s13, s13, 1"); A("  s_and_b32 s47, s5, 1"); A("  s_add_u32 s13, s13, s47")
    A("  s_mul_i32 s13, s13, 3072")
    A("  s_mul_i32 s47, s3, 3145728"); A("  s_add_u32 s12, s13, s47")
    A("  s_mul_i32 s47, s4, 171"); A("  s_lshr_b32 s47, s47, 9          ; sigma")
    A("  s_mul_i32 s48, s47, 3"); A("  s_sub_u32 s48, s4, s48          ; c")
    A("  s_and_b32 s49, s47, 3"); A("  s_lshl_b32 s49, s49, 3"); A(f"  s_mul_i32 s47, s47, {rot}"); A("  s_add_u32 s47, s47, s3"); A("  s_and_b32 s47, s47, 7"); A("  s_add_u32 s49, s49, s47         ; h")
    A("  s_mul_i32 s49, s49, 384"); A("  s_lshl_b32 s48, s48, 7"); A("  s_add_u32 s28, s49, s48")
    A(f"  s_mul_i32 s48, s5, {160*12288}"); A("  s_add_u32 s28, s28, s48")
    A("  s_mul_i32 s29, s5, 320")
    A(f"  s_mov_b32 s10, {KVBYTES}"); A("  s_mov_b32 s11, 0x20000")
    A(f"  s_mov_b32 s26, {WBYTES}"); A("  s_mov_b32 s27, 0x20000")
    A("  s_mov_b32 s34, 2560"); A("  s_mov_b32 s35, 0x20000")
    A("  s_cmp_ge_u32 s4, 12")
    A("  s_waitcnt lgkmcnt(0)")
    A("  s_cselect_b32 s24, s80, s70"); A("  s_cselect_b32 s25, s81, s71")
    A("  s_cselect_b32 s32, s74, s64"); A("  s_cselect_b32 s33, s75, s65")
    A("  s_mov_b32 s8, s66"); A("  s_mov_b32 s9, s67")
    HEADJ = 393216 + 7 * 3145728
    def kv_load(n):
        s, t = divmod(n, 3)
        A(f"  buffer_load_dwordx4 v[{ring(s,t)}:{ring(s,t)+3}], v{vKV}, s[8:11], s12 offen offset:{128*t} nt")
        if t == 2 and s < 7:
            d = ((s + 1) * sstep % 8 - s * sstep % 8) * 393216
            A(f"  s_add_u32 s12, s12, {d}" if d > 0 else f"  s_sub_u32 s12, s12, {-d}")
    def consts():
        A(f"  v_and_b32 v{vT0}, 1, v{vT2}"); A(f"  v_lshlrev_b32 v{vT0}, 4, v{vT0}")
        A(f"  v_mov_b32 v{vT3}, 0xffff"); A(f"  v_lshlrev_b32 v{vT0}, v{vT0}, v{vT3}")
        A(f"  v_lshrrev_b32 v{vT3}, 1, v{vT2}")
        for q in range(4):
            A(f"  v_cmp_eq_u32 vcc, {q}, v{vT3}"); A("  s_nop 1"); A(f"  v_cndmask_b32 v{vM+q}, 0, v{vT0}, vcc")
        A("  s_mov_b32 s54, 0x00ff00ff"); A("  s_mov_b32 s55, 0xff00ff00")
    A("  s_cmp_ge_u32 s4, 24"); A("  s_cbranch_scc1 L_noq")
    for b in range(2):
        A(f"  buffer_load_dwordx4 v[{vX+10*b}:{vX+10*b+3}], v{vT0}, s[32:35], s29 offen offset:{1280*b}")
        A(f"  buffer_load_dwordx4 v[{vX+10*b+4}:{vX+10*b+7}], v{vT0}, s[32:35], s29 offen offset:{1280*b+16}")
        A(f"  buffer_load_dwordx2 v[{vX+10*b+8}:{vX+10*b+9}], v{vT0}, s[32:35], s29 offen offset:{1280*b+32}")
    def wq_load(i):
        A(f"  buffer_load_dwordx4 a[{4*i}:{4*i+3}], v{vW}, s[24:27], s28 offen {wqpol}")
        if i < 19: A("  s_add_u32 s28, s28, 12288")
    nq = wqd or 20
    for i in range(nq): wq_load(i)
    consts()
    A("  s_mov_b32 s52, 0x01000100"); A("  s_mov_b32 s53, 0x03020302")
    nk = 0
    for i in range(20):
        A(f"  s_waitcnt vmcnt({nq - 1 - i + nk})")
        if nq < 20: wq_load(nq); nq += 1
        else:
            while (19 - i + nk) < d0: kv_load(nk); nk += 1
        for b in range(2):
            A(f"  v_perm_b32 v{vT0}, v{vX+10*b+i//2}, v{vX+10*b+i//2}, s{52+(i&1)}")
            for q in range(4): A(f"  v_and_b32 v{vB+4*b+q}, v{vT0}, v{vM+q}")
        for b in range(2):
            if b == 1: A("  s_nop 0")
            c = f"v[{vD+4*b}:{vD+4*b+3}]" if i else "0"
            A(f"  v_mfma_f32_16x16x32_bf16 v[{vD+4*b}:{vD+4*b+3}], v[{vB+4*b}:{vB+4*b+3}], a[{4*i}:{4*i+3}], {c}")
    assert nk == d0
    A(f"  v_lshrrev_b32 v{vT0}, 5, v{vLane}"); A(f"  v_lshlrev_b32 v{vT0}, 9, v{vT0}")
    A(f"  v_lshl_add_u32 v{vT0}, v{vT2}, 5, v{vT0}")
    A(f"  v_and_b32 v{vT3}, 16, v{vLane}"); A(f"  v_add_u32 v{vT0}, v{vT0}, v{vT3}")
    A("  s_lshl_b32 s47, s5, 10"); A(f"  v_add_u32 v{vT0}, s47, v{vT0}")
    A("  s_nop 0")
    A("  s_mov_b64 exec, s[54:55]")
    for b in range(2): A(f"  ds_write_b128 v{vT0}, v[{vD+4*b}:{vD+4*b+3}] offset:{L_Y + 256*b}")
    A("  s_mov_b64 exec, -1")
    stamp("s", "preB1")
    A("  s_waitcnt lgkmcnt(0)"); A("  s_barrier                       ; B1: q partials")
    A("  s_branch L_qdone")
    A("L_noq:")
    for n in range(d0): kv_load(n)
    consts()
    if stamps in (1, 3): A("  s_memrealtime s[86:87]")
    A("L_qdone:")
    rest = []
    R = rest.append
    R([f"  s_mul_i32 s47, s5, {PWAVE}", f"  s_add_u32 s47, s47, {L_P}", f"  v_mul_u32_u24 v{vPa}, {PROW}, v{vT1}", f"  v_add_u32 v{vPa}, s47, v{vPa}"])
    R([f"  v_lshlrev_b32 v{vQa}, 4, v{vT2}", f"  s_lshl_b32 s47, s5, 3", f"  v_mov_b32 v{vMLa}, s47", f"  s_lshl_b32 s47, s5, 2", f"  v_mov_b32 v{vCa}, s47", f"  v_mov_b32 v{vProg}, 0"])
    R([f"  v_lshrrev_b32 v{vDa}, 5, v{vLane}", f"  v_mul_u32_u24 v{vDa}, 768, v{vDa}", f"  v_lshl_add_u32 v{vDa}, v{vT2}, 5, v{vDa}",
       f"  v_and_b32 v{vT3}, 16, v{vLane}", f"  v_add_u32 v{vDa}, v{vDa}, v{vT3}", "  s_mul_i32 s47, s5, 1536", f"  s_add_u32 s47, s47, {L_O}", f"  v_add_u32 v{vDa}, s47, v{vDa}"])
    R(["  s_mov_b32 s16, s68", "  s_mov_b32 s17, s69", "  s_mov_b32 s18, s76", "  s_mov_b32 s19, s77", "  s_mov_b32 s20, s78", "  s_mov_b32 s21, s79"])
    R(["  s_cmp_ge_u32 s4, 16", "  s_cselect_b32 s24, s82, s72", "  s_cselect_b32 s25, s83, s73", "  s_mov_b32 s36, s42", "  s_mov_b32 s37, s43"])
    R(["  s_lshr_b32 s47, s4, 2", f"  s_mul_i32 s49, s47, {rot}", "  s_add_u32 s49, s49, s3", "  s_and_b32 s49, s49, 7", "  s_and_b32 s47, s47, 3", "  s_lshl_b32 s48, s47, 3", "  s_add_u32 s48, s48, s49", "  s_mul_i32 s48, s48, 192",
       "  s_and_b32 s49, s4, 3", "  s_lshl_b32 s49, s49, 2", "  s_add_u32 s49, s49, s5", "  s_lshl_b32 s49, s49, 2      ; 16qd+4w",
       "  s_add_u32 s28, s48, s49", "  s_mul_i32 s28, s28, 1280"])
    pk = 1 if pack else 0
    assert not (pack and loc and not usepure)
    R(["  s_lshr_b32 s48, s4, 4", "  s_lshl_b32 s48, s48, 3", "  s_add_u32 s48, s48, s47", f"  s_mul_i32 s48, s48, {0 if fake else 32*OS}", "  s_lshl_b32 s49, s49, 3", "  s_add_u32 s48, s48, s49",
       f"  s_mul_i32 s49, s3, {512*OS}", "  s_add_u32 s48, s48, s49", f"  s_add_u32 s60, s48, {W_O}", f"  s_add_u32 s61, s60, {8*OS}", f"  s_add_u32 s62, s60, {16*OS}", f"  s_add_u32 s63, s60, {24*OS}"])
    R([f"  v_lshrrev_b32 v{vT0}, 4, v{vLane}", f"  v_mul_u32_u24 v{vW}, 1280, v{vT0}", f"  v_and_b32 v{vT3}, 15, v{vLane}", f"  v_lshl_add_u32 v{vW}, v{vT3}, 4, v{vW}"])
    R([f"  s_mov_b32 s58, {f32hex(192 ** -0.5 * math.log2(math.e))}", "  s_mov_b32 s44, 0", f"  s_mov_b32 s45, {mode0}"])
    for n in range(d0, 24):
        A(f"  s_waitcnt vmcnt({d0-1})")
        kv_load(n)
        if rest:
            for x in rest.pop(0): A(x)
    assert not rest
    def wo_load(i, wait):
        tp, c = divmod(i, 5)
        A(f"  s_waitcnt vmcnt({wait})")
        A(f"  buffer_load_dwordx4 a[{4*i}:{4*i+3}], v{vW}, s[24:27], s28 offen offset:{256*c} {wopol}")
        if c == 4 and tp < 2: A("  s_add_u32 s28, s28, 81920")
    for i in range(ne): wo_load(i, d0 - 1)
    if early:
        A("  s_cmp_lt_u32 s4, 24"); A("  s_cbranch_scc1 L_noearly")
        for i in range(ne, 15): wo_load(i, d0 - 1)
        A("L_noearly:")
    stamp("s", "ring")
    A("  s_barrier")
    for t in range(3): A(f"  ds_read_b128 v[{vQ+4*t}:{vQ+4*t+3}], v{vQa} offset:{L_Q + 128*t}")
    stamp("s", "B2")
    A("  s_waitcnt lgkmcnt(0)")
    def throttle(tag):
        A(f"  s_waitcnt vmcnt({hi})")
        if pace:
            A("  s_cmp_eq_u32 s45, 2"); A(f"  s_cbranch_scc1 {tag}")
        A(f"  s_waitcnt vmcnt({mid})")
        if pace and lo != mid:
            A("  s_cmp_eq_u32 s45, 1"); A(f"  s_cbranch_scc1 {tag}")
            A(f"  s_waitcnt vmcnt({lo})")
        A(f"{tag}:")
    def switch(tag):
        A("  s_add_u32 s47, s44, 1"); A("  s_lshr_b32 s48, s47, 4"); A("  s_lshl_b32 s48, s48, 2"); A("  s_and_b32 s49, s47, 3"); A("  s_add_u32 s48, s48, s49")
        A(f"  s_mul_i32 s48, s48, {rot}"); A("  s_add_u32 s48, s48, s3"); A("  s_and_b32 s48, s48, 7")
        A("  s_and_b32 s47, s47, 7"); A(f"  s_cbranch_scc1 {tag}")
        A("  s_mov_b32 s8, s16"); A("  s_mov_b32 s9, s17")
        for k in range(4): A(f"  s_mov_b32 s{16+k}, s{18+k}")
        A(f"{tag}:")
        A("  s_lshl_b32 s47, s47, 3"); A("  s_add_u32 s48, s48, s47"); A("  s_mul_i32 s48, s48, 3145728"); A("  s_add_u32 s12, s13, s48")
    def body(tag, gaps):
        for n in range(24):
            s, j = divmod(n, 3)
            for x in gaps.get(n, []): A(x)
            if j == 2 and pace:
                A("  s_waitcnt lgkmcnt(0)"); A(f"  v_readfirstlane_b32 s45, v{vMode}")
            throttle(f"{tag}_{n}")
            kv_load(n)
            if j == 1 and pace: A(f"  ds_read_b32 v{vMode}, v{vCa} offset:{L_CTL+32}")
            if j == 2:
                A(f"  v_add_u32 v{vProg}, 1, v{vProg}"); A(f"  ds_write_b32 v{vCa}, v{vProg} offset:{L_CTL+16}")
    def xred(op, t, u):
        return [f"  s_nop 1", f"  {op}_dpp v{t}, v{t}, v{t} row_ror:8 row_mask:0xf bank_mask:0xf",
                f"  v_mov_b32 v{u}, v{t}", "  s_nop 1", f"  v_permlane16_swap_b32 v{t}, v{u}", "  s_nop 0", f"  {op} v{t}, v{t}, v{u}",
                f"  v_mov_b32 v{u}, v{t}", "  s_nop 1", f"  v_permlane32_swap_b32 v{t}, v{u}", "  s_nop 0", f"  {op} v{t}, v{t}, v{u}"]
    kg = {}
    for s in range(4):
        for j in range(2):
            T = 2 * s + j
            kg[3*s+j] = [f"  s_waitcnt vmcnt({3*(7-T) + 3*s + j})"] + \
                        [f"  v_dot2_f32_bf16 v{vS+T}, v{ring(T,0)+k}, v{vQ+k}, {('v%d' % (vS+T)) if k else '0'}" for k in range(12)]
        g = []
        for pat in ("quad_perm:[1,0,3,2]", "quad_perm:[2,3,0,1]", "row_half_mirror"):
            g += ["  s_nop 0"] + [f"  v_add_f32_dpp v{vS+T}, v{vS+T}, v{vS+T} {pat} row_mask:0xf bank_mask:0xf" for T in (2*s, 2*s+1)]
        kg[3*s+2] = g
    kg[12] = [f"  v_add_u32 v{vQa}, 384, v{vQa}",
              f"  v_max3_f32 v{vT0}, v{vS}, v{vS+1}, v{vS+2}", f"  v_max3_f32 v{vT0}, v{vT0}, v{vS+3}, v{vS+4}",
              f"  v_max3_f32 v{vT0}, v{vT0}, v{vS+5}, v{vS+6}", f"  v_max_f32 v{vT0}, v{vT0}, v{vS+7}"] + \
             [f"  ds_read_b128 v[{vQ+4*t}:{vQ+4*t+3}], v{vQa} offset:{L_Q + 128*t}" for t in range(3)]
    kg[13] = xred("v_max_f32", vT0, vT1) + [f"  v_mul_f32 v{vD}, s58, v{vT0}"]
    kg[14] = [f"  v_fma_f32 v{vS+i}, v{vS+i}, s58, -v{vD}" for i in range(8)]
    kg[15] = [f"  v_exp_f32 v{vS+i}, v{vS+i}" for i in range(8)]
    kg[16] = [f"  v_add_f32 v{vD+1}, v{vS}, v{vS+1}"] + [f"  v_add_f32 v{vD+1}, v{vD+1}, v{vS+i}" for i in range(2, 8)]
    kg[17] = [f"  v_cvt_pk_bf16_f32 v{vS+i}, v{vS+i}, v{vS+i}" for i in range(8)]
    kg[18] = [f"  ds_write_b128 v{vPa}, v[{vS}:{vS+3}]", f"  ds_write_b128 v{vPa}, v[{vS+4}:{vS+7}] offset:16", f"  v_add_u32 v{vPa}, 32, v{vPa}"]
    kg[19] = xred("v_add_f32", vD+1, vT1)
    kg[21] = [f"  ds_write_b64 v{vMLa}, v[{vD}:{vD+1}] offset:{L_ML}", f"  v_add_u32 v{vMLa}, 32, v{vMLa}"]
    def vtile(T, wait):
        b = vB + 4 * (T & 1)
        g = [f"  v_and_b32 v{b+q}, v{vS+T}, v{vM+q}" for q in range(4)] + [f"  s_waitcnt vmcnt({wait})", "  s_nop 0"]
        for t in range(3):
            c = f"v[{vD+4*t}:{vD+4*t+3}]" if T else "0"
            g.append(f"  v_mfma_f32_16x16x32_bf16 v[{vD+4*t}:{vD+4*t+3}], v[{b}:{b+3}], v[{ring(T,t)}:{ring(T,t)+3}], {c}")
        return g
    dump = ["  s_mov_b64 exec, s[54:55]"] + [f"  ds_write_b128 v{vDa}, v[{vD+4*t}:{vD+4*t+3}] offset:{256*t}" for t in range(3)] + ["  s_mov_b64 exec, -1"]
    pread = [f"  ds_read_b128 v[{vS}:{vS+3}], v{vPa}", f"  ds_read_b128 v[{vS+4}:{vS+7}], v{vPa} offset:16"]
    vg = {}
    for s in range(4):
        for j in range(2): vg[3*s+j] = vtile(2*s+j, 3*(7-(2*s+j)) + 3*s + j)
    vg[12] = ["  s_nop 7"] + dump + [f"  v_add_u32 v{vDa}, 6144, v{vDa}", f"  v_add_u32 v{vPa}, 32, v{vPa}"]
    vg[13] = pread
    vg[20] = ["  s_waitcnt lgkmcnt(0)"]
    kg[20] = ["  s_waitcnt lgkmcnt(0)"]
    def cstamp():
        if not curve: return
        A("  s_memrealtime s[98:99]"); A("  s_mov_b32 m0, s44"); A("  s_waitcnt lgkmcnt(0)")
        A(f"  v_writelane_b32 v{vCv}, s98, m0"); A(f"  v_writelane_b32 v{vCv+1}, s99, m0")
    A("L_kloop:")
    A(";HOP k")
    switch("L_ksw")
    body("L_k", kg); cstamp()
    A("  s_add_u32 s44, s44, 1"); A("  s_and_b32 s47, s44, 7"); A("  s_cbranch_scc1 L_kloop")
    A(";HOP t")
    A(f"  v_subrev_u32 v{vPa}, 256, v{vPa}")
    for x in pread: A(x)
    A("  s_waitcnt lgkmcnt(0)")
    A("L_vloop:")
    switch("L_vsw")
    body("L_v", vg); cstamp()
    A("  s_add_u32 s44, s44, 1")
    A("  s_cmp_eq_u32 s44, 31"); A("  s_cbranch_scc1 L_last")
    A("  s_and_b32 s47, s44, 7"); A("  s_cbranch_scc1 L_vloop")
    A(f"  v_subrev_u32 v{vPa}, 256, v{vPa}")
    A("  s_branch L_kloop")
    A("L_last:")
    def last(n0, tag):
        m = 15 - n0
        sched = {1: [0, 1], 2: [2, 3], 3: [4, 5], dl - 1: [6], dl: [7]}
        gdone = False
        for k in range(max(m, dl + 4)):
            for T in sched.get(k, []):
                for x in vtile(T, 3*(7-T) + min(k, m)): A(x)
            if k == dl:
                A(f"  v_add_u32 v{vProg}, 8, v{vProg}"); A("  s_nop 5")
                for x in dump: A(x)
                A(f"  ds_write_b32 v{vCa}, v{vProg} offset:{L_CTL+16}")
                if tag == "": stamp("s", "vend")
                elif stamps: A(f"  s_memrealtime s[{84+2*len(names['s'])}:{85+2*len(names['s'])}]")
            if k == dl + 1:
                A(f"  v_and_b32 v{vT0}, {0 if fake else 8}, v{vLane}"); A(f"  v_and_b32 v{vT2}, 7, v{vLane}"); A(f"  v_lshl_add_u32 v{vT0}, v{vT0}, 4, v{vT2}     ; 128*b + producer")
                A(f"  v_mul_u32_u24 v{vT0}, {OS}, v{vT0}")
                A(f"  v_lshrrev_b32 v{vT3}, 4, v{vLane}"); A(f"  v_lshl_add_u32 v{vT0}, v{vT3}, 3, v{vT0}")
                A(f"  v_and_b32 v{vT2}, 15, v{vLane}"); A(f"  v_lshlrev_b32 v{vT1}, 4, v{vT2}")
            if k == dl + 2:
                A(f"  v_lshrrev_b32 v{vDa}, 5, v{vLane}"); A(f"  v_mul_u32_u24 v{vDa}, 2560, v{vDa}")
                A(f"  v_lshl_add_u32 v{vDa}, v{vT2}, 5, v{vDa}")
                A(f"  v_and_b32 v{vT3}, 16, v{vLane}"); A(f"  v_add_u32 v{vDa}, v{vDa}, v{vT3}")
                A("  s_mul_i32 s47, s5, 5120"); A(f"  v_add_u32 v{vDa}, s47, v{vDa}")
            if k == dl + 3:
                A(f"  s_mov_b32 s50, {SPIN*8}")
                A(f"L_wwait{tag}:")
                A(f"  ds_read_b64 v[{vS}:{vS+1}], v{vZero} offset:{L_CTL+8}")
                A("  s_waitcnt lgkmcnt(0)")
                A(f"  v_readfirstlane_b32 s47, v{vS}"); A(f"  v_readfirstlane_b32 s46, v{vS+1}")
                A("  s_sub_u32 s50, s50, 1"); A(f"  s_cbranch_scc1 L_wgo{tag}")
                A("  s_cmp_eq_u32 s47, 0"); A(f"  s_cbranch_scc1 L_wwait{tag}")
                A(f"L_wgo{tag}:")
                A(f"  ds_read_b128 v[{vS}:{vS+3}], v{vT1} offset:{L_W}")
                A(f"  v_and_b32 v{vMode}, 16, v{vLane}"); A(f"  v_lshrrev_b32 v{vMode}, v{vMode}, s46"); A(f"  v_and_b32 v{vMode}, 0xffff, v{vMode}")
            if k < m:
                i = n0 + k
                if i == gpos:
                    assert k >= dl + 2
                    for q in range(4): A(f"  buffer_load_dwordx2 v[{vRing+4*q}:{vRing+4*q+1}], v{vT0}, s[36:39], s{60+q} offen sc1")
                wo_load(i, dl - 1 + (4 if gpos <= i < gpos + dl else 0))
    if early:
        A("  s_cmp_lt_u32 s4, 24"); A("  s_cbranch_scc1 L_last1")
        last(15, "e")
        if stamps == 2: A(f"  s_memrealtime s[{86+2*len(names['s'])}:{87+2*len(names['s'])}]")
        A(f"  s_mov_b32 s50, {SPIN}"); A("  s_branch L_gather")
        A("L_last1:")
    last(ne, "")
    G = vRing
    assert pack and usepure
    stamp("s", "woiss", 2)
    A(f"  s_mov_b32 s50, {SPIN}")
    if gpos < 15:
        if gcrit: A("  s_cmp_ge_u32 s4, 28"); A("  s_cbranch_scc1 L_gather")
        A(f"  s_waitcnt vmcnt({15-gpos}) lgkmcnt(0)"); A("  s_branch L_gchk")
    A("L_gather:")
    for k in range(4): A(f"  buffer_load_dwordx2 v[{G+4*k}:{G+4*k+1}], v{vT0}, s[36:39], s{60+k} offen sc1")
    A("  s_waitcnt vmcnt(0) lgkmcnt(0)")
    A("L_gchk:")
    for k in range(4): A(f"  v_lshrrev_b32 v{G+4*k+3}, 16, v{G+4*k+1}")
    A(f"  v_cmp_ne_u32 s[48:49], v{vMode}, v{G+3}")
    for k in range(1, 4):
        A(f"  v_cmp_ne_u32 vcc, v{vMode}, v{G+4*k+3}"); A("  s_or_b64 s[48:49], s[48:49], vcc")
    A("  s_sub_u32 s50, s50, 1"); A("  s_cbranch_scc1 L_ggo")
    A("  s_cmp_eq_u64 s[48:49], 0"); A("  s_cbranch_scc0 L_gather")
    A("L_ggo:")
    stamp("s", "gath")
    for k in range(4):
        A(f"  v_lshlrev_b32 v{G+4*k+2}, 16, v{G+4*k+1}"); A(f"  v_and_b32 v{G+4*k+1}, 0xffff0000, v{G+4*k}"); A(f"  v_lshlrev_b32 v{G+4*k}, 16, v{G+4*k}")
    for t in range(3): A(f"  v_mul_f32 v{G+t}, v{vS}, v{G+t}")
    for k in range(1, 4):
        for t in range(3): A(f"  v_fmac_f32 v{G+t}, v{vS+k}, v{G+4*k+t}")
    for pat in ("quad_perm:[1,0,3,2]", "quad_perm:[2,3,0,1]", "row_half_mirror"):
        for t in range(3): A(f"  v_add_f32_dpp v{G+t}, v{G+t}, v{G+t} {pat} row_mask:0xf bank_mask:0xf")
    for t in range(3): A(f"  v_cvt_pk_bf16_f32 v{G+t}, v{G+t}, v{G+t}")
    for t in range(3):
        for q in range(4): A(f"  v_and_b32 v{G+4+4*t+q}, v{G+t}, v{vM+q}")
    for tp in range(3):
        for c in range(5):
            i = tp * 5 + c
            cc = f"v[{vD+4*c}:{vD+4*c+3}]" if tp else "0"
            if i >= gpos: A(f"  s_waitcnt vmcnt({14-i})")
            A(f"  v_mfma_f32_16x16x32_bf16 v[{vD+4*c}:{vD+4*c+3}], v[{G+4+4*tp}:{G+7+4*tp}], a[{4*i}:{4*i+3}], {cc}")
    A("  s_nop 3")
    for c in range(5): A(f"  ds_write_b128 v{vDa}, v[{vD+4*c}:{vD+4*c+3}] offset:{L_Y + 512*c}")
    stamp("s", "mfma", 2)
    A("L_yred:")
    A(f"  v_lshlrev_b32 v{vT1}, 4, v0")
    A(f"  v_mov_b32 v{vT2}, {128*YS - 2560}"); A("  v_cmp_le_u32 vcc, 160, v0")
    A("  s_lshr_b32 s47, s4, 4"); A(f"  s_mul_i32 s47, s47, {256*YS}")
    A(f"  v_cndmask_b32 v{vT2}, 0, v{vT2}, vcc"); A(f"  v_add_u32 v{vT2}, v{vT2}, v{vT1}")
    A("  s_and_b32 s48, s2, 127"); A(f"  s_mul_i32 s48, s48, {YS}"); A("  s_add_u32 s47, s47, s48")
    if fuse:
        A(f"  v_mov_b32 v{vT0}, s46")
        for i in range(4): A(f"  s_mov_b32 s{52+i}, 0x0706050{i}")
    A("  s_waitcnt lgkmcnt(0)"); A("  s_barrier                       ; B3: y partials")
    for k in range(4): A(f"  ds_read_b128 v[{vD+4*k}:{vD+4*k+3}], v{vT1} offset:{L_Y + 5120*k}")
    for k in range(1, 4):
        A(f"  s_waitcnt lgkmcnt({3-k})")
        for r in range(4): A(f"  v_add_f32 v{vD+r}, v{vD+r}, v{vD+4*k+r}")
    if fuse:
        for r in range(4): A(f"  v_perm_b32 v{vD+r}, v{vD+r}, v{vT0}, s{52+r}")
    A(f"  buffer_store_dwordx4 v[{vD}:{vD+3}], v{vT2}, s[36:39], s47 offen{' sc1' if fuse else ''}")
    if fuse:
        A("  s_cmp_eq_u32 s5, 4"); A("  s_cbranch_scc1 L_final")
    A(";HOP -")
    if curve:
        A("  s_cmp_lg_u32 s5, 0"); A("  s_cbranch_scc1 L_end")
        A("  s_getreg_b32 s100, hwreg(HW_REG_XCC_ID)")
        A(f"  s_mul_i32 s47, s2, 144"); A(f"  s_add_u32 s47, s47, {WS - (1<<20)}")
        A(f"  v_lshlrev_b32 v{vT0}, 2, v{vLane}"); A(f"  v_add_u32 v{vT0}, 16, v{vT0}")
        A("  s_mov_b32 exec_lo, 0x55555555"); A("  s_mov_b32 exec_hi, 0")
        A(f"  buffer_store_dwordx2 v[{vCv}:{vCv+1}], v{vT0}, s[36:39], s47 offen")
        A("  s_mov_b64 exec, 1")
        A(f"  v_mov_b32 v{vRing}, s96"); A(f"  v_mov_b32 v{vRing+1}, s97"); A(f"  v_mov_b32 v{vRing+2}, s100"); A(f"  v_mov_b32 v{vRing+3}, 0")
        A(f"  buffer_store_dwordx4 v[{vRing}:{vRing+3}], v{vZero}, s[36:39], s47 offen")
    if stamps:
        A("  s_cmp_eq_u32 s5, 4"); A("  s_cbranch_scc1 L_hst")
        A("  s_cmp_lg_u32 s5, 0"); A("  s_cbranch_scc1 L_end")
        stamp("s", "ystore", 2)
        A("  s_waitcnt vmcnt(0)")
        stamp("s", "end"); stamp("s", "yack", 2)
        dump_stamps("s", 0)
    A("L_end:"); A("  s_endpgm")
    H = vRing
    A("L_helper:")
    A(f"  v_mov_b32 v{H}, {mode0}"); A(f"  v_mov_b32 v{H+1}, 0"); A(f"  v_mov_b32 v{H+2}, 0"); A(f"  v_mov_b32 v{H+3}, 0"); A(f"  v_mov_b32 v{H+4}, 0"); A(f"  v_mov_b32 v{H+5}, 0")
    A(f"  ds_write_b128 v{vZero}, v[{H}:{H+3}] offset:{L_CTL}"); A(f"  ds_write_b128 v{vZero}, v[{H+2}:{H+5}] offset:{L_CTL+16}")
    A(f"  v_and_b32 v{vCa}, 3, v{vLane}"); A(f"  v_lshlrev_b32 v{vCa}, 2, v{vCa}")
    A(f"  ds_write_b32 v{vCa}, v{H} offset:{L_CTL+32}")
    A("  s_mov_b32 s36, s42"); A("  s_mov_b32 s37, s43")
    A(f"  v_lshlrev_b32 v{vT0}, 3, v{vLane}      ; lane*8"); A(f"  v_lshlrev_b32 v{vT3}, 4, v{vLane}      ; lane*16")
    A(f"  s_mul_i32 s12, s3, {24*512}"); A(f"  s_add_u32 s12, s12, {W_Q}")
    A("  s_lshl_b32 s13, s4, 9"); A("  s_add_u32 s13, s13, s12")
    A("  s_add_u32 s14, s12, 4096"); A("  s_add_u32 s15, s12, 8192")
    if dry:
        A("  s_mov_b32 s38, 0")
        A("  s_mov_b32 s45, 0"); A("  s_branch L_hq1")
    A("L_hreal:")
    A(f"  s_mov_b32 s38, {WS}"); A(f"  s_mov_b32 s45, {SPIN}")
    A("  s_cmp_eq_u32 s2, 0"); A("  s_cbranch_scc1 L_nhave")
    A(f"  s_mov_b32 s50, {SPIN}")
    if warm >= 2: A("  s_mov_b64 exec, 0"); A("  s_branch L_hop_k_0"); A("L_back_k:")
    if nslp0: A(f"  s_sleep {nslp0}")
    A("L_nloop:")
    A(f"  buffer_load_dword v{H}, v{vZero}, s[8:11], 0 offen sc1"); A("  s_waitcnt vmcnt(0)")
    A(f"  v_readfirstlane_b32 s46, v{H}")
    A("  s_sub_u32 s50, s50, 1"); A("  s_cbranch_scc1 L_nhave")
    A("  s_cmp_lg_u32 s46, 0"); A("  s_cbranch_scc1 L_nhave")
    A(f"  s_sleep {nslp}"); A("  s_branch L_nloop")
    A("L_nhave:")
    A(";HOP k")
    stamp("h", "nonce")
    A(f"  v_mov_b32 v{H}, s46"); A(f"  ds_write_b32 v{vZero}, v{H} offset:{L_CTL+12}")
    assert not dry
    if stamps == 3: A("  s_memrealtime s[88:89]")
    A("  s_waitcnt lgkmcnt(0)")
    A("  s_cmp_ge_u32 s4, 24"); A("  s_cbranch_scc1 L_hq2")
    A("  s_barrier                       ; B1")
    stamp("h", "hB1", 3)
    if stamps == 3: A("  s_waitcnt lgkmcnt(0)")
    for k in range(8): A(f"  ds_read_b64 v[{H+2*k}:{H+2*k+1}], v{vT0} offset:{L_Y + 512*k}")
    for k in range(1, 8):
        A(f"  s_waitcnt lgkmcnt({7-k})")
        for r in range(2): A(f"  v_add_f32 v{H+r}, v{H+r}, v{H+2*k+r}")
    A(f"  v_cvt_pk_bf16_f32 v{vD}, v{H}, v{H+1}"); A(f"  v_mov_b32 v{vD+1}, s46")
    def qglob(tag):
        A("  s_cmp_ge_u32 s4, 24"); A(f"  s_cbranch_scc1 {tag}")
        A(f"  buffer_store_dwordx2 v[{vD}:{vD+1}], v{vT0}, s[36:39], s13 offen sc1")
        A(f"{tag}:")
    if loc:
        A(f"  s_add_u32 s47, s13, {QLOC}")
        A(f"  buffer_store_dwordx2 v[{vD}:{vD+1}], v{vT0}, s[36:39], s47 offen")
    else:
        A(f"  buffer_store_dwordx2 v[{vD}:{vD+1}], v{vT0}, s[36:39], s13 offen sc1")
    A("L_hq2:")
    stamp("h", "pub", 3)
    A(f"  v_and_b32 v{vT1}, 16, v{vLane}"); A(f"  v_mul_u32_u24 v{vT1}, 96, v{vT1}")
    A(f"  v_and_b32 v{vT2}, 15, v{vLane}"); A(f"  v_lshl_add_u32 v{vT1}, v{vT2}, 3, v{vT1}")
    A(f"  v_lshrrev_b32 v{vT2}, 5, v{vLane}")
    A(f"  s_mov_b32 s50, s45")
    A("L_qg:")
    if loc:
        A(f"  s_cmp_lg_u32 s50, {SPIN - nloc}"); A("  s_cbranch_scc1 L_qg1"); qglob("L_qg1")
    A(f"  s_cmp_gt_u32 s50, {SPIN - nloc}"); A(f"  s_cselect_b32 s47, {QLOC if loc else 0}, 0")
    A(f"  v_add_u32 v{vDa}, s47, v{vT3}")
    for k in range(12):
        A(f"  buffer_load_dwordx4 v[{H+4*k}:{H+4*k+3}], v{vDa}, s[36:39], s{(12,14,15)[k//4]} offen offset:{1024*(k%4)} sc1")
    A("  s_mov_b64 s[48:49], 0")
    for k in range(12):
        A(f"  s_waitcnt vmcnt({11-k})")
        for r in (1, 3):
            A(f"  v_cmp_ne_u32 vcc, s46, v{H+4*k+r}"); A("  s_or_b64 s[48:49], s[48:49], vcc")
    A("  s_sub_u32 s50, s50, 1"); A("  s_cbranch_scc1 L_qgo")
    A("  s_cmp_eq_u64 s[48:49], 0"); A("  s_cbranch_scc0 L_qg")
    A("L_qgo:")
    stamp("h", "qgot", 3)
    def qconst(item):
        sg, c = divmod(item, 3); return ((sg >> 2) * 8 + (sg & 3)) * 384 + c * 128
    for k in range(12):
        c0, c1 = qconst(2 * k), qconst(2 * k + 1)
        A(f"  v_mov_b32 v{H+4*k+1}, v{H+4*k+2}")
        if k == 0 or (c1 - c0) != (qconst(2*k-1) - qconst(2*k-2)):
            A(f"  v_mul_u32_u24 v{vPa}, {c1-c0}, v{vT2}"); A(f"  v_add_u32 v{vPa}, v{vPa}, v{vT1}")
        A(f"  ds_write_b64 v{vPa}, v[{H+4*k}:{H+4*k+1}] offset:{L_Q + c0}")
    A("  s_waitcnt lgkmcnt(0)")
    if dry: A("  s_cmp_eq_u32 s45, 0"); A("  s_cbranch_scc1 L_hreal")
    stamp("h", "qtab")
    A("  s_barrier                       ; B2")
    if loc and not usepure: qglob("L_qg2")
    A("  s_getreg_b32 s56, hwreg(HW_REG_XCC_ID)"); A("  s_and_b32 s56, s56, 7")
    A("  s_lshl_b32 s57, s56, 3"); A("  s_add_u32 s57, s57, s3"); A("  s_mul_i32 s57, s57, 1152"); A(f"  s_add_u32 s57, s57, {W_B}")
    A("  s_lshl_b32 s59, s4, 3"); A("  s_add_u32 s59, s59, s57")
    A("  s_mov_b32 s31, 0")
    A("  s_mov_b32 s30, 16"); A("  s_mov_b32 s29, 0")
    A(f"  v_mov_b32 v{H+35}, s46")
    A("  s_lshl_b32 s62, s56, 2"); A(f"  s_add_u32 s62, s62, {W_G}"); A(f"  s_mov_b32 s28, {lper-1}")
    A(f"  s_add_u32 s16, s42, {W_G}"); A("  s_addc_u32 s17, s43, 0")
    A("  s_and_b32 s51, s46, 0xffff0000   ; tag")
    A(f"  v_lshlrev_b32 v{vQa}, 2, v{vLane}")
    A("  s_mov_b32 s18, -1"); A("  s_mov_b32 s19, 1")
    A(f"  s_mov_b32 s44, {t_q}")
    A(";HOP -")
    if warm: A("  s_mov_b64 exec, 0"); A("  s_branch L_hop_t_0"); A("L_back_t:")
    A("L_pace:")
    A(f"  s_sleep {slp}")
    if pace: A("  s_memrealtime s[26:27]"); A(f"  ds_read_b32 v{H+10}, v{vCa} offset:{L_CTL+16}")
    A(f"  ds_read_b128 v[{H}:{H+3}], v{vZero} offset:{L_CTL+16}"); A("  s_waitcnt lgkmcnt(0)")
    A(f"  v_min3_u32 v{H+4}, v{H}, v{H+1}, v{H+2}"); A(f"  v_min_u32 v{H+4}, v{H+4}, v{H+3}")
    A(f"  v_add3_u32 v{H+5}, v{H}, v{H+1}, v{H+2}"); A(f"  v_add_u32 v{H+5}, v{H+5}, v{H+3}")
    A(f"  v_readfirstlane_b32 s20, v{H+4}")
    A("  s_cmp_ge_u32 s20, s44"); A("  s_cbranch_scc1 L_event")
    if pace:
        A(f"  v_readfirstlane_b32 s21, v{H+5}")
        A(f"  s_mul_i32 s22, s26, {kap}"); A("  s_lshr_b32 s22, s22, 6")
        A("  s_lshl_b32 s21, s21, 5"); A("  s_sub_u32 s21, s21, s22"); A("  s_and_b32 s21, s21, 0xffff")
        A(f"  v_mov_b32 v{H+34}, s21"); A(f"  v_mov_b32 v{H+8}, 0"); A(f"  v_mov_b32 v{H+9}, 0")
        A("  s_mov_b64 exec, 1")
        A(f"  buffer_store_dwordx2 v[{H+34}:{H+35}], v{vZero}, s[36:39], s59 offen")
        A("  s_mov_b64 exec, s[18:19]")
        A(f"  buffer_load_dwordx2 v[{H+8}:{H+9}], v{vT0}, s[36:39], s57 offen sc1")
        A("  s_mov_b64 exec, -1")
        A("  s_waitcnt vmcnt(0)")
        A(f"  v_readlane_b32 s22, v{H+8}, 32")
        A(f"  v_cmp_eq_u32 vcc, s46, v{H+9}")
        A(f"  v_subrev_u32 v{H+7}, s21, v{H+8}"); A(f"  v_bfe_i32 v{H+7}, v{H+7}, 0, 16")
        A(f"  v_cndmask_b32 v{H+7}, 0, v{H+7}, vcc")
        if usepure: A("  s_cmp_eq_u32 vcc_lo, -1"); A("  s_cselect_b32 s31, 1, s31")
        for sh in (1, 2, 4, 8):
            A("  s_nop 1"); A(f"  v_add_u32_dpp v{H+7}, v{H+7}, v{H+7} row_ror:{sh} row_mask:0xf bank_mask:0xf")
        A("  s_bitcmp1_b32 vcc_hi, 0"); A("  s_cselect_b32 s22, s22, 0")
        A(f"  v_readlane_b32 s23, v{H+7}, 0"); A(f"  v_readlane_b32 s24, v{H+7}, 16")
        A("  s_add_u32 s23, s23, s24"); A("  s_ashr_i32 s23, s23, 5")
        A("  s_add_u32 s24, s23, s22")
        if pw:
            A(f"  v_lshlrev_b32 v{H+10}, 2, v{H+10}"); A(f"  v_sub_u32 v{H+10}, v{H+5}, v{H+10}"); A(f"  v_lshl_add_u32 v{H+10}, v{H+10}, 5, s24")
        else:
            A(f"  v_mov_b32 v{H+10}, s24")
        A(f"  v_cmp_lt_i32 vcc, {-tb}, v{H+10}"); A(f"  v_mov_b32 v{H+6}, 1"); A("  s_nop 0"); A(f"  v_cndmask_b32 v{H+6}, v{H+6}, 2, vcc")
        A(f"  v_cmp_gt_i32 vcc, {-ta}, v{H+10}"); A("  s_nop 1"); A(f"  v_cndmask_b32 v{H+6}, v{H+6}, 0, vcc")
        A(f"  ds_write_b32 v{vCa}, v{H+6} offset:{L_CTL+32}")
        if pace >= 2:
            A("  s_cmp_lg_u32 s4, 0"); A("  s_cbranch_scc1 L_paced")
            A("  s_add_u32 s28, s28, 1"); A(f"  s_cmp_lt_u32 s28, {lper}"); A("  s_cbranch_scc1 L_paced")
            A("  s_mov_b32 s28, 0")
            A("  s_load_dwordx8 s[64:71], s[16:17], 0 glc")
            A("  s_add_u32 s23, s23, s21"); A("  s_and_b32 s23, s23, 0xffff")
            A("  s_or_b32 s24, s23, s51"); A(f"  v_mov_b32 v{H+6}, s24")
            A("  s_waitcnt lgkmcnt(0)")
            A("  s_mov_b64 exec, 1")
            A(f"  buffer_store_dword v{H+6}, v{vZero}, s[36:39], s62 offen sc1")
            A("  s_mov_b32 s25, 0")
            for k in range(8):
                A(f"  s_xor_b32 s{64+k}, s{64+k}, s51"); A(f"  s_cmp_lt_u32 s{64+k}, 0x10000"); A(f"  s_cselect_b32 s{64+k}, s{64+k}, s23")
                A(f"  s_sub_u32 s{64+k}, s{64+k}, s23"); A(f"  s_sext_i32_i16 s{64+k}, s{64+k}"); A(f"  s_add_u32 s25, s25, s{64+k}")
            A("  s_ashr_i32 s25, s25, 3")
            A(f"  v_mov_b32 v{H+34}, s25")
            A(f"  buffer_store_dwordx2 v[{H+34}:{H+35}], v{vZero}, s[36:39], s57 offen offset:256")
            A("  s_mov_b64 exec, -1")
    A("L_paced:")
    A(f"  s_mov_b32 s27, {nfl}"); A("  s_branch L_fl")
    A("L_event:")
    A(f"  s_cmp_eq_u32 s44, {t_w}"); A("  s_cbranch_scc1 L_evw")
    A(f"  s_cmp_eq_u32 s44, {t_f}"); A("  s_cbranch_scc1 L_flush")
    A(f"  s_cmp_eq_u32 s44, {t_ml}"); A("  s_cbranch_scc1 L_evm")
    A(f"  s_mov_b32 s44, {t_ml}")
    if loc and usepure:
        A("  s_cmp_eq_u32 s31, 1"); A("  s_cbranch_scc1 L_pace"); qglob("L_qg2")
    A("  s_branch L_pace")
    A("L_evm:")
    A(";HOP t")
    def pub(instr, tag):
        if usepure:
            A("  s_cmp_eq_u32 s31, 1"); A(f"  s_cbranch_scc1 {tag}a")
        A(instr + " sc1")
        if usepure:
            A(f"  s_branch {tag}b"); A(f"{tag}a:"); A(instr); A(f"{tag}b:")
    A(f"  v_and_b32 v{vT1}, 15, v{vLane}"); A(f"  v_lshlrev_b32 v{vT2}, 5, v{vT1}"); A(f"  v_lshlrev_b32 v{vT1}, 4, v{vT1}")
    A(f"  ds_read_b128 v[{H}:{H+3}], v{vT2} offset:{L_ML}"); A(f"  ds_read_b128 v[{H+4}:{H+7}], v{vT2} offset:{L_ML+16}")
    A("  s_lshl_b32 s47, s3, 5"); A("  s_add_u32 s47, s47, s4"); A("  s_lshl_b32 s47, s47, 8"); A(f"  s_add_u32 s47, s47, {W_ML}")
    A("  s_waitcnt lgkmcnt(0)")
    A(f"  v_max3_f32 v{H+8}, v{H}, v{H+2}, v{H+4}"); A(f"  v_max_f32 v{H+8}, v{H+8}, v{H+6}")
    for w in range(4): A(f"  v_sub_f32 v{H+12+w}, v{H+2*w}, v{H+8}")
    for w in range(4): A(f"  v_exp_f32 v{H+12+w}, v{H+12+w}")
    A(f"  v_mov_b32 v{H+10}, 0"); A(f"  v_mov_b32 v{H+11}, s46")
    A(f"  v_mul_f32 v{H+9}, v{H+12}, v{H+1}")
    for w in range(1, 4): A(f"  v_fmac_f32 v{H+9}, v{H+12+w}, v{H+2*w+1}")
    A(f"  ds_write_b128 v{vT1}, v[{H+12}:{H+15}] offset:{L_E}")
    A("  s_mov_b64 exec, 0xffff")
    pub(f"  buffer_store_dwordx4 v[{H+8}:{H+11}], v{vT1}, s[36:39], s47 offen", "L_pm")
    A("  s_mov_b64 exec, -1")
    A(f"  v_add_u32 v{vDa}, {L_O}, v{vQa}"); A(f"  v_mov_b32 v{vMLa}, {L_E}")
    if pack:
        A(f"  v_and_b32 v{vMode}, 1, v{vLane}"); A(f"  v_lshlrev_b32 v{vMode}, 4, v{vMode}"); A(f"  v_lshrrev_b32 v{vMode}, v{vMode}, s46"); A(f"  v_lshlrev_b32 v{vMode}, 16, v{vMode}")
        A("  s_mov_b32 s33, 0xffff")
    A(f"  s_mul_i32 s58, s3, {512*OS}"); A(f"  s_mul_i32 s48, s4, {OS}"); A("  s_add_u32 s58, s58, s48"); A(f"  s_add_u32 s58, s58, {W_O}")
    A("  s_mov_b32 s30, 0")
    A(f"  s_mov_b32 s44, {t_w}"); A("  s_branch L_pace")
    A("L_evw:")
    A(f"  v_and_b32 v{vT1}, 31, v{vLane}"); A(f"  v_lshlrev_b32 v{vT1}, 8, v{vT1}")
    A(f"  v_and_b32 v{vT2}, 32, v{vLane}"); A(f"  v_lshl_add_u32 v{vT1}, v{vT2}, 1, v{vT1}      ; producer*256 + b*64")
    A("  s_lshr_b32 s47, s4, 4"); A("  s_lshl_b32 s47, s47, 3"); A("  s_lshr_b32 s48, s4, 2"); A("  s_and_b32 s48, s48, 3"); A("  s_add_u32 s47, s47, s48")
    A("  s_lshl_b32 s47, s47, 4"); A("  s_lshl_b32 s48, s3, 13"); A("  s_add_u32 s47, s47, s48"); A(f"  s_add_u32 s47, s47, {W_ML}")
    A(f"  s_mov_b32 s50, {SPIN}")
    A("L_wg:")
    A(f"  buffer_load_dwordx4 v[{H}:{H+3}], v{vT1}, s[36:39], s47 offen sc1"); A("  s_waitcnt vmcnt(0)")
    A(f"  v_cmp_ne_u32 vcc, s46, v{H+3}")
    A("  s_sub_u32 s50, s50, 1"); A("  s_cbranch_scc1 L_wgo2")
    A("  s_cmp_eq_u64 vcc, 0"); A("  s_cbranch_scc1 L_wgo2")
    A("  s_sleep 16"); A("  s_branch L_wg")
    A("L_wgo2:")
    def red32(op, t, u):
        for sh in (1, 2, 4, 8):
            A("  s_nop 1"); A(f"  {op}_dpp v{t}, v{t}, v{t} row_ror:{sh} row_mask:0xf bank_mask:0xf")
        A(f"  v_mov_b32 v{u}, v{t}"); A("  s_nop 1"); A(f"  v_permlane16_swap_b32 v{t}, v{u}"); A("  s_nop 0"); A(f"  {op} v{t}, v{t}, v{u}")
    A(f"  v_mov_b32 v{H+4}, v{H}")
    red32("v_max_f32", H+4, H+5)
    A(f"  v_sub_f32 v{H}, v{H}, v{H+4}"); A(f"  v_exp_f32 v{H}, v{H}"); A("  s_nop 0")
    A(f"  v_mul_f32 v{H+4}, v{H}, v{H+1}")
    red32("v_add_f32", H+4, H+5)
    A(f"  v_rcp_f32 v{H+4}, v{H+4}")
    A(f"  v_and_b32 v{vT1}, 7, v{vLane}"); A(f"  v_lshlrev_b32 v{vT1}, 4, v{vT1}"); A(f"  v_lshl_add_u32 v{vT1}, v{vT2}, 2, v{vT1}")
    A(f"  v_and_b32 v{vT2}, 24, v{vLane}"); A(f"  v_lshrrev_b32 v{vT2}, 1, v{vT2}"); A(f"  v_add_u32 v{vT1}, v{vT1}, v{vT2}")
    A(f"  v_mul_f32 v{H}, v{H}, v{H+4}"); A(f"  v_mov_b32 v{H+1}, 1")
    A(f"  ds_write_b32 v{vT1}, v{H} offset:{L_W}"); A(f"  ds_write_b32 v{vZero}, v{H+1} offset:{L_CTL+8}")
    A(f"  s_mov_b32 s44, {t_f}"); A("  s_branch L_pace")
    A("L_flush:")
    stamp("h", "flush0")
    if rstmode: A(f"  v_mov_b32 v{H+6}, 1"); A(f"  ds_write_b32 v{vCa}, v{H+6} offset:{L_CTL+32}")
    A("  s_mov_b32 s29, 1")
    A("L_fl:")
    A("  s_cmp_ge_u32 s30, 8"); A("  s_cselect_b32 s48, 16, 8"); A("  s_add_u32 s48, s48, s30"); A("  s_lshl_b32 s48, s48, 3"); A("  s_add_u32 s48, s48, 5")
    A("  s_cmp_eq_u32 s29, 1"); A("  s_cbranch_scc1 L_fl1")
    A("  s_cmp_lt_u32 s20, s48"); A("  s_cbranch_scc1 L_pace")
    A("  s_sub_u32 s27, s27, 1"); A("  s_cbranch_scc1 L_pace")
    A("L_fl1:")
    A(f"  ds_read_b128 v[{H+28}:{H+31}], v{vMLa}")
    A("L_flw:")
    A(f"  ds_read_b128 v[{H}:{H+3}], v{vZero} offset:{L_CTL+16}"); A("  s_waitcnt lgkmcnt(0)")
    A(f"  v_min3_u32 v{H+4}, v{H}, v{H+1}, v{H+2}"); A(f"  v_min_u32 v{H+4}, v{H+4}, v{H+3}"); A("  s_nop 0")
    A(f"  v_readfirstlane_b32 s20, v{H+4}")
    A("  s_cmp_lt_u32 s20, s48"); A("  s_cbranch_scc1 L_flw")
    for k in range(12): A(f"  ds_read2st64_b32 v[{H+2*k}:{H+2*k+1}], v{vDa} offset0:{2*k} offset1:{2*k+1}")
    for w in range(4):
        A(f"  s_waitcnt lgkmcnt({9-3*w})")
        for t in range(3): A(f"  v_add_f32 v{H+6*w+t}, v{H+6*w+t}, v{H+6*w+3+t}")
        for t in range(3):
            A(f"  v_mul_f32 v{H+32+t}, v{H+28}, v{H+t}" if w == 0 else f"  v_fmac_f32 v{H+32+t}, v{H+28+w}, v{H+6*w+t}")
    if loc and not usepure:
        A("  s_cmp_lg_u32 s30, 15"); A("  s_cbranch_scc1 L_flg")
        A("  s_lshl_b32 s48, s3, 5"); A("  s_add_u32 s48, s48, s4"); A("  s_lshl_b32 s48, s48, 10"); A(f"  s_add_u32 s48, s48, {W_OL}")
        A(f"  buffer_store_dwordx4 v[{H+32}:{H+35}], v{vT3}, s[36:39], s48 offen")
        A("L_flg:")
    if pack:
        A(f"  v_cvt_pk_bf16_f32 v{H+32}, v{H+32}, v{H+33}"); A(f"  v_cvt_pk_bf16_f32 v{H+33}, v{H+34}, v{H+34}")
        A(f"  v_and_or_b32 v{H+33}, v{H+33}, s33, v{vMode}")
        pub(f"  buffer_store_dwordx2 v[{H+32}:{H+33}], v{vT0}, s[36:39], s58 offen", "L_po")
    else:
        pub(f"  buffer_store_dwordx4 v[{H+32}:{H+35}], v{vT3}, s[36:39], s58 offen", "L_po")
    A(f"  v_add_u32 v{vDa}, 6144, v{vDa}"); A(f"  v_add_u32 v{vMLa}, 16, v{vMLa}")
    A(f"  s_add_u32 s58, s58, {0 if fake else 32*OS}"); A("  s_add_u32 s30, s30, 1"); A("  s_cmp_lt_u32 s30, 16"); A("  s_cbranch_scc1 L_fl")
    if wb == 1:
        A("  s_cmp_lg_u32 s4, 31"); A("  s_cbranch_scc1 L_nowb"); A("  buffer_wbl2 sc1"); A("L_nowb:")
    stamp("h", "flushed")
    if fuse:
        A("  s_load_dwordx2 s[12:13], s[0:1], 80")
        A("  s_and_b32 s20, s2, 3"); A("  s_lshr_b32 s21, s2, 2")
        A(f"  v_lshrrev_b32 v{vPa}, 2, v{vLane}"); A(f"  v_and_b32 v{vQa}, 3, v{vLane}")
        A(f"  v_mul_u32_u24 v{vPa}, {YS}, v{vPa}"); A(f"  v_lshl_add_u32 v{vPa}, v{vQa}, 4, v{vPa}"); A(f"  v_lshlrev_b32 v{vQa}, 3, v{vQa}")
        A(f"  s_mul_i32 s27, s20, {128*YS}"); A("  s_lshl_b32 s22, s21, 6"); A("  s_add_u32 s27, s27, s22")
        for k in range(1, 8): A(f"  s_add_u32 s{27+k}, s27, {16*k*YS}")
        A("  s_and_b32 s22, s20, 1"); A("  s_mul_i32 s22, s22, 2560"); A("  s_lshr_b32 s23, s20, 1"); A("  s_mul_i32 s23, s23, 1280")
        A("  s_add_u32 s22, s22, s23"); A("  s_lshl_b32 s23, s21, 5"); A("  s_add_u32 s22, s22, s23")
        A("  s_mov_b32 s14, 5120"); A("  s_mov_b32 s15, 0x20000")
        A("  s_mov_b32 s24, 0x0c0c0400"); A("  s_mov_b32 s25, 0x04000c0c"); A("  s_mov_b32 s26, 0xffffff00")
        for k in range(8): A(f"  s_mov_b64 s[{64+2*k}:{65+2*k}], -1")
    A("  s_branch L_yred")
    if fuse:
        A("L_final:")
        stamp("h", "final0", 2)
        if stamps in (1, 2): A(f"  s_memrealtime s[{84+2*len(names['h'])}:{85+2*len(names['h'])}]"); A("  s_waitcnt lgkmcnt(0)")
        if wb == 2:
            A(f"  s_cmp_lt_u32 s4, {wbj}"); A("  s_cbranch_scc1 L_nowb"); A("  buffer_wbl2 sc1"); A("  s_waitcnt vmcnt(0)"); A("L_nowb:")
        A(f"  s_cmp_ge_u32 s2, 160"); A(f"  s_cbranch_scc1 {'L_hst' if stamps else 'L_end'}")
        A(f"  s_mov_b32 s50, {SPIN}")
        if fslp0: A(f"  s_sleep {fslp0}")
        A(";HOP -")
        A("L_fin:")
        if fslp: A(f"  s_sleep {fslp}")
        for k in range(8):
            A(f"  s_mov_b64 exec, s[{64+2*k}:{65+2*k}]"); A(f"  s_cbranch_execz L_fin{k}")
            A(f"  buffer_load_dwordx4 v[{H+4*k}:{H+4*k+3}], v{vPa}, s[36:39], s{27+k} offen sc1")
            A(f"L_fin{k}:")
        A("  s_mov_b64 exec, -1")
        A(";HOP t")
        A("  s_waitcnt vmcnt(0)")
        for k in range(8):
            A(f"  v_perm_b32 v{vS}, v{H+4*k+1}, v{H+4*k}, s24"); A(f"  v_perm_b32 v{vS+1}, v{H+4*k+3}, v{H+4*k+2}, s25")
            A(f"  v_or_b32 v{vS}, v{vS}, v{vS+1}"); A(f"  v_cmp_ne_u32 s[{64+2*k}:{65+2*k}], s46, v{vS}")
        A("  s_or_b64 s[48:49], s[64:65], s[66:67]")
        for k in range(2, 8): A(f"  s_or_b64 s[48:49], s[48:49], s[{64+2*k}:{65+2*k}]")
        A("  s_sub_u32 s50, s50, 1"); A("  s_cbranch_scc1 L_fgo")
        A("  s_cmp_eq_u64 s[48:49], 0"); A("  s_cbranch_scc0 L_fin")
        A("L_fgo:")
        stamp("h", "ygot")
        for i in range(32): A(f"  v_and_b32 v{H+i}, s26, v{H+i}")
        for st in (16, 8, 4):
            for i in range(st): A(f"  v_add_f32 v{H+i}, v{H+i}, v{H+st+i}")
        for sh in (4, 8):
            for r in range(4): A(f"  v_add_f32_dpp v{H+r}, v{H+r}, v{H+r} row_ror:{sh} row_mask:0xf bank_mask:0xf")
        for sw in ("v_permlane32_swap_b32", "v_permlane16_swap_b32"):
            for r in range(4): A(f"  v_mov_b32 v{H+4+r}, v{H+r}")
            for r in range(4): A(f"  {sw} v{H+r}, v{H+4+r}")
            for r in range(4): A(f"  v_add_f32 v{H+r}, v{H+r}, v{H+4+r}")
        A(f"  v_cvt_pk_bf16_f32 v{H}, v{H}, v{H+1}"); A(f"  v_cvt_pk_bf16_f32 v{H+1}, v{H+2}, v{H+3}")
        A("  s_mov_b64 exec, 15")
        A(f"  buffer_store_dwordx2 v[{H}:{H+1}], v{vQa}, s[12:15], s22 offen")
        A(";HOP -")
        if not stamps: A("  s_endpgm")
    if stamps:
        A("L_hst:")
        A("  s_waitcnt vmcnt(0)")
        stamp("h", "hend")
        dump_stamps("h", 1)
        A("  s_endpgm")
        sn = names["s"]; hn = names["h"]
        L.insert(2, "; stamps: start id " + " ".join((sn[1:] + ["id"] * 6)[:6]) + " " + " ".join((hn + ["id"] * 8)[:7]) + " last")
    n_k2 = len(L)
    A(f".globl {K2}"); A(".p2align 8"); A(f".type {K2},@function"); A(f"{K2}:")
    A("  s_cmp_ge_u32 s2, 160"); A("  s_cbranch_scc1 L2_end")
    A("  s_load_dwordx2 s[4:5], s[0:1], 96"); A("  s_load_dwordx2 s[8:9], s[0:1], 80")
    A("  s_and_b32 s3, s2, 3              ; pb"); A("  s_lshr_b32 s12, s2, 2")
    A("  v_lshrrev_b32 v1, 2, v0"); A("  v_and_b32 v2, 3, v0")
    A("  v_mul_u32_u24 v3, 5120, v1"); A("  v_lshl_add_u32 v3, v2, 4, v3")
    A("  s_mul_i32 s13, s3, 327680"); A("  s_lshl_b32 s14, s12, 6"); A("  s_add_u32 s13, s13, s14")
    A("  s_add_u32 s17, s13, 81920"); A("  s_add_u32 s18, s13, 163840"); A("  s_add_u32 s19, s13, 245760")
    A(f"  s_mov_b32 s6, {WS}"); A("  s_mov_b32 s7, 0x20000"); A("  s_mov_b32 s10, 5120"); A("  s_mov_b32 s11, 0x20000")
    A("  s_and_b32 s15, s3, 1"); A("  s_mul_i32 s15, s15, 2560"); A("  s_lshr_b32 s16, s3, 1"); A("  s_mul_i32 s16, s16, 1280")
    A("  s_add_u32 s15, s15, s16"); A("  s_lshl_b32 s16, s12, 5"); A("  s_add_u32 s15, s15, s16")
    A("  v_lshlrev_b32 v6, 3, v2")
    A("  s_waitcnt lgkmcnt(0)")
    for k in range(8):
        A(f"  buffer_load_dwordx4 v[{8+4*k}:{11+4*k}], v3, s[4:7], s{(13,17,18,19)[k//2]} offen offset:{2560*(k%2)}")
    for k in range(1, 8):
        A(f"  s_waitcnt vmcnt({7-k})")
        for r in range(4): A(f"  v_add_f32 v{8+r}, v{8+r}, v{8+4*k+r}")
    for sh in (4, 8):
        for r in range(4): A(f"  v_add_f32_dpp v{8+r}, v{8+r}, v{8+r} row_ror:{sh} row_mask:0xf bank_mask:0xf")
    for sw in ("v_permlane32_swap_b32", "v_permlane16_swap_b32"):
        for r in range(4): A(f"  v_mov_b32 v{12+r}, v{8+r}")
        for r in range(4): A(f"  {sw} v{8+r}, v{12+r}")
        for r in range(4): A(f"  v_add_f32 v{8+r}, v{8+r}, v{12+r}")
    A("  v_cvt_pk_bf16_f32 v8, v8, v9"); A("  v_cvt_pk_bf16_f32 v9, v10, v11")
    A("  s_mov_b64 exec, 15")
    A("  buffer_store_dwordx2 v[8:9], v6, s[8:11], s15 offen")
    A("L2_end:"); A("  s_endpgm")
    if fuse: del L[n_k2:]
    import re
    def isize(l):
        op = l.split()[0]
        lit = any(not (-16 <= int(t, 0) <= 64) for t in re.findall(r"(?<![\w\[:])(-?(?:0x[0-9a-f]+|\d+))(?![\w\]:])", " ".join(l.split(";")[0].split()[1:])))
        if op in ("s_waitcnt", "s_nop", "s_barrier", "s_sleep", "s_branch", "s_endpgm") or op.startswith("s_cbranch"): return 4
        if op.startswith("s_load") or op.startswith("s_mem"): return 8
        if op.startswith("s_"): return 8 if lit else 4
        return 8
    chains = {"t": warm >= 1, "k": warm >= 2}
    cnt = {"t": 0, "k": 0}
    out = []; cur = None; acc = 0
    for l in L:
        if l.startswith(";HOP"):
            c = l.split()[1]; cur = c if chains.get(c) else None; acc = hopb
            continue
        if cur and l.startswith("  "):
            if acc >= hopb:
                out.append(f"L_hop_{cur}_{cnt[cur]}:"); out.append(f"  s_cbranch_execz L_hop_{cur}_{cnt[cur]+1}"); cnt[cur] += 1; acc = 4
            acc += isize(l)
        out.append(l)
    for c in chains:
        if chains[c]:
            out.append(f"L_hop_{c}_{cnt[c]}:"); out.append("  s_mov_b64 exec, -1"); out.append(f"  s_branch L_back_{c}")
    L[:] = out
    A('.section .rodata,"a"')
    for kn, nv, acc, ns in ((KN, ACC + NA, ACC, 102), (K2, 40, 40, 24))[:1 if fuse else 2]:
        A(".p2align 6"); A(f".amdhsa_kernel {kn}")
        A(f"  .amdhsa_next_free_vgpr {nv}"); A(f"  .amdhsa_next_free_sgpr {ns}"); A(f"  .amdhsa_accum_offset {acc}")
        A("  .amdhsa_group_segment_fixed_size 0"); A("  .amdhsa_kernarg_size 104"); A("  .amdhsa_user_sgpr_count 2")
        A("  .amdhsa_user_sgpr_kernarg_segment_ptr 1"); A("  .amdhsa_system_sgpr_workgroup_id_x 1")
        A(".end_amdhsa_kernel")
    open(name, "w").write("\n".join(L) + "\n")
    return name
if __name__ == "__main__":
    if len(sys.argv) > 2:
        hdr = open("concat_heads__gqa_block_cached__mha_block_cached__decode.s.ref").read().split("; Override launch")[0]
        print(gen(name=sys.argv[2], header=hdr, **eval(sys.argv[1])))
    else:
        print(" ".join(gen(**kw) for kw in eval(sys.argv[1])))
```

```python
import sys, math, struct
KN = "concat_heads__gqa_block_cached__mha_block_cached__decode_kernel"
K2 = "final_reduce_kernel"
WS = 836768768
KVBYTES = 201326592
WBYTES = 7864320
def f32hex(x): return "0x%08x" % struct.unpack("<I", struct.pack("<f", x))[0]

def gen(name="z.s", header="", stamps=0, lo=3, mid=4, hi=5, d0=5, dl=5, pace=2, slp=32, ta=260, tb=-40, lper=8, kap=205,
        t_ml=193, t_w=212, t_f=241, wqpol="nt", wopol="nt", nok2=False, mode0=2, SPIN=200000, nslp=8, curve=False, dry=False, wqd=7, nslp0=16, rot=0, loc=True, nloc=24, fuse=True, fslp=0, dbg=False, nfl=2, usepure=True, t_q=16, wb=0, rstmode=False, pack=True, wbj=31, pw=True, gpos=11, YS=2688, OS=640, fslp0=20, gcrit=False, sstep=3, tmap=0, fake=0, ne=0, early=False, warm=0, hopb=56, dn=3, ej=28, dec=3, pp=2, pstag=8, self_=True, sa=-340, sb=0, lv=None, lev=(6, 150, 15, -200), sj=1, ysp="sc1", ylp="sc1", pretouch=0):
    L = []; A = L.append
    L_CTL = 0
    L_W = 64
    L_E = L_W + 256
    L_ML = L_E + 256
    L_Q = L_ML + 512
    L_P = L_Q + 17 * 384
    PROW = 272; PWAVE = 8 * PROW
    L_Y = L_P + 4 * PWAVE + 64
    L_O = L_Y + 20480
    LDS = L_O + 16 * 6144
    assert L_Y % 16 == 0 and L_O % 16 == 0 and L_Q % 16 == 0 and L_P % 16 == 0
    W_Y = 0
    W_O = 2 << 20
    W_Q = 6 << 20
    W_ML = W_Q + (128 << 10)
    W_B = W_ML + (128 << 10)
    W_G = W_B + (128 << 10)
    QLOC = 512 << 10
    W_OL = 7 << 20
    vLane, vKV, vW, vZero = 1, 2, 3, 4
    vT0, vT1, vT2, vT3 = 5, 6, 7, 8
    vPa, vQa, vDa, vMLa, vCa, vProg, vMode = 9, 10, 11, 12, 13, 14, 15
    vM = 16; vB = 20; vQ = 28; vS = 40; vD = 48; vRing = 68
    vX = vQ
    NV = vRing + 96
    if curve: vCv = NV; NV += 2
    ACC = (NV + 3) // 4 * 4
    NA = 80
    def ring(s, t): return vRing + 12 * s + 4 * t
    names = {"s": [], "h": []}
    def stamp(who, nm, level=1):
        skip = {1: (), 2: ("preB1", "ring", "B2", "end", "nonce", "qtab"), 3: ("flush0", "flushed", "ygot"), 4: ("ring", "B2", "vend", "gath", "end", "ygot")}.get(stamps, ())
        if stamps == level or (stamps and level == 1 and nm not in skip):
            k = len(names[who]); assert k < 8, nm
            names[who].append(nm)
            A(f"  s_memrealtime s[{84+2*k}:{85+2*k}]")
    def dump_stamps(who, rec):
        n = len(names[who])
        if dbg:
            A("  s_waitcnt vmcnt(0) lgkmcnt(0)")
            A("  s_mov_b32 s64, s40"); A("  s_mov_b32 s65, s41"); A("  s_mov_b32 s66, 256"); A("  s_mov_b32 s67, 0x20000")
            A("  s_mov_b64 exec, 1")
            for k in range(n):
                A(f"  s_sub_u32 s47, s{84+2*k}, s46"); A("  s_add_u32 s47, s47, 100"); A(f"  v_mov_b32 v{vRing+k}, s47")
                A(f"  buffer_atomic_umax v{vRing+k}, v{vZero}, s[64:67], 0 offen offset:{4*(1 + k + (7 if who == 'h' else 0))}")
            return
        A("  s_getreg_b32 s100, hwreg(HW_REG_XCC_ID)"); A("  s_getreg_b32 s101, hwreg(HW_REG_HW_ID)")
        A("  s_waitcnt vmcnt(0) lgkmcnt(0)")
        A(f"  s_lshl_b32 s47, s2, 7"); A(f"  s_add_u32 s47, s47, {WS - (1<<20) + 64*rec}")
        if who == "s": regs = [84, 85, 100, 101] + sum([[84+2*min(k, n-1), 85+2*min(k, n-1)] for k in range(1, 7)], [])
        else: regs = sum([[84+2*min(k, n-1), 85+2*min(k, n-1)] for k in range(8)], [])
        A("  s_mov_b64 exec, 1")
        for i in range(16): A(f"  v_mov_b32 v{vRing+i}, s{regs[i]}")
        for i in range(4): A(f"  buffer_store_dwordx4 v[{vRing+4*i}:{vRing+4*i+3}], v{vZero}, s[36:39], s47 offen offset:{16*i}")

    assert fuse or YS == 2560
    if fuse:
        A(header + f"; @launch grid=(256,1,1) block=(320,1,1) lds={LDS}"); A("; single launch")
    else:
        A(header + f"; @launch kernel={KN} grid=(256,1,1) block=(320,1,1) lds={LDS}")
        A(f"; @launch kernel={K2} grid=(160,1,1) block=(64,1,1) lds=0" if not nok2 else "; (second launch disabled)")
    A('.amdgcn_target "amdgcn-amd-amdhsa--gfx950"')
    A(".text"); A(f".globl {KN}"); A(".p2align 8"); A(f".type {KN},@function"); A(f"{KN}:")
    A("  s_cmp_ge_u32 s2, 256"); A("  s_cbranch_scc1 L_end")
    A("  s_load_dwordx16 s[64:79], s[0:1], 0")
    A("  s_load_dwordx4 s[80:83], s[0:1], 64")
    A("  s_load_dwordx4 s[40:43], s[0:1], 88")
    if curve: A("  s_memrealtime s[96:97]"); A(f"  v_mov_b32 v{vCv}, 0"); A(f"  v_mov_b32 v{vCv+1}, 0")
    stamp("s", "start"); names["h"] = ["hstart"] if stamps else []
    A("  s_and_b32 s3, s2, 7             ; x"); A("  s_lshr_b32 s4, s2, 3            ; j")
    A(f"  v_lshrrev_b32 v{vT0}, 6, v0"); A(f"  v_and_b32 v{vLane}, 63, v0")
    A(f"  v_readfirstlane_b32 s5, v{vT0}     ; wave")
    A(f"  v_mov_b32 v{vZero}, 0")
    A(f"  v_lshrrev_b32 v{vT1}, 3, v{vLane}    ; l/8"); A(f"  v_and_b32 v{vT2}, 7, v{vLane}        ; l%8")
    A(f"  s_mov_b32 s38, {WS}"); A("  s_mov_b32 s39, 0x20000")
    A("  s_cmp_lg_u32 s5, 4"); A("  s_cbranch_scc1 L_stream")
    A("  s_memrealtime s[48:49]")
    A("  s_mov_b32 s10, 256"); A("  s_mov_b32 s11, 0x20000")
    A("  s_waitcnt lgkmcnt(0)")
    A("  s_mov_b32 s8, s40"); A("  s_mov_b32 s9, s41")
    A("  s_or_b32 s46, s48, 1")
    if not dbg: A("  s_mul_i32 s46, s46, 0x9e3779b1")
    A("  s_cmp_lg_u32 s2, 0"); A("  s_cbranch_scc1 L_helper")
    A(f"  v_mov_b32 v{vT0}, s46"); A("  s_mov_b64 exec, 1")
    A(f"  buffer_store_dword v{vT0}, v{vZero}, s[8:11], 0 offen sc1")
    A("  s_mov_b64 exec, -1"); A("  s_branch L_helper")
    A("L_stream:")
    A(f"  v_lshlrev_b32 v{vT3}, 4, v{vT2}")
    A(f"  v_mul_u32_u24 v{vKV}, 384, v{vT1}"); A(f"  v_add_u32 v{vKV}, v{vKV}, v{vT3}")
    A(f"  v_mul_u32_u24 v{vW}, {20*12288}, v{vT1}"); A(f"  v_add_u32 v{vW}, v{vW}, v{vT3}")
    A(f"  v_mul_u32_u24 v{vT0}, 40, v{vT1}")
    if tmap == 0: A("  s_lshl_b32 s13, s4, 2"); A("  s_add_u32 s13, s13, s5")
    elif tmap == 1: A("  s_lshl_b32 s13, s5, 5"); A("  s_add_u32 s13, s13, s4")
    else:
        A("  s_lshr_b32 s13, s5, 1"); A("  s_lshl_b32 s13, s13, 5"); A("  s_add_u32 s13, s13, s4"); A("  s_lshl_b32 s13, s13, 1"); A("  s_and_b32 s47, s5, 1"); A("  s_add_u32 s13, s13, s47")
    A("  s_mul_i32 s13, s13, 3072")
    A("  s_mul_i32 s47, s3, 3145728"); A("  s_add_u32 s12, s13, s47")
    A("  s_mul_i32 s47, s4, 171"); A("  s_lshr_b32 s47, s47, 9          ; sigma")
    A("  s_mul_i32 s48, s47, 3"); A("  s_sub_u32 s48, s4, s48          ; c")
    A("  s_and_b32 s49, s47, 3"); A("  s_lshl_b32 s49, s49, 3"); A(f"  s_mul_i32 s47, s47, {rot}"); A("  s_add_u32 s47, s47, s3"); A("  s_and_b32 s47, s47, 7"); A("  s_add_u32 s49, s49, s47         ; h")
    A("  s_mul_i32 s49, s49, 384"); A("  s_lshl_b32 s48, s48, 7"); A("  s_add_u32 s28, s49, s48")
    A(f"  s_mul_i32 s48, s5, {160*12288}"); A("  s_add_u32 s28, s28, s48")
    A("  s_mul_i32 s29, s5, 320")
    A(f"  s_mov_b32 s10, {KVBYTES}"); A("  s_mov_b32 s11, 0x20000")
    A(f"  s_mov_b32 s26, {WBYTES}"); A("  s_mov_b32 s27, 0x20000")
    A("  s_mov_b32 s34, 2560"); A("  s_mov_b32 s35, 0x20000")
    stamp("s", "prek", 4)
    A("  s_cmp_ge_u32 s4, 12")
    A("  s_waitcnt lgkmcnt(0)")
    stamp("s", "kwait", 4)
    A("  s_cselect_b32 s24, s80, s70"); A("  s_cselect_b32 s25, s81, s71")
    A("  s_cselect_b32 s32, s74, s64"); A("  s_cselect_b32 s33, s75, s65")
    A("  s_mov_b32 s8, s66"); A("  s_mov_b32 s9, s67")
    HEADJ = 393216 + 7 * 3145728
    def kv_load(n):
        s, t = divmod(n, 3)
        A(f"  buffer_load_dwordx4 v[{ring(s,t)}:{ring(s,t)+3}], v{vKV}, s[8:11], s12 offen offset:{128*t} nt")
        if t == 2 and s < 7:
            d = ((s + 1) * sstep % 8 - s * sstep % 8) * 393216
            A(f"  s_add_u32 s12, s12, {d}" if d > 0 else f"  s_sub_u32 s12, s12, {-d}")
    def consts():
        A(f"  v_and_b32 v{vT0}, 1, v{vT2}"); A(f"  v_lshlrev_b32 v{vT0}, 4, v{vT0}")
        A(f"  v_mov_b32 v{vT3}, 0xffff"); A(f"  v_lshlrev_b32 v{vT0}, v{vT0}, v{vT3}")
        A(f"  v_lshrrev_b32 v{vT3}, 1, v{vT2}")
        for q in range(4):
            A(f"  v_cmp_eq_u32 vcc, {q}, v{vT3}"); A("  s_nop 1"); A(f"  v_cndmask_b32 v{vM+q}, 0, v{vT0}, vcc")
        A("  s_mov_b32 s54, 0x00ff00ff"); A("  s_mov_b32 s55, 0xff00ff00")
    A("  s_cmp_ge_u32 s4, 24"); A("  s_cbranch_scc1 L_noq")
    for b in range(2):
        A(f"  buffer_load_dwordx4 v[{vX+10*b}:{vX+10*b+3}], v{vT0}, s[32:35], s29 offen offset:{1280*b}")
        A(f"  buffer_load_dwordx4 v[{vX+10*b+4}:{vX+10*b+7}], v{vT0}, s[32:35], s29 offen offset:{1280*b+16}")
        A(f"  buffer_load_dwordx2 v[{vX+10*b+8}:{vX+10*b+9}], v{vT0}, s[32:35], s29 offen offset:{1280*b+32}")
    def wq_load(i):
        A(f"  buffer_load_dwordx4 a[{4*i}:{4*i+3}], v{vW}, s[24:27], s28 offen {wqpol}")
        if i < 19: A("  s_add_u32 s28, s28, 12288")
    nq = wqd or 20
    for i in range(nq): wq_load(i)
    stamp("s", "iss", 4)
    consts()
    A("  s_mov_b32 s52, 0x01000100"); A("  s_mov_b32 s53, 0x03020302")
    nk = 0
    for i in range(20):
        A(f"  s_waitcnt vmcnt({nq - 1 - i + nk})")
        if i in (0, 10): stamp("s", f"d{i}", 4)
        if nq < 20: wq_load(nq); nq += 1
        else:
            while (19 - i + nk) < d0: kv_load(nk); nk += 1
        for b in range(2):
            A(f"  v_perm_b32 v{vT0}, v{vX+10*b+i//2}, v{vX+10*b+i//2}, s{52+(i&1)}")
            for q in range(4): A(f"  v_and_b32 v{vB+4*b+q}, v{vT0}, v{vM+q}")
        for b in range(2):
            if b == 1: A("  s_nop 0")
            c = f"v[{vD+4*b}:{vD+4*b+3}]" if i else "0"
            A(f"  v_mfma_f32_16x16x32_bf16 v[{vD+4*b}:{vD+4*b+3}], v[{vB+4*b}:{vB+4*b+3}], a[{4*i}:{4*i+3}], {c}")
    assert nk == d0
    A(f"  v_lshrrev_b32 v{vT0}, 5, v{vLane}"); A(f"  v_lshlrev_b32 v{vT0}, 9, v{vT0}")
    A(f"  v_lshl_add_u32 v{vT0}, v{vT2}, 5, v{vT0}")
    A(f"  v_and_b32 v{vT3}, 16, v{vLane}"); A(f"  v_add_u32 v{vT0}, v{vT0}, v{vT3}")
    A("  s_lshl_b32 s47, s5, 10"); A(f"  v_add_u32 v{vT0}, s47, v{vT0}")
    A("  s_nop 0")
    A("  s_mov_b64 exec, s[54:55]")
    for b in range(2): A(f"  ds_write_b128 v{vT0}, v[{vD+4*b}:{vD+4*b+3}] offset:{L_Y + 256*b}")
    A("  s_mov_b64 exec, -1")
    stamp("s", "preB1")
    A("  s_waitcnt lgkmcnt(0)"); A("  s_barrier                       ; B1: q partials")
    A("  s_branch L_qdone")
    A("L_noq:")
    for n in range(dn or d0): kv_load(n)
    consts()
    for n in range(dn or d0, d0):
        A(f"  s_waitcnt vmcnt({dn-1})"); kv_load(n)
    if stamps in (1, 3): A("  s_memrealtime s[86:87]")
    A("L_qdone:")
    rest = []
    R = rest.append
    R([f"  s_mul_i32 s47, s5, {PWAVE}", f"  s_add_u32 s47, s47, {L_P}", f"  v_mul_u32_u24 v{vPa}, {PROW}, v{vT1}", f"  v_add_u32 v{vPa}, s47, v{vPa}"])
    R([f"  v_lshlrev_b32 v{vQa}, 4, v{vT2}", f"  s_lshl_b32 s47, s5, 3", f"  v_mov_b32 v{vMLa}, s47", f"  s_lshl_b32 s47, s5, 2", f"  v_mov_b32 v{vCa}, s47", f"  v_mov_b32 v{vProg}, 0"])
    R([f"  v_lshrrev_b32 v{vDa}, 5, v{vLane}", f"  v_mul_u32_u24 v{vDa}, 768, v{vDa}", f"  v_lshl_add_u32 v{vDa}, v{vT2}, 5, v{vDa}",
       f"  v_and_b32 v{vT3}, 16, v{vLane}", f"  v_add_u32 v{vDa}, v{vDa}, v{vT3}", "  s_mul_i32 s47, s5, 1536", f"  s_add_u32 s47, s47, {L_O}", f"  v_add_u32 v{vDa}, s47, v{vDa}"])
    R(["  s_mov_b32 s16, s68", "  s_mov_b32 s17, s69", "  s_mov_b32 s18, s76", "  s_mov_b32 s19, s77", "  s_mov_b32 s20, s78", "  s_mov_b32 s21, s79"])
    R(["  s_cmp_ge_u32 s4, 16", "  s_cselect_b32 s24, s82, s72", "  s_cselect_b32 s25, s83, s73", "  s_mov_b32 s36, s42", "  s_mov_b32 s37, s43"])
    R(["  s_lshr_b32 s47, s4, 2", f"  s_mul_i32 s49, s47, {rot}", "  s_add_u32 s49, s49, s3", "  s_and_b32 s49, s49, 7", "  s_and_b32 s47, s47, 3", "  s_lshl_b32 s48, s47, 3", "  s_add_u32 s48, s48, s49", "  s_mul_i32 s48, s48, 192",
       "  s_and_b32 s49, s4, 3", "  s_lshl_b32 s49, s49, 2", "  s_add_u32 s49, s49, s5", "  s_lshl_b32 s49, s49, 2      ; 16qd+4w",
       "  s_add_u32 s28, s48, s49", "  s_mul_i32 s28, s28, 1280"])
    pk = 1 if pack else 0
    assert not (pack and loc and not usepure)
    R(["  s_lshr_b32 s48, s4, 4", "  s_lshl_b32 s48, s48, 3", "  s_add_u32 s48, s48, s47", f"  s_mul_i32 s48, s48, {0 if fake else 32*OS}", "  s_lshl_b32 s49, s49, 3", "  s_add_u32 s48, s48, s49",
       f"  s_mul_i32 s49, s3, {512*OS}", "  s_add_u32 s48, s48, s49", f"  s_add_u32 s60, s48, {W_O}", f"  s_add_u32 s61, s60, {8*OS}", f"  s_add_u32 s62, s60, {16*OS}", f"  s_add_u32 s63, s60, {24*OS}"])
    R([f"  v_lshrrev_b32 v{vT0}, 4, v{vLane}", f"  v_mul_u32_u24 v{vW}, 1280, v{vT0}", f"  v_and_b32 v{vT3}, 15, v{vLane}", f"  v_lshl_add_u32 v{vW}, v{vT3}, 4, v{vW}"])
    R([f"  s_mov_b32 s58, {f32hex(192 ** -0.5 * math.log2(math.e))}", "  s_mov_b32 s44, 0", f"  s_mov_b32 s45, {(lev[-2] + 1 if mode0 == 2 else lev[-2]) if self_ else mode0}", "  s_mov_b32 s30, 0"])
    if dn:
        A("  s_cmp_ge_u32 s4, 24"); A("  s_cselect_b64 vcc, -1, 0")
        if early: A(f"  s_cmp_ge_u32 s4, {ej}"); A("  s_cselect_b64 vcc, 0, vcc")
    for n in range(d0, 24):
        A(f"  s_waitcnt vmcnt({d0-1})")
        if dn: A(f"  s_cbranch_vccz L_rf{n}"); A(f"  s_waitcnt vmcnt({dn-1})"); A(f"L_rf{n}:")
        kv_load(n)
        if rest:
            for x in rest.pop(0): A(x)
    assert not rest
    def wo_load(i, wait):
        tp, c = divmod(i, 5)
        if wait is not None: A(f"  s_waitcnt vmcnt({wait})")
        A(f"  buffer_load_dwordx4 a[{4*i}:{4*i+3}], v{vW}, s[24:27], s28 offen offset:{256*c} {wopol}")
        if c == 4 and tp < 2: A("  s_add_u32 s28, s28, 81920")
    for i in range(ne): wo_load(i, d0 - 1)
    if early:
        A(f"  s_cmp_lt_u32 s4, {ej}"); A("  s_cbranch_scc1 L_noearly")
        for i in range(ne, 15): wo_load(i, d0 - 1)
        A("L_noearly:")
    stamp("s", "ring")
    A("  s_barrier")
    for t in range(3): A(f"  ds_read_b128 v[{vQ+4*t}:{vQ+4*t+3}], v{vQa} offset:{L_Q + 128*t}")
    stamp("s", "B2")
    A("  s_waitcnt lgkmcnt(0)")
    def throttle(tag, lo=lo, mid=mid, hi=hi, sa=sa, sb=sb):
        if lev and self_ and pace and not tag.startswith("L_wt"):
            A(f"  s_waitcnt vmcnt({lev[0]})")
            for k, th in enumerate(lev[1:]):
                A(f"  s_cmpk_gt_i32 s45, {th & 0xffff:#x}"); A(f"  s_cbranch_scc1 {tag}"); A(f"  s_waitcnt vmcnt({lev[0]-1-k})")
            A(f"{tag}:"); return
        A(f"  s_waitcnt vmcnt({hi})")
        if pace:
            A(f"  s_cmpk_gt_i32 s45, {sb & 0xffff:#x}" if self_ else "  s_cmp_eq_u32 s45, 2"); A(f"  s_cbranch_scc1 {tag}")
        A(f"  s_waitcnt vmcnt({mid})")
        if pace and lo != mid:
            A(f"  s_cmpk_gt_i32 s45, {sa & 0xffff:#x}" if self_ else "  s_cmp_eq_u32 s45, 1"); A(f"  s_cbranch_scc1 {tag}")
            A(f"  s_waitcnt vmcnt({lo})")
        A(f"{tag}:")
    def switch(tag):
        A("  s_add_u32 s47, s44, 1"); A("  s_lshr_b32 s48, s47, 4"); A("  s_lshl_b32 s48, s48, 2"); A("  s_and_b32 s49, s47, 3"); A("  s_add_u32 s48, s48, s49")
        A(f"  s_mul_i32 s48, s48, {rot}"); A("  s_add_u32 s48, s48, s3"); A("  s_and_b32 s48, s48, 7")
        A("  s_and_b32 s47, s47, 7"); A(f"  s_cbranch_scc1 {tag}")
        A("  s_mov_b32 s8, s16"); A("  s_mov_b32 s9, s17")
        for k in range(4): A(f"  s_mov_b32 s{16+k}, s{18+k}")
        A(f"{tag}:")
        A("  s_lshl_b32 s47, s47, 3"); A("  s_add_u32 s48, s48, s47"); A("  s_mul_i32 s48, s48, 3145728"); A("  s_add_u32 s12, s13, s48")
    def body(tag, gaps):
        for n in range(24):
            s, j = divmod(n, 3)
            for x in gaps.get(n, []): A(x)
            if j == 2 and pace:
                A("  s_waitcnt lgkmcnt(0)")
                if self_:
                    A(f"  v_readfirstlane_b32 s31, v{vMode}")
                    A(f"  s_mul_i32 s56, s56, {kap}"); A("  s_lshr_b32 s56, s56, 6"); A("  s_sub_u32 s56, s56, s30"); A("  s_addk_i32 s30, 128")
                    A("  s_add_u32 s56, s56, s31"); A("  s_sext_i32_i16 s56, s56")
                    A("  s_bitcmp0_b32 s31, 31"); A("  s_cselect_b32 s45, s56, s45")
                else: A(f"  v_readfirstlane_b32 s45, v{vMode}")
            throttle(f"{tag}_{n}")
            kv_load(n)
            if j == sj and pace:
                A(f"  ds_read_b32 v{vMode}, v{vCa} offset:{L_CTL+32}")
                if self_: A("  s_memrealtime s[56:57]")
            if j == 2:
                A(f"  v_add_u32 v{vProg}, 1, v{vProg}"); A(f"  ds_write_b32 v{vCa}, v{vProg} offset:{L_CTL+16}")
    def xred(op, t, u):
        return [f"  s_nop 1", f"  {op}_dpp v{t}, v{t}, v{t} row_ror:8 row_mask:0xf bank_mask:0xf",
                f"  v_mov_b32 v{u}, v{t}", "  s_nop 1", f"  v_permlane16_swap_b32 v{t}, v{u}", "  s_nop 0", f"  {op} v{t}, v{t}, v{u}",
                f"  v_mov_b32 v{u}, v{t}", "  s_nop 1", f"  v_permlane32_swap_b32 v{t}, v{u}", "  s_nop 0", f"  {op} v{t}, v{t}, v{u}"]
    kg = {}
    for s in range(4):
        for j in range(2):
            T = 2 * s + j
            kg[3*s+j] = [f"  s_waitcnt vmcnt({3*(7-T) + 3*s + j})"] + \
                        [f"  v_dot2_f32_bf16 v{vS+T}, v{ring(T,0)+k}, v{vQ+k}, {('v%d' % (vS+T)) if k else '0'}" for k in range(12)]
        g = []
        for pat in ("quad_perm:[1,0,3,2]", "quad_perm:[2,3,0,1]", "row_half_mirror"):
            g += ["  s_nop 0"] + [f"  v_add_f32_dpp v{vS+T}, v{vS+T}, v{vS+T} {pat} row_mask:0xf bank_mask:0xf" for T in (2*s, 2*s+1)]
        kg[3*s+2] = g
    kg[12] = [f"  v_add_u32 v{vQa}, 384, v{vQa}",
              f"  v_max3_f32 v{vT0}, v{vS}, v{vS+1}, v{vS+2}", f"  v_max3_f32 v{vT0}, v{vT0}, v{vS+3}, v{vS+4}",
              f"  v_max3_f32 v{vT0}, v{vT0}, v{vS+5}, v{vS+6}", f"  v_max_f32 v{vT0}, v{vT0}, v{vS+7}"] + \
             [f"  ds_read_b128 v[{vQ+4*t}:{vQ+4*t+3}], v{vQa} offset:{L_Q + 128*t}" for t in range(3)]
    kg[13] = xred("v_max_f32", vT0, vT1) + [f"  v_mul_f32 v{vD}, s58, v{vT0}"]
    kg[14] = [f"  v_fma_f32 v{vS+i}, v{vS+i}, s58, -v{vD}" for i in range(8)]
    kg[15] = [f"  v_exp_f32 v{vS+i}, v{vS+i}" for i in range(8)]
    kg[16] = [f"  v_add_f32 v{vD+1}, v{vS}, v{vS+1}"] + [f"  v_add_f32 v{vD+1}, v{vD+1}, v{vS+i}" for i in range(2, 8)]
    kg[17] = [f"  v_cvt_pk_bf16_f32 v{vS+i}, v{vS+i}, v{vS+i}" for i in range(8)]
    kg[18] = [f"  ds_write_b128 v{vPa}, v[{vS}:{vS+3}]", f"  ds_write_b128 v{vPa}, v[{vS+4}:{vS+7}] offset:16", f"  v_add_u32 v{vPa}, 32, v{vPa}"]
    kg[19] = xred("v_add_f32", vD+1, vT1)
    kg[21] = [f"  ds_write_b64 v{vMLa}, v[{vD}:{vD+1}] offset:{L_ML}", f"  v_add_u32 v{vMLa}, 32, v{vMLa}"]
    def vtile(T, wait):
        b = vB + 4 * (T & 1)
        g = [f"  v_and_b32 v{b+q}, v{vS+T}, v{vM+q}" for q in range(4)] + [f"  s_waitcnt vmcnt({wait})", "  s_nop 0"]
        for t in range(3):
            c = f"v[{vD+4*t}:{vD+4*t+3}]" if T else "0"
            g.append(f"  v_mfma_f32_16x16x32_bf16 v[{vD+4*t}:{vD+4*t+3}], v[{b}:{b+3}], v[{ring(T,t)}:{ring(T,t)+3}], {c}")
        return g
    dump = ["  s_mov_b64 exec, s[54:55]"] + [f"  ds_write_b128 v{vDa}, v[{vD+4*t}:{vD+4*t+3}] offset:{256*t}" for t in range(3)] + ["  s_mov_b64 exec, -1"]
    pread = [f"  ds_read_b128 v[{vS}:{vS+3}], v{vPa}", f"  ds_read_b128 v[{vS+4}:{vS+7}], v{vPa} offset:16"]
    vg = {}
    for s in range(4):
        for j in range(2): vg[3*s+j] = vtile(2*s+j, 3*(7-(2*s+j)) + 3*s + j)
    vg[12] = ["  s_nop 7"] + dump + [f"  v_add_u32 v{vDa}, 6144, v{vDa}", f"  v_add_u32 v{vPa}, 32, v{vPa}"]
    vg[13] = pread
    vg[20] = ["  s_waitcnt lgkmcnt(0)"]
    kg[20] = ["  s_waitcnt lgkmcnt(0)"]
    def cstamp():
        if not curve: return
        A("  s_memrealtime s[98:99]"); A("  s_mov_b32 m0, s44"); A("  s_waitcnt lgkmcnt(0)")
        A(f"  v_writelane_b32 v{vCv}, s98, m0"); A(f"  v_writelane_b32 v{vCv+1}, s99, m0")
    A("L_kloop:")
    A(";HOP k")
    switch("L_ksw")
    body("L_k", kg); cstamp()
    A("  s_add_u32 s44, s44, 1"); A("  s_and_b32 s47, s44, 7"); A("  s_cbranch_scc1 L_kloop")
    A(";HOP t")
    A(f"  v_subrev_u32 v{vPa}, 256, v{vPa}")
    for x in pread: A(x)
    A("  s_waitcnt lgkmcnt(0)")
    A("L_vloop:")
    switch("L_vsw")
    body("L_v", vg); cstamp()
    A("  s_add_u32 s44, s44, 1")
    A("  s_cmp_eq_u32 s44, 31"); A("  s_cbranch_scc1 L_last")
    A("  s_and_b32 s47, s44, 7"); A("  s_cbranch_scc1 L_vloop")
    A(f"  v_subrev_u32 v{vPa}, 256, v{vPa}")
    A("  s_branch L_kloop")
    A("L_last:")
    def last(n0, tag):
        m = 15 - n0
        sched = {1: [0, 1], 2: [2, 3], 3: [4, 5], dl - 1: [6], dl: [7]}
        gdone = False
        for k in range(max(m, dl + 4)):
            for T in sched.get(k, []):
                for x in vtile(T, 3*(7-T) + min(k, m)): A(x)
            if k == dl:
                A(f"  v_add_u32 v{vProg}, 8, v{vProg}"); A("  s_nop 5")
                for x in dump: A(x)
                A(f"  ds_write_b32 v{vCa}, v{vProg} offset:{L_CTL+16}")
                if tag == "": stamp("s", "vend")
                elif stamps: A(f"  s_memrealtime s[{84+2*len(names['s'])}:{85+2*len(names['s'])}]")
            if k == dl + 1:
                A(f"  v_and_b32 v{vT0}, {0 if fake else 8}, v{vLane}"); A(f"  v_and_b32 v{vT2}, 7, v{vLane}"); A(f"  v_lshl_add_u32 v{vT0}, v{vT0}, 4, v{vT2}     ; 128*b + producer")
                A(f"  v_mul_u32_u24 v{vT0}, {OS}, v{vT0}")
                A(f"  v_lshrrev_b32 v{vT3}, 4, v{vLane}"); A(f"  v_lshl_add_u32 v{vT0}, v{vT3}, 3, v{vT0}")
                A(f"  v_and_b32 v{vT2}, 15, v{vLane}"); A(f"  v_lshlrev_b32 v{vT1}, 4, v{vT2}")
            if k == dl + 2:
                A(f"  v_lshrrev_b32 v{vDa}, 5, v{vLane}"); A(f"  v_mul_u32_u24 v{vDa}, 2560, v{vDa}")
                A(f"  v_lshl_add_u32 v{vDa}, v{vT2}, 5, v{vDa}")
                A(f"  v_and_b32 v{vT3}, 16, v{vLane}"); A(f"  v_add_u32 v{vDa}, v{vDa}, v{vT3}")
                A("  s_mul_i32 s47, s5, 5120"); A(f"  v_add_u32 v{vDa}, s47, v{vDa}")
            if k == dl + 3:
                A(f"  s_mov_b32 s50, {SPIN*8}")
                A(f"L_wwait{tag}:")
                A(f"  ds_read_b64 v[{vS}:{vS+1}], v{vZero} offset:{L_CTL+8}")
                A("  s_waitcnt lgkmcnt(0)")
                A(f"  v_readfirstlane_b32 s47, v{vS}"); A(f"  v_readfirstlane_b32 s46, v{vS+1}")
                A("  s_sub_u32 s50, s50, 1"); A(f"  s_cbranch_scc1 L_wgo{tag}")
                A("  s_cmp_eq_u32 s47, 0"); A(f"  s_cbranch_scc1 L_wwait{tag}")
                A(f"L_wgo{tag}:")
                A(f"  ds_read_b128 v[{vS}:{vS+3}], v{vT1} offset:{L_W}")
                A(f"  v_and_b32 v{vMode}, 16, v{vLane}"); A(f"  v_lshrrev_b32 v{vMode}, v{vMode}, s46"); A(f"  v_and_b32 v{vMode}, 0xffff, v{vMode}")
            if k < m:
                i = n0 + k
                if i == gpos:
                    assert k >= dl + 2
                    for q in range(4): A(f"  buffer_load_dwordx2 v[{vRing+4*q}:{vRing+4*q+1}], v{vT0}, s[36:39], s{60+q} offen sc1")
                if lv:
                    ex = lambda d: d - 1 + (4 if gpos <= i < gpos + d else 0)
                    assert lv[2] == dl
                    throttle(f"L_wt{i}", ex(lv[0]), ex(lv[1]), ex(lv[2]), lv[3], lv[4]); wo_load(i, None)
                else: wo_load(i, dl - 1 + (4 if gpos <= i < gpos + dl else 0))
    if early:
        A(f"  s_cmp_lt_u32 s4, {ej}"); A("  s_cbranch_scc1 L_last1")
        last(15, "e")
        if stamps == 2: A(f"  s_memrealtime s[{86+2*len(names['s'])}:{87+2*len(names['s'])}]")
        A(f"  s_mov_b32 s50, {SPIN}"); A("  s_branch L_gather")
        A("L_last1:")
    last(ne, "")
    G = vRing
    assert pack and usepure
    stamp("s", "woiss", 2)
    A(f"  s_mov_b32 s50, {SPIN}")
    if gpos < 15:
        if gcrit: A("  s_cmp_ge_u32 s4, 28"); A("  s_cbranch_scc1 L_gather")
        A(f"  s_waitcnt vmcnt({15-gpos}) lgkmcnt(0)"); A("  s_branch L_gchk")
    A("L_gather:")
    for k in range(4): A(f"  buffer_load_dwordx2 v[{G+4*k}:{G+4*k+1}], v{vT0}, s[36:39], s{60+k} offen sc1")
    A("  s_waitcnt vmcnt(0) lgkmcnt(0)")
    A("L_gchk:")
    for k in range(4): A(f"  v_lshrrev_b32 v{G+4*k+3}, 16, v{G+4*k+1}")
    A(f"  v_cmp_ne_u32 s[48:49], v{vMode}, v{G+3}")
    for k in range(1, 4):
        A(f"  v_cmp_ne_u32 vcc, v{vMode}, v{G+4*k+3}"); A("  s_or_b64 s[48:49], s[48:49], vcc")
    A("  s_sub_u32 s50, s50, 1"); A("  s_cbranch_scc1 L_ggo")
    A("  s_cmp_eq_u64 s[48:49], 0"); A("  s_cbranch_scc0 L_gather")
    A("L_ggo:")
    stamp("s", "gath")
    for k in range(4):
        A(f"  v_lshlrev_b32 v{G+4*k+2}, 16, v{G+4*k+1}"); A(f"  v_and_b32 v{G+4*k+1}, 0xffff0000, v{G+4*k}"); A(f"  v_lshlrev_b32 v{G+4*k}, 16, v{G+4*k}")
    for t in range(3): A(f"  v_mul_f32 v{G+t}, v{vS}, v{G+t}")
    for k in range(1, 4):
        for t in range(3): A(f"  v_fmac_f32 v{G+t}, v{vS+k}, v{G+4*k+t}")
    for pat in ("quad_perm:[1,0,3,2]", "quad_perm:[2,3,0,1]", "row_half_mirror"):
        for t in range(3): A(f"  v_add_f32_dpp v{G+t}, v{G+t}, v{G+t} {pat} row_mask:0xf bank_mask:0xf")
    for t in range(3): A(f"  v_cvt_pk_bf16_f32 v{G+t}, v{G+t}, v{G+t}")
    for t in range(3):
        for q in range(4): A(f"  v_and_b32 v{G+4+4*t+q}, v{G+t}, v{vM+q}")
    for tp in range(3):
        for c in range(5):
            i = tp * 5 + c
            cc = f"v[{vD+4*c}:{vD+4*c+3}]" if tp else "0"
            if i >= gpos: A(f"  s_waitcnt vmcnt({14-i})")
            A(f"  v_mfma_f32_16x16x32_bf16 v[{vD+4*c}:{vD+4*c+3}], v[{G+4+4*tp}:{G+7+4*tp}], a[{4*i}:{4*i+3}], {cc}")
    A("  s_nop 3")
    for c in range(5): A(f"  ds_write_b128 v{vDa}, v[{vD+4*c}:{vD+4*c+3}] offset:{L_Y + 512*c}")
    stamp("s", "mfma", 2)
    A("L_yred:")
    A(f"  v_lshlrev_b32 v{vT1}, 4, v0")
    A(f"  v_mov_b32 v{vT2}, {128*YS - 2560}"); A("  v_cmp_le_u32 vcc, 160, v0")
    A("  s_lshr_b32 s47, s4, 4"); A(f"  s_mul_i32 s47, s47, {256*YS}")
    A(f"  v_cndmask_b32 v{vT2}, 0, v{vT2}, vcc"); A(f"  v_add_u32 v{vT2}, v{vT2}, v{vT1}")
    A("  s_and_b32 s48, s2, 127"); A(f"  s_mul_i32 s48, s48, {YS}"); A("  s_add_u32 s47, s47, s48")
    if fuse:
        A(f"  v_mov_b32 v{vT0}, s46")
        for i in range(4): A(f"  s_mov_b32 s{52+i}, 0x0706050{i}")
    A("  s_waitcnt lgkmcnt(0)"); A("  s_barrier                       ; B3: y partials")
    for k in range(4): A(f"  ds_read_b128 v[{vD+4*k}:{vD+4*k+3}], v{vT1} offset:{L_Y + 5120*k}")
    for k in range(1, 4):
        A(f"  s_waitcnt lgkmcnt({3-k})")
        for r in range(4): A(f"  v_add_f32 v{vD+r}, v{vD+r}, v{vD+4*k+r}")
    if fuse:
        for r in range(4): A(f"  v_perm_b32 v{vD+r}, v{vD+r}, v{vT0}, s{52+r}")
    A(f"  buffer_store_dwordx4 v[{vD}:{vD+3}], v{vT2}, s[36:39], s47 offen{' ' + ysp if fuse else ''}")
    if fuse:
        A("  s_cmp_eq_u32 s5, 4"); A("  s_cbranch_scc1 L_final")
    A(";HOP -")
    if curve:
        A("  s_cmp_lg_u32 s5, 0"); A("  s_cbranch_scc1 L_end")
        A("  s_getreg_b32 s100, hwreg(HW_REG_XCC_ID)")
        A(f"  s_mul_i32 s47, s2, 144"); A(f"  s_add_u32 s47, s47, {WS - (1<<20)}")
        A(f"  v_lshlrev_b32 v{vT0}, 2, v{vLane}"); A(f"  v_add_u32 v{vT0}, 16, v{vT0}")
        A("  s_mov_b32 exec_lo, 0x55555555"); A("  s_mov_b32 exec_hi, 0")
        A(f"  buffer_store_dwordx2 v[{vCv}:{vCv+1}], v{vT0}, s[36:39], s47 offen")
        A("  s_mov_b64 exec, 1")
        A(f"  v_mov_b32 v{vRing}, s96"); A(f"  v_mov_b32 v{vRing+1}, s97"); A(f"  v_mov_b32 v{vRing+2}, s100"); A(f"  v_mov_b32 v{vRing+3}, 0")
        A(f"  buffer_store_dwordx4 v[{vRing}:{vRing+3}], v{vZero}, s[36:39], s47 offen")
    if stamps:
        A("  s_cmp_eq_u32 s5, 4"); A("  s_cbranch_scc1 L_hst")
        A("  s_cmp_lg_u32 s5, 0"); A("  s_cbranch_scc1 L_end")
        stamp("s", "ystore", 2)
        A("  s_waitcnt vmcnt(0)")
        stamp("s", "end"); stamp("s", "yack", 2)
        dump_stamps("s", 0)
    A("L_end:"); A("  s_endpgm")
    H = vRing
    A("L_helper:")
    A(f"  v_mov_b32 v{H}, {-1 if self_ else mode0}"); A(f"  v_mov_b32 v{H+1}, 0"); A(f"  v_mov_b32 v{H+2}, 0"); A(f"  v_mov_b32 v{H+3}, 0"); A(f"  v_mov_b32 v{H+4}, 0"); A(f"  v_mov_b32 v{H+5}, 0")
    A(f"  ds_write_b128 v{vZero}, v[{H}:{H+3}] offset:{L_CTL}"); A(f"  ds_write_b128 v{vZero}, v[{H+2}:{H+5}] offset:{L_CTL+16}")
    A(f"  v_and_b32 v{vCa}, 3, v{vLane}"); A(f"  v_lshlrev_b32 v{vCa}, 2, v{vCa}")
    A(f"  ds_write_b32 v{vCa}, v{H} offset:{L_CTL+32}")
    A("  s_mov_b32 s36, s42"); A("  s_mov_b32 s37, s43")
    A(f"  v_lshlrev_b32 v{vT0}, 3, v{vLane}      ; lane*8"); A(f"  v_lshlrev_b32 v{vT3}, 4, v{vLane}      ; lane*16")
    A(f"  s_mul_i32 s12, s3, {24*512}"); A(f"  s_add_u32 s12, s12, {W_Q}")
    A("  s_lshl_b32 s13, s4, 9"); A("  s_add_u32 s13, s13, s12")
    A("  s_add_u32 s14, s12, 4096"); A("  s_add_u32 s15, s12, 8192")
    if dry:
        A("  s_mov_b32 s38, 0")
        A("  s_mov_b32 s45, 0"); A("  s_branch L_hq1")
    A("L_hreal:")
    A(f"  s_mov_b32 s38, {WS}"); A(f"  s_mov_b32 s45, {SPIN}")
    A("  s_cmp_eq_u32 s2, 0"); A("  s_cbranch_scc1 L_nhave")
    A(f"  s_mov_b32 s50, {SPIN}")
    if warm >= 2: A("  s_mov_b64 exec, 0"); A("  s_branch L_hop_k_0"); A("L_back_k:")
    if nslp0: A(f"  s_sleep {nslp0}")
    A("L_nloop:")
    A(f"  buffer_load_dword v{H}, v{vZero}, s[8:11], 0 offen sc1"); A("  s_waitcnt vmcnt(0)")
    A(f"  v_readfirstlane_b32 s46, v{H}")
    A("  s_sub_u32 s50, s50, 1"); A("  s_cbranch_scc1 L_nhave")
    A("  s_cmp_lg_u32 s46, 0"); A("  s_cbranch_scc1 L_nhave")
    A(f"  s_sleep {nslp}"); A("  s_branch L_nloop")
    A("L_nhave:")
    A(";HOP k")
    stamp("h", "nonce")
    A(f"  v_mov_b32 v{H}, s46"); A(f"  ds_write_b32 v{vZero}, v{H} offset:{L_CTL+12}")
    assert not dry
    if stamps == 3: A("  s_memrealtime s[88:89]")
    A("  s_waitcnt lgkmcnt(0)")
    A("  s_cmp_ge_u32 s4, 24"); A("  s_cbranch_scc1 L_hq2")
    A("  s_barrier                       ; B1")
    stamp("h", "hB1", 3)
    if stamps == 3: A("  s_waitcnt lgkmcnt(0)")
    for k in range(8): A(f"  ds_read_b64 v[{H+2*k}:{H+2*k+1}], v{vT0} offset:{L_Y + 512*k}")
    for k in range(1, 8):
        A(f"  s_waitcnt lgkmcnt({7-k})")
        for r in range(2): A(f"  v_add_f32 v{H+r}, v{H+r}, v{H+2*k+r}")
    A(f"  v_cvt_pk_bf16_f32 v{vD}, v{H}, v{H+1}"); A(f"  v_mov_b32 v{vD+1}, s46")
    def qglob(tag):
        A("  s_cmp_ge_u32 s4, 24"); A(f"  s_cbranch_scc1 {tag}")
        A(f"  buffer_store_dwordx2 v[{vD}:{vD+1}], v{vT0}, s[36:39], s13 offen sc1")
        A(f"{tag}:")
    if loc:
        A(f"  s_add_u32 s47, s13, {QLOC}")
        A(f"  buffer_store_dwordx2 v[{vD}:{vD+1}], v{vT0}, s[36:39], s47 offen")
    else:
        A(f"  buffer_store_dwordx2 v[{vD}:{vD+1}], v{vT0}, s[36:39], s13 offen sc1")
    A("L_hq2:")
    stamp("h", "pub", 3)
    A(f"  v_and_b32 v{vT1}, 16, v{vLane}"); A(f"  v_mul_u32_u24 v{vT1}, 96, v{vT1}")
    A(f"  v_and_b32 v{vT2}, 15, v{vLane}"); A(f"  v_lshl_add_u32 v{vT1}, v{vT2}, 3, v{vT1}")
    A(f"  v_lshrrev_b32 v{vT2}, 5, v{vLane}")
    A(f"  s_mov_b32 s50, s45")
    A("L_qg:")
    if loc:
        A(f"  s_cmp_lg_u32 s50, {SPIN - nloc}"); A("  s_cbranch_scc1 L_qg1"); qglob("L_qg1")
    A(f"  s_cmp_gt_u32 s50, {SPIN - nloc}"); A(f"  s_cselect_b32 s47, {QLOC if loc else 0}, 0")
    A(f"  v_add_u32 v{vDa}, s47, v{vT3}")
    for k in range(12):
        A(f"  buffer_load_dwordx4 v[{H+4*k}:{H+4*k+3}], v{vDa}, s[36:39], s{(12,14,15)[k//4]} offen offset:{1024*(k%4)} sc1")
    A("  s_mov_b64 s[48:49], 0")
    for k in range(12):
        A(f"  s_waitcnt vmcnt({11-k})")
        for r in (1, 3):
            A(f"  v_cmp_ne_u32 vcc, s46, v{H+4*k+r}"); A("  s_or_b64 s[48:49], s[48:49], vcc")
    A("  s_sub_u32 s50, s50, 1"); A("  s_cbranch_scc1 L_qgo")
    A("  s_cmp_eq_u64 s[48:49], 0"); A("  s_cbranch_scc0 L_qg")
    A("L_qgo:")
    stamp("h", "qgot", 3)
    def qconst(item):
        sg, c = divmod(item, 3); return ((sg >> 2) * 8 + (sg & 3)) * 384 + c * 128
    for k in range(12):
        c0, c1 = qconst(2 * k), qconst(2 * k + 1)
        A(f"  v_mov_b32 v{H+4*k+1}, v{H+4*k+2}")
        if k == 0 or (c1 - c0) != (qconst(2*k-1) - qconst(2*k-2)):
            A(f"  v_mul_u32_u24 v{vPa}, {c1-c0}, v{vT2}"); A(f"  v_add_u32 v{vPa}, v{vPa}, v{vT1}")
        A(f"  ds_write_b64 v{vPa}, v[{H+4*k}:{H+4*k+1}] offset:{L_Q + c0}")
    A("  s_waitcnt lgkmcnt(0)")
    if dry: A("  s_cmp_eq_u32 s45, 0"); A("  s_cbranch_scc1 L_hreal")
    stamp("h", "qtab")
    A("  s_barrier                       ; B2")
    if loc and not usepure: qglob("L_qg2")
    A("  s_getreg_b32 s56, hwreg(HW_REG_XCC_ID)"); A("  s_and_b32 s56, s56, 7")
    A("  s_lshl_b32 s57, s56, 3"); A("  s_add_u32 s57, s57, s3"); A("  s_mul_i32 s57, s57, 1152"); A(f"  s_add_u32 s57, s57, {W_B}")
    A("  s_lshl_b32 s59, s4, 3"); A("  s_add_u32 s59, s59, s57")
    A("  s_mov_b32 s31, 0")
    A("  s_mov_b32 s30, 16"); A("  s_mov_b32 s29, 0")
    A(f"  v_mov_b32 v{H+35}, s46")
    A("  s_lshl_b32 s62, s56, 2"); A(f"  s_add_u32 s62, s62, {W_G}"); A(f"  s_mov_b32 s28, {lper-1}")
    A(f"  s_add_u32 s16, s42, {W_G}"); A("  s_addc_u32 s17, s43, 0")
    A("  s_and_b32 s51, s46, 0xffff0000   ; tag")
    A(f"  v_lshlrev_b32 v{vQa}, 2, v{vLane}")
    A("  s_mov_b32 s18, -1"); A("  s_mov_b32 s19, 1")
    A(f"  s_mov_b32 s44, {t_q}")
    A(";HOP -")
    if warm: A("  s_mov_b64 exec, 0"); A("  s_branch L_hop_t_0"); A("L_back_t:")
    A("L_pace:")
    A(f"  s_sleep {slp}")
    if pace: A("  s_memrealtime s[26:27]"); A(f"  ds_read_b32 v{H+10}, v{vCa} offset:{L_CTL+16}")
    A(f"  ds_read_b128 v[{H}:{H+3}], v{vZero} offset:{L_CTL+16}"); A("  s_waitcnt lgkmcnt(0)")
    A(f"  v_min3_u32 v{H+4}, v{H}, v{H+1}, v{H+2}"); A(f"  v_min_u32 v{H+4}, v{H+4}, v{H+3}")
    A(f"  v_add3_u32 v{H+5}, v{H}, v{H+1}, v{H+2}"); A(f"  v_add_u32 v{H+5}, v{H+5}, v{H+3}")
    A(f"  v_readfirstlane_b32 s20, v{H+4}")
    A("  s_cmp_ge_u32 s20, s44"); A("  s_cbranch_scc1 L_event")
    if pace:
        A(f"  v_readfirstlane_b32 s21, v{H+5}")
        A(f"  s_mul_i32 s22, s26, {kap}"); A("  s_lshr_b32 s22, s22, 6")
        A("  s_lshl_b32 s21, s21, 5"); A("  s_sub_u32 s21, s21, s22"); A("  s_and_b32 s21, s21, 0xffff")
        A(f"  v_mov_b32 v{H+34}, s21"); A(f"  v_mov_b32 v{H+8}, 0"); A(f"  v_mov_b32 v{H+9}, 0")
        A("  s_mov_b64 exec, 1")
        A(f"  buffer_store_dwordx2 v[{H+34}:{H+35}], v{vZero}, s[36:39], s59 offen")
        A("  s_mov_b64 exec, s[18:19]")
        A(f"  buffer_load_dwordx2 v[{H+8}:{H+9}], v{vT0}, s[36:39], s57 offen sc1")
        A("  s_mov_b64 exec, -1")
        A("  s_waitcnt vmcnt(0)")
        A(f"  v_readlane_b32 s22, v{H+8}, 32")
        A(f"  v_cmp_eq_u32 vcc, s46, v{H+9}")
        A(f"  v_subrev_u32 v{H+7}, s21, v{H+8}"); A(f"  v_bfe_i32 v{H+7}, v{H+7}, 0, 16")
        A(f"  v_cndmask_b32 v{H+7}, 0, v{H+7}, vcc")
        if usepure: A("  s_cmp_eq_u32 vcc_lo, -1"); A("  s_cselect_b32 s31, 1, s31")
        for sh in (1, 2, 4, 8):
            A("  s_nop 1"); A(f"  v_add_u32_dpp v{H+7}, v{H+7}, v{H+7} row_ror:{sh} row_mask:0xf bank_mask:0xf")
        A("  s_bitcmp1_b32 vcc_hi, 0"); A("  s_cselect_b32 s22, s22, 0")
        A(f"  v_readlane_b32 s23, v{H+7}, 0"); A(f"  v_readlane_b32 s24, v{H+7}, 16")
        A("  s_add_u32 s23, s23, s24"); A("  s_ashr_i32 s23, s23, 5")
        A("  s_add_u32 s24, s23, s22")
        if self_:
            A("  s_add_u32 s24, s24, s21"); A("  s_and_b32 s24, s24, 0xffff"); A(f"  v_mov_b32 v{H+6}, s24")
        else:
            if pw:
                A(f"  v_lshlrev_b32 v{H+10}, 2, v{H+10}"); A(f"  v_sub_u32 v{H+10}, v{H+5}, v{H+10}"); A(f"  v_lshl_add_u32 v{H+10}, v{H+10}, 5, s24")
            else:
                A(f"  v_mov_b32 v{H+10}, s24")
            A(f"  v_cmp_lt_i32 vcc, {-tb}, v{H+10}"); A(f"  v_mov_b32 v{H+6}, 1"); A("  s_nop 0"); A(f"  v_cndmask_b32 v{H+6}, v{H+6}, 2, vcc")
            A(f"  v_cmp_gt_i32 vcc, {-ta}, v{H+10}"); A("  s_nop 1"); A(f"  v_cndmask_b32 v{H+6}, v{H+6}, 0, vcc")
        A(f"  ds_write_b32 v{vCa}, v{H+6} offset:{L_CTL+32}")
        if pace >= 2:
            A("  s_cmp_lg_u32 s4, 0"); A("  s_cbranch_scc1 L_paced")
            if dec:
                A(f"  s_ashr_i32 s25, s22, {dec}"); A("  s_sub_u32 s25, s22, s25"); A("  s_mov_b64 exec, 1")
            A("  s_add_u32 s28, s28, 1"); A(f"  s_cmp_lt_u32 s28, {lper}"); A(f"  s_cbranch_scc1 {'L_dst' if dec else 'L_paced'}")
            A("  s_mov_b32 s28, 0")
            A("  s_load_dwordx8 s[64:71], s[16:17], 0 glc")
            A("  s_add_u32 s23, s23, s21"); A("  s_and_b32 s23, s23, 0xffff")
            A("  s_or_b32 s24, s23, s51"); A(f"  v_mov_b32 v{H+6}, s24")
            A("  s_waitcnt lgkmcnt(0)")
            A("  s_mov_b64 exec, 1")
            A(f"  buffer_store_dword v{H+6}, v{vZero}, s[36:39], s62 offen sc1")
            A("  s_mov_b32 s25, 0")
            for k in range(8):
                A(f"  s_xor_b32 s{64+k}, s{64+k}, s51"); A(f"  s_cmp_lt_u32 s{64+k}, 0x10000"); A(f"  s_cselect_b32 s{64+k}, s{64+k}, s23")
                A(f"  s_sub_u32 s{64+k}, s{64+k}, s23"); A(f"  s_sext_i32_i16 s{64+k}, s{64+k}"); A(f"  s_add_u32 s25, s25, s{64+k}")
            A("  s_ashr_i32 s25, s25, 3")
            A("L_dst:")
            A(f"  v_mov_b32 v{H+34}, s25")
            A(f"  buffer_store_dwordx2 v[{H+34}:{H+35}], v{vZero}, s[36:39], s57 offen offset:256")
            A("  s_mov_b64 exec, -1")
    A("L_paced:")
    A(f"  s_mov_b32 s27, {nfl}"); A("  s_branch L_fl")
    A("L_event:")
    A(f"  s_cmp_eq_u32 s44, {t_w}"); A("  s_cbranch_scc1 L_evw")
    A(f"  s_cmp_eq_u32 s44, {t_f}"); A("  s_cbranch_scc1 L_flush")
    A(f"  s_cmp_eq_u32 s44, {t_ml}"); A("  s_cbranch_scc1 L_evm")
    A(f"  s_mov_b32 s44, {t_ml}")
    if loc and usepure:
        A("  s_cmp_eq_u32 s31, 1"); A("  s_cbranch_scc1 L_pace"); qglob("L_qg2")
    A("  s_branch L_pace")
    A("L_evm:")
    A(";HOP t")
    def pub(instr, tag):
        if usepure:
            A("  s_cmp_eq_u32 s31, 1"); A(f"  s_cbranch_scc1 {tag}a")
        A(instr + " sc1")
        if usepure:
            A(f"  s_branch {tag}b"); A(f"{tag}a:"); A(instr); A(f"{tag}b:")
    A(f"  v_and_b32 v{vT1}, 15, v{vLane}"); A(f"  v_lshlrev_b32 v{vT2}, 5, v{vT1}"); A(f"  v_lshlrev_b32 v{vT1}, 4, v{vT1}")
    A(f"  ds_read_b128 v[{H}:{H+3}], v{vT2} offset:{L_ML}"); A(f"  ds_read_b128 v[{H+4}:{H+7}], v{vT2} offset:{L_ML+16}")
    A("  s_lshl_b32 s47, s3, 5"); A("  s_add_u32 s47, s47, s4"); A("  s_lshl_b32 s47, s47, 8"); A(f"  s_add_u32 s47, s47, {W_ML}")
    A("  s_waitcnt lgkmcnt(0)")
    A(f"  v_max3_f32 v{H+8}, v{H}, v{H+2}, v{H+4}"); A(f"  v_max_f32 v{H+8}, v{H+8}, v{H+6}")
    for w in range(4): A(f"  v_sub_f32 v{H+12+w}, v{H+2*w}, v{H+8}")
    for w in range(4): A(f"  v_exp_f32 v{H+12+w}, v{H+12+w}")
    A(f"  v_mov_b32 v{H+10}, 0"); A(f"  v_mov_b32 v{H+11}, s46")
    A(f"  v_mul_f32 v{H+9}, v{H+12}, v{H+1}")
    for w in range(1, 4): A(f"  v_fmac_f32 v{H+9}, v{H+12+w}, v{H+2*w+1}")
    A(f"  ds_write_b128 v{vT1}, v[{H+12}:{H+15}] offset:{L_E}")
    A("  s_mov_b64 exec, 0xffff")
    pub(f"  buffer_store_dwordx4 v[{H+8}:{H+11}], v{vT1}, s[36:39], s47 offen", "L_pm")
    A("  s_mov_b64 exec, -1")
    A(f"  v_add_u32 v{vDa}, {L_O}, v{vQa}"); A(f"  v_mov_b32 v{vMLa}, {L_E}")
    if pack:
        A(f"  v_and_b32 v{vMode}, 1, v{vLane}"); A(f"  v_lshlrev_b32 v{vMode}, 4, v{vMode}"); A(f"  v_lshrrev_b32 v{vMode}, v{vMode}, s46"); A(f"  v_lshlrev_b32 v{vMode}, 16, v{vMode}")
        A("  s_mov_b32 s33, 0xffff")
    A(f"  s_mul_i32 s58, s3, {512*OS}"); A(f"  s_mul_i32 s48, s4, {OS}"); A("  s_add_u32 s58, s58, s48"); A(f"  s_add_u32 s58, s58, {W_O}")
    A("  s_mov_b32 s30, 0")
    A(f"  s_mov_b32 s44, {t_w}"); A("  s_branch L_pace")
    A("L_evw:")
    A(f"  v_and_b32 v{vT1}, 31, v{vLane}"); A(f"  v_lshlrev_b32 v{vT1}, 8, v{vT1}")
    A(f"  v_and_b32 v{vT2}, 32, v{vLane}"); A(f"  v_lshl_add_u32 v{vT1}, v{vT2}, 1, v{vT1}      ; producer*256 + b*64")
    A("  s_lshr_b32 s47, s4, 4"); A("  s_lshl_b32 s47, s47, 3"); A("  s_lshr_b32 s48, s4, 2"); A("  s_and_b32 s48, s48, 3"); A("  s_add_u32 s47, s47, s48")
    A("  s_lshl_b32 s47, s47, 4"); A("  s_lshl_b32 s48, s3, 13"); A("  s_add_u32 s47, s47, s48"); A(f"  s_add_u32 s47, s47, {W_ML}")
    A(f"  s_mov_b32 s50, {SPIN}")
    A("L_wg:")
    A(f"  buffer_load_dwordx4 v[{H}:{H+3}], v{vT1}, s[36:39], s47 offen sc1"); A("  s_waitcnt vmcnt(0)")
    A(f"  v_cmp_ne_u32 vcc, s46, v{H+3}")
    A("  s_sub_u32 s50, s50, 1"); A("  s_cbranch_scc1 L_wgo2")
    A("  s_cmp_eq_u64 vcc, 0"); A("  s_cbranch_scc1 L_wgo2")
    A("  s_sleep 16"); A("  s_branch L_wg")
    A("L_wgo2:")
    def red32(op, t, u):
        for sh in (1, 2, 4, 8):
            A("  s_nop 1"); A(f"  {op}_dpp v{t}, v{t}, v{t} row_ror:{sh} row_mask:0xf bank_mask:0xf")
        A(f"  v_mov_b32 v{u}, v{t}"); A("  s_nop 1"); A(f"  v_permlane16_swap_b32 v{t}, v{u}"); A("  s_nop 0"); A(f"  {op} v{t}, v{t}, v{u}")
    A(f"  v_mov_b32 v{H+4}, v{H}")
    red32("v_max_f32", H+4, H+5)
    A(f"  v_sub_f32 v{H}, v{H}, v{H+4}"); A(f"  v_exp_f32 v{H}, v{H}"); A("  s_nop 0")
    A(f"  v_mul_f32 v{H+4}, v{H}, v{H+1}")
    red32("v_add_f32", H+4, H+5)
    A(f"  v_rcp_f32 v{H+4}, v{H+4}")
    A(f"  v_and_b32 v{vT1}, 7, v{vLane}"); A(f"  v_lshlrev_b32 v{vT1}, 4, v{vT1}"); A(f"  v_lshl_add_u32 v{vT1}, v{vT2}, 2, v{vT1}")
    A(f"  v_and_b32 v{vT2}, 24, v{vLane}"); A(f"  v_lshrrev_b32 v{vT2}, 1, v{vT2}"); A(f"  v_add_u32 v{vT1}, v{vT1}, v{vT2}")
    A(f"  v_mul_f32 v{H}, v{H}, v{H+4}"); A(f"  v_mov_b32 v{H+1}, 1")
    A(f"  ds_write_b32 v{vT1}, v{H} offset:{L_W}"); A(f"  ds_write_b32 v{vZero}, v{H+1} offset:{L_CTL+8}")
    if pretouch:
        A(f"  v_lshlrev_b32 v{vT1}, 7, v{vLane}"); A(f"  v_mov_b32 v{vT2}, {128*YS - 2560}"); A(f"  v_cmp_le_u32 vcc, 20, v{vLane}")
        A("  s_lshr_b32 s47, s4, 4"); A(f"  s_mul_i32 s47, s47, {256*YS}")
        A(f"  v_cndmask_b32 v{vT2}, 0, v{vT2}, vcc"); A(f"  v_add_u32 v{vT2}, v{vT2}, v{vT1}")
        A("  s_and_b32 s48, s2, 127"); A(f"  s_mul_i32 s48, s48, {YS}"); A("  s_add_u32 s47, s47, s48")
        A("  s_mov_b32 exec_lo, -1"); A("  s_mov_b32 exec_hi, 0xff")
        A(f"  buffer_load_dword v{H}, v{vT2}, s[36:39], s47 offen {'sc1' if pretouch == 2 else ''}")
        A("  s_mov_b64 exec, -1"); A("  s_waitcnt vmcnt(0)")
    A(f"  s_mov_b32 s44, {t_f}"); A("  s_branch L_pace")
    A("L_flush:")
    stamp("h", "flush0")
    if rstmode: A(f"  v_mov_b32 v{H+6}, 1"); A(f"  ds_write_b32 v{vCa}, v{H+6} offset:{L_CTL+32}")
    A("  s_mov_b32 s29, 1")
    A("L_fl:")
    A("  s_cmp_ge_u32 s30, 8"); A("  s_cselect_b32 s48, 16, 8"); A("  s_add_u32 s48, s48, s30"); A("  s_lshl_b32 s48, s48, 3"); A("  s_add_u32 s48, s48, 5")
    A("  s_cmp_eq_u32 s29, 1"); A("  s_cbranch_scc1 L_fl1")
    A("  s_cmp_lt_u32 s20, s48"); A("  s_cbranch_scc1 L_pace")
    A("  s_sub_u32 s27, s27, 1"); A("  s_cbranch_scc1 L_pace")
    A("L_fl1:")
    A(f"  ds_read_b128 v[{H+28}:{H+31}], v{vMLa}")
    A("L_flw:")
    A(f"  ds_read_b128 v[{H}:{H+3}], v{vZero} offset:{L_CTL+16}"); A("  s_waitcnt lgkmcnt(0)")
    A(f"  v_min3_u32 v{H+4}, v{H}, v{H+1}, v{H+2}"); A(f"  v_min_u32 v{H+4}, v{H+4}, v{H+3}"); A("  s_nop 0")
    A(f"  v_readfirstlane_b32 s20, v{H+4}")
    A("  s_cmp_lt_u32 s20, s48"); A("  s_cbranch_scc1 L_flw")
    for k in range(12): A(f"  ds_read2st64_b32 v[{H+2*k}:{H+2*k+1}], v{vDa} offset0:{2*k} offset1:{2*k+1}")
    for w in range(4):
        A(f"  s_waitcnt lgkmcnt({9-3*w})")
        for t in range(3): A(f"  v_add_f32 v{H+6*w+t}, v{H+6*w+t}, v{H+6*w+3+t}")
        for t in range(3):
            A(f"  v_mul_f32 v{H+32+t}, v{H+28}, v{H+t}" if w == 0 else f"  v_fmac_f32 v{H+32+t}, v{H+28+w}, v{H+6*w+t}")
    if loc and not usepure:
        A("  s_cmp_lg_u32 s30, 15"); A("  s_cbranch_scc1 L_flg")
        A("  s_lshl_b32 s48, s3, 5"); A("  s_add_u32 s48, s48, s4"); A("  s_lshl_b32 s48, s48, 10"); A(f"  s_add_u32 s48, s48, {W_OL}")
        A(f"  buffer_store_dwordx4 v[{H+32}:{H+35}], v{vT3}, s[36:39], s48 offen")
        A("L_flg:")
    if pack:
        A(f"  v_cvt_pk_bf16_f32 v{H+32}, v{H+32}, v{H+33}"); A(f"  v_cvt_pk_bf16_f32 v{H+33}, v{H+34}, v{H+34}")
        A(f"  v_and_or_b32 v{H+33}, v{H+33}, s33, v{vMode}")
        pub(f"  buffer_store_dwordx2 v[{H+32}:{H+33}], v{vT0}, s[36:39], s58 offen", "L_po")
    else:
        pub(f"  buffer_store_dwordx4 v[{H+32}:{H+35}], v{vT3}, s[36:39], s58 offen", "L_po")
    A(f"  v_add_u32 v{vDa}, 6144, v{vDa}"); A(f"  v_add_u32 v{vMLa}, 16, v{vMLa}")
    A(f"  s_add_u32 s58, s58, {0 if fake else 32*OS}"); A("  s_add_u32 s30, s30, 1"); A("  s_cmp_lt_u32 s30, 16"); A("  s_cbranch_scc1 L_fl")
    if wb == 1:
        A("  s_cmp_lg_u32 s4, 31"); A("  s_cbranch_scc1 L_nowb"); A("  buffer_wbl2 sc1"); A("L_nowb:")
    stamp("h", "flushed")
    if fuse:
        A("  s_load_dwordx2 s[12:13], s[0:1], 80")
        A("  s_and_b32 s20, s2, 3"); A("  s_lshr_b32 s21, s2, 2")
        A(f"  v_lshrrev_b32 v{vPa}, 2, v{vLane}"); A(f"  v_and_b32 v{vQa}, 3, v{vLane}")
        A(f"  v_mul_u32_u24 v{vPa}, {YS}, v{vPa}"); A(f"  v_lshl_add_u32 v{vPa}, v{vQa}, 4, v{vPa}"); A(f"  v_lshlrev_b32 v{vQa}, 3, v{vQa}")
        A(f"  v_bfe_u32 v{vMLa}, v{vLane}, 4, 1"); A(f"  v_lshl_add_u32 v{vQa}, v{vMLa}, 2, v{vQa}")
        A(f"  v_lshrrev_b32 v{vMLa}, 5, v{vLane}"); A(f"  v_lshl_add_u32 v{vQa}, v{vMLa}, 1, v{vQa}")
        A(f"  s_mul_i32 s27, s20, {128*YS}"); A("  s_lshl_b32 s22, s21, 6"); A("  s_add_u32 s27, s27, s22")
        for k in range(1, 8): A(f"  s_add_u32 s{27+k}, s27, {16*k*YS}")
        A("  s_and_b32 s22, s20, 1"); A("  s_mul_i32 s22, s22, 2560"); A("  s_lshr_b32 s23, s20, 1"); A("  s_mul_i32 s23, s23, 1280")
        A("  s_add_u32 s22, s22, s23"); A("  s_lshl_b32 s23, s21, 5"); A("  s_add_u32 s22, s22, s23")
        A("  s_mov_b32 s14, 5120"); A("  s_mov_b32 s15, 0x20000")
        A("  s_mov_b32 s24, 0x0c0c0400"); A("  s_mov_b32 s25, 0x04000c0c"); A("  s_mov_b32 s26, 0xffffff00")
        for k in range(8): A(f"  s_mov_b64 s[{64+2*k}:{65+2*k}], -1")
    A("  s_branch L_yred")
    if fuse:
        A("L_final:")
        stamp("h", "final0", 2)
        if stamps in (1, 2): A(f"  s_memrealtime s[{84+2*len(names['h'])}:{85+2*len(names['h'])}]"); A("  s_waitcnt lgkmcnt(0)")
        if wb == 2:
            A(f"  s_cmp_lt_u32 s4, {wbj}"); A("  s_cbranch_scc1 L_nowb"); A("  buffer_wbl2 sc1"); A("  s_waitcnt vmcnt(0)"); A("L_nowb:")
        A(f"  s_cmp_ge_u32 s2, 160"); A(f"  s_cbranch_scc1 {'L_hst' if stamps else 'L_end'}")
        A(f"  s_mov_b32 s50, {SPIN}")
        if fslp0: A(f"  s_sleep {fslp0}")
        A(";HOP -")
        def yround():
            for k in range(8):
                if pp > 1: A(f"  s_or_b64 exec, s[{64+2*k}:{65+2*k}], 1")
                else: A(f"  s_mov_b64 exec, s[{64+2*k}:{65+2*k}]"); A(f"  s_cbranch_execz L_fin{k}")
                A(f"  buffer_load_dwordx4 v[{H+4*k}:{H+4*k+3}], v{vPa}, s[36:39], s{27+k} offen {ylp}")
                if pp == 1: A(f"L_fin{k}:")
            A("  s_mov_b64 exec, -1")
        for _ in range(pp - 1):
            yround(); A(f"  s_sleep {pstag}")
        A("L_fin:")
        if fslp: A(f"  s_sleep {fslp}")
        yround()
        A(f"  s_waitcnt vmcnt({8*(pp-1)})")
        for k in range(8):
            A(f"  v_perm_b32 v{vS}, v{H+4*k+1}, v{H+4*k}, s24"); A(f"  v_perm_b32 v{vS+1}, v{H+4*k+3}, v{H+4*k+2}, s25")
            A(f"  v_or_b32 v{vS}, v{vS}, v{vS+1}"); A(f"  v_cmp_ne_u32 s[{64+2*k}:{65+2*k}], s46, v{vS}")
        A("  s_or_b64 s[48:49], s[64:65], s[66:67]")
        for k in range(2, 8): A(f"  s_or_b64 s[48:49], s[48:49], s[{64+2*k}:{65+2*k}]")
        A("  s_sub_u32 s50, s50, 1"); A("  s_cbranch_scc1 L_fgo")
        A("  s_cmp_eq_u64 s[48:49], 0"); A("  s_cbranch_scc0 L_fin")
        A("L_fgo:")
        stamp("h", "ygot")
        Y = H + 32
        for i in range(32): A(f"  v_and_b32 v{Y+i}, s26, v{H+i}")
        for st in (16, 8, 4):
            for i in range(0, st, 2): A(f"  v_pk_add_f32 v[{Y+i}:{Y+i+1}], v[{Y+i}:{Y+i+1}], v[{Y+st+i}:{Y+st+i+1}]")
        A("  s_nop 1")
        A(f"  v_permlane32_swap_b32 v{Y}, v{Y+1}"); A(f"  v_permlane32_swap_b32 v{Y+2}, v{Y+3}"); A("  s_nop 0")
        A(f"  v_add_f32 v{Y}, v{Y}, v{Y+1}"); A(f"  v_add_f32 v{Y+2}, v{Y+2}, v{Y+3}"); A("  s_nop 1")
        A(f"  v_permlane16_swap_b32 v{Y}, v{Y+2}"); A("  s_nop 0")
        A(f"  v_add_f32 v{Y}, v{Y}, v{Y+2}")
        for sh in (4, 8):
            A("  s_nop 1"); A(f"  v_add_f32_dpp v{Y}, v{Y}, v{Y} row_ror:{sh} row_mask:0xf bank_mask:0xf")
        A(f"  v_cvt_pk_bf16_f32 v{Y}, v{Y}, v{Y}")
        A("  s_mov_b32 exec_lo, 0x000f000f"); A("  s_mov_b32 exec_hi, 0x000f000f")
        A(f"  buffer_store_short v{Y}, v{vQa}, s[12:15], s22 offen")
        if not dbg:
            A("  s_cmp_lg_u32 s2, 0"); A("  s_cbranch_scc1 L_nz")
            A("  s_mov_b64 exec, 1")
            A(f"  buffer_store_dword v{vZero}, v{vZero}, s[8:11], 0 offen sc1")
            A("L_nz:")
        A(";HOP -")
        if not stamps: A("  s_endpgm")
    if stamps:
        A("L_hst:")
        A("  s_waitcnt vmcnt(0)")
        stamp("h", "hend")
        dump_stamps("h", 1)
        A("  s_endpgm")
        sn = names["s"]; hn = names["h"]
        L.insert(2, "; stamps: start id " + " ".join((sn[1:] + ["id"] * 6)[:6]) + " " + " ".join((hn + ["id"] * 8)[:7]) + " last")
    n_k2 = len(L)
    A(f".globl {K2}"); A(".p2align 8"); A(f".type {K2},@function"); A(f"{K2}:")
    A("  s_cmp_ge_u32 s2, 160"); A("  s_cbranch_scc1 L2_end")
    A("  s_load_dwordx2 s[4:5], s[0:1], 96"); A("  s_load_dwordx2 s[8:9], s[0:1], 80")
    A("  s_and_b32 s3, s2, 3              ; pb"); A("  s_lshr_b32 s12, s2, 2")
    A("  v_lshrrev_b32 v1, 2, v0"); A("  v_and_b32 v2, 3, v0")
    A("  v_mul_u32_u24 v3, 5120, v1"); A("  v_lshl_add_u32 v3, v2, 4, v3")
    A("  s_mul_i32 s13, s3, 327680"); A("  s_lshl_b32 s14, s12, 6"); A("  s_add_u32 s13, s13, s14")
    A("  s_add_u32 s17, s13, 81920"); A("  s_add_u32 s18, s13, 163840"); A("  s_add_u32 s19, s13, 245760")
    A(f"  s_mov_b32 s6, {WS}"); A("  s_mov_b32 s7, 0x20000"); A("  s_mov_b32 s10, 5120"); A("  s_mov_b32 s11, 0x20000")
    A("  s_and_b32 s15, s3, 1"); A("  s_mul_i32 s15, s15, 2560"); A("  s_lshr_b32 s16, s3, 1"); A("  s_mul_i32 s16, s16, 1280")
    A("  s_add_u32 s15, s15, s16"); A("  s_lshl_b32 s16, s12, 5"); A("  s_add_u32 s15, s15, s16")
    A("  v_lshlrev_b32 v6, 3, v2")
    A("  s_waitcnt lgkmcnt(0)")
    for k in range(8):
        A(f"  buffer_load_dwordx4 v[{8+4*k}:{11+4*k}], v3, s[4:7], s{(13,17,18,19)[k//2]} offen offset:{2560*(k%2)}")
    for k in range(1, 8):
        A(f"  s_waitcnt vmcnt({7-k})")
        for r in range(4): A(f"  v_add_f32 v{8+r}, v{8+r}, v{8+4*k+r}")
    for sh in (4, 8):
        for r in range(4): A(f"  v_add_f32_dpp v{8+r}, v{8+r}, v{8+r} row_ror:{sh} row_mask:0xf bank_mask:0xf")
    for sw in ("v_permlane32_swap_b32", "v_permlane16_swap_b32"):
        for r in range(4): A(f"  v_mov_b32 v{12+r}, v{8+r}")
        for r in range(4): A(f"  {sw} v{8+r}, v{12+r}")
        for r in range(4): A(f"  v_add_f32 v{8+r}, v{8+r}, v{12+r}")
    A("  v_cvt_pk_bf16_f32 v8, v8, v9"); A("  v_cvt_pk_bf16_f32 v9, v10, v11")
    A("  s_mov_b64 exec, 15")
    A("  buffer_store_dwordx2 v[8:9], v6, s[8:11], s15 offen")
    A("L2_end:"); A("  s_endpgm")
    if fuse: del L[n_k2:]
    import re
    def isize(l):
        op = l.split()[0]
        lit = any(not (-16 <= int(t, 0) <= 64) for t in re.findall(r"(?<![\w\[:])(-?(?:0x[0-9a-f]+|\d+))(?![\w\]:])", " ".join(l.split(";")[0].split()[1:])))
        if op in ("s_waitcnt", "s_nop", "s_barrier", "s_sleep", "s_branch", "s_endpgm") or op.startswith("s_cbranch"): return 4
        if op.startswith("s_load") or op.startswith("s_mem"): return 8
        if op.startswith("s_"): return 8 if lit else 4
        return 8
    chains = {"t": warm >= 1, "k": warm >= 2}
    cnt = {"t": 0, "k": 0}
    out = []; cur = None; acc = 0
    for l in L:
        if l.startswith(";HOP"):
            c = l.split()[1]; cur = c if chains.get(c) else None; acc = hopb
            continue
        if cur and l.startswith("  "):
            if acc >= hopb:
                out.append(f"L_hop_{cur}_{cnt[cur]}:"); out.append(f"  s_cbranch_execz L_hop_{cur}_{cnt[cur]+1}"); cnt[cur] += 1; acc = 4
            acc += isize(l)
        out.append(l)
    for c in chains:
        if chains[c]:
            out.append(f"L_hop_{c}_{cnt[c]}:"); out.append("  s_mov_b64 exec, -1"); out.append(f"  s_branch L_back_{c}")
    L[:] = out
    A('.section .rodata,"a"')
    for kn, nv, acc, ns in ((KN, ACC + NA, ACC, 102), (K2, 40, 40, 24))[:1 if fuse else 2]:
        A(".p2align 6"); A(f".amdhsa_kernel {kn}")
        A(f"  .amdhsa_next_free_vgpr {nv}"); A(f"  .amdhsa_next_free_sgpr {ns}"); A(f"  .amdhsa_accum_offset {acc}")
        A("  .amdhsa_group_segment_fixed_size 0"); A("  .amdhsa_kernarg_size 104"); A("  .amdhsa_user_sgpr_count 2")
        A("  .amdhsa_user_sgpr_kernarg_segment_ptr 1"); A("  .amdhsa_system_sgpr_workgroup_id_x 1")
        A(".end_amdhsa_kernel")
    open(name, "w").write("\n".join(L) + "\n")
    return name
if __name__ == "__main__":
    if len(sys.argv) > 2:
        hdr = open("concat_heads__gqa_block_cached__mha_block_cached__decode.s.ref").read().split("; Override launch")[0]
        print(gen(name=sys.argv[2], header=hdr, **eval(sys.argv[1])))
    else:
        print(" ".join(gen(**kw) for kw in eval(sys.argv[1])))
```

```python
import sys, math, struct
KN = "concat_heads__gqa_block_cached__mha_block_cached__decode_kernel"
WS = 836768768
KVBYTES = 201326592
WBYTES = 7864320
def f32hex(x): return "0x%08x" % struct.unpack("<I", struct.pack("<f", x))[0]

DOC = """;
; ---------------------------------------------------------------------------------------------------------
; ---------------------------------------------------------------------------------------------------------"""

def gen(name="f.s", header="", stamps=0, curve=False,
        lev=(6, 150, 15, -200), kap=205, slp=32, lper=8, dec=3, sstep=3, ep=True, ep0=8, epp=30, epw=2,
        wqd=7, d0=5, dn=3, dl=5, ej=28, nslp0=16, nslp=8, nloc=24,
        t_q=16, t_a=150, t_c=178, t_ml=193, t_w=212, t_f=241, nfl=2, share=True, gj=16, hw=12, t_g=229,
        fslp0=13, fslp1=12, fslp2=0, ysp="sc1", ylp="sc1", pp=2, pstag=8, SPIN=200000, YS=2688, OS=640):
    L = []; A = L.append
    def C(txt): A("  ; " + txt)
    L_CTL = 0
    L_W = 64
    L_C = L_W + 256
    L_E = L_C + 512
    L_ML = L_E + 256
    L_Q = L_ML + 512
    L_P = L_Q + 17 * 384
    PROW = 272; PWAVE = 8 * PROW
    L_Y = L_P + 4 * PWAVE + 64
    L_O = L_Y + 4096
    LDS = L_O + 16 * 6144
    assert L_Y % 16 == 0 and L_O % 16 == 0 and L_Q % 16 == 0 and L_P % 16 == 0
    W_O = 2 << 20
    W_Q = 6 << 20
    W_ML = W_Q + (128 << 10)
    W_B = W_ML + (128 << 10)
    W_G = W_B + (128 << 10)
    QLOC = 512 << 10
    GEN = 0x5aa5c33c
    vLane, vKV, vW, vZero = 1, 2, 3, 4
    vT0, vT1, vT2, vT3 = 5, 6, 7, 8
    vPa, vQa, vDa, vMLa, vCa, vProg, vMode = 9, 10, 11, 12, 13, 14, 15
    vM = 16; vB = 20; vQ = 28; vS = 40; vD = 48; vRing = 60
    vX = vQ
    NV = vRing + 96
    if curve: vCv = NV; NV += 2
    ACC = (NV + 3) // 4 * 4
    NA = 80
    H = vRing
    def ring(s, t): return vRing + 12 * s + 4 * t
    names = {"s": [], "h": []}
    sets = {1: ("start", "preB1", "ring", "B2", "vend", "oready", "end", "nonce", "qtab", "flush0", "flushed", "ygot", "hend"),
            2: ("start", "vend", "woiss", "oready", "ystore", "end", "flush0", "flushed", "hready", "final0", "ygot", "hend")}
    def stamp(who, nm, again=False):
        if nm not in sets.get(stamps, ()): return
        if nm not in names[who]: names[who].append(nm)
        k = names[who].index(nm); assert k < 8
        A(f"  s_memrealtime s[{84+2*k}:{85+2*k}]")
    def dump_stamps(who, rec):
        n = len(names[who])
        A("  s_getreg_b32 s100, hwreg(HW_REG_XCC_ID)"); A("  s_getreg_b32 s101, hwreg(HW_REG_HW_ID)")
        A("  s_waitcnt vmcnt(0) lgkmcnt(0)")
        A(f"  s_lshl_b32 s47, s2, 7"); A(f"  s_add_u32 s47, s47, {WS - (1<<20) + 64*rec}")
        if who == "s": regs = [84, 85, 100, 101] + sum([[84+2*min(k, n-1), 85+2*min(k, n-1)] for k in range(1, 7)], [])
        else: regs = sum([[84+2*min(k, n-1), 85+2*min(k, n-1)] for k in range(8)], [])
        A("  s_mov_b64 exec, 1")
        for i in range(16): A(f"  v_mov_b32 v{vRing+i}, s{regs[i]}")
        for i in range(4): A(f"  buffer_store_dwordx4 v[{vRing+4*i}:{vRing+4*i+3}], v{vZero}, s[36:39], s47 offen offset:{16*i}")

    A(header + f"; @launch grid=(256,1,1) block=(320,1,1) lds={LDS}")
    A(DOC)
    A('.amdgcn_target "amdgcn-amd-amdhsa--gfx950"')
    A(".text"); A(f".globl {KN}"); A(".p2align 8"); A(f".type {KN},@function"); A(f"{KN}:")
    A("  s_cmp_ge_u32 s2, 256"); A("  s_cbranch_scc1 L_end")
    A("  s_load_dwordx16 s[64:79], s[0:1], 0")
    A("  s_load_dwordx4 s[80:83], s[0:1], 64")
    A("  s_load_dwordx4 s[40:43], s[0:1], 88")
    if curve: A("  s_memrealtime s[96:97]"); A(f"  v_mov_b32 v{vCv}, 0"); A(f"  v_mov_b32 v{vCv+1}, 0")
    stamp("s", "start"); names["h"] = ["hstart"] if stamps else []
    A(f"  v_lshrrev_b32 v{vT0}, 6, v0"); A(f"  v_and_b32 v{vLane}, 63, v0")
    A(f"  v_readfirstlane_b32 s5, v{vT0}     ; wave")
    A(f"  v_lshrrev_b32 v{vT1}, 3, v{vLane}    ; l/8"); A(f"  v_and_b32 v{vT2}, 7, v{vLane}        ; l%8")
    A("  s_and_b32 s3, s2, 7             ; x"); A("  s_lshr_b32 s4, s2, 3            ; j")
    A("  s_cmp_eq_u32 s5, 4"); A("  s_cbranch_scc1 L_tag")
    C("q item of workgroup j < 24: problem (j>>2)&1, head 8*(j&3)+x, 64-column block j>>3; rows 160*w + 20*(l/8) + i")
    A(f"  v_mul_u32_u24 v{vW}, {20*12288}, v{vT1}"); A(f"  v_lshl_add_u32 v{vW}, v{vT2}, 4, v{vW}")
    A("  s_and_b32 s28, s2, 31"); A("  s_mul_i32 s28, s28, 3"); A("  s_lshr_b32 s47, s2, 6"); A("  s_add_u32 s28, s28, s47"); A("  s_lshl_b32 s28, s28, 7")
    A(f"  s_mul_i32 s47, s5, {160*12288}"); A("  s_add_u32 s28, s28, s47")
    A(f"  s_mov_b32 s26, {WBYTES}"); A("  s_mov_b32 s27, 0x20000")
    A("  s_bitcmp1_b32 s2, 5")
    A("  s_waitcnt lgkmcnt(0)")
    A("  s_cselect_b32 s24, s80, s70"); A("  s_cselect_b32 s25, s81, s71")
    A("  s_cselect_b32 s32, s74, s64"); A("  s_cselect_b32 s33, s75, s65")
    def kv_load(n):
        s, t = divmod(n, 3)
        A(f"  buffer_load_dwordx4 v[{ring(s,t)}:{ring(s,t)+3}], v{vKV}, s[8:11], s12 offen offset:{128*t} nt")
        if t == 2 and s < 7:
            d = ((s + 1) * sstep % 8 - s * sstep % 8) * 393216
            A(f"  s_add_u32 s12, s12, {d}" if d > 0 else f"  s_sub_u32 s12, s12, {-d}")
    def kvsetup():
        A(f"  v_mul_u32_u24 v{vKV}, 384, v{vT1}"); A(f"  v_lshl_add_u32 v{vKV}, v{vT2}, 4, v{vKV}")
        A("  s_lshl_b32 s13, s4, 2"); A("  s_add_u32 s13, s13, s5"); A("  s_mul_i32 s13, s13, 3072")
        A("  s_mul_i32 s47, s3, 3145728"); A("  s_add_u32 s13, s13, s47"); A("  s_mov_b32 s12, s13")
        A("  s_mov_b32 s8, s66"); A("  s_mov_b32 s9, s67"); A(f"  s_mov_b32 s10, {KVBYTES}"); A("  s_mov_b32 s11, 0x20000")
    def masks():
        C("masks that put a bf16 on the diagonal of the first MFMA operand")
        A(f"  v_and_b32 v{vT0}, 1, v{vT2}"); A(f"  v_lshlrev_b32 v{vT0}, 4, v{vT0}")
        A(f"  v_mov_b32 v{vT3}, 0xffff"); A(f"  v_lshlrev_b32 v{vT0}, v{vT0}, v{vT3}")
        A(f"  v_lshrrev_b32 v{vT3}, 1, v{vT2}")
        for q in range(4):
            A(f"  v_cmp_eq_u32 vcc, {q}, v{vT3}"); A("  s_nop 1"); A(f"  v_cndmask_b32 v{vM+q}, 0, v{vT0}, vcc")
    def consts():
        A(f"  v_mov_b32 v{vZero}, 0")
        masks()
        A("  s_mov_b32 s54, 0x00ff00ff"); A("  s_mov_b32 s55, 0xff00ff00")
    wosetup = ["  s_cmp_ge_u32 s4, 16", "  s_cselect_b32 s24, s82, s72", "  s_cselect_b32 s25, s83, s73",
               "  s_lshr_b32 s47, s4, 2", "  s_and_b32 s47, s47, 3", "  s_lshl_b32 s47, s47, 3", "  s_add_u32 s47, s47, s3", "  s_mul_i32 s47, s47, 12",
               "  s_and_b32 s48, s4, 3", "  s_add_u32 s47, s47, s48", f"  s_mul_i32 s47, s47, {16*1280}", "  s_lshl_b32 s48, s5, 8", "  s_add_u32 s28, s47, s48",
               f"  v_lshrrev_b32 v{vW}, 4, v{vLane}", f"  v_mul_u32_u24 v{vW}, 1280, v{vW}", f"  v_and_b32 v{vT3}, 15, v{vLane}", f"  v_lshl_add_u32 v{vW}, v{vT3}, 4, v{vW}"]
    def wo_load(i, wait):
        if wait is not None: A(f"  s_waitcnt vmcnt({wait})")
        A(f"  buffer_load_dwordx4 a[{4*i}:{4*i+3}], v{vW}, s[24:27], s28 offen nt")
        if i < 11: A("  s_addk_i32 s28, 5120" if i % 4 < 3 else f"  s_add_u32 s28, s28, {81920 - 3*5120}")
    A("  s_cmp_ge_u32 s4, 24"); A("  s_cbranch_scc1 L_noq")
    def wq_load(i):
        A(f"  buffer_load_dwordx4 a[{4*i}:{4*i+3}], v{vW}, s[24:27], s28 offen nt")
        if i < 19: A("  s_addk_i32 s28, 12288")
    nq = wqd; assert 2 * nq <= 20
    for i in range(nq): wq_load(i)
    A("  s_branch L_xld")
    A("L_tag:")
    C("helper wave: workgroup 0 publishes the launch tag")
    A("  s_memrealtime s[48:49]")
    A(f"  v_mov_b32 v{vZero}, 0")
    A("  s_mov_b32 s10, 256"); A("  s_mov_b32 s11, 0x20000")
    A("  s_waitcnt lgkmcnt(0)")
    A("  s_mov_b32 s8, s40"); A("  s_mov_b32 s9, s41")
    A("  s_or_b32 s46, s48, 1"); A("  s_mul_i32 s46, s46, 0x9e3779b1")
    A("  s_cmp_lg_u32 s2, 0"); A("  s_cbranch_scc1 L_helper")
    A(f"  v_mov_b32 v{vT0}, s46"); A("  s_mov_b64 exec, 1")
    A(f"  buffer_store_dword v{vT0}, v{vZero}, s[8:11], 0 offen sc1")
    A("  s_mov_b64 exec, -1"); A("  s_branch L_helper")
    A("L_xld:")
    A(f"  v_mul_u32_u24 v{vT0}, 40, v{vT1}"); A("  s_mul_i32 s29, s5, 320")
    A("  s_mov_b32 s34, 2560"); A("  s_mov_b32 s35, 0x20000")
    for b in range(2):
        A(f"  buffer_load_dwordx4 v[{vX+10*b}:{vX+10*b+3}], v{vT0}, s[32:35], s29 offen offset:{1280*b}")
        A(f"  buffer_load_dwordx4 v[{vX+10*b+4}:{vX+10*b+7}], v{vT0}, s[32:35], s29 offen offset:{1280*b+16}")
        A(f"  buffer_load_dwordx2 v[{vX+10*b+8}:{vX+10*b+9}], v{vT0}, s[32:35], s29 offen offset:{1280*b+32}")
    consts(); kvsetup()
    A("  s_mov_b32 s52, 0x01000100"); A("  s_mov_b32 s53, 0x03020302")
    def qstep(i):
        for b in range(2):
            A(f"  v_perm_b32 v{vT0}, v{vX+10*b+i//2}, v{vX+10*b+i//2}, s{52+(i&1)}")
            for q in range(4): A(f"  v_and_b32 v{vB+4*b+q}, v{vT0}, v{vM+q}")
        for b in range(2):
            if b == 1: A("  s_nop 0")
            c = f"v[{vD+4*b}:{vD+4*b+3}]" if i else "0"
            A(f"  v_mfma_f32_16x16x32_bf16 v[{vD+4*b}:{vD+4*b+3}], v[{vB+4*b}:{vB+4*b+3}], a[{4*i}:{4*i+3}], {c}")
    C("q projection for both batch rows; the first K tiles follow the wq rows")
    nk = 0; done = 0
    for i in range(20):
        A(f"  s_waitcnt vmcnt({nq - 1 - i + nk + (6 if i < wqd else 0)})")
        if nq < 20: wq_load(nq); nq += 1
        else:
            while (19 - i + nk) < d0: kv_load(nk); nk += 1
        if i >= wqd:
            for _ in range(2):
                if done <= i: qstep(done); done += 1
    assert done == 20 and nk == d0
    A(f"  v_lshrrev_b32 v{vT0}, 5, v{vLane}"); A(f"  v_lshlrev_b32 v{vT0}, 9, v{vT0}")
    A(f"  v_lshl_add_u32 v{vT0}, v{vT2}, 5, v{vT0}")
    A(f"  v_and_b32 v{vT3}, 16, v{vLane}"); A(f"  v_add_u32 v{vT0}, v{vT0}, v{vT3}")
    A("  s_lshl_b32 s47, s5, 10"); A(f"  v_add_u32 v{vT0}, s47, v{vT0}")
    A("  s_nop 0")
    A("  s_mov_b64 exec, s[54:55]")
    for b in range(2): A(f"  ds_write_b128 v{vT0}, v[{vD+4*b}:{vD+4*b+3}] offset:{L_Y + 256*b}")
    A("  s_mov_b64 exec, -1")
    stamp("s", "preB1")
    A("  s_waitcnt lgkmcnt(0)"); A("  s_barrier                       ; B1: q partials")
    A("  s_branch L_qdone")
    A("L_noq:")
    kvsetup()
    for n in range(dn): kv_load(n)
    consts()
    for n in range(dn, d0):
        A(f"  s_waitcnt vmcnt({dn-1})"); kv_load(n)
    stamp("s", "preB1")
    A("L_qdone:")
    C("fill the ring with the first head while q is exchanged")
    rest = []
    R = rest.append
    R([f"  s_mul_i32 s47, s5, {PWAVE}", f"  s_add_u32 s47, s47, {L_P}", f"  v_mul_u32_u24 v{vPa}, {PROW}, v{vT1}", f"  v_add_u32 v{vPa}, s47, v{vPa}"])
    R([f"  v_lshlrev_b32 v{vQa}, 4, v{vT2}", f"  s_lshl_b32 s47, s5, 3", f"  v_mov_b32 v{vMLa}, s47", f"  s_lshl_b32 s47, s5, 2", f"  v_mov_b32 v{vCa}, s47", f"  v_mov_b32 v{vProg}, 0"])
    R([f"  v_lshrrev_b32 v{vDa}, 5, v{vLane}", f"  v_mul_u32_u24 v{vDa}, 768, v{vDa}", f"  v_lshl_add_u32 v{vDa}, v{vT2}, 5, v{vDa}",
       f"  v_and_b32 v{vT3}, 16, v{vLane}", f"  v_add_u32 v{vDa}, v{vDa}, v{vT3}", "  s_mul_i32 s47, s5, 1536", f"  s_add_u32 s47, s47, {L_O}", f"  v_add_u32 v{vDa}, s47, v{vDa}"])
    R(["  s_mov_b32 s16, s68", "  s_mov_b32 s17, s69", "  s_mov_b32 s18, s76", "  s_mov_b32 s19, s77", "  s_mov_b32 s20, s78", "  s_mov_b32 s21, s79"])
    R(wosetup)
    R(["  s_mov_b32 s36, s42", "  s_mov_b32 s37, s43", f"  s_mov_b32 s38, {WS}", "  s_mov_b32 s39, 0x20000"])
    R([f"  s_mov_b32 s58, {f32hex(192 ** -0.5 * math.log2(math.e))}      ; log2(e)/sqrt(192)", "  s_mov_b32 s44, 0", f"  s_mov_b32 s45, {lev[-2] + 1}", "  s_mov_b32 s30, 0"])
    A("  s_cmp_ge_u32 s4, 24"); A("  s_cselect_b64 vcc, -1, 0")
    A(f"  s_cmp_ge_u32 s4, {ej}"); A("  s_cselect_b64 vcc, 0, vcc")
    for n in range(d0, 24):
        A(f"  s_waitcnt vmcnt({d0-1})")
        A(f"  s_cbranch_vccz L_rf{n}"); A(f"  s_waitcnt vmcnt({dn-1})"); A(f"L_rf{n}:")
        kv_load(n)
        if rest:
            for x in rest.pop(0): A(x)
    assert not rest
    if ej < 32:
        C("workgroups that wait for the very last partial o fetch their wo rows now")
        A(f"  s_cmp_lt_u32 s4, {ej}"); A("  s_cbranch_scc1 L_noearly")
        for i in range(12): wo_load(i, d0 - 1)
        A("L_noearly:")
    stamp("s", "ring")
    A("  s_barrier")
    for t in range(3): A(f"  ds_read_b128 v[{vQ+4*t}:{vQ+4*t+3}], v{vQa} offset:{L_Q + 128*t}")
    stamp("s", "B2")
    A("  s_waitcnt lgkmcnt(0)")
    def throttle(tag):
        A(f"  s_waitcnt vmcnt({lev[0]})")
        for k, th in enumerate(lev[1:]):
            A(f"  s_cmpk_gt_i32 s45, {th & 0xffff:#x}"); A(f"  s_cbranch_scc1 {tag}"); A(f"  s_waitcnt vmcnt({lev[0]-1-k})")
        A(f"{tag}:")
    def switch(tag):
        C("round it consumes head it and fetches head it+1; every 8 rounds the next buffer")
        A("  s_add_u32 s47, s44, 1"); A("  s_and_b32 s47, s47, 7"); A(f"  s_cbranch_scc1 {tag}")
        A("  s_mov_b32 s8, s16"); A("  s_mov_b32 s9, s17")
        for k in range(4): A(f"  s_mov_b32 s{16+k}, s{18+k}")
        A(f"{tag}:")
        A(f"  s_mul_i32 s47, s47, {8*3145728}"); A("  s_add_u32 s12, s13, s47")
    def body(tag, gaps):
        for n in range(24):
            s, j = divmod(n, 3)
            for x in gaps.get(n, []): A(x)
            if j == 2:
                A("  s_waitcnt lgkmcnt(0)")
                A(f"  v_readfirstlane_b32 s31, v{vMode}")
                A(f"  s_mul_i32 s56, s56, {kap}"); A("  s_lshr_b32 s56, s56, 6"); A("  s_sub_u32 s56, s56, s30"); A("  s_addk_i32 s30, 128")
                A("  s_add_u32 s56, s56, s31"); A("  s_sext_i32_i16 s56, s56")
                A("  s_bitcmp0_b32 s31, 31"); A("  s_cselect_b32 s45, s56, s45")
            throttle(f"{tag}_{n}")
            kv_load(n)
            if j == 1:
                A(f"  ds_read_b32 v{vMode}, v{vZero} offset:{L_CTL+32}"); A("  s_memrealtime s[56:57]")
            if j == 2:
                A(f"  v_add_u32 v{vProg}, 1, v{vProg}"); A(f"  ds_write_b32 v{vCa}, v{vProg} offset:{L_CTL+16}")
    def xred(op, t, u):
        return [f"  s_nop 1", f"  {op}_dpp v{t}, v{t}, v{t} row_ror:8 row_mask:0xf bank_mask:0xf",
                f"  v_mov_b32 v{u}, v{t}", "  s_nop 1", f"  v_permlane16_swap_b32 v{t}, v{u}", "  s_nop 0", f"  {op} v{t}, v{t}, v{u}",
                f"  v_mov_b32 v{u}, v{t}", "  s_nop 1", f"  v_permlane32_swap_b32 v{t}, v{u}", "  s_nop 0", f"  {op} v{t}, v{t}, v{u}"]
    kg = {}
    for s in range(4):
        for j in range(2):
            T = 2 * s + j
            kg[3*s+j] = [f"  s_waitcnt vmcnt({3*(7-T) + 3*s + j})"] + \
                        [f"  v_dot2_f32_bf16 v{vS+T}, v{ring(T,0)+k}, v{vQ+k}, {('v%d' % (vS+T)) if k else '0'}" for k in range(12)]
        g = []
        for pat in ("quad_perm:[1,0,3,2]", "quad_perm:[2,3,0,1]", "row_half_mirror"):
            g += ["  s_nop 0"] + [f"  v_add_f32_dpp v{vS+T}, v{vS+T}, v{vS+T} {pat} row_mask:0xf bank_mask:0xf" for T in (2*s, 2*s+1)]
        kg[3*s+2] = g
    kg[12] = [f"  v_add_u32 v{vQa}, 384, v{vQa}",
              f"  v_max3_f32 v{vT0}, v{vS}, v{vS+1}, v{vS+2}", f"  v_max3_f32 v{vT0}, v{vT0}, v{vS+3}, v{vS+4}",
              f"  v_max3_f32 v{vT0}, v{vT0}, v{vS+5}, v{vS+6}", f"  v_max_f32 v{vT0}, v{vT0}, v{vS+7}"] + \
             [f"  ds_read_b128 v[{vQ+4*t}:{vQ+4*t+3}], v{vQa} offset:{L_Q + 128*t}" for t in range(3)]
    kg[13] = xred("v_max_f32", vT0, vT1) + [f"  v_mul_f32 v{vD}, s58, v{vT0}"]
    kg[14] = [f"  v_fma_f32 v{vS+i}, v{vS+i}, s58, -v{vD}" for i in range(8)]
    kg[15] = [f"  v_exp_f32 v{vS+i}, v{vS+i}" for i in range(8)]
    kg[16] = [f"  v_add_f32 v{vD+1}, v{vS}, v{vS+1}"] + [f"  v_add_f32 v{vD+1}, v{vD+1}, v{vS+i}" for i in range(2, 8)]
    kg[17] = [f"  v_cvt_pk_bf16_f32 v{vS+i}, v{vS+i}, v{vS+i}" for i in range(8)]
    kg[18] = [f"  ds_write_b128 v{vPa}, v[{vS}:{vS+3}]", f"  ds_write_b128 v{vPa}, v[{vS+4}:{vS+7}] offset:16", f"  v_add_u32 v{vPa}, 32, v{vPa}"]
    kg[19] = xred("v_add_f32", vD+1, vT1)
    kg[21] = [f"  ds_write_b64 v{vMLa}, v[{vD}:{vD+1}] offset:{L_ML}", f"  v_add_u32 v{vMLa}, 32, v{vMLa}"]
    def vtile(T, wait):
        b = vB + 4 * (T & 1)
        g = [f"  v_and_b32 v{b+q}, v{vS+T}, v{vM+q}" for q in range(4)] + [f"  s_waitcnt vmcnt({wait})", "  s_nop 0"]
        for t in range(3):
            c = f"v[{vD+4*t}:{vD+4*t+3}]" if T else "0"
            g.append(f"  v_mfma_f32_16x16x32_bf16 v[{vD+4*t}:{vD+4*t+3}], v[{b}:{b+3}], v[{ring(T,t)}:{ring(T,t)+3}], {c}")
        return g
    dump = ["  s_mov_b64 exec, s[54:55]"] + [f"  ds_write_b128 v{vDa}, v[{vD+4*t}:{vD+4*t+3}] offset:{256*t}" for t in range(3)] + ["  s_mov_b64 exec, -1"]
    pread = [f"  ds_read_b128 v[{vS}:{vS+3}], v{vPa}", f"  ds_read_b128 v[{vS+4}:{vS+7}], v{vPa} offset:16"]
    vg = {}
    for s in range(4):
        for j in range(2): vg[3*s+j] = vtile(2*s+j, 3*(7-(2*s+j)) + 3*s + j)
    vg[12] = ["  s_nop 7"] + dump + [f"  v_add_u32 v{vDa}, 6144, v{vDa}", f"  v_add_u32 v{vPa}, 32, v{vPa}"]
    vg[13] = pread
    def cstamp():
        if not curve: return
        A("  s_memrealtime s[98:99]"); A("  s_mov_b32 m0, s44"); A("  s_waitcnt lgkmcnt(0)")
        A(f"  v_writelane_b32 v{vCv}, s98, m0"); A(f"  v_writelane_b32 v{vCv+1}, s99, m0")
    A("L_kloop:")
    switch("L_ksw")
    body("L_k", kg); cstamp()
    A("  s_add_u32 s44, s44, 1"); A("  s_and_b32 s47, s44, 7"); A("  s_cbranch_scc1 L_kloop")
    A(f"  v_subrev_u32 v{vPa}, 256, v{vPa}")
    for x in pread: A(x)
    A("  s_waitcnt lgkmcnt(0)")
    A("L_vloop:")
    switch("L_vsw")
    body("L_v", vg); cstamp()
    A("  s_add_u32 s44, s44, 1")
    A("  s_cmp_eq_u32 s44, 31"); A("  s_cbranch_scc1 L_last")
    A("  s_and_b32 s47, s44, 7"); A("  s_cbranch_scc1 L_vloop")
    A(f"  v_subrev_u32 v{vPa}, 256, v{vPa}")
    A("  s_branch L_kloop")
    A("L_last:")
    C("last round: the wo rows are the end of the stream and cover the exchange of the last partial o")
    def last(m):
        sched = {1: [0, 1], 2: [2, 3], 3: [4, 5], dl - 1: [6], dl: [7]}
        for k in range(max(m, dl + 1)):
            for T in sched.get(k, []):
                for x in vtile(T, 3*(7-T) + min(k, m)): A(x)
            if k == dl:
                A(f"  v_add_u32 v{vProg}, 8, v{vProg}"); A("  s_nop 5")
                for x in dump: A(x)
                A(f"  ds_write_b32 v{vCa}, v{vProg} offset:{L_CTL+16}")
                stamp("s", "vend")
            if k < m: wo_load(k, dl - 1)
        stamp("s", "woiss")
    if ej < 32:
        A(f"  s_cmp_lt_u32 s4, {ej}"); A("  s_cbranch_scc1 L_last1")
        last(0)
        A("  s_branch L_proj")
        A("L_last1:")
    last(12)
    A("L_proj:")
    C("all five waves: y[2][128 columns] = o[2][48 rows] * wo")
    A(f"  v_and_b32 v{vT0}, 8, v{vLane}"); A(f"  v_and_b32 v{vT1}, 48, v{vLane}"); A(f"  v_lshl_add_u32 v{vT0}, v{vT0}, 5, v{vT1}      ; (16*b + g)*16")
    A(f"  v_lshrrev_b32 v{vT1}, 5, v{vLane}"); A(f"  v_mul_u32_u24 v{vT1}, {128*YS - 512}, v{vT1}"); A(f"  v_lshl_add_u32 v{vT1}, v{vLane}, 4, v{vT1}")
    A("  s_lshr_b32 s47, s4, 4"); A(f"  s_mul_i32 s47, s47, {256*YS}")
    A("  s_and_b32 s48, s2, 127"); A(f"  s_mul_i32 s48, s48, {YS}"); A("  s_add_u32 s47, s47, s48")
    A("  s_lshl_b32 s48, s5, 9"); A("  s_add_u32 s47, s47, s48")
    for i in range(4): A(f"  s_mov_b32 s{52+i}, 0x0706050{i}")
    A("  s_waitcnt lgkmcnt(0)")
    A("  s_barrier")
    G = vRing
    for u in range(4): A(f"  ds_read_b128 v[{G+4*u}:{G+4*u+3}], v{vT0} offset:{L_C + 64*u}")
    if stamps:
        A("  s_cmp_eq_u32 s5, 4"); A("  s_cbranch_scc1 L_nost"); stamp("s", "oready"); A("L_nost:")
    A("  s_waitcnt lgkmcnt(0)")
    def diag(i):
        tp, u = divmod(i, 4)
        for q in range(4): A(f"  v_and_b32 v{G+16+4*i+q}, v{G+4*u+tp}, v{vM+q}")
    diag(0); diag(1)
    nd = 2
    for i in range(12):
        A(f"  s_waitcnt vmcnt({11-i})")
        cc = f"v[{vD}:{vD+3}]" if i else "0"
        A(f"  v_mfma_f32_16x16x32_bf16 v[{vD}:{vD+3}], v[{G+16+4*i}:{G+19+4*i}], a[{4*i}:{4*i+3}], {cc}")
        for _ in range(2 if i >= 2 else 1):
            if nd < 12: diag(nd); nd += 1
    A("  s_nop 7")
    C("the low byte of each value carries one byte of the launch tag")
    for r in range(4): A(f"  v_perm_b32 v{vD+r}, v{vD+r}, v{G+3}, s{52+r}")
    A(f"  buffer_store_dwordx4 v[{vD}:{vD+3}], v{vT1}, s[36:39], s47 offen {ysp}")
    A("  s_cmp_eq_u32 s5, 4"); A("  s_cbranch_scc1 L_final")
    if curve:
        A("  s_cmp_lg_u32 s5, 0"); A("  s_cbranch_scc1 L_end")
        A("  s_getreg_b32 s100, hwreg(HW_REG_XCC_ID)")
        A(f"  s_mul_i32 s47, s2, 144"); A(f"  s_add_u32 s47, s47, {WS - (1<<20)}")
        A(f"  v_lshlrev_b32 v{vT0}, 2, v{vLane}"); A(f"  v_add_u32 v{vT0}, 16, v{vT0}")
        A("  s_mov_b32 exec_lo, 0x55555555"); A("  s_mov_b32 exec_hi, 0")
        A(f"  buffer_store_dwordx2 v[{vCv}:{vCv+1}], v{vT0}, s[36:39], s47 offen")
        A("  s_mov_b64 exec, 1")
        A(f"  v_mov_b32 v{vRing}, s96"); A(f"  v_mov_b32 v{vRing+1}, s97"); A(f"  v_mov_b32 v{vRing+2}, s100"); A(f"  v_mov_b32 v{vRing+3}, 0")
        A(f"  buffer_store_dwordx4 v[{vRing}:{vRing+3}], v{vZero}, s[36:39], s47 offen")
    if stamps:
        A("  s_cmp_lg_u32 s5, 0"); A("  s_cbranch_scc1 L_end")
        stamp("s", "ystore")
        A("  s_waitcnt vmcnt(0)")
        stamp("s", "end")
        dump_stamps("s", 0)
    A("L_end:"); A("  s_endpgm")
    vE = vD + 2
    A("L_helper:")
    A("  s_load_dwordx2 s[6:7], s[0:1], 80      ; out")
    A(f"  v_mov_b32 v{H}, 0"); A(f"  v_mov_b32 v{H+1}, 0"); A(f"  v_mov_b32 v{H+2}, 0"); A(f"  v_mov_b32 v{H+3}, 0"); A(f"  v_mov_b32 v{H+4}, -1")
    A(f"  ds_write_b128 v{vZero}, v[{H}:{H+3}] offset:{L_CTL+16}"); A(f"  ds_write_b32 v{vZero}, v{H+4} offset:{L_CTL+32}")
    A("  s_mov_b32 s36, s42"); A("  s_mov_b32 s37, s43"); A(f"  s_mov_b32 s38, {WS}"); A("  s_mov_b32 s39, 0x20000")
    masks()
    for x in wosetup: A(x)
    A(f"  s_mov_b32 s26, {WBYTES}"); A("  s_mov_b32 s27, 0x20000")
    A(f"  v_lshlrev_b32 v{vT0}, 3, v{vLane}"); A(f"  v_lshlrev_b32 v{vT3}, 4, v{vLane}"); A(f"  v_lshlrev_b32 v{vQa}, 2, v{vLane}")
    A(f"  s_mul_i32 s12, s3, {24*512}"); A(f"  s_add_u32 s12, s12, {W_Q}")
    A("  s_and_b32 s13, s4, 7"); A("  s_mul_i32 s13, s13, 3"); A("  s_lshr_b32 s14, s4, 3"); A("  s_add_u32 s13, s13, s14")
    A("  s_lshl_b32 s13, s13, 9"); A("  s_add_u32 s13, s13, s12")
    A("  s_add_u32 s14, s12, 4096"); A("  s_add_u32 s15, s12, 8192")
    A("  s_cmp_eq_u32 s2, 0"); A("  s_cbranch_scc1 L_nhave")
    A(f"  s_mov_b32 s50, {SPIN}")
    if nslp0: A(f"  s_sleep {nslp0}")
    A("L_nloop:")
    A(f"  buffer_load_dword v{H}, v{vZero}, s[8:11], 0 offen sc1"); A("  s_waitcnt vmcnt(0)")
    A(f"  v_readfirstlane_b32 s46, v{H}")
    A("  s_sub_u32 s50, s50, 1"); A("  s_cbranch_scc1 L_nhave")
    A("  s_cmp_lg_u32 s46, 0"); A("  s_cbranch_scc1 L_nhave")
    A(f"  s_sleep {nslp}"); A("  s_branch L_nloop")
    A("L_nhave:")
    stamp("h", "nonce")
    A("  s_waitcnt lgkmcnt(0)")
    A("  s_cmp_ge_u32 s4, 24"); A("  s_cbranch_scc1 L_hq2")
    A("  s_barrier                       ; B1")
    for k in range(8): A(f"  ds_read_b64 v[{H+2*k}:{H+2*k+1}], v{vT0} offset:{L_Y + 512*k}")
    for k in range(1, 8):
        A(f"  s_waitcnt lgkmcnt({7-k})")
        for r in range(2): A(f"  v_add_f32 v{H+r}, v{H+r}, v{H+2*k+r}")
    A(f"  v_cvt_pk_bf16_f32 v{vD}, v{H}, v{H+1}"); A(f"  v_mov_b32 v{vD+1}, s46")
    def qglob(tag):
        A("  s_cmp_ge_u32 s4, 24"); A(f"  s_cbranch_scc1 {tag}")
        A(f"  buffer_store_dwordx2 v[{vD}:{vD+1}], v{vT0}, s[36:39], s13 offen sc1")
        A(f"{tag}:")
    A(f"  s_add_u32 s47, s13, {QLOC}")
    A(f"  buffer_store_dwordx2 v[{vD}:{vD+1}], v{vT0}, s[36:39], s47 offen")
    A("L_hq2:")
    A(f"  v_and_b32 v{vT1}, 16, v{vLane}"); A(f"  v_mul_u32_u24 v{vT1}, 96, v{vT1}")
    A(f"  v_and_b32 v{vT2}, 15, v{vLane}"); A(f"  v_lshl_add_u32 v{vT1}, v{vT2}, 3, v{vT1}")
    A(f"  v_lshrrev_b32 v{vT2}, 5, v{vLane}"); A(f"  v_lshl_add_u32 v{vT1}, v{vT2}, 7, v{vT1}")
    A(f"  s_mov_b32 s50, {SPIN}")
    A("L_qg:")
    C("the first tries read the copy that a producer on this die left in L2, later ones the device-wide copy")
    A(f"  s_cmp_lg_u32 s50, {SPIN - nloc}"); A("  s_cbranch_scc1 L_qg1"); qglob("L_qg1")
    A(f"  s_cmp_gt_u32 s50, {SPIN - nloc}"); A(f"  s_cselect_b32 s47, {QLOC}, 0")
    A(f"  v_add_u32 v{vDa}, s47, v{vT3}")
    for k in range(12):
        A(f"  buffer_load_dwordx4 v[{H+4*k}:{H+4*k+3}], v{vDa}, s[36:39], s{(12,14,15)[k//4]} offen offset:{1024*(k%4)} sc1")
    A("  s_mov_b64 s[48:49], 0")
    for k in range(12):
        A(f"  s_waitcnt vmcnt({11-k})")
        for r in (1, 3):
            A(f"  v_cmp_ne_u32 vcc, s46, v{H+4*k+r}"); A("  s_or_b64 s[48:49], s[48:49], vcc")
    A("  s_sub_u32 s50, s50, 1"); A("  s_cbranch_scc1 L_qgo")
    A("  s_cmp_eq_u64 s[48:49], 0"); A("  s_cbranch_scc0 L_qg")
    A("L_qgo:")
    def qconst(item):
        sg, c = divmod(item, 3); return ((sg >> 2) * 8 + (sg & 3)) * 384 + c * 128
    for k in range(12):
        assert qconst(2*k+1) - qconst(2*k) == 128
        A(f"  v_mov_b32 v{H+4*k+1}, v{H+4*k+2}")
        A(f"  ds_write_b64 v{vT1}, v[{H+4*k}:{H+4*k+1}] offset:{L_Q + qconst(2*k)}")
    A("  s_waitcnt lgkmcnt(0)")
    stamp("h", "qtab")
    A("  s_barrier                       ; B2")
    C("set-up of the progress board and of the flush state")
    A("  s_getreg_b32 s56, hwreg(HW_REG_XCC_ID)"); A("  s_and_b32 s56, s56, 7")
    A("  s_lshl_b32 s57, s56, 3"); A("  s_add_u32 s57, s57, s3"); A("  s_mul_i32 s57, s57, 1152"); A(f"  s_add_u32 s57, s57, {W_B}")
    A("  s_lshl_b32 s59, s4, 3"); A("  s_add_u32 s59, s59, s57")
    A("  s_mov_b32 s31, 0")
    A(f"  v_mov_b32 v{vE+1}, s46")
    A("  s_lshl_b32 s62, s56, 2"); A(f"  s_add_u32 s62, s62, {W_G}"); A(f"  s_mov_b32 s29, {lper-1}")
    A(f"  s_add_u32 s16, s42, {W_G}"); A("  s_addc_u32 s17, s43, 0")
    A("  s_and_b32 s51, s46, 0xffff0000")
    A("  s_mov_b32 s18, -1"); A("  s_mov_b32 s19, 1")
    A("  s_mov_b32 s30, 0"); A("  s_mov_b32 s32, 0")
    A(f"  v_add_u32 v{vDa}, {L_O}, v{vQa}"); A(f"  v_mov_b32 v{vMLa}, {L_E}")
    A("  s_mov_b32 s33, 0xffff")
    if ep: A(f"  s_mov_b32 s29, {ep0}"); A("  s_mov_b32 s80, 0"); A("  s_mov_b32 s81, 0")
    A(f"  s_mul_i32 s58, s3, {512*OS}"); A(f"  s_mul_i32 s48, s4, {OS}"); A("  s_add_u32 s58, s58, s48"); A(f"  s_add_u32 s58, s58, {W_O}")
    def otag(reg):
        A(f"  v_and_b32 v{vMode}, 1, v{vLane}"); A(f"  v_lshlrev_b32 v{vMode}, 4, v{vMode}"); A(f"  v_lshrrev_b32 v{vMode}, v{vMode}, {reg}"); A(f"  v_lshlrev_b32 v{vMode}, 16, v{vMode}")
    otag("s46")
    A("  s_mov_b32 s45, s46")
    def call(l): A(f"  s_call_b64 s[60:61], {l}")
    def pace(t): A(f"  s_mov_b32 s44, {t}"); call("L_pace")
    def drain(n): A(f"  s_mov_b32 s32, {n}"); call("L_drain")
    pace(t_q)
    C("without proof that the group shares a die, leave a device-wide copy of q")
    A("  s_cmp_eq_u32 s31, 1"); A("  s_cbranch_scc1 L_qg2"); qglob("L_qg2")
    if share:
        C("problem A: publish (M, l) and the partial o; its projectors merge them before anyone reuses the slots")
        pace(t_a)
        A("  s_mov_b32 s34, 0x00ff"); call("L_ml"); A("  s_mov_b32 s32, 8")
        pace(t_c); drain(8)
        A("  s_cmp_ge_u32 s4, 16"); A("  s_cbranch_scc1 L_s1")
        A("  s_mov_b32 s34, 0"); call("L_wt"); call("L_merge"); A("  s_mov_b32 s34, 1"); call("L_merge")
        A("L_s1:")
        pace(t_ml)
        A("  s_mov_b32 s34, 0xff00"); call("L_ml")
        pace(t_w)
        C("the (M, l) records of problem B also tell that their writers are done with the slots")
        A("  s_mov_b32 s34, 8"); call("L_wt")
        A(f"  s_xor_b32 s45, s46, {GEN:#x}"); otag("s45"); A(f"  s_sub_u32 s58, s58, {8*32*OS}")
        A("  s_mov_b32 s32, 15")
    else:
        pace(t_ml)
        A("  s_mov_b32 s34, 0xffff"); call("L_ml"); A("  s_mov_b32 s32, 15")
        pace(t_w)
        A("  s_lshr_b32 s34, s4, 4"); A("  s_lshl_b32 s34, s34, 3"); call("L_wt")
    pace(t_g); drain(12); A("  s_mov_b32 s32, 15")
    if share: A("  s_cmp_lt_u32 s4, 16"); A("  s_cbranch_scc1 L_s4")
    A("  s_mov_b32 s34, 0"); call("L_merge")
    A("L_s4:")
    A("  s_mov_b32 s34, 1")
    pace(t_f)
    stamp("h", "flush0")
    for i in range(hw): wo_load(i, None)
    C("final-reduction role of workgroups 0..159: (problem, batch) = id&3, block of 4 granules = id>>2")
    A("  s_and_b32 s20, s2, 3"); A("  s_lshr_b32 s21, s2, 2")
    A(f"  v_lshrrev_b32 v{vCa}, 2, v{vLane}"); A(f"  v_and_b32 v{vProg}, 3, v{vLane}")
    A(f"  v_mul_u32_u24 v{vCa}, {YS}, v{vCa}"); A(f"  v_lshl_add_u32 v{vCa}, v{vProg}, 4, v{vCa}"); A(f"  v_lshlrev_b32 v{vProg}, 4, v{vProg}")
    A(f"  v_bfe_u32 v{vT1}, v{vLane}, 4, 1"); A(f"  v_lshl_add_u32 v{vProg}, v{vT1}, 2, v{vProg}")
    A(f"  v_lshrrev_b32 v{vT1}, 5, v{vLane}"); A(f"  v_lshl_add_u32 v{vProg}, v{vT1}, 1, v{vProg}")
    A(f"  s_mul_i32 s72, s20, {128*YS}"); A("  s_lshl_b32 s22, s21, 6"); A("  s_add_u32 s72, s72, s22")
    for k in range(1, 8): A(f"  s_add_u32 s{72+k}, s72, {16*k*YS}")
    A("  s_and_b32 s22, s20, 1"); A("  s_mul_i32 s35, s22, 2560"); A("  s_lshr_b32 s22, s20, 1"); A("  s_mul_i32 s22, s22, 1280"); A("  s_add_u32 s35, s35, s22")
    A("  s_lshr_b32 s22, s21, 3"); A("  s_lshl_b32 s22, s22, 8"); A("  s_add_u32 s35, s35, s22")
    A("  s_and_b32 s22, s21, 3"); A("  s_lshl_b32 s22, s22, 6"); A("  s_add_u32 s35, s35, s22")
    A("  s_and_b32 s22, s21, 4"); A("  s_lshl_b32 s22, s22, 1"); A("  s_add_u32 s35, s35, s22")
    A("  s_mov_b32 s12, s6"); A("  s_mov_b32 s13, s7"); A("  s_mov_b32 s14, 5120"); A("  s_mov_b32 s15, 0x20000")
    lo_j = 16 if share else 0
    drain(15)
    if gj > lo_j:
        if share: A("  s_cmp_lt_u32 s4, 16"); A("  s_cbranch_scc1 L_s2")
        A(f"  s_cmp_ge_u32 s4, {gj}"); A("  s_cbranch_scc1 L_s2")
        call("L_merge")
        A("L_s2:")
    drain(16)
    stamp("h", "flushed")
    for i in range(hw, 12): wo_load(i, None)
    A(f"  s_cmp_lt_u32 s4, {max(gj, lo_j)}"); A("  s_cbranch_scc1 L_s3")
    call("L_merge")
    A("L_s3:")
    stamp("h", "hready")
    A("  s_branch L_proj")
    def pub(instr, tag):
        A("  s_cmp_eq_u32 s31, 1"); A(f"  s_cbranch_scc1 {tag}a")
        A(instr + " sc1")
        A(f"  s_branch {tag}b"); A(f"{tag}a:"); A(instr); A(f"{tag}b:")
    A("L_pace:")
    A(f"  s_sleep {slp}")
    A("  s_memrealtime s[22:23]")
    A(f"  ds_read_b128 v[{H}:{H+3}], v{vZero} offset:{L_CTL+16}"); A("  s_waitcnt lgkmcnt(0)")
    A(f"  v_min3_u32 v{H+4}, v{H}, v{H+1}, v{H+2}"); A(f"  v_min_u32 v{H+4}, v{H+4}, v{H+3}")
    A(f"  v_add3_u32 v{H+5}, v{H}, v{H+1}, v{H+2}"); A(f"  v_add_u32 v{H+5}, v{H+5}, v{H+3}")
    A(f"  v_readfirstlane_b32 s20, v{H+4}")
    A("  s_cmp_ge_u32 s20, s44"); A("  s_cbranch_scc1 L_ret")
    A(f"  v_readfirstlane_b32 s21, v{H+5}")
    A(f"  s_mul_i32 s22, s22, {kap}"); A("  s_lshr_b32 s22, s22, 6")
    A("  s_lshl_b32 s21, s21, 5"); A("  s_sub_u32 s21, s21, s22"); A("  s_and_b32 s21, s21, 0xffff")
    A(f"  v_mov_b32 v{vE}, s21"); A(f"  v_mov_b32 v{H+8}, 0"); A(f"  v_mov_b32 v{H+9}, 0")
    A("  s_mov_b64 exec, 1")
    A(f"  buffer_store_dwordx2 v[{vE}:{vE+1}], v{vZero}, s[36:39], s59 offen")
    A("  s_mov_b64 exec, s[18:19]")
    A(f"  buffer_load_dwordx2 v[{H+8}:{H+9}], v{vT0}, s[36:39], s57 offen sc1")
    A("  s_mov_b64 exec, -1")
    A("  s_waitcnt vmcnt(0)")
    A(f"  v_readlane_b32 s22, v{H+8}, 32")
    A(f"  v_cmp_eq_u32 vcc, s46, v{H+9}")
    A(f"  v_subrev_u32 v{H+7}, s21, v{H+8}"); A(f"  v_bfe_i32 v{H+7}, v{H+7}, 0, 16")
    A(f"  v_cndmask_b32 v{H+7}, 0, v{H+7}, vcc")
    A("  s_cmp_eq_u32 vcc_lo, -1"); A("  s_cselect_b32 s31, 1, s31")
    for sh in (1, 2, 4, 8):
        A("  s_nop 1"); A(f"  v_add_u32_dpp v{H+7}, v{H+7}, v{H+7} row_ror:{sh} row_mask:0xf bank_mask:0xf")
    A("  s_bitcmp1_b32 vcc_hi, 0"); A("  s_cselect_b32 s22, s22, 0")
    A(f"  v_readlane_b32 s23, v{H+7}, 0"); A(f"  v_readlane_b32 s47, v{H+7}, 16")
    A("  s_add_u32 s23, s23, s47"); A("  s_ashr_i32 s23, s23, 5"); A("  s_add_u32 s23, s23, s21")
    A("  s_add_u32 s47, s23, s22")
    A("  s_and_b32 s47, s47, 0xffff"); A(f"  v_mov_b32 v{H+6}, s47")
    A(f"  ds_write_b32 v{vZero}, v{H+6} offset:{L_CTL+32}")
    A("  s_cmp_lg_u32 s4, 0"); A("  s_cbranch_scc1 L_paced")
    C("first workgroup of a group: now and then compare with the other groups")
    A(f"  s_ashr_i32 s48, s22, {dec}"); A("  s_sub_u32 s48, s22, s48"); A("  s_mov_b64 exec, 1")
    if ep:
        C("all groups post their mean at the same points of progress and read the others' a few rounds later")
        A("  s_cmp_lt_u32 s20, s29"); A("  s_cbranch_scc1 L_ep1")
        A(f"  s_add_u32 s29, s29, {epp}"); A("  s_add_u32 s51, s51, 0x10000"); A(f"  s_mov_b32 s81, {epw}")
        A("  s_and_b32 s80, s23, 0xffff"); A("  s_or_b32 s47, s80, s51"); A(f"  v_mov_b32 v{H+6}, s47")
        A(f"  buffer_store_dword v{H+6}, v{vZero}, s[36:39], s62 offen sc1")
        A("  s_branch L_dst")
        A("L_ep1:")
        A("  s_sub_u32 s81, s81, 1"); A("  s_cmp_lg_u32 s81, 0"); A("  s_cbranch_scc1 L_dst")
        A("  s_load_dwordx8 s[64:71], s[16:17], 0 glc")
        A("  s_mov_b32 s23, s80")
        A("  s_waitcnt lgkmcnt(0)")
    else:
        A("  s_add_u32 s29, s29, 1"); A(f"  s_cmp_lt_u32 s29, {lper}"); A("  s_cbranch_scc1 L_dst")
        A("  s_mov_b32 s29, 0")
        A("  s_load_dwordx8 s[64:71], s[16:17], 0 glc")
        A("  s_and_b32 s23, s23, 0xffff")
        A("  s_or_b32 s47, s23, s51"); A(f"  v_mov_b32 v{H+6}, s47")
        A("  s_waitcnt lgkmcnt(0)")
        A(f"  buffer_store_dword v{H+6}, v{vZero}, s[36:39], s62 offen sc1")
    A("  s_mov_b32 s48, 0")
    for k in range(8):
        A(f"  s_xor_b32 s{64+k}, s{64+k}, s51"); A(f"  s_cmp_lt_u32 s{64+k}, 0x10000"); A(f"  s_cselect_b32 s{64+k}, s{64+k}, s23")
        A(f"  s_sub_u32 s{64+k}, s{64+k}, s23"); A(f"  s_sext_i32_i16 s{64+k}, s{64+k}"); A(f"  s_add_u32 s48, s48, s{64+k}")
    A("  s_ashr_i32 s48, s48, 3")
    A("L_dst:")
    A(f"  v_mov_b32 v{vE}, s48")
    A(f"  buffer_store_dwordx2 v[{vE}:{vE+1}], v{vZero}, s[36:39], s57 offen offset:256")
    A("  s_mov_b64 exec, -1")
    A("L_paced:")
    A(f"  s_mov_b32 s63, {nfl}"); A("  s_branch L_fl")
    A("L_drain:")
    C("entry: flush up to the limit, waiting for the waves")
    A("  s_mov_b32 s63, -1")
    A("L_fl:")
    C("head i (round 8+i, or 16+i from 8 on) is in LDS once every wave's progress is >= 8*round+5")
    A("  s_cmp_ge_u32 s30, 8"); A("  s_cselect_b32 s48, 16, 8"); A("  s_add_u32 s48, s48, s30"); A("  s_lshl_b32 s48, s48, 3"); A("  s_add_u32 s48, s48, 5")
    A("  s_cmp_lt_i32 s63, 0"); A("  s_cbranch_scc0 L_fl0")
    A("  s_cmp_ge_u32 s30, s32"); A("  s_cbranch_scc0 L_fl1")
    A("L_ret:")
    A("  s_setpc_b64 s[60:61]")
    A("L_fl0:")
    A("  s_cmp_ge_u32 s30, s32"); A("  s_cbranch_scc1 L_pace")
    A("  s_cmp_lt_u32 s20, s48"); A("  s_cbranch_scc1 L_pace")
    A("  s_sub_u32 s63, s63, 1"); A("  s_cbranch_scc1 L_pace")
    A("L_fl1:")
    A(f"  ds_read_b128 v[{H+28}:{H+31}], v{vMLa}")
    A("L_flw:")
    A(f"  ds_read_b128 v[{H}:{H+3}], v{vZero} offset:{L_CTL+16}"); A("  s_waitcnt lgkmcnt(0)")
    A(f"  v_min3_u32 v{H+4}, v{H}, v{H+1}, v{H+2}"); A(f"  v_min_u32 v{H+4}, v{H+4}, v{H+3}"); A("  s_nop 0")
    A(f"  v_readfirstlane_b32 s20, v{H+4}")
    A("  s_cmp_lt_u32 s20, s48"); A("  s_cbranch_scc1 L_flw")
    for k in range(12): A(f"  ds_read2st64_b32 v[{H+2*k}:{H+2*k+1}], v{vDa} offset0:{2*k} offset1:{2*k+1}")
    for w in range(4):
        A(f"  s_waitcnt lgkmcnt({9-3*w})")
        for t in range(3): A(f"  v_add_f32 v{H+6*w+t}, v{H+6*w+t}, v{H+6*w+3+t}")
        for t in range(3):
            A(f"  v_mul_f32 v{H+32+t}, v{H+28}, v{H+t}" if w == 0 else f"  v_fmac_f32 v{H+32+t}, v{H+28+w}, v{H+6*w+t}")
    C("lane l: o[l], o[l+64], o[l+128] and one half of the tag")
    A(f"  v_cvt_pk_bf16_f32 v{H+32}, v{H+32}, v{H+33}"); A(f"  v_cvt_pk_bf16_f32 v{H+33}, v{H+34}, v{H+34}")
    A(f"  v_and_or_b32 v{H+33}, v{H+33}, s33, v{vMode}")
    pub(f"  buffer_store_dwordx2 v[{H+32}:{H+33}], v{vT0}, s[36:39], s58 offen", "L_po")
    A(f"  v_add_u32 v{vDa}, 6144, v{vDa}"); A(f"  v_add_u32 v{vMLa}, 16, v{vMLa}")
    A(f"  s_add_u32 s58, s58, {32*OS}"); A("  s_add_u32 s30, s30, 1"); A("  s_branch L_fl")
    A("L_ml:")
    A(f"  v_and_b32 v{vT1}, 15, v{vLane}"); A(f"  v_lshlrev_b32 v{vT2}, 5, v{vT1}"); A(f"  v_lshlrev_b32 v{vT1}, 4, v{vT1}")
    A(f"  ds_read_b128 v[{H}:{H+3}], v{vT2} offset:{L_ML}"); A(f"  ds_read_b128 v[{H+4}:{H+7}], v{vT2} offset:{L_ML+16}")
    A("  s_lshl_b32 s47, s3, 5"); A("  s_add_u32 s47, s47, s4"); A("  s_lshl_b32 s47, s47, 8"); A(f"  s_add_u32 s47, s47, {W_ML}")
    A("  s_waitcnt lgkmcnt(0)")
    A(f"  v_max3_f32 v{H+8}, v{H}, v{H+2}, v{H+4}"); A(f"  v_max_f32 v{H+8}, v{H+8}, v{H+6}")
    for w in range(4): A(f"  v_sub_f32 v{H+12+w}, v{H+2*w}, v{H+8}")
    for w in range(4): A(f"  v_exp_f32 v{H+12+w}, v{H+12+w}")
    A(f"  v_mov_b32 v{H+10}, 0"); A(f"  v_mov_b32 v{H+11}, s46")
    A(f"  v_mul_f32 v{H+9}, v{H+12}, v{H+1}")
    for w in range(1, 4): A(f"  v_fmac_f32 v{H+9}, v{H+12+w}, v{H+2*w+1}")
    A("  s_mov_b32 exec_lo, s34"); A("  s_mov_b32 exec_hi, 0")
    A(f"  ds_write_b128 v{vT1}, v[{H+12}:{H+15}] offset:{L_E}")
    pub(f"  buffer_store_dwordx4 v[{H+8}:{H+11}], v{vT1}, s[36:39], s47 offen", "L_pm")
    A("  s_mov_b64 exec, -1")
    A("  s_setpc_b64 s[60:61]")
    A("L_wt:")
    A(f"  v_and_b32 v{vT1}, 31, v{vLane}"); A(f"  v_lshlrev_b32 v{vT1}, 8, v{vT1}")
    A(f"  v_and_b32 v{vT2}, 32, v{vLane}"); A(f"  v_lshl_add_u32 v{vT1}, v{vT2}, 1, v{vT1}      ; producer*256 + b*64")
    A("  s_lshr_b32 s48, s4, 2"); A("  s_and_b32 s48, s48, 3"); A("  s_add_u32 s47, s34, s48")
    A("  s_lshl_b32 s47, s47, 4"); A("  s_lshl_b32 s48, s3, 13"); A("  s_add_u32 s47, s47, s48"); A(f"  s_add_u32 s47, s47, {W_ML}")
    A(f"  s_mov_b32 s50, {SPIN}")
    A("L_wg:")
    A(f"  buffer_load_dwordx4 v[{H}:{H+3}], v{vT1}, s[36:39], s47 offen sc1"); A("  s_waitcnt vmcnt(0)")
    A(f"  v_cmp_ne_u32 vcc, s46, v{H+3}")
    A("  s_sub_u32 s50, s50, 1"); A("  s_cbranch_scc1 L_wgo")
    A("  s_cmp_eq_u64 vcc, 0"); A("  s_cbranch_scc1 L_wgo")
    A("  s_sleep 16"); A("  s_branch L_wg")
    A("L_wgo:")
    def red32(op, t, u):
        for sh in (1, 2, 4, 8):
            A("  s_nop 1"); A(f"  {op}_dpp v{t}, v{t}, v{t} row_ror:{sh} row_mask:0xf bank_mask:0xf")
        A(f"  v_mov_b32 v{u}, v{t}"); A("  s_nop 1"); A(f"  v_permlane16_swap_b32 v{t}, v{u}"); A("  s_nop 0"); A(f"  {op} v{t}, v{t}, v{u}")
    A(f"  v_mov_b32 v{H+4}, v{H}")
    red32("v_max_f32", H+4, H+5)
    A(f"  v_sub_f32 v{H}, v{H}, v{H+4}"); A(f"  v_exp_f32 v{H}, v{H}"); A("  s_nop 0")
    A(f"  v_mul_f32 v{H+4}, v{H}, v{H+1}")
    red32("v_add_f32", H+4, H+5)
    A(f"  v_rcp_f32 v{H+4}, v{H+4}")
    A(f"  v_and_b32 v{vT1}, 7, v{vLane}"); A(f"  v_lshlrev_b32 v{vT1}, 4, v{vT1}"); A(f"  v_lshl_add_u32 v{vT1}, v{vT2}, 2, v{vT1}")
    A(f"  v_and_b32 v{vT2}, 24, v{vLane}"); A(f"  v_lshrrev_b32 v{vT2}, 1, v{vT2}"); A(f"  v_add_u32 v{vT1}, v{vT1}, v{vT2}")
    A(f"  v_mul_f32 v{H}, v{H}, v{H+4}")
    A(f"  ds_write_b32 v{vT1}, v{H} offset:{L_W}")
    A("  s_setpc_b64 s[60:61]")
    A("L_merge:")
    C("batch row s34: first call keeps its sums, second call folds both and leaves them in LDS")
    A(f"  v_lshrrev_b32 v{vT1}, 3, v{vLane}"); A(f"  v_and_b32 v{vT2}, 7, v{vLane}")
    A(f"  v_mul_u32_u24 v{vPa}, {OS}, v{vT1}"); A(f"  v_lshl_add_u32 v{vPa}, v{vT2}, 4, v{vPa}")
    A("  s_lshr_b32 s47, s4, 2"); A("  s_and_b32 s47, s47, 3"); A("  s_lshl_b32 s48, s34, 2"); A("  s_add_u32 s47, s47, s48")
    if not share: A("  s_lshr_b32 s48, s4, 4"); A("  s_lshl_b32 s48, s48, 3"); A("  s_add_u32 s47, s47, s48")
    A(f"  s_mul_i32 s47, s47, {32*OS}"); A(f"  s_mul_i32 s48, s3, {512*OS}"); A("  s_add_u32 s47, s47, s48")
    A("  s_and_b32 s48, s4, 3"); A("  s_lshl_b32 s48, s48, 7"); A("  s_add_u32 s47, s47, s48"); A(f"  s_add_u32 s64, s47, {W_O}")
    for k in range(1, 4): A(f"  s_add_u32 s{64+k}, s64, {k*8*OS}")
    A("  s_lshl_b32 s48, s34, 7"); A(f"  v_lshl_add_u32 v{vT1}, v{vT1}, 4, s48")
    A(f"  ds_read_b128 v[{vS}:{vS+3}], v{vT1} offset:{L_W}")
    A("  s_mov_b32 s22, 0x07060302"); A("  s_mov_b32 s23, 0xffff0000")
    A(f"  v_bfe_u32 v{vT1}, v{vLane}, 4, 1"); A(f"  v_lshl_add_u32 v{vT1}, v{vT2}, 1, v{vT1}")
    A(f"  v_and_b32 v{vT2}, 32, v{vLane}"); A(f"  v_lshlrev_b32 v{vT1}, 4, v{vT1}")
    A(f"  v_lshl_add_u32 v{vT1}, v{vT2}, 3, v{vT1}      ; (16*b + granule)*16")
    A(f"  s_mov_b32 s50, {SPIN}")
    A("L_gather:")
    for k in range(4): A(f"  buffer_load_dwordx4 v[{H+4*k}:{H+4*k+3}], v{vPa}, s[36:39], s{64+k} offen sc1")
    A("  s_mov_b64 s[48:49], 0")
    for k in range(4):
        A(f"  s_waitcnt vmcnt({3-k})")
        A(f"  v_perm_b32 v{vKV}, v{H+4*k+3}, v{H+4*k+1}, s22"); A(f"  v_cmp_ne_u32 vcc, s45, v{vKV}"); A("  s_or_b64 s[48:49], s[48:49], vcc")
    A("  s_sub_u32 s50, s50, 1"); A("  s_cbranch_scc1 L_ggo")
    A("  s_cmp_eq_u64 s[48:49], 0"); A("  s_cbranch_scc0 L_gather")
    A("L_ggo:")
    A("  s_waitcnt lgkmcnt(0)")
    M = H + 32
    Z = vB
    for k in range(4):
        for par in range(2):
            e0, e1 = H + 4*k + 2*par, H + 4*k + 2*par + 1
            A(f"  v_lshlrev_b32 v{vKV}, 16, v{e0}"); A(f"  v_and_b32 v{e0}, s23, v{e0}"); A(f"  v_lshlrev_b32 v{e1}, 16, v{e1}")
            for t, r in enumerate((vKV, e0, e1)):
                A(f"  {'v_mul_f32' if k == 0 else 'v_fmac_f32'} v{M+3*par+t}, v{vS+k}, v{r}")
    A("  s_cmp_eq_u32 s34, 0"); A("  s_cbranch_scc0 L_fold")
    for i in range(6): A(f"  v_mov_b32 v{Z+i}, v{M+i}")
    A("  s_setpc_b64 s[60:61]")
    A("L_fold:")
    for i in range(6): A(f"  v_permlane32_swap_b32 v{Z+i}, v{M+i}")
    for i in range(6): A(f"  v_add_f32 v{Z+i}, v{Z+i}, v{M+i}")
    A("  s_nop 0")
    for i in range(3): A(f"  v_permlane16_swap_b32 v{Z+i}, v{Z+3+i}")
    A("  s_nop 0")
    for i in range(3): A(f"  v_add_f32 v{Z+i}, v{Z+i}, v{Z+3+i}")
    for i in range(3): A(f"  v_add_f32_dpp v{Z+i}, v{Z+i}, v{Z+i} row_ror:8 row_mask:0xf bank_mask:0xf")
    for i in range(3): A(f"  v_cvt_pk_bf16_f32 v{Z+i}, v{Z+i}, v{Z+i}")
    A(f"  v_mov_b32 v{Z+3}, s46")
    A(f"  ds_write_b128 v{vT1}, v[{Z}:{Z+3}] offset:{L_C}")
    A("  s_setpc_b64 s[60:61]")
    A("L_final:")
    stamp("h", "final0"); stamp("h", "ygot")
    if stamps: A("  s_waitcnt lgkmcnt(0)")
    A(f"  s_cmp_ge_u32 s2, 160"); A(f"  s_cbranch_scc1 {'L_hst' if stamps else 'L_end'}")
    A("  s_mov_b32 s52, 0x0c0c0400"); A("  s_mov_b32 s53, 0x04000c0c"); A("  s_mov_b32 s54, 0xffffff00")
    mk = [16, 18, 20, 22, 64, 66, 68, 70]
    for k in range(8): A(f"  s_mov_b64 s[{mk[k]}:{mk[k]+1}], -1")
    A(f"  s_mov_b32 s50, {SPIN}")
    if fslp1: A("  s_cmp_ge_u32 s4, 16"); A("  s_cbranch_scc1 L_fs"); A(f"  s_sleep {fslp1}"); A("L_fs:")
    if fslp2: A("  s_bitcmp0_b32 s2, 1"); A("  s_cbranch_scc1 L_fs2"); A(f"  s_sleep {fslp2}"); A("L_fs2:")
    if fslp0: A(f"  s_sleep {fslp0}")
    def yround():
        for k in range(8):
            A(f"  s_or_b64 exec, s[{mk[k]}:{mk[k]+1}], 1")
            A(f"  buffer_load_dwordx4 v[{H+4*k}:{H+4*k+3}], v{vCa}, s[36:39], s{72+k} offen {ylp}")
        A("  s_mov_b64 exec, -1")
    C("poll the 128 partial outputs; lanes that already hold their record drop out")
    for _ in range(pp - 1):
        yround(); A(f"  s_sleep {pstag}")
    A("L_fin:")
    yround()
    A(f"  s_waitcnt vmcnt({8*(pp-1)})")
    for k in range(8):
        A(f"  v_perm_b32 v{vS}, v{H+4*k+1}, v{H+4*k}, s52"); A(f"  v_perm_b32 v{vS+1}, v{H+4*k+3}, v{H+4*k+2}, s53")
        A(f"  v_or_b32 v{vS}, v{vS}, v{vS+1}"); A(f"  v_cmp_ne_u32 s[{mk[k]}:{mk[k]+1}], s46, v{vS}")
    A(f"  s_or_b64 s[48:49], s[{mk[0]}:{mk[0]+1}], s[{mk[1]}:{mk[1]+1}]")
    for k in range(2, 8): A(f"  s_or_b64 s[48:49], s[48:49], s[{mk[k]}:{mk[k]+1}]")
    A("  s_sub_u32 s50, s50, 1"); A("  s_cbranch_scc1 L_fgo")
    A("  s_cmp_eq_u64 s[48:49], 0"); A("  s_cbranch_scc0 L_fin")
    A("L_fgo:")
    stamp("h", "ygot")
    Y = H + 32
    for i in range(32): A(f"  v_and_b32 v{Y+i}, s54, v{H+i}")
    for st in (16, 8, 4):
        for i in range(0, st, 2): A(f"  v_pk_add_f32 v[{Y+i}:{Y+i+1}], v[{Y+i}:{Y+i+1}], v[{Y+st+i}:{Y+st+i+1}]")
    C("fold the four columns onto the four rows of lanes: row 0..3 = column 0,2,1,3")
    A("  s_nop 1")
    A(f"  v_permlane32_swap_b32 v{Y}, v{Y+1}"); A(f"  v_permlane32_swap_b32 v{Y+2}, v{Y+3}"); A("  s_nop 0")
    A(f"  v_add_f32 v{Y}, v{Y}, v{Y+1}"); A(f"  v_add_f32 v{Y+2}, v{Y+2}, v{Y+3}"); A("  s_nop 1")
    A(f"  v_permlane16_swap_b32 v{Y}, v{Y+2}"); A("  s_nop 0")
    A(f"  v_add_f32 v{Y}, v{Y}, v{Y+2}")
    for sh in (4, 8):
        A("  s_nop 1"); A(f"  v_add_f32_dpp v{Y}, v{Y}, v{Y} row_ror:{sh} row_mask:0xf bank_mask:0xf")
    A(f"  v_cvt_pk_bf16_f32 v{Y}, v{Y}, v{Y}")
    A("  s_mov_b32 exec_lo, 0x000f000f"); A("  s_mov_b32 exec_hi, 0x000f000f")
    A(f"  buffer_store_short v{Y}, v{vProg}, s[12:15], s35 offen")
    C("every workgroup has read the launch tag by now: leave the word as it was found")
    A("  s_cmp_lg_u32 s2, 0"); A("  s_cbranch_scc1 L_nz")
    A("  s_mov_b64 exec, 1")
    A(f"  buffer_store_dword v{vZero}, v{vZero}, s[8:11], 0 offen sc1")
    A("L_nz:")
    if stamps:
        A("L_hst:")
        A("  s_waitcnt vmcnt(0)")
        stamp("h", "hend")
        dump_stamps("h", 1)
        sn = names["s"]; hn = names["h"]
        L.insert(1, "; stamps: start id " + " ".join((sn[1:] + ["id"] * 6)[:6]) + " " + " ".join((hn + ["id"] * 8)[:7]) + " last")
    A("  s_endpgm")
    A('.section .rodata,"a"')
    A(".p2align 6"); A(f".amdhsa_kernel {KN}")
    A(f"  .amdhsa_next_free_vgpr {ACC + NA}"); A(f"  .amdhsa_next_free_sgpr 102"); A(f"  .amdhsa_accum_offset {ACC}")
    A("  .amdhsa_group_segment_fixed_size 0"); A("  .amdhsa_kernarg_size 104"); A("  .amdhsa_user_sgpr_count 2")
    A("  .amdhsa_user_sgpr_kernarg_segment_ptr 1"); A("  .amdhsa_system_sgpr_workgroup_id_x 1")
    A(".end_amdhsa_kernel")
    open(name, "w").write("\n".join(L) + "\n")
    return name
if __name__ == "__main__":
    if len(sys.argv) > 2:
        hdr = open("concat_heads__gqa_block_cached__mha_block_cached__decode.s.ref").read().split("; Override launch")[0]
        print(gen(name=sys.argv[2], header=hdr, **eval(sys.argv[1])))
    else:
        print(" ".join(gen(**kw) for kw in eval(sys.argv[1])))
```

```python
import sys, math, struct
KN = "concat_heads__gqa_block_cached__mha_block_cached__decode_kernel"
WS = 836768768
KVBYTES = 201326592
WBYTES = 7864320
def f32hex(x): return "0x%08x" % struct.unpack("<I", struct.pack("<f", x))[0]

DOC = """;
; ---------------------------------------------------------------------------------------------------------
; ---------------------------------------------------------------------------------------------------------"""

def gen(name="f.s", header="", stamps=0, curve=False,
        lev=(7, 300, 120, 15, -200), kap=205, slp=24, lper=8, dec=2, lin=0, gain=8, prio=0, flws=0, kd=1, gpol="sc1", bpol="sc1", warm=2, hopb=120, sstep=3, ep=True, ep0=8, epp=40, epw=2, ept=999, epp2=0, epend=215, atom=True,
        wqd=7, d0=5, dn=3, dl=5, ej=28, nslp0=16, nslp=8, nloc=24,
        t_q=16, t_a=165, t_c=184, t_ml=193, t_w=198, t_f=244, nfl=2, share=True, gj=16, hw=12, t_g=229,
        fslp0=13, fslp1=12, fslp2=0, ysp="sc1", ylp="sc1", pp=2, pstag=8, SPIN=200000, YS=2688, OS=640):
    L = []; A = L.append
    def C(txt): A("  ; " + txt)
    L_CTL = 0
    L_W = 64
    L_C = L_W + 256
    L_E = L_C + 512
    L_ML = L_E + 256
    L_Q = L_ML + 512
    L_P = L_Q + 17 * 384
    PROW = 272; PWAVE = 8 * PROW
    L_Y = L_P + 4 * PWAVE + 64
    L_O = L_Y + 4096
    LDS = L_O + 16 * 6144
    assert L_Y % 16 == 0 and L_O % 16 == 0 and L_Q % 16 == 0 and L_P % 16 == 0
    W_O = 2 << 20
    W_Q = 6 << 20
    W_ML = W_Q + (128 << 10)
    W_B = W_ML + (128 << 10)
    W_G = W_B + (128 << 10)
    QLOC = 512 << 10
    GEN = 0x5aa5c33c
    vLane, vKV, vW, vZero = 1, 2, 3, 4
    vT0, vT1, vT2, vT3 = 5, 6, 7, 8
    vPa, vQa, vDa, vMLa, vCa, vProg, vMode = 9, 10, 11, 12, 13, 14, 15
    vM = 16; vB = 20; vQ = 28; vS = 40; vD = 48; vRing = 60
    vX = vQ
    NV = vRing + 96
    if curve: vCv = NV; NV += 2
    ACC = (NV + 3) // 4 * 4
    NA = 80
    H = vRing
    def ring(s, t): return vRing + 12 * s + 4 * t
    names = {"s": [], "h": []}
    sets = {1: ("start", "preB1", "ring", "B2", "vend", "oready", "end", "nonce", "qtab", "flush0", "flushed", "ygot", "hend"),
            2: ("start", "vend", "woiss", "oready", "ystore", "end", "flush0", "flushed", "hready", "final0", "ygot", "hend")}
    def stamp(who, nm, again=False):
        if nm not in sets.get(stamps, ()): return
        if nm not in names[who]: names[who].append(nm)
        k = names[who].index(nm); assert k < 8
        A(f"  s_memrealtime s[{84+2*k}:{85+2*k}]")
    def dump_stamps(who, rec):
        n = len(names[who])
        A("  s_getreg_b32 s100, hwreg(HW_REG_XCC_ID)"); A("  s_getreg_b32 s101, hwreg(HW_REG_HW_ID)")
        A("  s_waitcnt vmcnt(0) lgkmcnt(0)")
        A(f"  s_lshl_b32 s47, s2, 7"); A(f"  s_add_u32 s47, s47, {WS - (1<<20) + 64*rec}")
        if who == "s": regs = [84, 85, 100, 101] + sum([[84+2*min(k, n-1), 85+2*min(k, n-1)] for k in range(1, 7)], [])
        else: regs = sum([[84+2*min(k, n-1), 85+2*min(k, n-1)] for k in range(8)], [])
        A("  s_mov_b64 exec, 1")
        for i in range(16): A(f"  v_mov_b32 v{vRing+i}, s{regs[i]}")
        for i in range(4): A(f"  buffer_store_dwordx4 v[{vRing+4*i}:{vRing+4*i+3}], v{vZero}, s[36:39], s47 offen offset:{16*i}")

    A(header + f"; @launch grid=(256,1,1) block=(320,1,1) lds={LDS}")
    A(DOC)
    A('.amdgcn_target "amdgcn-amd-amdhsa--gfx950"')
    A(".text"); A(f".globl {KN}"); A(".p2align 8"); A(f".type {KN},@function"); A(f"{KN}:")
    A("  s_cmp_ge_u32 s2, 256"); A("  s_cbranch_scc1 L_end")
    A("  s_load_dwordx16 s[64:79], s[0:1], 0")
    A("  s_load_dwordx4 s[80:83], s[0:1], 64")
    A("  s_load_dwordx4 s[40:43], s[0:1], 88")
    if curve: A("  s_memrealtime s[96:97]"); A(f"  v_mov_b32 v{vCv}, 0"); A(f"  v_mov_b32 v{vCv+1}, 0")
    stamp("s", "start"); names["h"] = ["hstart"] if stamps else []
    A(f"  v_lshrrev_b32 v{vT0}, 6, v0"); A(f"  v_and_b32 v{vLane}, 63, v0")
    A(f"  v_readfirstlane_b32 s5, v{vT0}     ; wave")
    A(f"  v_lshrrev_b32 v{vT1}, 3, v{vLane}    ; l/8"); A(f"  v_and_b32 v{vT2}, 7, v{vLane}        ; l%8")
    A("  s_and_b32 s3, s2, 7             ; x"); A("  s_lshr_b32 s4, s2, 3            ; j")
    A("  s_cmp_eq_u32 s5, 4"); A("  s_cbranch_scc1 L_tag")
    C("q item of workgroup j < 24: problem (j>>2)&1, head 8*(j&3)+x, 64-column block j>>3; rows 160*w + 20*(l/8) + i")
    A(f"  v_mul_u32_u24 v{vW}, {20*12288}, v{vT1}"); A(f"  v_lshl_add_u32 v{vW}, v{vT2}, 4, v{vW}")
    A("  s_and_b32 s28, s2, 31"); A("  s_mul_i32 s28, s28, 3"); A("  s_lshr_b32 s47, s2, 6"); A("  s_add_u32 s28, s28, s47"); A("  s_lshl_b32 s28, s28, 7")
    A(f"  s_mul_i32 s47, s5, {160*12288}"); A("  s_add_u32 s28, s28, s47")
    A(f"  s_mov_b32 s26, {WBYTES}"); A("  s_mov_b32 s27, 0x20000")
    A("  s_bitcmp1_b32 s2, 5")
    A("  s_waitcnt lgkmcnt(0)")
    A("  s_cselect_b32 s24, s80, s70"); A("  s_cselect_b32 s25, s81, s71")
    A("  s_cselect_b32 s32, s74, s64"); A("  s_cselect_b32 s33, s75, s65")
    def kv_load(n):
        s, t = divmod(n, 3)
        A(f"  buffer_load_dwordx4 v[{ring(s,t)}:{ring(s,t)+3}], v{vKV}, s[8:11], s12 offen offset:{128*t} nt")
        if t == 2 and s < 7:
            d = ((s + 1) * sstep % 8 - s * sstep % 8) * 393216
            A(f"  s_add_u32 s12, s12, {d}" if d > 0 else f"  s_sub_u32 s12, s12, {-d}")
    def kvsetup():
        A(f"  v_mul_u32_u24 v{vKV}, {384*kd}, v{vT1}"); A(f"  v_lshl_add_u32 v{vKV}, v{vT2}, 4, v{vKV}")
        A("  s_lshl_b32 s13, s4, 2"); A("  s_add_u32 s13, s13, s5")
        if kd == 1: A("  s_mul_i32 s13, s13, 3072")
        else:
            A(f"  s_and_b32 s47, s13, {kd-1}"); A("  s_sub_u32 s13, s13, s47"); A("  s_lshl_b32 s13, s13, 3"); A("  s_add_u32 s13, s13, s47"); A("  s_mul_i32 s13, s13, 384")
        A("  s_mul_i32 s47, s3, 3145728"); A("  s_add_u32 s13, s13, s47"); A("  s_mov_b32 s12, s13")
        A("  s_mov_b32 s8, s66"); A("  s_mov_b32 s9, s67"); A(f"  s_mov_b32 s10, {KVBYTES}"); A("  s_mov_b32 s11, 0x20000")
    def masks():
        C("masks that put a bf16 on the diagonal of the first MFMA operand")
        A(f"  v_and_b32 v{vT0}, 1, v{vT2}"); A(f"  v_lshlrev_b32 v{vT0}, 4, v{vT0}")
        A(f"  v_mov_b32 v{vT3}, 0xffff"); A(f"  v_lshlrev_b32 v{vT0}, v{vT0}, v{vT3}")
        A(f"  v_lshrrev_b32 v{vT3}, 1, v{vT2}")
        for q in range(4):
            A(f"  v_cmp_eq_u32 vcc, {q}, v{vT3}"); A("  s_nop 1"); A(f"  v_cndmask_b32 v{vM+q}, 0, v{vT0}, vcc")
    def consts():
        A(f"  v_mov_b32 v{vZero}, 0")
        masks()
        A("  s_mov_b32 s54, 0x00ff00ff"); A("  s_mov_b32 s55, 0xff00ff00")
    wosetup = ["  s_cmp_ge_u32 s4, 16", "  s_cselect_b32 s24, s82, s72", "  s_cselect_b32 s25, s83, s73",
               "  s_lshr_b32 s47, s4, 2", "  s_and_b32 s47, s47, 3", "  s_lshl_b32 s47, s47, 3", "  s_add_u32 s47, s47, s3", "  s_mul_i32 s47, s47, 12",
               "  s_and_b32 s48, s4, 3", "  s_add_u32 s47, s47, s48", f"  s_mul_i32 s47, s47, {16*1280}", "  s_lshl_b32 s48, s5, 8", "  s_add_u32 s28, s47, s48",
               f"  v_lshrrev_b32 v{vW}, 4, v{vLane}", f"  v_mul_u32_u24 v{vW}, 1280, v{vW}", f"  v_and_b32 v{vT3}, 15, v{vLane}", f"  v_lshl_add_u32 v{vW}, v{vT3}, 4, v{vW}"]
    def wo_load(i, wait):
        if wait is not None: A(f"  s_waitcnt vmcnt({wait})")
        A(f"  buffer_load_dwordx4 a[{4*i}:{4*i+3}], v{vW}, s[24:27], s28 offen nt")
        if i < 11: A("  s_addk_i32 s28, 5120" if i % 4 < 3 else f"  s_add_u32 s28, s28, {81920 - 3*5120}")
    if prio == 3: A("  s_setprio 3")
    A("  s_cmp_ge_u32 s4, 24"); A("  s_cbranch_scc1 L_noq")
    def wq_load(i):
        A(f"  buffer_load_dwordx4 a[{4*i}:{4*i+3}], v{vW}, s[24:27], s28 offen nt")
        if i < 19: A("  s_addk_i32 s28, 12288")
    nq = wqd; assert 2 * nq <= 20
    for i in range(nq): wq_load(i)
    A("  s_branch L_xld")
    A("L_tag:")
    C("helper wave: workgroup 0 publishes the launch tag")
    A("  s_memrealtime s[48:49]")
    A(f"  v_mov_b32 v{vZero}, 0")
    A("  s_mov_b32 s10, 256"); A("  s_mov_b32 s11, 0x20000")
    A("  s_waitcnt lgkmcnt(0)")
    A("  s_mov_b32 s8, s40"); A("  s_mov_b32 s9, s41")
    A("  s_or_b32 s46, s48, 1"); A("  s_mul_i32 s46, s46, 0x9e3779b1")
    A("  s_cmp_lg_u32 s2, 0"); A("  s_cbranch_scc1 L_helper")
    A(f"  v_mov_b32 v{vT0}, s46"); A("  s_mov_b64 exec, 1")
    A(f"  buffer_store_dword v{vT0}, v{vZero}, s[8:11], 0 offen sc1")
    A("  s_mov_b64 exec, -1"); A("  s_branch L_helper")
    A("L_xld:")
    A(f"  v_mul_u32_u24 v{vT0}, 40, v{vT1}"); A("  s_mul_i32 s29, s5, 320")
    A("  s_mov_b32 s34, 2560"); A("  s_mov_b32 s35, 0x20000")
    for b in range(2):
        A(f"  buffer_load_dwordx4 v[{vX+10*b}:{vX+10*b+3}], v{vT0}, s[32:35], s29 offen offset:{1280*b}")
        A(f"  buffer_load_dwordx4 v[{vX+10*b+4}:{vX+10*b+7}], v{vT0}, s[32:35], s29 offen offset:{1280*b+16}")
        A(f"  buffer_load_dwordx2 v[{vX+10*b+8}:{vX+10*b+9}], v{vT0}, s[32:35], s29 offen offset:{1280*b+32}")
    consts(); kvsetup()
    A("  s_mov_b32 s52, 0x01000100"); A("  s_mov_b32 s53, 0x03020302")
    def qstep(i):
        for b in range(2):
            A(f"  v_perm_b32 v{vT0}, v{vX+10*b+i//2}, v{vX+10*b+i//2}, s{52+(i&1)}")
            for q in range(4): A(f"  v_and_b32 v{vB+4*b+q}, v{vT0}, v{vM+q}")
        for b in range(2):
            if b == 1: A("  s_nop 0")
            c = f"v[{vD+4*b}:{vD+4*b+3}]" if i else "0"
            A(f"  v_mfma_f32_16x16x32_bf16 v[{vD+4*b}:{vD+4*b+3}], v[{vB+4*b}:{vB+4*b+3}], a[{4*i}:{4*i+3}], {c}")
    C("q projection for both batch rows; the first K tiles follow the wq rows")
    nk = 0; done = 0
    for i in range(20):
        A(f"  s_waitcnt vmcnt({nq - 1 - i + nk + (6 if i < wqd else 0)})")
        if nq < 20: wq_load(nq); nq += 1
        else:
            while (19 - i + nk) < d0: kv_load(nk); nk += 1
        if i >= wqd:
            for _ in range(2):
                if done <= i: qstep(done); done += 1
    assert done == 20 and nk == d0
    A(f"  v_lshrrev_b32 v{vT0}, 5, v{vLane}"); A(f"  v_lshlrev_b32 v{vT0}, 9, v{vT0}")
    A(f"  v_lshl_add_u32 v{vT0}, v{vT2}, 5, v{vT0}")
    A(f"  v_and_b32 v{vT3}, 16, v{vLane}"); A(f"  v_add_u32 v{vT0}, v{vT0}, v{vT3}")
    A("  s_lshl_b32 s47, s5, 10"); A(f"  v_add_u32 v{vT0}, s47, v{vT0}")
    A("  s_nop 0")
    A("  s_mov_b64 exec, s[54:55]")
    for b in range(2): A(f"  ds_write_b128 v{vT0}, v[{vD+4*b}:{vD+4*b+3}] offset:{L_Y + 256*b}")
    A("  s_mov_b64 exec, -1")
    stamp("s", "preB1")
    A("  s_waitcnt lgkmcnt(0)"); A("  s_barrier                       ; B1: q partials")
    A("  s_branch L_qdone")
    A("L_noq:")
    kvsetup()
    for n in range(dn): kv_load(n)
    consts()
    for n in range(dn, d0):
        A(f"  s_waitcnt vmcnt({dn-1})"); kv_load(n)
    stamp("s", "preB1")
    A("L_qdone:")
    C("fill the ring with the first head while q is exchanged")
    rest = []
    R = rest.append
    R([f"  s_mul_i32 s47, s5, {PWAVE}", f"  s_add_u32 s47, s47, {L_P}", f"  v_mul_u32_u24 v{vPa}, {PROW}, v{vT1}", f"  v_add_u32 v{vPa}, s47, v{vPa}"])
    R([f"  v_lshlrev_b32 v{vQa}, 4, v{vT2}", f"  s_lshl_b32 s47, s5, 3", f"  v_mov_b32 v{vMLa}, s47", f"  s_lshl_b32 s47, s5, 2", f"  v_mov_b32 v{vCa}, s47", f"  v_mov_b32 v{vProg}, 0"])
    R([f"  v_lshrrev_b32 v{vDa}, 5, v{vLane}", f"  v_mul_u32_u24 v{vDa}, 768, v{vDa}", f"  v_lshl_add_u32 v{vDa}, v{vT2}, 5, v{vDa}",
       f"  v_and_b32 v{vT3}, 16, v{vLane}", f"  v_add_u32 v{vDa}, v{vDa}, v{vT3}", "  s_mul_i32 s47, s5, 1536", f"  s_add_u32 s47, s47, {L_O}", f"  v_add_u32 v{vDa}, s47, v{vDa}"])
    R(["  s_mov_b32 s16, s68", "  s_mov_b32 s17, s69", "  s_mov_b32 s18, s76", "  s_mov_b32 s19, s77", "  s_mov_b32 s20, s78", "  s_mov_b32 s21, s79"])
    R(wosetup)
    R(["  s_mov_b32 s36, s42", "  s_mov_b32 s37, s43", f"  s_mov_b32 s38, {WS}", "  s_mov_b32 s39, 0x20000", "  s_mov_b32 s14, 0", "  s_mov_b32 s15, 0x20000"])
    R([f"  s_mov_b32 s58, {f32hex(192 ** -0.5 * math.log2(math.e))}      ; log2(e)/sqrt(192)", "  s_mov_b32 s44, 0", f"  s_mov_b32 s45, {lev[-2] + 1}", "  s_mov_b32 s30, 0"])
    A("  s_cmp_ge_u32 s4, 24"); A("  s_cselect_b64 vcc, -1, 0")
    A(f"  s_cmp_ge_u32 s4, {ej}"); A("  s_cselect_b64 vcc, 0, vcc")
    for n in range(d0, 24):
        A(f"  s_waitcnt vmcnt({d0-1})")
        A(f"  s_cbranch_vccz L_rf{n}"); A(f"  s_waitcnt vmcnt({dn-1})"); A(f"L_rf{n}:")
        kv_load(n)
        if rest:
            for x in rest.pop(0): A(x)
    assert not rest
    if ej < 32:
        C("workgroups that wait for the very last partial o fetch their wo rows now")
        A(f"  s_cmp_lt_u32 s4, {ej}"); A("  s_cbranch_scc1 L_noearly")
        for i in range(12): wo_load(i, d0 - 1)
        A("L_noearly:")
    stamp("s", "ring")
    A("  s_barrier")
    for t in range(3): A(f"  ds_read_b128 v[{vQ+4*t}:{vQ+4*t+3}], v{vQa} offset:{L_Q + 128*t}")
    stamp("s", "B2")
    A("  s_waitcnt lgkmcnt(0)")
    def throttle(tag):
        A(f"  s_waitcnt vmcnt({lev[0]})")
        for k, th in enumerate(lev[1:]):
            A(f"  s_cmpk_gt_i32 s45, {th & 0xffff:#x}"); A(f"  s_cbranch_scc1 {tag}"); A(f"  s_waitcnt vmcnt({lev[0]-1-k})")
        A(f"{tag}:")
    def switch(tag):
        C("round it consumes head it and fetches head it+1; every 8 rounds the next buffer")
        A("  s_add_u32 s47, s44, 1"); A("  s_and_b32 s47, s47, 7"); A(f"  s_cbranch_scc1 {tag}")
        A("  s_mov_b32 s8, s16"); A("  s_mov_b32 s9, s17")
        for k in range(4): A(f"  s_mov_b32 s{16+k}, s{18+k}")
        A(f"{tag}:")
        A(f"  s_mul_i32 s47, s47, {8*3145728}"); A("  s_add_u32 s12, s13, s47")
    def body(tag, gaps):
        for n in range(24):
            s, j = divmod(n, 3)
            for x in gaps.get(n, []): A(x)
            if j == 2:
                A("  s_waitcnt lgkmcnt(0)")
                A(f"  v_readfirstlane_b32 s31, v{vMode}")
                A(f"  s_mul_i32 s56, s56, {kap}"); A("  s_lshr_b32 s56, s56, 6"); A("  s_sub_u32 s56, s56, s30"); A("  s_addk_i32 s30, 128")
                A("  s_add_u32 s56, s56, s31"); A("  s_sext_i32_i16 s56, s56")
                A("  s_bitcmp0_b32 s31, 31"); A("  s_cselect_b32 s45, s56, s45")
            throttle(f"{tag}_{n}")
            kv_load(n)
            if j == 1:
                A(f"  ds_read_b32 v{vMode}, v{vZero} offset:{L_CTL+32}"); A("  s_memrealtime s[56:57]")
            if j == 2:
                A(f"  v_add_u32 v{vProg}, 1, v{vProg}"); A(f"  ds_write_b32 v{vCa}, v{vProg} offset:{L_CTL+16}")
    def xred(op, t, u):
        return [f"  s_nop 1", f"  {op}_dpp v{t}, v{t}, v{t} row_ror:8 row_mask:0xf bank_mask:0xf",
                f"  v_mov_b32 v{u}, v{t}", "  s_nop 1", f"  v_permlane16_swap_b32 v{t}, v{u}", "  s_nop 0", f"  {op} v{t}, v{t}, v{u}",
                f"  v_mov_b32 v{u}, v{t}", "  s_nop 1", f"  v_permlane32_swap_b32 v{t}, v{u}", "  s_nop 0", f"  {op} v{t}, v{t}, v{u}"]
    kg = {}
    for s in range(4):
        for j in range(2):
            T = 2 * s + j
            kg[3*s+j] = [f"  s_waitcnt vmcnt({3*(7-T) + 3*s + j})"] + \
                        [f"  v_dot2_f32_bf16 v{vS+T}, v{ring(T,0)+k}, v{vQ+k}, {('v%d' % (vS+T)) if k else '0'}" for k in range(12)]
        g = []
        for pat in ("quad_perm:[1,0,3,2]", "quad_perm:[2,3,0,1]", "row_half_mirror"):
            g += ["  s_nop 0"] + [f"  v_add_f32_dpp v{vS+T}, v{vS+T}, v{vS+T} {pat} row_mask:0xf bank_mask:0xf" for T in (2*s, 2*s+1)]
        kg[3*s+2] = g
    kg[12] = [f"  v_add_u32 v{vQa}, 384, v{vQa}",
              f"  v_max3_f32 v{vT0}, v{vS}, v{vS+1}, v{vS+2}", f"  v_max3_f32 v{vT0}, v{vT0}, v{vS+3}, v{vS+4}",
              f"  v_max3_f32 v{vT0}, v{vT0}, v{vS+5}, v{vS+6}", f"  v_max_f32 v{vT0}, v{vT0}, v{vS+7}"] + \
             [f"  ds_read_b128 v[{vQ+4*t}:{vQ+4*t+3}], v{vQa} offset:{L_Q + 128*t}" for t in range(3)]
    kg[13] = xred("v_max_f32", vT0, vT1) + [f"  v_mul_f32 v{vD}, s58, v{vT0}"]
    kg[14] = [f"  v_fma_f32 v{vS+i}, v{vS+i}, s58, -v{vD}" for i in range(8)]
    kg[15] = [f"  v_exp_f32 v{vS+i}, v{vS+i}" for i in range(8)]
    kg[16] = [f"  v_add_f32 v{vD+1}, v{vS}, v{vS+1}"] + [f"  v_add_f32 v{vD+1}, v{vD+1}, v{vS+i}" for i in range(2, 8)]
    kg[17] = [f"  v_cvt_pk_bf16_f32 v{vS+i}, v{vS+i}, v{vS+i}" for i in range(8)]
    kg[18] = [f"  ds_write_b128 v{vPa}, v[{vS}:{vS+3}]", f"  ds_write_b128 v{vPa}, v[{vS+4}:{vS+7}] offset:16", f"  v_add_u32 v{vPa}, 32, v{vPa}"]
    kg[19] = xred("v_add_f32", vD+1, vT1)
    kg[21] = [f"  ds_write_b64 v{vMLa}, v[{vD}:{vD+1}] offset:{L_ML}", f"  v_add_u32 v{vMLa}, 32, v{vMLa}"]
    def vtile(T, wait):
        b = vB + 4 * (T & 1)
        g = [f"  v_and_b32 v{b+q}, v{vS+T}, v{vM+q}" for q in range(4)] + [f"  s_waitcnt vmcnt({wait})", "  s_nop 0"]
        for t in range(3):
            c = f"v[{vD+4*t}:{vD+4*t+3}]" if T else "0"
            g.append(f"  v_mfma_f32_16x16x32_bf16 v[{vD+4*t}:{vD+4*t+3}], v[{b}:{b+3}], v[{ring(T,t)}:{ring(T,t)+3}], {c}")
        return g
    dump = ["  s_mov_b64 exec, s[54:55]"] + [f"  ds_write_b128 v{vDa}, v[{vD+4*t}:{vD+4*t+3}] offset:{256*t}" for t in range(3)] + ["  s_mov_b64 exec, -1"]
    pread = [f"  ds_read_b128 v[{vS}:{vS+3}], v{vPa}", f"  ds_read_b128 v[{vS+4}:{vS+7}], v{vPa} offset:16"]
    vg = {}
    for s in range(4):
        for j in range(2): vg[3*s+j] = vtile(2*s+j, 3*(7-(2*s+j)) + 3*s + j)
    vg[12] = ["  s_nop 7"] + dump + [f"  v_add_u32 v{vDa}, 6144, v{vDa}", f"  v_add_u32 v{vPa}, 32, v{vPa}"]
    vg[13] = pread
    def cstamp():
        if not curve: return
        A("  s_memrealtime s[98:99]"); A("  s_mov_b32 m0, s44"); A("  s_waitcnt lgkmcnt(0)")
        A(f"  v_writelane_b32 v{vCv}, s98, m0"); A(f"  v_writelane_b32 v{vCv+1}, s99, m0")
    A("L_kloop:")
    switch("L_ksw")
    body("L_k", kg); cstamp()
    A("  s_add_u32 s44, s44, 1"); A("  s_and_b32 s47, s44, 7"); A("  s_cbranch_scc1 L_kloop")
    A(";HOP 1")
    A(f"  v_subrev_u32 v{vPa}, 256, v{vPa}")
    for x in pread: A(x)
    A("  s_waitcnt lgkmcnt(0)")
    A("L_vloop:")
    switch("L_vsw")
    body("L_v", vg); cstamp()
    A("  s_add_u32 s44, s44, 1")
    A("  s_cmp_eq_u32 s44, 31"); A("  s_cbranch_scc1 L_last")
    A("  s_and_b32 s47, s44, 7"); A("  s_cbranch_scc1 L_vloop")
    A(f"  v_subrev_u32 v{vPa}, 256, v{vPa}")
    A("  s_branch L_kloop")
    A(";HOP 2")
    A("L_last:")
    C("last round: the wo rows are the end of the stream and cover the exchange of the last partial o")
    def last(m):
        sched = {1: [0, 1], 2: [2, 3], 3: [4, 5], dl - 1: [6], dl: [7]}
        for k in range(max(m, dl + 1)):
            for T in sched.get(k, []):
                for x in vtile(T, 3*(7-T) + min(k, m)): A(x)
            if k == dl:
                A(f"  v_add_u32 v{vProg}, 8, v{vProg}"); A("  s_nop 5")
                for x in dump: A(x)
                A(f"  ds_write_b32 v{vCa}, v{vProg} offset:{L_CTL+16}")
                stamp("s", "vend")
            if k < m: wo_load(k, dl - 1)
        stamp("s", "woiss")
    if ej < 32:
        A(f"  s_cmp_lt_u32 s4, {ej}"); A("  s_cbranch_scc1 L_last1")
        last(0)
        A("  s_branch L_proj")
        A("L_last1:")
    last(12)
    A("L_proj:")
    C("all five waves: y[2][128 columns] = o[2][48 rows] * wo")
    A(f"  v_and_b32 v{vT0}, 8, v{vLane}"); A(f"  v_and_b32 v{vT1}, 48, v{vLane}"); A(f"  v_lshl_add_u32 v{vT0}, v{vT0}, 5, v{vT1}      ; (16*b + g)*16")
    A(f"  v_lshrrev_b32 v{vT1}, 5, v{vLane}"); A(f"  v_mul_u32_u24 v{vT1}, {128*YS - 512}, v{vT1}"); A(f"  v_lshl_add_u32 v{vT1}, v{vLane}, 4, v{vT1}")
    A("  s_lshr_b32 s47, s4, 4"); A(f"  s_mul_i32 s47, s47, {256*YS}")
    A("  s_and_b32 s48, s2, 127"); A(f"  s_mul_i32 s48, s48, {YS}"); A("  s_add_u32 s47, s47, s48")
    A("  s_lshl_b32 s48, s5, 9"); A("  s_add_u32 s47, s47, s48")
    for i in range(4): A(f"  s_mov_b32 s{52+i}, 0x0706050{i}")
    A("  s_waitcnt lgkmcnt(0)")
    A("  s_barrier")
    G = vRing
    for u in range(4): A(f"  ds_read_b128 v[{G+4*u}:{G+4*u+3}], v{vT0} offset:{L_C + 64*u}")
    if stamps:
        A("  s_cmp_eq_u32 s5, 4"); A("  s_cbranch_scc1 L_nost"); stamp("s", "oready"); A("L_nost:")
    A("  s_waitcnt lgkmcnt(0)")
    def diag(i):
        tp, u = divmod(i, 4)
        for q in range(4): A(f"  v_and_b32 v{G+16+4*i+q}, v{G+4*u+tp}, v{vM+q}")
    diag(0); diag(1)
    nd = 2
    for i in range(12):
        A(f"  s_waitcnt vmcnt({11-i})")
        cc = f"v[{vD}:{vD+3}]" if i else "0"
        A(f"  v_mfma_f32_16x16x32_bf16 v[{vD}:{vD+3}], v[{G+16+4*i}:{G+19+4*i}], a[{4*i}:{4*i+3}], {cc}")
        for _ in range(2 if i >= 2 else 1):
            if nd < 12: diag(nd); nd += 1
    A("  s_nop 7")
    C("the low byte of each value carries one byte of the launch tag")
    for r in range(4): A(f"  v_perm_b32 v{vD+r}, v{vD+r}, v{G+3}, s{52+r}")
    A(f"  buffer_store_dwordx4 v[{vD}:{vD+3}], v{vT1}, s[36:39], s47 offen {ysp}")
    A("  s_cmp_eq_u32 s5, 4"); A("  s_cbranch_scc1 L_final")
    A(";HOP 9")
    if curve:
        A("  s_cmp_lg_u32 s5, 0"); A("  s_cbranch_scc1 L_end")
        A("  s_getreg_b32 s100, hwreg(HW_REG_XCC_ID)")
        A(f"  s_mul_i32 s47, s2, {144 if curve == 1 else 264}"); A(f"  s_add_u32 s47, s47, {WS - (1<<20)}")
        A(f"  v_lshlrev_b32 v{vT0}, {2 if curve == 1 else 3}, v{vLane}"); A(f"  v_add_u32 v{vT0}, 16, v{vT0}")
        A(f"  s_mov_b32 exec_lo, {0x55555555 if curve == 1 else 0x7fffffff:#x}"); A("  s_mov_b32 exec_hi, 0")
        A(f"  buffer_store_dwordx2 v[{vCv}:{vCv+1}], v{vT0}, s[36:39], s47 offen")
        A("  s_mov_b64 exec, 1")
        A(f"  v_mov_b32 v{vRing}, s96"); A(f"  v_mov_b32 v{vRing+1}, s97"); A(f"  v_mov_b32 v{vRing+2}, s100"); A(f"  v_mov_b32 v{vRing+3}, 0")
        A(f"  buffer_store_dwordx4 v[{vRing}:{vRing+3}], v{vZero}, s[36:39], s47 offen")
    if stamps:
        A("  s_cmp_lg_u32 s5, 0"); A("  s_cbranch_scc1 L_end")
        stamp("s", "ystore")
        A("  s_waitcnt vmcnt(0)")
        stamp("s", "end")
        dump_stamps("s", 0)
    A("L_end:"); A("  s_endpgm")
    vE = vD + 2
    A("L_helper:")
    if prio == 1: A("  s_setprio 3")
    A(f"  v_mov_b32 v{H}, 0"); A(f"  v_mov_b32 v{H+1}, 0"); A(f"  v_mov_b32 v{H+2}, 0"); A(f"  v_mov_b32 v{H+3}, 0"); A(f"  v_mov_b32 v{H+4}, -1")
    A(f"  ds_write_b128 v{vZero}, v[{H}:{H+3}] offset:{L_CTL+16}"); A(f"  ds_write_b32 v{vZero}, v{H+4} offset:{L_CTL+32}")
    A("  s_mov_b32 s36, s42"); A("  s_mov_b32 s37, s43"); A(f"  s_mov_b32 s38, {WS}"); A("  s_mov_b32 s39, 0x20000")
    masks()
    for x in wosetup: A(x)
    A(f"  s_mov_b32 s26, {WBYTES}"); A("  s_mov_b32 s27, 0x20000")
    A(f"  v_lshlrev_b32 v{vT0}, 3, v{vLane}"); A(f"  v_lshlrev_b32 v{vT3}, 4, v{vLane}"); A(f"  v_lshlrev_b32 v{vQa}, 2, v{vLane}")
    A(f"  s_mul_i32 s12, s3, {24*512}"); A(f"  s_add_u32 s12, s12, {W_Q}")
    A("  s_and_b32 s13, s4, 7"); A("  s_mul_i32 s13, s13, 3"); A("  s_lshr_b32 s14, s4, 3"); A("  s_add_u32 s13, s13, s14")
    A("  s_lshl_b32 s13, s13, 9"); A("  s_add_u32 s13, s13, s12")
    A("  s_add_u32 s14, s12, 4096"); A("  s_add_u32 s15, s12, 8192")
    A("  s_cmp_eq_u32 s2, 0"); A("  s_cbranch_scc1 L_nhave")
    A(f"  s_mov_b32 s50, {SPIN}")
    if nslp0: A(f"  s_sleep {nslp0}")
    A("L_nloop:")
    A(f"  buffer_load_dword v{H}, v{vZero}, s[8:11], 0 offen sc1"); A("  s_waitcnt vmcnt(0)")
    A(f"  v_readfirstlane_b32 s46, v{H}")
    A("  s_sub_u32 s50, s50, 1"); A("  s_cbranch_scc1 L_nhave")
    A("  s_cmp_lg_u32 s46, 0"); A("  s_cbranch_scc1 L_nhave")
    A(f"  s_sleep {nslp}"); A("  s_branch L_nloop")
    A("L_nhave:")
    stamp("h", "nonce")
    A("  s_waitcnt lgkmcnt(0)")
    A("  s_cmp_ge_u32 s4, 24"); A("  s_cbranch_scc1 L_hq2")
    A("  s_barrier                       ; B1")
    for k in range(8): A(f"  ds_read_b64 v[{H+2*k}:{H+2*k+1}], v{vT0} offset:{L_Y + 512*k}")
    for k in range(1, 8):
        A(f"  s_waitcnt lgkmcnt({7-k})")
        for r in range(2): A(f"  v_add_f32 v{H+r}, v{H+r}, v{H+2*k+r}")
    A(f"  v_cvt_pk_bf16_f32 v{vD}, v{H}, v{H+1}"); A(f"  v_mov_b32 v{vD+1}, s46")
    def qglob(tag):
        A("  s_cmp_ge_u32 s4, 24"); A(f"  s_cbranch_scc1 {tag}")
        A(f"  buffer_store_dwordx2 v[{vD}:{vD+1}], v{vT0}, s[36:39], s13 offen sc1")
        A(f"{tag}:")
    A(f"  s_add_u32 s47, s13, {QLOC}")
    A(f"  buffer_store_dwordx2 v[{vD}:{vD+1}], v{vT0}, s[36:39], s47 offen")
    A("L_hq2:")
    A(f"  v_and_b32 v{vT1}, 16, v{vLane}"); A(f"  v_mul_u32_u24 v{vT1}, 96, v{vT1}")
    A(f"  v_and_b32 v{vT2}, 15, v{vLane}"); A(f"  v_lshl_add_u32 v{vT1}, v{vT2}, 3, v{vT1}")
    A(f"  v_lshrrev_b32 v{vT2}, 5, v{vLane}"); A(f"  v_lshl_add_u32 v{vT1}, v{vT2}, 7, v{vT1}")
    A(f"  s_mov_b32 s50, {SPIN}")
    A("L_qg:")
    C("the first tries read the copy that a producer on this die left in L2, later ones alternate with the device-wide copy")
    A(f"  s_cmp_lg_u32 s50, {SPIN - nloc}"); A("  s_cbranch_scc1 L_qg1"); qglob("L_qg1")
    A(f"  s_cmp_gt_u32 s50, {SPIN - nloc}"); A(f"  s_cselect_b32 s47, {QLOC}, 0")
    A("  s_bitcmp1_b32 s50, 0"); A(f"  s_cselect_b32 s47, {QLOC}, s47")
    A(f"  v_add_u32 v{vDa}, s47, v{vT3}")
    for k in range(12):
        A(f"  buffer_load_dwordx4 v[{H+4*k}:{H+4*k+3}], v{vDa}, s[36:39], s{(12,14,15)[k//4]} offen offset:{1024*(k%4)} sc1")
    A("  s_mov_b64 s[48:49], 0")
    for k in range(12):
        A(f"  s_waitcnt vmcnt({11-k})")
        for r in (1, 3):
            A(f"  v_cmp_ne_u32 vcc, s46, v{H+4*k+r}"); A("  s_or_b64 s[48:49], s[48:49], vcc")
    A("  s_sub_u32 s50, s50, 1"); A("  s_cbranch_scc1 L_qgo")
    A("  s_cmp_eq_u64 s[48:49], 0"); A("  s_cbranch_scc0 L_qg")
    A("L_qgo:")
    def qconst(item):
        sg, c = divmod(item, 3); return ((sg >> 2) * 8 + (sg & 3)) * 384 + c * 128
    for k in range(12):
        assert qconst(2*k+1) - qconst(2*k) == 128
        A(f"  v_mov_b32 v{H+4*k+1}, v{H+4*k+2}")
        A(f"  ds_write_b64 v{vT1}, v[{H+4*k}:{H+4*k+1}] offset:{L_Q + qconst(2*k)}")
    A("  s_waitcnt lgkmcnt(0)")
    stamp("h", "qtab")
    A("  s_barrier                       ; B2")
    C("set-up of the progress board and of the flush state")
    A("  s_getreg_b32 s56, hwreg(HW_REG_XCC_ID)"); A("  s_and_b32 s56, s56, 7")
    A("  s_lshl_b32 s57, s56, 3"); A("  s_add_u32 s57, s57, s3"); A("  s_mul_i32 s57, s57, 1152"); A(f"  s_add_u32 s57, s57, {W_B}")
    A("  s_lshl_b32 s59, s4, 3"); A("  s_add_u32 s59, s59, s57")
    A("  s_mov_b32 s31, 0")
    A(f"  v_mov_b32 v{vE+1}, s46")
    A("  s_lshl_b32 s62, s56, 2"); A(f"  s_add_u32 s62, s62, {W_G}"); A(f"  s_mov_b32 s29, {lper-1}")
    A(f"  s_add_u32 s16, s42, {W_G}"); A("  s_addc_u32 s17, s43, 0")
    A("  s_and_b32 s51, s46, 0xffff0000")
    A("  s_mov_b32 s18, -1"); A("  s_mov_b32 s19, 1")
    A("  s_mov_b32 s30, 0"); A("  s_mov_b32 s32, 0")
    A(f"  v_add_u32 v{vDa}, {L_O}, v{vQa}"); A(f"  v_mov_b32 v{vMLa}, {L_E}")
    A("  s_mov_b32 s33, 0xffff")
    if atom: A("  s_mov_b32 s62, 124")
    if ep: A(f"  s_mov_b32 s29, {ep0}"); A("  s_mov_b32 s80, 0"); A("  s_mov_b32 s81, 0")
    A(f"  s_mul_i32 s58, s3, {512*OS}"); A(f"  s_mul_i32 s48, s4, {OS}"); A("  s_add_u32 s58, s58, s48"); A(f"  s_add_u32 s58, s58, {W_O}")
    def otag(reg):
        A(f"  v_and_b32 v{vMode}, 1, v{vLane}"); A(f"  v_lshlrev_b32 v{vMode}, 4, v{vMode}"); A(f"  v_lshrrev_b32 v{vMode}, v{vMode}, {reg}"); A(f"  v_lshlrev_b32 v{vMode}, 16, v{vMode}")
    otag("s46")
    A("  s_mov_b32 s45, s46")
    def call(l): A(f"  s_call_b64 s[60:61], {l}")
    def pace(t): A(f"  s_mov_b32 s44, {t}"); call("L_pace")
    def drain(n): A(f"  s_mov_b32 s32, {n}"); call("L_drain")
    pace(t_q)
    if warm:
        C("bring the code of the V rounds into the instruction cache: with EXEC = 0 only the chain of branches runs")
        A("  s_mov_b64 exec, 0"); A("  s_branch L_hop_0"); A("L_back:")
    A("  s_load_dwordx2 s[6:7], s[0:1], 80      ; out"); A("  s_waitcnt lgkmcnt(0)")
    C("without proof that the group shares a die, leave a device-wide copy of q")
    A("  s_cmp_eq_u32 s31, 1"); A("  s_cbranch_scc1 L_qg2"); qglob("L_qg2")
    if share:
        C("problem A: publish (M, l) and the partial o; its projectors merge them before anyone reuses the slots")
        pace(t_a)
        A("  s_mov_b32 s34, 0x00ff"); call("L_ml"); A("  s_mov_b32 s32, 8")
        pace(t_c); drain(8)
        A("  s_cmp_ge_u32 s4, 16"); A("  s_cbranch_scc1 L_s1")
        A("  s_mov_b32 s34, 0"); call("L_wt"); call("L_merge"); A("  s_mov_b32 s34, 1"); call("L_merge")
        A("L_s1:")
        pace(t_ml)
        A("  s_mov_b32 s34, 0xff00"); call("L_ml")
        pace(t_w)
        C("the (M, l) records of problem B also tell that their writers are done with the slots")
        A("  s_mov_b32 s34, 8"); call("L_wt")
        A(f"  s_xor_b32 s45, s46, {GEN:#x}"); otag("s45"); A(f"  s_sub_u32 s58, s58, {8*32*OS}")
        A("  s_mov_b32 s32, 15")
    else:
        pace(t_ml)
        A("  s_mov_b32 s34, 0xffff"); call("L_ml"); A("  s_mov_b32 s32, 15")
        pace(t_w)
        A("  s_lshr_b32 s34, s4, 4"); A("  s_lshl_b32 s34, s34, 3"); call("L_wt")
    pace(t_g); drain(12); A("  s_mov_b32 s32, 15")
    if share: A("  s_cmp_lt_u32 s4, 16"); A("  s_cbranch_scc1 L_s4")
    A("  s_mov_b32 s34, 0"); call("L_merge")
    A("L_s4:")
    A("  s_mov_b32 s34, 1")
    pace(t_f)
    stamp("h", "flush0")
    if prio == 2: A("  s_setprio 3")
    for i in range(hw): wo_load(i, None)
    C("final-reduction role of workgroups 0..159: (problem, batch) = id&3, block of 4 granules = id>>2")
    A("  s_and_b32 s20, s2, 3"); A("  s_lshr_b32 s21, s2, 2")
    A(f"  v_lshrrev_b32 v{vCa}, 2, v{vLane}"); A(f"  v_and_b32 v{vProg}, 3, v{vLane}")
    A(f"  v_mul_u32_u24 v{vCa}, {YS}, v{vCa}"); A(f"  v_lshl_add_u32 v{vCa}, v{vProg}, 4, v{vCa}"); A(f"  v_lshlrev_b32 v{vProg}, 4, v{vProg}")
    A(f"  v_bfe_u32 v{vT1}, v{vLane}, 4, 1"); A(f"  v_lshl_add_u32 v{vProg}, v{vT1}, 2, v{vProg}")
    A(f"  v_lshrrev_b32 v{vT1}, 5, v{vLane}"); A(f"  v_lshl_add_u32 v{vProg}, v{vT1}, 1, v{vProg}")
    A(f"  s_mul_i32 s72, s20, {128*YS}"); A("  s_lshl_b32 s22, s21, 6"); A("  s_add_u32 s72, s72, s22")
    for k in range(1, 8): A(f"  s_add_u32 s{72+k}, s72, {16*k*YS}")
    A("  s_and_b32 s22, s20, 1"); A("  s_mul_i32 s35, s22, 2560"); A("  s_lshr_b32 s22, s20, 1"); A("  s_mul_i32 s22, s22, 1280"); A("  s_add_u32 s35, s35, s22")
    A("  s_lshr_b32 s22, s21, 3"); A("  s_lshl_b32 s22, s22, 8"); A("  s_add_u32 s35, s35, s22")
    A("  s_and_b32 s22, s21, 3"); A("  s_lshl_b32 s22, s22, 6"); A("  s_add_u32 s35, s35, s22")
    A("  s_and_b32 s22, s21, 4"); A("  s_lshl_b32 s22, s22, 1"); A("  s_add_u32 s35, s35, s22")
    A("  s_mov_b32 s12, s6"); A("  s_mov_b32 s13, s7"); A("  s_mov_b32 s14, 5120"); A("  s_mov_b32 s15, 0x20000")
    lo_j = 16 if share else 0
    drain(15)
    if gj > lo_j:
        if share: A("  s_cmp_lt_u32 s4, 16"); A("  s_cbranch_scc1 L_s2")
        A(f"  s_cmp_ge_u32 s4, {gj}"); A("  s_cbranch_scc1 L_s2")
        call("L_merge")
        A("L_s2:")
    drain(16)
    stamp("h", "flushed")
    for i in range(hw, 12): wo_load(i, None)
    A(f"  s_cmp_lt_u32 s4, {max(gj, lo_j)}"); A("  s_cbranch_scc1 L_s3")
    call("L_merge")
    A("L_s3:")
    stamp("h", "hready")
    A("  s_branch L_proj")
    def pub(instr, tag):
        A("  s_cmp_eq_u32 s31, 1"); A(f"  s_cbranch_scc1 {tag}a")
        A(instr + " sc1")
        A(f"  s_branch {tag}b"); A(f"{tag}a:"); A(instr); A(f"{tag}b:")
    A("L_pace:")
    A(f"  s_sleep {slp}")
    A("  s_memrealtime s[22:23]")
    A(f"  ds_read_b128 v[{H}:{H+3}], v{vZero} offset:{L_CTL+16}"); A("  s_waitcnt lgkmcnt(0)")
    A(f"  v_min3_u32 v{H+4}, v{H}, v{H+1}, v{H+2}"); A(f"  v_min_u32 v{H+4}, v{H+4}, v{H+3}")
    A(f"  v_add3_u32 v{H+5}, v{H}, v{H+1}, v{H+2}"); A(f"  v_add_u32 v{H+5}, v{H+5}, v{H+3}")
    A(f"  v_readfirstlane_b32 s20, v{H+4}")
    A("  s_cmp_ge_u32 s20, s44"); A("  s_cbranch_scc1 L_ret")
    A(f"  v_readfirstlane_b32 s21, v{H+5}")
    A(f"  s_mul_i32 s22, s22, {kap}"); A("  s_lshr_b32 s22, s22, 6")
    A("  s_lshl_b32 s21, s21, 5"); A("  s_sub_u32 s21, s21, s22"); A("  s_and_b32 s21, s21, 0xffff")
    A(f"  v_mov_b32 v{vE}, s21"); A(f"  v_mov_b32 v{H+8}, 0"); A(f"  v_mov_b32 v{H+9}, 0")
    A("  s_mov_b64 exec, 1")
    A(f"  buffer_store_dwordx2 v[{vE}:{vE+1}], v{vZero}, s[36:39], s59 offen")
    A("  s_mov_b64 exec, s[18:19]")
    A(f"  buffer_load_dwordx2 v[{H+8}:{H+9}], v{vT0}, s[36:39], s57 offen {bpol}")
    A("  s_mov_b64 exec, -1")
    A("  s_waitcnt vmcnt(0)")
    A(f"  v_readlane_b32 s22, v{H+8}, 32")
    A(f"  v_cmp_eq_u32 vcc, s46, v{H+9}")
    A(f"  v_subrev_u32 v{H+7}, s21, v{H+8}"); A(f"  v_bfe_i32 v{H+7}, v{H+7}, 0, 16")
    A(f"  v_cndmask_b32 v{H+7}, 0, v{H+7}, vcc")
    A("  s_cmp_eq_u32 vcc_lo, -1"); A("  s_cselect_b32 s31, 1, s31")
    for sh in (1, 2, 4, 8):
        A("  s_nop 1"); A(f"  v_add_u32_dpp v{H+7}, v{H+7}, v{H+7} row_ror:{sh} row_mask:0xf bank_mask:0xf")
    A("  s_bitcmp1_b32 vcc_hi, 0"); A("  s_cselect_b32 s22, s22, 0")
    A(f"  v_readlane_b32 s23, v{H+7}, 0"); A(f"  v_readlane_b32 s47, v{H+7}, 16")
    A("  s_add_u32 s23, s23, s47"); A("  s_ashr_i32 s23, s23, 5"); A("  s_add_u32 s23, s23, s21")
    A("  s_add_u32 s47, s23, s22")
    A("  s_and_b32 s47, s47, 0xffff"); A(f"  v_mov_b32 v{H+6}, s47")
    A(f"  ds_write_b32 v{vZero}, v{H+6} offset:{L_CTL+32}")
    A("  s_cmp_lg_u32 s4, 0"); A("  s_cbranch_scc1 L_paced")
    C("first workgroup of a group: now and then compare with the other groups")
    if lin: A(f"  s_min_i32 s48, s22, {lin}"); A(f"  s_max_i32 s48, s48, {-lin}")
    else: A(f"  s_ashr_i32 s48, s22, {dec}")
    A("  s_sub_u32 s48, s22, s48"); A("  s_mov_b64 exec, 1")
    if ep:
        C("all groups post their mean at the same points of progress and read the others' a few rounds later")
        A("  s_cmp_lt_u32 s20, s29"); A("  s_cbranch_scc1 L_ep1")
        if epp2: A(f"  s_cmp_ge_u32 s29, {ept}"); A(f"  s_cselect_b32 s47, {epp2}, {epp}"); A("  s_add_u32 s29, s29, s47")
        else: A(f"  s_add_u32 s29, s29, {epp}")
        if epend < 999: A(f"  s_cmp_gt_u32 s29, {epend}"); A("  s_cselect_b32 s29, 999, s29")
        A(f"  s_mov_b32 s81, {epw}"); A("  s_and_b32 s80, s23, 0xffff")
        if atom:
            A("  s_add_u32 s62, s62, 4"); A("  s_or_b32 s47, s80, 0x1000000"); A(f"  v_mov_b32 v{H+6}, s47")
            A(f"  buffer_atomic_add v{H+6}, v{vZero}, s[8:11], s62 offen")
        else:
            A("  s_add_u32 s51, s51, 0x10000"); A("  s_or_b32 s47, s80, s51"); A(f"  v_mov_b32 v{H+6}, s47")
            A(f"  buffer_store_dword v{H+6}, v{vZero}, s[36:39], s62 offen sc1")
        A("  s_branch L_dst")
        A("L_ep1:")
        A("  s_sub_u32 s81, s81, 1"); A("  s_cmp_lg_u32 s81, 0"); A("  s_cbranch_scc1 L_dst")
        if atom:
            A("  s_load_dword s64, s[40:41], s62 glc"); A("  s_waitcnt lgkmcnt(0)")
            A("  s_lshr_b32 s65, s64, 24"); A("  s_mul_i32 s65, s65, s80"); A("  s_sub_u32 s48, s64, s65"); A("  s_sext_i32_i16 s48, s48")
        else:
            A("  s_load_dwordx8 s[64:71], s[16:17], 0 glc")
            A("  s_mov_b32 s23, s80")
            A("  s_waitcnt lgkmcnt(0)")
    else:
        A("  s_add_u32 s29, s29, 1"); A(f"  s_cmp_lt_u32 s29, {lper}"); A("  s_cbranch_scc1 L_dst")
        A("  s_mov_b32 s29, 0")
        A("  s_load_dwordx8 s[64:71], s[16:17], 0 glc")
        A("  s_and_b32 s23, s23, 0xffff")
        A("  s_or_b32 s47, s23, s51"); A(f"  v_mov_b32 v{H+6}, s47")
        A("  s_waitcnt lgkmcnt(0)")
        A(f"  buffer_store_dword v{H+6}, v{vZero}, s[36:39], s62 offen sc1")
    if not atom: A("  s_mov_b32 s48, 0")
    for k in range(0 if atom else 8):
        A(f"  s_xor_b32 s{64+k}, s{64+k}, s51"); A(f"  s_cmp_lt_u32 s{64+k}, 0x10000"); A(f"  s_cselect_b32 s{64+k}, s{64+k}, s23")
        A(f"  s_sub_u32 s{64+k}, s{64+k}, s23"); A(f"  s_sext_i32_i16 s{64+k}, s{64+k}"); A(f"  s_add_u32 s48, s48, s{64+k}")
    if gain != 8: A(f"  s_mul_i32 s48, s48, {gain}"); A("  s_ashr_i32 s48, s48, 6")
    else: A("  s_ashr_i32 s48, s48, 3")
    A("L_dst:")
    A(f"  v_mov_b32 v{vE}, s48")
    A(f"  buffer_store_dwordx2 v[{vE}:{vE+1}], v{vZero}, s[36:39], s57 offen offset:256")
    A("  s_mov_b64 exec, -1")
    A("L_paced:")
    A(f"  s_mov_b32 s63, {nfl}"); A("  s_branch L_fl")
    A("L_drain:")
    C("entry: flush up to the limit, waiting for the waves")
    A("  s_mov_b32 s63, -1")
    A("L_fl:")
    C("head i (round 8+i, or 16+i from 8 on) is in LDS once every wave's progress is >= 8*round+5")
    A("  s_cmp_ge_u32 s30, 8"); A("  s_cselect_b32 s48, 16, 8"); A("  s_add_u32 s48, s48, s30"); A("  s_lshl_b32 s48, s48, 3"); A("  s_add_u32 s48, s48, 5")
    A("  s_cmp_lt_i32 s63, 0"); A("  s_cbranch_scc0 L_fl0")
    A("  s_cmp_ge_u32 s30, s32"); A("  s_cbranch_scc0 L_fl1")
    A("L_ret:")
    A("  s_setpc_b64 s[60:61]")
    A("L_fl0:")
    A("  s_cmp_ge_u32 s30, s32"); A("  s_cbranch_scc1 L_pace")
    A("  s_cmp_lt_u32 s20, s48"); A("  s_cbranch_scc1 L_pace")
    A("  s_sub_u32 s63, s63, 1"); A("  s_cbranch_scc1 L_pace")
    A("L_fl1:")
    A(f"  ds_read_b128 v[{H+28}:{H+31}], v{vMLa}")
    A("L_flw:")
    if flws: A(f"  s_sleep {flws}")
    A(f"  ds_read_b128 v[{H}:{H+3}], v{vZero} offset:{L_CTL+16}"); A("  s_waitcnt lgkmcnt(0)")
    A(f"  v_min3_u32 v{H+4}, v{H}, v{H+1}, v{H+2}"); A(f"  v_min_u32 v{H+4}, v{H+4}, v{H+3}"); A("  s_nop 0")
    A(f"  v_readfirstlane_b32 s20, v{H+4}")
    A("  s_cmp_lt_u32 s20, s48"); A("  s_cbranch_scc1 L_flw")
    for k in range(12): A(f"  ds_read2st64_b32 v[{H+2*k}:{H+2*k+1}], v{vDa} offset0:{2*k} offset1:{2*k+1}")
    for w in range(4):
        A(f"  s_waitcnt lgkmcnt({9-3*w})")
        for t in range(3): A(f"  v_add_f32 v{H+6*w+t}, v{H+6*w+t}, v{H+6*w+3+t}")
        for t in range(3):
            A(f"  v_mul_f32 v{H+32+t}, v{H+28}, v{H+t}" if w == 0 else f"  v_fmac_f32 v{H+32+t}, v{H+28+w}, v{H+6*w+t}")
    C("lane l: o[l], o[l+64], o[l+128] and one half of the tag")
    A(f"  v_cvt_pk_bf16_f32 v{H+32}, v{H+32}, v{H+33}"); A(f"  v_cvt_pk_bf16_f32 v{H+33}, v{H+34}, v{H+34}")
    A(f"  v_and_or_b32 v{H+33}, v{H+33}, s33, v{vMode}")
    pub(f"  buffer_store_dwordx2 v[{H+32}:{H+33}], v{vT0}, s[36:39], s58 offen", "L_po")
    A(f"  v_add_u32 v{vDa}, 6144, v{vDa}"); A(f"  v_add_u32 v{vMLa}, 16, v{vMLa}")
    A(f"  s_add_u32 s58, s58, {32*OS}"); A("  s_add_u32 s30, s30, 1"); A("  s_branch L_fl")
    A("L_ml:")
    A(f"  v_and_b32 v{vT1}, 15, v{vLane}"); A(f"  v_lshlrev_b32 v{vT2}, 5, v{vT1}"); A(f"  v_lshlrev_b32 v{vT1}, 4, v{vT1}")
    A(f"  ds_read_b128 v[{H}:{H+3}], v{vT2} offset:{L_ML}"); A(f"  ds_read_b128 v[{H+4}:{H+7}], v{vT2} offset:{L_ML+16}")
    A("  s_lshl_b32 s47, s3, 5"); A("  s_add_u32 s47, s47, s4"); A("  s_lshl_b32 s47, s47, 8"); A(f"  s_add_u32 s47, s47, {W_ML}")
    A("  s_waitcnt lgkmcnt(0)")
    A(f"  v_max3_f32 v{H+8}, v{H}, v{H+2}, v{H+4}"); A(f"  v_max_f32 v{H+8}, v{H+8}, v{H+6}")
    for w in range(4): A(f"  v_sub_f32 v{H+12+w}, v{H+2*w}, v{H+8}")
    for w in range(4): A(f"  v_exp_f32 v{H+12+w}, v{H+12+w}")
    A(f"  v_mov_b32 v{H+10}, 0"); A(f"  v_mov_b32 v{H+11}, s46")
    A(f"  v_mul_f32 v{H+9}, v{H+12}, v{H+1}")
    for w in range(1, 4): A(f"  v_fmac_f32 v{H+9}, v{H+12+w}, v{H+2*w+1}")
    A("  s_mov_b32 exec_lo, s34"); A("  s_mov_b32 exec_hi, 0")
    A(f"  ds_write_b128 v{vT1}, v[{H+12}:{H+15}] offset:{L_E}")
    pub(f"  buffer_store_dwordx4 v[{H+8}:{H+11}], v{vT1}, s[36:39], s47 offen", "L_pm")
    A("  s_mov_b64 exec, -1")
    A("  s_setpc_b64 s[60:61]")
    A("L_wt:")
    A(f"  v_and_b32 v{vT1}, 31, v{vLane}"); A(f"  v_lshlrev_b32 v{vT1}, 8, v{vT1}")
    A(f"  v_and_b32 v{vT2}, 32, v{vLane}"); A(f"  v_lshl_add_u32 v{vT1}, v{vT2}, 1, v{vT1}      ; producer*256 + b*64")
    A("  s_lshr_b32 s48, s4, 2"); A("  s_and_b32 s48, s48, 3"); A("  s_add_u32 s47, s34, s48")
    A("  s_lshl_b32 s47, s47, 4"); A("  s_lshl_b32 s48, s3, 13"); A("  s_add_u32 s47, s47, s48"); A(f"  s_add_u32 s47, s47, {W_ML}")
    A(f"  s_mov_b32 s50, {SPIN}")
    A("L_wg:")
    A(f"  buffer_load_dwordx4 v[{H}:{H+3}], v{vT1}, s[36:39], s47 offen {gpol}"); A("  s_waitcnt vmcnt(0)")
    A(f"  v_cmp_ne_u32 vcc, s46, v{H+3}")
    A("  s_sub_u32 s50, s50, 1"); A("  s_cbranch_scc1 L_wgo")
    A("  s_cmp_eq_u64 vcc, 0"); A("  s_cbranch_scc1 L_wgo")
    A("  s_sleep 16"); A("  s_branch L_wg")
    A("L_wgo:")
    def red32(op, t, u):
        for sh in (1, 2, 4, 8):
            A("  s_nop 1"); A(f"  {op}_dpp v{t}, v{t}, v{t} row_ror:{sh} row_mask:0xf bank_mask:0xf")
        A(f"  v_mov_b32 v{u}, v{t}"); A("  s_nop 1"); A(f"  v_permlane16_swap_b32 v{t}, v{u}"); A("  s_nop 0"); A(f"  {op} v{t}, v{t}, v{u}")
    A(f"  v_mov_b32 v{H+4}, v{H}")
    red32("v_max_f32", H+4, H+5)
    A(f"  v_sub_f32 v{H}, v{H}, v{H+4}"); A(f"  v_exp_f32 v{H}, v{H}"); A("  s_nop 0")
    A(f"  v_mul_f32 v{H+4}, v{H}, v{H+1}")
    red32("v_add_f32", H+4, H+5)
    A(f"  v_rcp_f32 v{H+4}, v{H+4}")
    A(f"  v_and_b32 v{vT1}, 7, v{vLane}"); A(f"  v_lshlrev_b32 v{vT1}, 4, v{vT1}"); A(f"  v_lshl_add_u32 v{vT1}, v{vT2}, 2, v{vT1}")
    A(f"  v_and_b32 v{vT2}, 24, v{vLane}"); A(f"  v_lshrrev_b32 v{vT2}, 1, v{vT2}"); A(f"  v_add_u32 v{vT1}, v{vT1}, v{vT2}")
    A(f"  v_mul_f32 v{H}, v{H}, v{H+4}")
    A(f"  ds_write_b32 v{vT1}, v{H} offset:{L_W}")
    A("  s_setpc_b64 s[60:61]")
    A("L_merge:")
    C("batch row s34: first call keeps its sums, second call folds both and leaves them in LDS")
    A(f"  v_lshrrev_b32 v{vT1}, 3, v{vLane}"); A(f"  v_and_b32 v{vT2}, 7, v{vLane}")
    A(f"  v_mul_u32_u24 v{vPa}, {OS}, v{vT1}"); A(f"  v_lshl_add_u32 v{vPa}, v{vT2}, 4, v{vPa}")
    A("  s_lshr_b32 s47, s4, 2"); A("  s_and_b32 s47, s47, 3"); A("  s_lshl_b32 s48, s34, 2"); A("  s_add_u32 s47, s47, s48")
    if not share: A("  s_lshr_b32 s48, s4, 4"); A("  s_lshl_b32 s48, s48, 3"); A("  s_add_u32 s47, s47, s48")
    A(f"  s_mul_i32 s47, s47, {32*OS}"); A(f"  s_mul_i32 s48, s3, {512*OS}"); A("  s_add_u32 s47, s47, s48")
    A("  s_and_b32 s48, s4, 3"); A("  s_lshl_b32 s48, s48, 7"); A("  s_add_u32 s47, s47, s48"); A(f"  s_add_u32 s64, s47, {W_O}")
    for k in range(1, 4): A(f"  s_add_u32 s{64+k}, s64, {k*8*OS}")
    A("  s_lshl_b32 s48, s34, 7"); A(f"  v_lshl_add_u32 v{vT1}, v{vT1}, 4, s48")
    A(f"  ds_read_b128 v[{vS}:{vS+3}], v{vT1} offset:{L_W}")
    A("  s_mov_b32 s22, 0x07060302"); A("  s_mov_b32 s23, 0xffff0000")
    A(f"  v_bfe_u32 v{vT1}, v{vLane}, 4, 1"); A(f"  v_lshl_add_u32 v{vT1}, v{vT2}, 1, v{vT1}")
    A(f"  v_and_b32 v{vT2}, 32, v{vLane}"); A(f"  v_lshlrev_b32 v{vT1}, 4, v{vT1}")
    A(f"  v_lshl_add_u32 v{vT1}, v{vT2}, 3, v{vT1}      ; (16*b + granule)*16")
    A(f"  s_mov_b32 s50, {SPIN}")
    A("L_gather:")
    for k in range(4): A(f"  buffer_load_dwordx4 v[{H+4*k}:{H+4*k+3}], v{vPa}, s[36:39], s{64+k} offen {gpol}")
    A("  s_mov_b64 s[48:49], 0")
    for k in range(4):
        A(f"  s_waitcnt vmcnt({3-k})")
        A(f"  v_perm_b32 v{vKV}, v{H+4*k+3}, v{H+4*k+1}, s22"); A(f"  v_cmp_ne_u32 vcc, s45, v{vKV}"); A("  s_or_b64 s[48:49], s[48:49], vcc")
    A("  s_sub_u32 s50, s50, 1"); A("  s_cbranch_scc1 L_ggo")
    A("  s_cmp_eq_u64 s[48:49], 0"); A("  s_cbranch_scc0 L_gather")
    A("L_ggo:")
    A("  s_waitcnt lgkmcnt(0)")
    M = H + 32
    Z = vB
    for k in range(4):
        for par in range(2):
            e0, e1 = H + 4*k + 2*par, H + 4*k + 2*par + 1
            A(f"  v_lshlrev_b32 v{vKV}, 16, v{e0}"); A(f"  v_and_b32 v{e0}, s23, v{e0}"); A(f"  v_lshlrev_b32 v{e1}, 16, v{e1}")
            for t, r in enumerate((vKV, e0, e1)):
                A(f"  {'v_mul_f32' if k == 0 else 'v_fmac_f32'} v{M+3*par+t}, v{vS+k}, v{r}")
    A("  s_cmp_eq_u32 s34, 0"); A("  s_cbranch_scc0 L_fold")
    for i in range(6): A(f"  v_mov_b32 v{Z+i}, v{M+i}")
    A("  s_setpc_b64 s[60:61]")
    A("L_fold:")
    A(";HOP 3")
    for i in range(6): A(f"  v_permlane32_swap_b32 v{Z+i}, v{M+i}")
    for i in range(6): A(f"  v_add_f32 v{Z+i}, v{Z+i}, v{M+i}")
    A("  s_nop 0")
    for i in range(3): A(f"  v_permlane16_swap_b32 v{Z+i}, v{Z+3+i}")
    A("  s_nop 0")
    for i in range(3): A(f"  v_add_f32 v{Z+i}, v{Z+i}, v{Z+3+i}")
    for i in range(3): A(f"  v_add_f32_dpp v{Z+i}, v{Z+i}, v{Z+i} row_ror:8 row_mask:0xf bank_mask:0xf")
    for i in range(3): A(f"  v_cvt_pk_bf16_f32 v{Z+i}, v{Z+i}, v{Z+i}")
    A(f"  v_mov_b32 v{Z+3}, s46")
    A(f"  ds_write_b128 v{vT1}, v[{Z}:{Z+3}] offset:{L_C}")
    A("  s_setpc_b64 s[60:61]")
    A("L_final:")
    stamp("h", "final0"); stamp("h", "ygot")
    if stamps: A("  s_waitcnt lgkmcnt(0)")
    A(f"  s_cmp_ge_u32 s2, 160"); A(f"  s_cbranch_scc1 {'L_hst' if stamps else 'L_end'}")
    A("  s_mov_b32 s52, 0x0c0c0400"); A("  s_mov_b32 s53, 0x04000c0c"); A("  s_mov_b32 s54, 0xffffff00")
    mk = [16, 18, 20, 22, 64, 66, 68, 70]
    for k in range(8): A(f"  s_mov_b64 s[{mk[k]}:{mk[k]+1}], -1")
    A(f"  s_mov_b32 s50, {SPIN}")
    if fslp1: A("  s_cmp_ge_u32 s4, 16"); A("  s_cbranch_scc1 L_fs"); A(f"  s_sleep {fslp1}"); A("L_fs:")
    if fslp2: A("  s_bitcmp0_b32 s2, 1"); A("  s_cbranch_scc1 L_fs2"); A(f"  s_sleep {fslp2}"); A("L_fs2:")
    if fslp0: A(f"  s_sleep {fslp0}")
    def yround():
        for k in range(8):
            A(f"  s_or_b64 exec, s[{mk[k]}:{mk[k]+1}], 1")
            A(f"  buffer_load_dwordx4 v[{H+4*k}:{H+4*k+3}], v{vCa}, s[36:39], s{72+k} offen {ylp}")
        A("  s_mov_b64 exec, -1")
    C("poll the 128 partial outputs; lanes that already hold their record drop out")
    for _ in range(pp - 1):
        yround(); A(f"  s_sleep {pstag}")
    A("L_fin:")
    yround()
    A(f"  s_waitcnt vmcnt({8*(pp-1)})")
    for k in range(8):
        A(f"  v_perm_b32 v{vS}, v{H+4*k+1}, v{H+4*k}, s52"); A(f"  v_perm_b32 v{vS+1}, v{H+4*k+3}, v{H+4*k+2}, s53")
        A(f"  v_or_b32 v{vS}, v{vS}, v{vS+1}"); A(f"  v_cmp_ne_u32 s[{mk[k]}:{mk[k]+1}], s46, v{vS}")
    A(f"  s_or_b64 s[48:49], s[{mk[0]}:{mk[0]+1}], s[{mk[1]}:{mk[1]+1}]")
    for k in range(2, 8): A(f"  s_or_b64 s[48:49], s[48:49], s[{mk[k]}:{mk[k]+1}]")
    A("  s_sub_u32 s50, s50, 1"); A("  s_cbranch_scc1 L_fgo")
    A("  s_cmp_eq_u64 s[48:49], 0"); A("  s_cbranch_scc0 L_fin")
    A("L_fgo:")
    stamp("h", "ygot")
    Y = H + 32
    for i in range(32): A(f"  v_and_b32 v{Y+i}, s54, v{H+i}")
    for st in (16, 8, 4):
        for i in range(0, st, 2): A(f"  v_pk_add_f32 v[{Y+i}:{Y+i+1}], v[{Y+i}:{Y+i+1}], v[{Y+st+i}:{Y+st+i+1}]")
    C("fold the four columns onto the four rows of lanes: row 0..3 = column 0,2,1,3")
    A("  s_nop 1")
    A(f"  v_permlane32_swap_b32 v{Y}, v{Y+1}"); A(f"  v_permlane32_swap_b32 v{Y+2}, v{Y+3}"); A("  s_nop 0")
    A(f"  v_add_f32 v{Y}, v{Y}, v{Y+1}"); A(f"  v_add_f32 v{Y+2}, v{Y+2}, v{Y+3}"); A("  s_nop 1")
    A(f"  v_permlane16_swap_b32 v{Y}, v{Y+2}"); A("  s_nop 0")
    A(f"  v_add_f32 v{Y}, v{Y}, v{Y+2}")
    for sh in (4, 8):
        A("  s_nop 1"); A(f"  v_add_f32_dpp v{Y}, v{Y}, v{Y} row_ror:{sh} row_mask:0xf bank_mask:0xf")
    A(f"  v_cvt_pk_bf16_f32 v{Y}, v{Y}, v{Y}")
    A("  s_mov_b32 exec_lo, 0x000f000f"); A("  s_mov_b32 exec_hi, 0x000f000f")
    A(f"  buffer_store_short v{Y}, v{vProg}, s[12:15], s35 offen")
    C("every workgroup has read the launch tag by now: leave the word as it was found")
    A("  s_cmp_lg_u32 s2, 0"); A("  s_cbranch_scc1 L_nz")
    A("  s_mov_b64 exec, -1" if atom else "  s_mov_b64 exec, 1")
    A(f"  buffer_store_dword v{vZero}, v{vQa if atom else vZero}, s[8:11], 0 offen sc1")
    A(";HOP 9")
    A("L_nz:")
    if stamps:
        A("L_hst:")
        A("  s_waitcnt vmcnt(0)")
        stamp("h", "hend")
        dump_stamps("h", 1)
        sn = names["s"]; hn = names["h"]
        L.insert(1, "; stamps: start id " + " ".join((sn[1:] + ["id"] * 6)[:6]) + " " + " ".join((hn + ["id"] * 8)[:7]) + " last")
    A("  s_endpgm")
    import re
    def isize(l):
        op = l.split()[0]
        if op == ";": return 0
        lit = any(not (-16 <= int(t, 0) <= 64) for t in re.findall(r"(?<![\w\[:])(-?(?:0x[0-9a-f]+|\d+))(?![\w\]:])", " ".join(l.split(";")[0].split()[1:])))
        if op in ("s_waitcnt", "s_nop", "s_barrier", "s_sleep", "s_branch", "s_endpgm") or op.startswith("s_cbranch") or op.startswith("s_cmpk") or op.startswith("s_addk"): return 4
        if op.startswith("s_load") or op.startswith("s_mem"): return 8
        if op.startswith("s_"): return 8 if lit else 4
        if op in ("v_and_b32", "v_add_u32", "v_readfirstlane_b32", "v_mov_b32"): return 8 if lit else 4
        return 8
    out = []; on = False; acc = 0; cnt = 0
    for l in L:
        if l.startswith(";HOP"):
            was = on; on = int(l.split()[1]) <= warm
            if on and not was: acc = hopb
            continue
        if on and l.startswith("  "):
            if acc >= hopb:
                out.append(f"L_hop_{cnt}:"); out.append(f"  s_cbranch_execz L_hop_{cnt+1}"); cnt += 1; acc = 4
            acc += isize(l)
        out.append(l)
    if warm: out.append(f"L_hop_{cnt}:"); out.append("  s_mov_b64 exec, -1"); out.append("  s_branch L_back")
    L[:] = out
    A('.section .rodata,"a"')
    A(".p2align 6"); A(f".amdhsa_kernel {KN}")
    A(f"  .amdhsa_next_free_vgpr {ACC + NA}"); A(f"  .amdhsa_next_free_sgpr 102"); A(f"  .amdhsa_accum_offset {ACC}")
    A("  .amdhsa_group_segment_fixed_size 0"); A("  .amdhsa_kernarg_size 104"); A("  .amdhsa_user_sgpr_count 2")
    A("  .amdhsa_user_sgpr_kernarg_segment_ptr 1"); A("  .amdhsa_system_sgpr_workgroup_id_x 1")
    A(".end_amdhsa_kernel")
    open(name, "w").write("\n".join(L) + "\n")
    return name
if __name__ == "__main__":
    if len(sys.argv) > 2:
        hdr = open("concat_heads__gqa_block_cached__mha_block_cached__decode.s.ref").read().split("; Override launch")[0]
        print(gen(name=sys.argv[2], header=hdr, **eval(sys.argv[1])))
    else:
        print(" ".join(gen(**kw) for kw in eval(sys.argv[1])))
```

```python
import sys, math, struct
KN = "concat_heads__gqa_block_cached__mha_block_cached__decode_kernel"
WS = 836768768
KVBYTES = 201326592
WBYTES = 7864320
def f32hex(x): return "0x%08x" % struct.unpack("<I", struct.pack("<f", x))[0]

DOC = """;
; ---------------------------------------------------------------------------------------------------------
; ---------------------------------------------------------------------------------------------------------"""

def gen(name="f.s", header="", stamps=0, curve=False,
        lev=(7, 300, 120, 15, -200), kap=205, slp=24, lper=8, dec=2, lin=0, gain=8, prio=0, flws=0, kd=1, gpol="sc1", bpol="sc1", warm=2, hopb=120, tlb=1, sstep=3, ep=True, ep0=8, epp=40, epw=2, ept=999, epp2=0, epend=215, atom=True,
        wqd=7, d0=5, dn=3, dl=5, ej=28, nslp0=4, nslp=8, nloc=24,
        t_q=16, t_a=165, t_c=184, t_ml=193, t_w=198, t_f=244, nfl=2, share=True, gj=16, hw=12, t_g=229,
        fslp0=13, fslp1=12, fslp2=0, ysp="sc1", ylp="sc1", pp=2, pstag=8, SPIN=200000, YS=2688, OS=640):
    L = []; A = L.append
    def C(txt): A("  ; " + txt)
    L_CTL = 0
    L_W = 64
    L_C = L_W + 256
    L_E = L_C + 512
    L_ML = L_E + 256
    L_Q = L_ML + 512
    L_P = L_Q + 17 * 384
    PROW = 272; PWAVE = 8 * PROW
    L_Y = L_P + 4 * PWAVE + 64
    L_O = L_Y + 4096
    LDS = L_O + 16 * 6144
    assert L_Y % 16 == 0 and L_O % 16 == 0 and L_Q % 16 == 0 and L_P % 16 == 0
    W_O = 2 << 20
    W_Q = 6 << 20
    W_ML = W_Q + (128 << 10)
    W_B = W_ML + (128 << 10)
    W_G = W_B + (128 << 10)
    QLOC = 512 << 10
    GEN = 0x5aa5c33c
    vLane, vKV, vW, vZero = 1, 2, 3, 4
    vT0, vT1, vT2, vT3 = 5, 6, 7, 8
    vPa, vQa, vDa, vMLa, vCa, vProg, vMode = 9, 10, 11, 12, 13, 14, 15
    vM = 16; vB = 20; vQ = 28; vS = 40; vD = 48; vRing = 60
    vX = vQ
    NV = vRing + 96
    if curve: vCv = NV; NV += 2
    ACC = (NV + 3) // 4 * 4
    NA = 80
    H = vRing
    def ring(s, t): return vRing + 12 * s + 4 * t
    names = {"s": [], "h": []}
    sets = {1: ("start", "preB1", "ring", "B2", "vend", "oready", "end", "nonce", "qtab", "flush0", "flushed", "ygot", "hend"),
            2: ("start", "vend", "woiss", "oready", "ystore", "end", "flush0", "flushed", "hready", "final0", "ygot", "hend")}
    def stamp(who, nm, again=False):
        if nm not in sets.get(stamps, ()): return
        if nm not in names[who]: names[who].append(nm)
        k = names[who].index(nm); assert k < 8
        A(f"  s_memrealtime s[{84+2*k}:{85+2*k}]")
    def dump_stamps(who, rec):
        n = len(names[who])
        A("  s_getreg_b32 s100, hwreg(HW_REG_XCC_ID)"); A("  s_getreg_b32 s101, hwreg(HW_REG_HW_ID)")
        A("  s_waitcnt vmcnt(0) lgkmcnt(0)")
        A(f"  s_lshl_b32 s47, s2, 7"); A(f"  s_add_u32 s47, s47, {WS - (1<<20) + 64*rec}")
        if who == "s": regs = [84, 85, 100, 101] + sum([[84+2*min(k, n-1), 85+2*min(k, n-1)] for k in range(1, 7)], [])
        else: regs = sum([[84+2*min(k, n-1), 85+2*min(k, n-1)] for k in range(8)], [])
        A("  s_mov_b64 exec, 1")
        for i in range(16): A(f"  v_mov_b32 v{vRing+i}, s{regs[i]}")
        for i in range(4): A(f"  buffer_store_dwordx4 v[{vRing+4*i}:{vRing+4*i+3}], v{vZero}, s[36:39], s47 offen offset:{16*i}")

    A(header + f"; @launch grid=(256,1,1) block=(320,1,1) lds={LDS}")
    A(DOC)
    A('.amdgcn_target "amdgcn-amd-amdhsa--gfx950"')
    A(".text"); A(f".globl {KN}"); A(".p2align 8"); A(f".type {KN},@function"); A(f"{KN}:")
    A("  s_cmp_ge_u32 s2, 256"); A("  s_cbranch_scc1 L_end")
    A("  s_load_dwordx16 s[64:79], s[0:1], 0")
    A("  s_load_dwordx4 s[80:83], s[0:1], 64")
    A("  s_load_dwordx4 s[40:43], s[0:1], 88")
    if curve: A("  s_memrealtime s[96:97]"); A(f"  v_mov_b32 v{vCv}, 0"); A(f"  v_mov_b32 v{vCv+1}, 0")
    stamp("s", "start"); names["h"] = ["hstart"] if stamps else []
    A(f"  v_lshrrev_b32 v{vT0}, 6, v0"); A(f"  v_and_b32 v{vLane}, 63, v0")
    A(f"  v_readfirstlane_b32 s5, v{vT0}     ; wave")
    A(f"  v_lshrrev_b32 v{vT1}, 3, v{vLane}    ; l/8"); A(f"  v_and_b32 v{vT2}, 7, v{vLane}        ; l%8")
    A("  s_and_b32 s3, s2, 7             ; x"); A("  s_lshr_b32 s4, s2, 3            ; j")
    A("  s_cmp_eq_u32 s5, 4"); A("  s_cbranch_scc1 L_tag")
    C("q item of workgroup j < 24: problem (j>>2)&1, head 8*(j&3)+x, 64-column block j>>3; rows 160*w + 20*(l/8) + i")
    A(f"  v_mul_u32_u24 v{vW}, {20*12288}, v{vT1}"); A(f"  v_lshl_add_u32 v{vW}, v{vT2}, 4, v{vW}")
    A("  s_and_b32 s28, s2, 31"); A("  s_mul_i32 s28, s28, 3"); A("  s_lshr_b32 s47, s2, 6"); A("  s_add_u32 s28, s28, s47"); A("  s_lshl_b32 s28, s28, 7")
    A(f"  s_mul_i32 s47, s5, {160*12288}"); A("  s_add_u32 s28, s28, s47")
    A(f"  s_mov_b32 s26, {WBYTES}"); A("  s_mov_b32 s27, 0x20000")
    A("  s_bitcmp1_b32 s2, 5")
    A("  s_waitcnt lgkmcnt(0)")
    A("  s_cselect_b32 s24, s80, s70"); A("  s_cselect_b32 s25, s81, s71")
    A("  s_cselect_b32 s32, s74, s64"); A("  s_cselect_b32 s33, s75, s65")
    def kv_load(n):
        s, t = divmod(n, 3)
        A(f"  buffer_load_dwordx4 v[{ring(s,t)}:{ring(s,t)+3}], v{vKV}, s[8:11], s12 offen offset:{128*t} nt")
        if t == 2 and s < 7:
            d = ((s + 1) * sstep % 8 - s * sstep % 8) * 393216
            A(f"  s_add_u32 s12, s12, {d}" if d > 0 else f"  s_sub_u32 s12, s12, {-d}")
    def kvsetup():
        A(f"  v_mul_u32_u24 v{vKV}, {384*kd}, v{vT1}"); A(f"  v_lshl_add_u32 v{vKV}, v{vT2}, 4, v{vKV}")
        A("  s_lshl_b32 s13, s4, 2"); A("  s_add_u32 s13, s13, s5")
        if kd == 1: A("  s_mul_i32 s13, s13, 3072")
        else:
            A(f"  s_and_b32 s47, s13, {kd-1}"); A("  s_sub_u32 s13, s13, s47"); A("  s_lshl_b32 s13, s13, 3"); A("  s_add_u32 s13, s13, s47"); A("  s_mul_i32 s13, s13, 384")
        A("  s_mul_i32 s47, s3, 3145728"); A("  s_add_u32 s13, s13, s47"); A("  s_mov_b32 s12, s13")
        A("  s_mov_b32 s8, s66"); A("  s_mov_b32 s9, s67"); A(f"  s_mov_b32 s10, {KVBYTES}"); A("  s_mov_b32 s11, 0x20000")
    def masks():
        C("masks that put a bf16 on the diagonal of the first MFMA operand")
        A(f"  v_and_b32 v{vT0}, 1, v{vT2}"); A(f"  v_lshlrev_b32 v{vT0}, 4, v{vT0}")
        A(f"  v_mov_b32 v{vT3}, 0xffff"); A(f"  v_lshlrev_b32 v{vT0}, v{vT0}, v{vT3}")
        A(f"  v_lshrrev_b32 v{vT3}, 1, v{vT2}")
        for q in range(4):
            A(f"  v_cmp_eq_u32 vcc, {q}, v{vT3}"); A("  s_nop 1"); A(f"  v_cndmask_b32 v{vM+q}, 0, v{vT0}, vcc")
    def consts():
        A(f"  v_mov_b32 v{vZero}, 0")
        masks()
        A("  s_mov_b32 s54, 0x00ff00ff"); A("  s_mov_b32 s55, 0xff00ff00")
    wosetup = ["  s_cmp_ge_u32 s4, 16", "  s_cselect_b32 s24, s82, s72", "  s_cselect_b32 s25, s83, s73",
               "  s_lshr_b32 s47, s4, 2", "  s_and_b32 s47, s47, 3", "  s_lshl_b32 s47, s47, 3", "  s_add_u32 s47, s47, s3", "  s_mul_i32 s47, s47, 12",
               "  s_and_b32 s48, s4, 3", "  s_add_u32 s47, s47, s48", f"  s_mul_i32 s47, s47, {16*1280}", "  s_lshl_b32 s48, s5, 8", "  s_add_u32 s28, s47, s48",
               f"  v_lshrrev_b32 v{vW}, 4, v{vLane}", f"  v_mul_u32_u24 v{vW}, 1280, v{vW}", f"  v_and_b32 v{vT3}, 15, v{vLane}", f"  v_lshl_add_u32 v{vW}, v{vT3}, 4, v{vW}"]
    def wo_load(i, wait):
        if wait is not None: A(f"  s_waitcnt vmcnt({wait})")
        A(f"  buffer_load_dwordx4 a[{4*i}:{4*i+3}], v{vW}, s[24:27], s28 offen nt")
        if i < 11: A("  s_addk_i32 s28, 5120" if i % 4 < 3 else f"  s_add_u32 s28, s28, {81920 - 3*5120}")
    if prio == 3: A("  s_setprio 3")
    A("  s_cmp_ge_u32 s4, 24"); A("  s_cbranch_scc1 L_noq")
    def wq_load(i):
        A(f"  buffer_load_dwordx4 a[{4*i}:{4*i+3}], v{vW}, s[24:27], s28 offen nt")
        if i < 19: A("  s_addk_i32 s28, 12288")
    nq = wqd; assert 2 * nq <= 20
    for i in range(nq): wq_load(i)
    A("  s_branch L_xld")
    A("L_tag:")
    C("helper wave: workgroup 0 publishes the launch tag")
    A("  s_memrealtime s[48:49]")
    A(f"  v_mov_b32 v{vZero}, 0")
    A("  s_mov_b32 s10, 256"); A("  s_mov_b32 s11, 0x20000")
    A("  s_waitcnt lgkmcnt(0)")
    A("  s_mov_b32 s8, s40"); A("  s_mov_b32 s9, s41")
    A("  s_or_b32 s46, s48, 1"); A("  s_mul_i32 s46, s46, 0x9e3779b1")
    A("  s_cmp_lg_u32 s2, 0"); A("  s_cbranch_scc1 L_helper")
    A(f"  v_mov_b32 v{vT0}, s46"); A("  s_mov_b64 exec, 1")
    A(f"  buffer_store_dword v{vT0}, v{vZero}, s[8:11], 0 offen sc1")
    A("  s_mov_b64 exec, -1"); A("  s_branch L_helper")
    A("L_xld:")
    A(f"  v_mul_u32_u24 v{vT0}, 40, v{vT1}"); A("  s_mul_i32 s29, s5, 320")
    A("  s_mov_b32 s34, 2560"); A("  s_mov_b32 s35, 0x20000")
    for b in range(2):
        A(f"  buffer_load_dwordx4 v[{vX+10*b}:{vX+10*b+3}], v{vT0}, s[32:35], s29 offen offset:{1280*b}")
        A(f"  buffer_load_dwordx4 v[{vX+10*b+4}:{vX+10*b+7}], v{vT0}, s[32:35], s29 offen offset:{1280*b+16}")
        A(f"  buffer_load_dwordx2 v[{vX+10*b+8}:{vX+10*b+9}], v{vT0}, s[32:35], s29 offen offset:{1280*b+32}")
    consts(); kvsetup()
    A("  s_mov_b32 s52, 0x01000100"); A("  s_mov_b32 s53, 0x03020302")
    def qstep(i):
        for b in range(2):
            A(f"  v_perm_b32 v{vT0}, v{vX+10*b+i//2}, v{vX+10*b+i//2}, s{52+(i&1)}")
            for q in range(4): A(f"  v_and_b32 v{vB+4*b+q}, v{vT0}, v{vM+q}")
        for b in range(2):
            if b == 1: A("  s_nop 0")
            c = f"v[{vD+4*b}:{vD+4*b+3}]" if i else "0"
            A(f"  v_mfma_f32_16x16x32_bf16 v[{vD+4*b}:{vD+4*b+3}], v[{vB+4*b}:{vB+4*b+3}], a[{4*i}:{4*i+3}], {c}")
    C("q projection for both batch rows; the first K tiles follow the wq rows")
    nk = 0; done = 0
    for i in range(20):
        A(f"  s_waitcnt vmcnt({nq - 1 - i + nk + (6 if i < wqd else 0)})")
        if nq < 20: wq_load(nq); nq += 1
        else:
            while (19 - i + nk) < d0: kv_load(nk); nk += 1
        if i >= wqd:
            for _ in range(2):
                if done <= i: qstep(done); done += 1
    assert done == 20 and nk == d0
    A(f"  v_lshrrev_b32 v{vT0}, 5, v{vLane}"); A(f"  v_lshlrev_b32 v{vT0}, 9, v{vT0}")
    A(f"  v_lshl_add_u32 v{vT0}, v{vT2}, 5, v{vT0}")
    A(f"  v_and_b32 v{vT3}, 16, v{vLane}"); A(f"  v_add_u32 v{vT0}, v{vT0}, v{vT3}")
    A("  s_lshl_b32 s47, s5, 10"); A(f"  v_add_u32 v{vT0}, s47, v{vT0}")
    A("  s_nop 0")
    A("  s_mov_b64 exec, s[54:55]")
    for b in range(2): A(f"  ds_write_b128 v{vT0}, v[{vD+4*b}:{vD+4*b+3}] offset:{L_Y + 256*b}")
    A("  s_mov_b64 exec, -1")
    stamp("s", "preB1")
    A("  s_waitcnt lgkmcnt(0)"); A("  s_barrier                       ; B1: q partials")
    A("  s_branch L_qdone")
    A("L_noq:")
    kvsetup()
    for n in range(dn): kv_load(n)
    consts()
    for n in range(dn, d0):
        A(f"  s_waitcnt vmcnt({dn-1})"); kv_load(n)
    stamp("s", "preB1")
    A("L_qdone:")
    C("fill the ring with the first head while q is exchanged")
    rest = []
    R = rest.append
    R([f"  s_mul_i32 s47, s5, {PWAVE}", f"  s_add_u32 s47, s47, {L_P}", f"  v_mul_u32_u24 v{vPa}, {PROW}, v{vT1}", f"  v_add_u32 v{vPa}, s47, v{vPa}"])
    R([f"  v_lshlrev_b32 v{vQa}, 4, v{vT2}", f"  s_lshl_b32 s47, s5, 3", f"  v_mov_b32 v{vMLa}, s47", f"  s_lshl_b32 s47, s5, 2", f"  v_mov_b32 v{vCa}, s47", f"  v_mov_b32 v{vProg}, 0"])
    R([f"  v_lshrrev_b32 v{vDa}, 5, v{vLane}", f"  v_mul_u32_u24 v{vDa}, 768, v{vDa}", f"  v_lshl_add_u32 v{vDa}, v{vT2}, 5, v{vDa}",
       f"  v_and_b32 v{vT3}, 16, v{vLane}", f"  v_add_u32 v{vDa}, v{vDa}, v{vT3}", "  s_mul_i32 s47, s5, 1536", f"  s_add_u32 s47, s47, {L_O}", f"  v_add_u32 v{vDa}, s47, v{vDa}"])
    R(["  s_mov_b32 s16, s68", "  s_mov_b32 s17, s69", "  s_mov_b32 s18, s76", "  s_mov_b32 s19, s77", "  s_mov_b32 s20, s78", "  s_mov_b32 s21, s79"])
    R(wosetup)
    R(["  s_mov_b32 s36, s42", "  s_mov_b32 s37, s43", f"  s_mov_b32 s38, {WS}", "  s_mov_b32 s39, 0x20000", "  s_mov_b32 s14, 0", "  s_mov_b32 s15, 0x20000"])
    R([f"  s_mov_b32 s58, {f32hex(192 ** -0.5 * math.log2(math.e))}      ; log2(e)/sqrt(192)", "  s_mov_b32 s44, 0", f"  s_mov_b32 s45, {lev[-2] + 1}", "  s_mov_b32 s30, 0"])
    A("  s_cmp_ge_u32 s4, 24"); A("  s_cselect_b64 vcc, -1, 0")
    A(f"  s_cmp_ge_u32 s4, {ej}"); A("  s_cselect_b64 vcc, 0, vcc")
    for n in range(d0, 24):
        A(f"  s_waitcnt vmcnt({d0-1})")
        A(f"  s_cbranch_vccz L_rf{n}"); A(f"  s_waitcnt vmcnt({dn-1})"); A(f"L_rf{n}:")
        kv_load(n)
        if rest:
            for x in rest.pop(0): A(x)
    assert not rest
    if ej < 32:
        C("workgroups that wait for the very last partial o fetch their wo rows now")
        A(f"  s_cmp_lt_u32 s4, {ej}"); A("  s_cbranch_scc1 L_noearly")
        for i in range(12): wo_load(i, d0 - 1)
        A("L_noearly:")
    stamp("s", "ring")
    A("  s_barrier")
    for t in range(3): A(f"  ds_read_b128 v[{vQ+4*t}:{vQ+4*t+3}], v{vQa} offset:{L_Q + 128*t}")
    stamp("s", "B2")
    A("  s_waitcnt lgkmcnt(0)")
    def throttle(tag):
        A(f"  s_waitcnt vmcnt({lev[0]})")
        for k, th in enumerate(lev[1:]):
            A(f"  s_cmpk_gt_i32 s45, {th & 0xffff:#x}"); A(f"  s_cbranch_scc1 {tag}"); A(f"  s_waitcnt vmcnt({lev[0]-1-k})")
        A(f"{tag}:")
    def switch(tag):
        C("round it consumes head it and fetches head it+1; every 8 rounds the next buffer")
        A("  s_add_u32 s47, s44, 1"); A("  s_and_b32 s47, s47, 7"); A(f"  s_cbranch_scc1 {tag}")
        A("  s_mov_b32 s8, s16"); A("  s_mov_b32 s9, s17")
        for k in range(4): A(f"  s_mov_b32 s{16+k}, s{18+k}")
        A(f"{tag}:")
        A(f"  s_mul_i32 s47, s47, {8*3145728}"); A("  s_add_u32 s12, s13, s47")
    def body(tag, gaps):
        for n in range(24):
            s, j = divmod(n, 3)
            for x in gaps.get(n, []): A(x)
            if j == 2:
                A("  s_waitcnt lgkmcnt(0)")
                A(f"  v_readfirstlane_b32 s31, v{vMode}")
                A(f"  s_mul_i32 s56, s56, {kap}"); A("  s_lshr_b32 s56, s56, 6"); A("  s_sub_u32 s56, s56, s30"); A("  s_addk_i32 s30, 128")
                A("  s_add_u32 s56, s56, s31"); A("  s_sext_i32_i16 s56, s56")
                A("  s_bitcmp0_b32 s31, 31"); A("  s_cselect_b32 s45, s56, s45")
            throttle(f"{tag}_{n}")
            kv_load(n)
            if j == 1:
                A(f"  ds_read_b32 v{vMode}, v{vZero} offset:{L_CTL+32}"); A("  s_memrealtime s[56:57]")
            if j == 2:
                A(f"  v_add_u32 v{vProg}, 1, v{vProg}"); A(f"  ds_write_b32 v{vCa}, v{vProg} offset:{L_CTL+16}")
    def xred(op, t, u):
        return [f"  s_nop 1", f"  {op}_dpp v{t}, v{t}, v{t} row_ror:8 row_mask:0xf bank_mask:0xf",
                f"  v_mov_b32 v{u}, v{t}", "  s_nop 1", f"  v_permlane16_swap_b32 v{t}, v{u}", "  s_nop 0", f"  {op} v{t}, v{t}, v{u}",
                f"  v_mov_b32 v{u}, v{t}", "  s_nop 1", f"  v_permlane32_swap_b32 v{t}, v{u}", "  s_nop 0", f"  {op} v{t}, v{t}, v{u}"]
    kg = {}
    for s in range(4):
        for j in range(2):
            T = 2 * s + j
            kg[3*s+j] = [f"  s_waitcnt vmcnt({3*(7-T) + 3*s + j})"] + \
                        [f"  v_dot2_f32_bf16 v{vS+T}, v{ring(T,0)+k}, v{vQ+k}, {('v%d' % (vS+T)) if k else '0'}" for k in range(12)]
        g = []
        for pat in ("quad_perm:[1,0,3,2]", "quad_perm:[2,3,0,1]", "row_half_mirror"):
            g += ["  s_nop 0"] + [f"  v_add_f32_dpp v{vS+T}, v{vS+T}, v{vS+T} {pat} row_mask:0xf bank_mask:0xf" for T in (2*s, 2*s+1)]
        kg[3*s+2] = g
    kg[12] = [f"  v_add_u32 v{vQa}, 384, v{vQa}",
              f"  v_max3_f32 v{vT0}, v{vS}, v{vS+1}, v{vS+2}", f"  v_max3_f32 v{vT0}, v{vT0}, v{vS+3}, v{vS+4}",
              f"  v_max3_f32 v{vT0}, v{vT0}, v{vS+5}, v{vS+6}", f"  v_max_f32 v{vT0}, v{vT0}, v{vS+7}"] + \
             [f"  ds_read_b128 v[{vQ+4*t}:{vQ+4*t+3}], v{vQa} offset:{L_Q + 128*t}" for t in range(3)]
    kg[13] = xred("v_max_f32", vT0, vT1) + [f"  v_mul_f32 v{vD}, s58, v{vT0}"]
    kg[14] = [f"  v_fma_f32 v{vS+i}, v{vS+i}, s58, -v{vD}" for i in range(8)]
    kg[15] = [f"  v_exp_f32 v{vS+i}, v{vS+i}" for i in range(8)]
    kg[16] = [f"  v_add_f32 v{vD+1}, v{vS}, v{vS+1}"] + [f"  v_add_f32 v{vD+1}, v{vD+1}, v{vS+i}" for i in range(2, 8)]
    kg[17] = [f"  v_cvt_pk_bf16_f32 v{vS+i}, v{vS+i}, v{vS+i}" for i in range(8)]
    kg[18] = [f"  ds_write_b128 v{vPa}, v[{vS}:{vS+3}]", f"  ds_write_b128 v{vPa}, v[{vS+4}:{vS+7}] offset:16", f"  v_add_u32 v{vPa}, 32, v{vPa}"]
    kg[19] = xred("v_add_f32", vD+1, vT1)
    kg[21] = [f"  ds_write_b64 v{vMLa}, v[{vD}:{vD+1}] offset:{L_ML}", f"  v_add_u32 v{vMLa}, 32, v{vMLa}"]
    def vtile(T, wait):
        b = vB + 4 * (T & 1)
        g = [f"  v_and_b32 v{b+q}, v{vS+T}, v{vM+q}" for q in range(4)] + [f"  s_waitcnt vmcnt({wait})", "  s_nop 0"]
        for t in range(3):
            c = f"v[{vD+4*t}:{vD+4*t+3}]" if T else "0"
            g.append(f"  v_mfma_f32_16x16x32_bf16 v[{vD+4*t}:{vD+4*t+3}], v[{b}:{b+3}], v[{ring(T,t)}:{ring(T,t)+3}], {c}")
        return g
    dump = ["  s_mov_b64 exec, s[54:55]"] + [f"  ds_write_b128 v{vDa}, v[{vD+4*t}:{vD+4*t+3}] offset:{256*t}" for t in range(3)] + ["  s_mov_b64 exec, -1"]
    pread = [f"  ds_read_b128 v[{vS}:{vS+3}], v{vPa}", f"  ds_read_b128 v[{vS+4}:{vS+7}], v{vPa} offset:16"]
    vg = {}
    for s in range(4):
        for j in range(2): vg[3*s+j] = vtile(2*s+j, 3*(7-(2*s+j)) + 3*s + j)
    vg[12] = ["  s_nop 7"] + dump + [f"  v_add_u32 v{vDa}, 6144, v{vDa}", f"  v_add_u32 v{vPa}, 32, v{vPa}"]
    vg[13] = pread
    def cstamp():
        if not curve: return
        A("  s_memrealtime s[98:99]"); A("  s_mov_b32 m0, s44"); A("  s_waitcnt lgkmcnt(0)")
        A(f"  v_writelane_b32 v{vCv}, s98, m0"); A(f"  v_writelane_b32 v{vCv+1}, s99, m0")
    A("L_kloop:")
    switch("L_ksw")
    body("L_k", kg); cstamp()
    A("  s_add_u32 s44, s44, 1"); A("  s_and_b32 s47, s44, 7"); A("  s_cbranch_scc1 L_kloop")
    A(";HOP 1")
    A(f"  v_subrev_u32 v{vPa}, 256, v{vPa}")
    for x in pread: A(x)
    A("  s_waitcnt lgkmcnt(0)")
    A("L_vloop:")
    switch("L_vsw")
    body("L_v", vg); cstamp()
    A("  s_add_u32 s44, s44, 1")
    A("  s_cmp_eq_u32 s44, 31"); A("  s_cbranch_scc1 L_last")
    A("  s_and_b32 s47, s44, 7"); A("  s_cbranch_scc1 L_vloop")
    A(f"  v_subrev_u32 v{vPa}, 256, v{vPa}")
    A("  s_branch L_kloop")
    A(";HOP 2")
    A("L_last:")
    C("last round: the wo rows are the end of the stream and cover the exchange of the last partial o")
    def last(m):
        sched = {1: [0, 1], 2: [2, 3], 3: [4, 5], dl - 1: [6], dl: [7]}
        for k in range(max(m, dl + 1)):
            for T in sched.get(k, []):
                for x in vtile(T, 3*(7-T) + min(k, m)): A(x)
            if k == dl:
                A(f"  v_add_u32 v{vProg}, 8, v{vProg}"); A("  s_nop 5")
                for x in dump: A(x)
                A(f"  ds_write_b32 v{vCa}, v{vProg} offset:{L_CTL+16}")
                stamp("s", "vend")
            if k < m: wo_load(k, dl - 1)
        stamp("s", "woiss")
    if ej < 32:
        A(f"  s_cmp_lt_u32 s4, {ej}"); A("  s_cbranch_scc1 L_last1")
        last(0)
        A("  s_branch L_proj")
        A("L_last1:")
    last(12)
    A("L_proj:")
    C("all five waves: y[2][128 columns] = o[2][48 rows] * wo")
    A(f"  v_and_b32 v{vT0}, 8, v{vLane}"); A(f"  v_and_b32 v{vT1}, 48, v{vLane}"); A(f"  v_lshl_add_u32 v{vT0}, v{vT0}, 5, v{vT1}      ; (16*b + g)*16")
    A(f"  v_lshrrev_b32 v{vT1}, 5, v{vLane}"); A(f"  v_mul_u32_u24 v{vT1}, {128*YS - 512}, v{vT1}"); A(f"  v_lshl_add_u32 v{vT1}, v{vLane}, 4, v{vT1}")
    A("  s_lshr_b32 s47, s4, 4"); A(f"  s_mul_i32 s47, s47, {256*YS}")
    A("  s_and_b32 s48, s2, 127"); A(f"  s_mul_i32 s48, s48, {YS}"); A("  s_add_u32 s47, s47, s48")
    A("  s_lshl_b32 s48, s5, 9"); A("  s_add_u32 s47, s47, s48")
    for i in range(4): A(f"  s_mov_b32 s{52+i}, 0x0706050{i}")
    A("  s_waitcnt lgkmcnt(0)")
    A("  s_barrier")
    G = vRing
    for u in range(4): A(f"  ds_read_b128 v[{G+4*u}:{G+4*u+3}], v{vT0} offset:{L_C + 64*u}")
    if stamps:
        A("  s_cmp_eq_u32 s5, 4"); A("  s_cbranch_scc1 L_nost"); stamp("s", "oready"); A("L_nost:")
    A("  s_waitcnt lgkmcnt(0)")
    def diag(i):
        tp, u = divmod(i, 4)
        for q in range(4): A(f"  v_and_b32 v{G+16+4*i+q}, v{G+4*u+tp}, v{vM+q}")
    diag(0); diag(1)
    nd = 2
    for i in range(12):
        A(f"  s_waitcnt vmcnt({11-i})")
        cc = f"v[{vD}:{vD+3}]" if i else "0"
        A(f"  v_mfma_f32_16x16x32_bf16 v[{vD}:{vD+3}], v[{G+16+4*i}:{G+19+4*i}], a[{4*i}:{4*i+3}], {cc}")
        for _ in range(2 if i >= 2 else 1):
            if nd < 12: diag(nd); nd += 1
    A("  s_nop 7")
    C("the low byte of each value carries one byte of the launch tag")
    for r in range(4): A(f"  v_perm_b32 v{vD+r}, v{vD+r}, v{G+3}, s{52+r}")
    A(f"  buffer_store_dwordx4 v[{vD}:{vD+3}], v{vT1}, s[36:39], s47 offen {ysp}")
    A("  s_cmp_eq_u32 s5, 4"); A("  s_cbranch_scc1 L_final")
    A(";HOP 9")
    if curve:
        A("  s_cmp_lg_u32 s5, 0"); A("  s_cbranch_scc1 L_end")
        A("  s_getreg_b32 s100, hwreg(HW_REG_XCC_ID)")
        A(f"  s_mul_i32 s47, s2, {144 if curve == 1 else 264}"); A(f"  s_add_u32 s47, s47, {WS - (1<<20)}")
        A(f"  v_lshlrev_b32 v{vT0}, {2 if curve == 1 else 3}, v{vLane}"); A(f"  v_add_u32 v{vT0}, 16, v{vT0}")
        A(f"  s_mov_b32 exec_lo, {0x55555555 if curve == 1 else 0x7fffffff:#x}"); A("  s_mov_b32 exec_hi, 0")
        A(f"  buffer_store_dwordx2 v[{vCv}:{vCv+1}], v{vT0}, s[36:39], s47 offen")
        A("  s_mov_b64 exec, 1")
        A(f"  v_mov_b32 v{vRing}, s96"); A(f"  v_mov_b32 v{vRing+1}, s97"); A(f"  v_mov_b32 v{vRing+2}, s100"); A(f"  v_mov_b32 v{vRing+3}, 0")
        A(f"  buffer_store_dwordx4 v[{vRing}:{vRing+3}], v{vZero}, s[36:39], s47 offen")
    if stamps:
        A("  s_cmp_lg_u32 s5, 0"); A("  s_cbranch_scc1 L_end")
        stamp("s", "ystore")
        A("  s_waitcnt vmcnt(0)")
        stamp("s", "end")
        dump_stamps("s", 0)
    A("L_end:"); A("  s_endpgm")
    vE = vD + 2
    A("L_helper:")
    if prio == 1: A("  s_setprio 3")
    A(f"  v_mov_b32 v{H}, 0"); A(f"  v_mov_b32 v{H+1}, 0"); A(f"  v_mov_b32 v{H+2}, 0"); A(f"  v_mov_b32 v{H+3}, 0"); A(f"  v_mov_b32 v{H+4}, -1")
    A(f"  ds_write_b128 v{vZero}, v[{H}:{H+3}] offset:{L_CTL+16}"); A(f"  ds_write_b32 v{vZero}, v{H+4} offset:{L_CTL+32}")
    A("  s_mov_b32 s36, s42"); A("  s_mov_b32 s37, s43"); A(f"  s_mov_b32 s38, {WS}"); A("  s_mov_b32 s39, 0x20000")
    masks()
    for x in wosetup: A(x)
    A(f"  s_mov_b32 s26, {WBYTES}"); A("  s_mov_b32 s27, 0x20000")
    A(f"  v_lshlrev_b32 v{vT0}, 3, v{vLane}"); A(f"  v_lshlrev_b32 v{vT3}, 4, v{vLane}"); A(f"  v_lshlrev_b32 v{vQa}, 2, v{vLane}")
    A(f"  s_mul_i32 s12, s3, {24*512}"); A(f"  s_add_u32 s12, s12, {W_Q}")
    A("  s_and_b32 s13, s4, 7"); A("  s_mul_i32 s13, s13, 3"); A("  s_lshr_b32 s14, s4, 3"); A("  s_add_u32 s13, s13, s14")
    A("  s_lshl_b32 s13, s13, 9"); A("  s_add_u32 s13, s13, s12")
    A("  s_add_u32 s14, s12, 4096"); A("  s_add_u32 s15, s12, 8192")
    def tlbtouch():
        C("touch the pages of round j (and of this workgroup's wo rows) once, so that their translations are cached in time")
        A("  s_bitcmp1_b32 s4, 3"); A("  s_cselect_b32 s20, s68, s66"); A("  s_cselect_b32 s21, s69, s67"); A("  s_cselect_b32 s22, s78, s76"); A("  s_cselect_b32 s23, s79, s77")
        A("  s_bitcmp1_b32 s4, 4"); A("  s_cselect_b32 s20, s22, s20"); A("  s_cselect_b32 s21, s23, s21")
        A("  s_and_b32 s47, s2, 63"); A("  s_mul_i32 s47, s47, 3145728")
        A("  s_add_u32 s20, s20, s47"); A("  s_addc_u32 s21, s21, 0")
        A("  s_load_dword s52, s[20:21], 0"); A("  s_load_dword s53, s[20:21], 0xffffc")
        A("  s_add_u32 s22, s20, 0x200000"); A("  s_addc_u32 s23, s21, 0")
        A("  s_load_dword s54, s[22:23], 0"); A("  s_load_dword s55, s[22:23], 0xffffc")
        A("  s_add_u32 s16, s24, s28"); A("  s_addc_u32 s17, s25, 0"); A("  s_load_dword s56, s[16:17], 0")
        A("  s_load_dword s57, s[42:43], 0")
        A(f"  s_add_u32 s18, s42, {W_O}"); A("  s_addc_u32 s19, s43, 0"); A("  s_load_dword s58, s[18:19], 0")
        A(f"  s_add_u32 s30, s42, {W_O + (2<<20)}"); A("  s_addc_u32 s31, s43, 0"); A("  s_load_dword s59, s[30:31], 0")
        A("  s_waitcnt lgkmcnt(0)")
    if tlb == 1: tlbtouch()
    A("  s_cmp_eq_u32 s2, 0"); A("  s_cbranch_scc1 L_nhave")
    A(f"  s_mov_b32 s50, {SPIN}")
    if nslp0: A(f"  s_sleep {nslp0}")
    A("L_nloop:")
    A(f"  buffer_load_dword v{H}, v{vZero}, s[8:11], 0 offen sc1"); A("  s_waitcnt vmcnt(0)")
    A(f"  v_readfirstlane_b32 s46, v{H}")
    A("  s_sub_u32 s50, s50, 1"); A("  s_cbranch_scc1 L_nhave")
    A("  s_cmp_lg_u32 s46, 0"); A("  s_cbranch_scc1 L_nhave")
    A(f"  s_sleep {nslp}"); A("  s_branch L_nloop")
    A("L_nhave:")
    stamp("h", "nonce")
    A("  s_waitcnt lgkmcnt(0)")
    A("  s_cmp_ge_u32 s4, 24"); A("  s_cbranch_scc1 L_hq2")
    A("  s_barrier                       ; B1")
    for k in range(8): A(f"  ds_read_b64 v[{H+2*k}:{H+2*k+1}], v{vT0} offset:{L_Y + 512*k}")
    for k in range(1, 8):
        A(f"  s_waitcnt lgkmcnt({7-k})")
        for r in range(2): A(f"  v_add_f32 v{H+r}, v{H+r}, v{H+2*k+r}")
    A(f"  v_cvt_pk_bf16_f32 v{vD}, v{H}, v{H+1}"); A(f"  v_mov_b32 v{vD+1}, s46")
    def qglob(tag):
        A("  s_cmp_ge_u32 s4, 24"); A(f"  s_cbranch_scc1 {tag}")
        A(f"  buffer_store_dwordx2 v[{vD}:{vD+1}], v{vT0}, s[36:39], s13 offen sc1")
        A(f"{tag}:")
    A(f"  s_add_u32 s47, s13, {QLOC}")
    A(f"  buffer_store_dwordx2 v[{vD}:{vD+1}], v{vT0}, s[36:39], s47 offen")
    A("L_hq2:")
    A(f"  v_and_b32 v{vT1}, 16, v{vLane}"); A(f"  v_mul_u32_u24 v{vT1}, 96, v{vT1}")
    A(f"  v_and_b32 v{vT2}, 15, v{vLane}"); A(f"  v_lshl_add_u32 v{vT1}, v{vT2}, 3, v{vT1}")
    A(f"  v_lshrrev_b32 v{vT2}, 5, v{vLane}"); A(f"  v_lshl_add_u32 v{vT1}, v{vT2}, 7, v{vT1}")
    A(f"  s_mov_b32 s50, {SPIN}")
    A("L_qg:")
    C("the first tries read the copy that a producer on this die left in L2, later ones alternate with the device-wide copy")
    A(f"  s_cmp_lg_u32 s50, {SPIN - nloc}"); A("  s_cbranch_scc1 L_qg1"); qglob("L_qg1")
    A(f"  s_cmp_gt_u32 s50, {SPIN - nloc}"); A(f"  s_cselect_b32 s47, {QLOC}, 0")
    A("  s_bitcmp1_b32 s50, 0"); A(f"  s_cselect_b32 s47, {QLOC}, s47")
    A(f"  v_add_u32 v{vDa}, s47, v{vT3}")
    for k in range(12):
        A(f"  buffer_load_dwordx4 v[{H+4*k}:{H+4*k+3}], v{vDa}, s[36:39], s{(12,14,15)[k//4]} offen offset:{1024*(k%4)} sc1")
    A("  s_mov_b64 s[48:49], 0")
    for k in range(12):
        A(f"  s_waitcnt vmcnt({11-k})")
        for r in (1, 3):
            A(f"  v_cmp_ne_u32 vcc, s46, v{H+4*k+r}"); A("  s_or_b64 s[48:49], s[48:49], vcc")
    A("  s_sub_u32 s50, s50, 1"); A("  s_cbranch_scc1 L_qgo")
    A("  s_cmp_eq_u64 s[48:49], 0"); A("  s_cbranch_scc0 L_qg")
    A("L_qgo:")
    def qconst(item):
        sg, c = divmod(item, 3); return ((sg >> 2) * 8 + (sg & 3)) * 384 + c * 128
    for k in range(12):
        assert qconst(2*k+1) - qconst(2*k) == 128
        A(f"  v_mov_b32 v{H+4*k+1}, v{H+4*k+2}")
        A(f"  ds_write_b64 v{vT1}, v[{H+4*k}:{H+4*k+1}] offset:{L_Q + qconst(2*k)}")
    A("  s_waitcnt lgkmcnt(0)")
    stamp("h", "qtab")
    A("  s_barrier                       ; B2")
    if tlb == 2: tlbtouch()
    C("set-up of the progress board and of the flush state")
    A("  s_getreg_b32 s56, hwreg(HW_REG_XCC_ID)"); A("  s_and_b32 s56, s56, 7")
    A("  s_lshl_b32 s57, s56, 3"); A("  s_add_u32 s57, s57, s3"); A("  s_mul_i32 s57, s57, 1152"); A(f"  s_add_u32 s57, s57, {W_B}")
    A("  s_lshl_b32 s59, s4, 3"); A("  s_add_u32 s59, s59, s57")
    A("  s_mov_b32 s31, 0")
    A(f"  v_mov_b32 v{vE+1}, s46")
    A("  s_lshl_b32 s62, s56, 2"); A(f"  s_add_u32 s62, s62, {W_G}"); A(f"  s_mov_b32 s29, {lper-1}")
    A(f"  s_add_u32 s16, s42, {W_G}"); A("  s_addc_u32 s17, s43, 0")
    A("  s_and_b32 s51, s46, 0xffff0000")
    A("  s_mov_b32 s18, -1"); A("  s_mov_b32 s19, 1")
    A("  s_mov_b32 s30, 0"); A("  s_mov_b32 s32, 0")
    A(f"  v_add_u32 v{vDa}, {L_O}, v{vQa}"); A(f"  v_mov_b32 v{vMLa}, {L_E}")
    A("  s_mov_b32 s33, 0xffff")
    if atom: A("  s_mov_b32 s62, 124")
    if ep: A(f"  s_mov_b32 s29, {ep0}"); A("  s_mov_b32 s80, 0"); A("  s_mov_b32 s81, 0")
    A(f"  s_mul_i32 s58, s3, {512*OS}"); A(f"  s_mul_i32 s48, s4, {OS}"); A("  s_add_u32 s58, s58, s48"); A(f"  s_add_u32 s58, s58, {W_O}")
    def otag(reg):
        A(f"  v_and_b32 v{vMode}, 1, v{vLane}"); A(f"  v_lshlrev_b32 v{vMode}, 4, v{vMode}"); A(f"  v_lshrrev_b32 v{vMode}, v{vMode}, {reg}"); A(f"  v_lshlrev_b32 v{vMode}, 16, v{vMode}")
    otag("s46")
    A("  s_mov_b32 s45, s46")
    def call(l): A(f"  s_call_b64 s[60:61], {l}")
    def pace(t): A(f"  s_mov_b32 s44, {t}"); call("L_pace")
    def drain(n): A(f"  s_mov_b32 s32, {n}"); call("L_drain")
    pace(t_q)
    if warm:
        C("bring the code of the V rounds into the instruction cache: with EXEC = 0 only the chain of branches runs")
        A("  s_mov_b64 exec, 0"); A("  s_branch L_hop_0"); A("L_back:")
    A("  s_load_dwordx2 s[6:7], s[0:1], 80      ; out"); A("  s_waitcnt lgkmcnt(0)")
    if tlb: A("  s_load_dword s47, s[6:7], 0"); A("  s_waitcnt lgkmcnt(0)")
    C("without proof that the group shares a die, leave a device-wide copy of q")
    A("  s_cmp_eq_u32 s31, 1"); A("  s_cbranch_scc1 L_qg2"); qglob("L_qg2")
    if share:
        C("problem A: publish (M, l) and the partial o; its projectors merge them before anyone reuses the slots")
        pace(t_a)
        A("  s_mov_b32 s34, 0x00ff"); call("L_ml"); A("  s_mov_b32 s32, 8")
        pace(t_c); drain(8)
        A("  s_cmp_ge_u32 s4, 16"); A("  s_cbranch_scc1 L_s1")
        A("  s_mov_b32 s34, 0"); call("L_wt"); call("L_merge"); A("  s_mov_b32 s34, 1"); call("L_merge")
        A("L_s1:")
        pace(t_ml)
        A("  s_mov_b32 s34, 0xff00"); call("L_ml")
        pace(t_w)
        C("the (M, l) records of problem B also tell that their writers are done with the slots")
        A("  s_mov_b32 s34, 8"); call("L_wt")
        A(f"  s_xor_b32 s45, s46, {GEN:#x}"); otag("s45"); A(f"  s_sub_u32 s58, s58, {8*32*OS}")
        A("  s_mov_b32 s32, 15")
    else:
        pace(t_ml)
        A("  s_mov_b32 s34, 0xffff"); call("L_ml"); A("  s_mov_b32 s32, 15")
        pace(t_w)
        A("  s_lshr_b32 s34, s4, 4"); A("  s_lshl_b32 s34, s34, 3"); call("L_wt")
    pace(t_g); drain(12); A("  s_mov_b32 s32, 15")
    if share: A("  s_cmp_lt_u32 s4, 16"); A("  s_cbranch_scc1 L_s4")
    A("  s_mov_b32 s34, 0"); call("L_merge")
    A("L_s4:")
    A("  s_mov_b32 s34, 1")
    pace(t_f)
    stamp("h", "flush0")
    if prio == 2: A("  s_setprio 3")
    for i in range(hw): wo_load(i, None)
    C("final-reduction role of workgroups 0..159: (problem, batch) = id&3, block of 4 granules = id>>2")
    A("  s_and_b32 s20, s2, 3"); A("  s_lshr_b32 s21, s2, 2")
    A(f"  v_lshrrev_b32 v{vCa}, 2, v{vLane}"); A(f"  v_and_b32 v{vProg}, 3, v{vLane}")
    A(f"  v_mul_u32_u24 v{vCa}, {YS}, v{vCa}"); A(f"  v_lshl_add_u32 v{vCa}, v{vProg}, 4, v{vCa}"); A(f"  v_lshlrev_b32 v{vProg}, 4, v{vProg}")
    A(f"  v_bfe_u32 v{vT1}, v{vLane}, 4, 1"); A(f"  v_lshl_add_u32 v{vProg}, v{vT1}, 2, v{vProg}")
    A(f"  v_lshrrev_b32 v{vT1}, 5, v{vLane}"); A(f"  v_lshl_add_u32 v{vProg}, v{vT1}, 1, v{vProg}")
    A(f"  s_mul_i32 s72, s20, {128*YS}"); A("  s_lshl_b32 s22, s21, 6"); A("  s_add_u32 s72, s72, s22")
    for k in range(1, 8): A(f"  s_add_u32 s{72+k}, s72, {16*k*YS}")
    A("  s_and_b32 s22, s20, 1"); A("  s_mul_i32 s35, s22, 2560"); A("  s_lshr_b32 s22, s20, 1"); A("  s_mul_i32 s22, s22, 1280"); A("  s_add_u32 s35, s35, s22")
    A("  s_lshr_b32 s22, s21, 3"); A("  s_lshl_b32 s22, s22, 8"); A("  s_add_u32 s35, s35, s22")
    A("  s_and_b32 s22, s21, 3"); A("  s_lshl_b32 s22, s22, 6"); A("  s_add_u32 s35, s35, s22")
    A("  s_and_b32 s22, s21, 4"); A("  s_lshl_b32 s22, s22, 1"); A("  s_add_u32 s35, s35, s22")
    A("  s_mov_b32 s12, s6"); A("  s_mov_b32 s13, s7"); A("  s_mov_b32 s14, 5120"); A("  s_mov_b32 s15, 0x20000")
    lo_j = 16 if share else 0
    drain(15)
    if gj > lo_j:
        if share: A("  s_cmp_lt_u32 s4, 16"); A("  s_cbranch_scc1 L_s2")
        A(f"  s_cmp_ge_u32 s4, {gj}"); A("  s_cbranch_scc1 L_s2")
        call("L_merge")
        A("L_s2:")
    drain(16)
    stamp("h", "flushed")
    for i in range(hw, 12): wo_load(i, None)
    A(f"  s_cmp_lt_u32 s4, {max(gj, lo_j)}"); A("  s_cbranch_scc1 L_s3")
    call("L_merge")
    A("L_s3:")
    stamp("h", "hready")
    A("  s_branch L_proj")
    def pub(instr, tag):
        A("  s_cmp_eq_u32 s31, 1"); A(f"  s_cbranch_scc1 {tag}a")
        A(instr + " sc1")
        A(f"  s_branch {tag}b"); A(f"{tag}a:"); A(instr); A(f"{tag}b:")
    A("L_pace:")
    A(f"  s_sleep {slp}")
    A("  s_memrealtime s[22:23]")
    A(f"  ds_read_b128 v[{H}:{H+3}], v{vZero} offset:{L_CTL+16}"); A("  s_waitcnt lgkmcnt(0)")
    A(f"  v_min3_u32 v{H+4}, v{H}, v{H+1}, v{H+2}"); A(f"  v_min_u32 v{H+4}, v{H+4}, v{H+3}")
    A(f"  v_add3_u32 v{H+5}, v{H}, v{H+1}, v{H+2}"); A(f"  v_add_u32 v{H+5}, v{H+5}, v{H+3}")
    A(f"  v_readfirstlane_b32 s20, v{H+4}")
    A("  s_cmp_ge_u32 s20, s44"); A("  s_cbranch_scc1 L_ret")
    A(f"  v_readfirstlane_b32 s21, v{H+5}")
    A(f"  s_mul_i32 s22, s22, {kap}"); A("  s_lshr_b32 s22, s22, 6")
    A("  s_lshl_b32 s21, s21, 5"); A("  s_sub_u32 s21, s21, s22"); A("  s_and_b32 s21, s21, 0xffff")
    A(f"  v_mov_b32 v{vE}, s21"); A(f"  v_mov_b32 v{H+8}, 0"); A(f"  v_mov_b32 v{H+9}, 0")
    A("  s_mov_b64 exec, 1")
    A(f"  buffer_store_dwordx2 v[{vE}:{vE+1}], v{vZero}, s[36:39], s59 offen")
    A("  s_mov_b64 exec, s[18:19]")
    A(f"  buffer_load_dwordx2 v[{H+8}:{H+9}], v{vT0}, s[36:39], s57 offen {bpol}")
    A("  s_mov_b64 exec, -1")
    A("  s_waitcnt vmcnt(0)")
    A(f"  v_readlane_b32 s22, v{H+8}, 32")
    A(f"  v_cmp_eq_u32 vcc, s46, v{H+9}")
    A(f"  v_subrev_u32 v{H+7}, s21, v{H+8}"); A(f"  v_bfe_i32 v{H+7}, v{H+7}, 0, 16")
    A(f"  v_cndmask_b32 v{H+7}, 0, v{H+7}, vcc")
    A("  s_cmp_eq_u32 vcc_lo, -1"); A("  s_cselect_b32 s31, 1, s31")
    for sh in (1, 2, 4, 8):
        A("  s_nop 1"); A(f"  v_add_u32_dpp v{H+7}, v{H+7}, v{H+7} row_ror:{sh} row_mask:0xf bank_mask:0xf")
    A("  s_bitcmp1_b32 vcc_hi, 0"); A("  s_cselect_b32 s22, s22, 0")
    A(f"  v_readlane_b32 s23, v{H+7}, 0"); A(f"  v_readlane_b32 s47, v{H+7}, 16")
    A("  s_add_u32 s23, s23, s47"); A("  s_ashr_i32 s23, s23, 5"); A("  s_add_u32 s23, s23, s21")
    A("  s_add_u32 s47, s23, s22")
    A("  s_and_b32 s47, s47, 0xffff"); A(f"  v_mov_b32 v{H+6}, s47")
    A(f"  ds_write_b32 v{vZero}, v{H+6} offset:{L_CTL+32}")
    A("  s_cmp_lg_u32 s4, 0"); A("  s_cbranch_scc1 L_paced")
    C("first workgroup of a group: now and then compare with the other groups")
    if lin: A(f"  s_min_i32 s48, s22, {lin}"); A(f"  s_max_i32 s48, s48, {-lin}")
    else: A(f"  s_ashr_i32 s48, s22, {dec}")
    A("  s_sub_u32 s48, s22, s48"); A("  s_mov_b64 exec, 1")
    if ep:
        C("all groups post their mean at the same points of progress and read the others' a few rounds later")
        A("  s_cmp_lt_u32 s20, s29"); A("  s_cbranch_scc1 L_ep1")
        if epp2: A(f"  s_cmp_ge_u32 s29, {ept}"); A(f"  s_cselect_b32 s47, {epp2}, {epp}"); A("  s_add_u32 s29, s29, s47")
        else: A(f"  s_add_u32 s29, s29, {epp}")
        if epend < 999: A(f"  s_cmp_gt_u32 s29, {epend}"); A("  s_cselect_b32 s29, 999, s29")
        A(f"  s_mov_b32 s81, {epw}"); A("  s_and_b32 s80, s23, 0xffff")
        if atom:
            A("  s_add_u32 s62, s62, 4"); A("  s_or_b32 s47, s80, 0x1000000"); A(f"  v_mov_b32 v{H+6}, s47")
            A(f"  buffer_atomic_add v{H+6}, v{vZero}, s[8:11], s62 offen")
        else:
            A("  s_add_u32 s51, s51, 0x10000"); A("  s_or_b32 s47, s80, s51"); A(f"  v_mov_b32 v{H+6}, s47")
            A(f"  buffer_store_dword v{H+6}, v{vZero}, s[36:39], s62 offen sc1")
        A("  s_branch L_dst")
        A("L_ep1:")
        A("  s_sub_u32 s81, s81, 1"); A("  s_cmp_lg_u32 s81, 0"); A("  s_cbranch_scc1 L_dst")
        if atom:
            A("  s_load_dword s64, s[40:41], s62 glc"); A("  s_waitcnt lgkmcnt(0)")
            A("  s_lshr_b32 s65, s64, 24"); A("  s_mul_i32 s65, s65, s80"); A("  s_sub_u32 s48, s64, s65"); A("  s_sext_i32_i16 s48, s48")
        else:
            A("  s_load_dwordx8 s[64:71], s[16:17], 0 glc")
            A("  s_mov_b32 s23, s80")
            A("  s_waitcnt lgkmcnt(0)")
    else:
        A("  s_add_u32 s29, s29, 1"); A(f"  s_cmp_lt_u32 s29, {lper}"); A("  s_cbranch_scc1 L_dst")
        A("  s_mov_b32 s29, 0")
        A("  s_load_dwordx8 s[64:71], s[16:17], 0 glc")
        A("  s_and_b32 s23, s23, 0xffff")
        A("  s_or_b32 s47, s23, s51"); A(f"  v_mov_b32 v{H+6}, s47")
        A("  s_waitcnt lgkmcnt(0)")
        A(f"  buffer_store_dword v{H+6}, v{vZero}, s[36:39], s62 offen sc1")
    if not atom: A("  s_mov_b32 s48, 0")
    for k in range(0 if atom else 8):
        A(f"  s_xor_b32 s{64+k}, s{64+k}, s51"); A(f"  s_cmp_lt_u32 s{64+k}, 0x10000"); A(f"  s_cselect_b32 s{64+k}, s{64+k}, s23")
        A(f"  s_sub_u32 s{64+k}, s{64+k}, s23"); A(f"  s_sext_i32_i16 s{64+k}, s{64+k}"); A(f"  s_add_u32 s48, s48, s{64+k}")
    if gain != 8: A(f"  s_mul_i32 s48, s48, {gain}"); A("  s_ashr_i32 s48, s48, 6")
    else: A("  s_ashr_i32 s48, s48, 3")
    A("L_dst:")
    A(f"  v_mov_b32 v{vE}, s48")
    A(f"  buffer_store_dwordx2 v[{vE}:{vE+1}], v{vZero}, s[36:39], s57 offen offset:256")
    A("  s_mov_b64 exec, -1")
    A("L_paced:")
    A(f"  s_mov_b32 s63, {nfl}"); A("  s_branch L_fl")
    A("L_drain:")
    C("entry: flush up to the limit, waiting for the waves")
    A("  s_mov_b32 s63, -1")
    A("L_fl:")
    C("head i (round 8+i, or 16+i from 8 on) is in LDS once every wave's progress is >= 8*round+5")
    A("  s_cmp_ge_u32 s30, 8"); A("  s_cselect_b32 s48, 16, 8"); A("  s_add_u32 s48, s48, s30"); A("  s_lshl_b32 s48, s48, 3"); A("  s_add_u32 s48, s48, 5")
    A("  s_cmp_lt_i32 s63, 0"); A("  s_cbranch_scc0 L_fl0")
    A("  s_cmp_ge_u32 s30, s32"); A("  s_cbranch_scc0 L_fl1")
    A("L_ret:")
    A("  s_setpc_b64 s[60:61]")
    A("L_fl0:")
    A("  s_cmp_ge_u32 s30, s32"); A("  s_cbranch_scc1 L_pace")
    A("  s_cmp_lt_u32 s20, s48"); A("  s_cbranch_scc1 L_pace")
    A("  s_sub_u32 s63, s63, 1"); A("  s_cbranch_scc1 L_pace")
    A("L_fl1:")
    A(f"  ds_read_b128 v[{H+28}:{H+31}], v{vMLa}")
    A("L_flw:")
    if flws: A(f"  s_sleep {flws}")
    A(f"  ds_read_b128 v[{H}:{H+3}], v{vZero} offset:{L_CTL+16}"); A("  s_waitcnt lgkmcnt(0)")
    A(f"  v_min3_u32 v{H+4}, v{H}, v{H+1}, v{H+2}"); A(f"  v_min_u32 v{H+4}, v{H+4}, v{H+3}"); A("  s_nop 0")
    A(f"  v_readfirstlane_b32 s20, v{H+4}")
    A("  s_cmp_lt_u32 s20, s48"); A("  s_cbranch_scc1 L_flw")
    for k in range(12): A(f"  ds_read2st64_b32 v[{H+2*k}:{H+2*k+1}], v{vDa} offset0:{2*k} offset1:{2*k+1}")
    for w in range(4):
        A(f"  s_waitcnt lgkmcnt({9-3*w})")
        for t in range(3): A(f"  v_add_f32 v{H+6*w+t}, v{H+6*w+t}, v{H+6*w+3+t}")
        for t in range(3):
            A(f"  v_mul_f32 v{H+32+t}, v{H+28}, v{H+t}" if w == 0 else f"  v_fmac_f32 v{H+32+t}, v{H+28+w}, v{H+6*w+t}")
    C("lane l: o[l], o[l+64], o[l+128] and one half of the tag")
    A(f"  v_cvt_pk_bf16_f32 v{H+32}, v{H+32}, v{H+33}"); A(f"  v_cvt_pk_bf16_f32 v{H+33}, v{H+34}, v{H+34}")
    A(f"  v_and_or_b32 v{H+33}, v{H+33}, s33, v{vMode}")
    pub(f"  buffer_store_dwordx2 v[{H+32}:{H+33}], v{vT0}, s[36:39], s58 offen", "L_po")
    A(f"  v_add_u32 v{vDa}, 6144, v{vDa}"); A(f"  v_add_u32 v{vMLa}, 16, v{vMLa}")
    A(f"  s_add_u32 s58, s58, {32*OS}"); A("  s_add_u32 s30, s30, 1"); A("  s_branch L_fl")
    A("L_ml:")
    A(f"  v_and_b32 v{vT1}, 15, v{vLane}"); A(f"  v_lshlrev_b32 v{vT2}, 5, v{vT1}"); A(f"  v_lshlrev_b32 v{vT1}, 4, v{vT1}")
    A(f"  ds_read_b128 v[{H}:{H+3}], v{vT2} offset:{L_ML}"); A(f"  ds_read_b128 v[{H+4}:{H+7}], v{vT2} offset:{L_ML+16}")
    A("  s_lshl_b32 s47, s3, 5"); A("  s_add_u32 s47, s47, s4"); A("  s_lshl_b32 s47, s47, 8"); A(f"  s_add_u32 s47, s47, {W_ML}")
    A("  s_waitcnt lgkmcnt(0)")
    A(f"  v_max3_f32 v{H+8}, v{H}, v{H+2}, v{H+4}"); A(f"  v_max_f32 v{H+8}, v{H+8}, v{H+6}")
    for w in range(4): A(f"  v_sub_f32 v{H+12+w}, v{H+2*w}, v{H+8}")
    for w in range(4): A(f"  v_exp_f32 v{H+12+w}, v{H+12+w}")
    A(f"  v_mov_b32 v{H+10}, 0"); A(f"  v_mov_b32 v{H+11}, s46")
    A(f"  v_mul_f32 v{H+9}, v{H+12}, v{H+1}")
    for w in range(1, 4): A(f"  v_fmac_f32 v{H+9}, v{H+12+w}, v{H+2*w+1}")
    A("  s_mov_b32 exec_lo, s34"); A("  s_mov_b32 exec_hi, 0")
    A(f"  ds_write_b128 v{vT1}, v[{H+12}:{H+15}] offset:{L_E}")
    pub(f"  buffer_store_dwordx4 v[{H+8}:{H+11}], v{vT1}, s[36:39], s47 offen", "L_pm")
    A("  s_mov_b64 exec, -1")
    A("  s_setpc_b64 s[60:61]")
    A("L_wt:")
    A(f"  v_and_b32 v{vT1}, 31, v{vLane}"); A(f"  v_lshlrev_b32 v{vT1}, 8, v{vT1}")
    A(f"  v_and_b32 v{vT2}, 32, v{vLane}"); A(f"  v_lshl_add_u32 v{vT1}, v{vT2}, 1, v{vT1}      ; producer*256 + b*64")
    A("  s_lshr_b32 s48, s4, 2"); A("  s_and_b32 s48, s48, 3"); A("  s_add_u32 s47, s34, s48")
    A("  s_lshl_b32 s47, s47, 4"); A("  s_lshl_b32 s48, s3, 13"); A("  s_add_u32 s47, s47, s48"); A(f"  s_add_u32 s47, s47, {W_ML}")
    A(f"  s_mov_b32 s50, {SPIN}")
    A("L_wg:")
    A(f"  buffer_load_dwordx4 v[{H}:{H+3}], v{vT1}, s[36:39], s47 offen {gpol}"); A("  s_waitcnt vmcnt(0)")
    A(f"  v_cmp_ne_u32 vcc, s46, v{H+3}")
    A("  s_sub_u32 s50, s50, 1"); A("  s_cbranch_scc1 L_wgo")
    A("  s_cmp_eq_u64 vcc, 0"); A("  s_cbranch_scc1 L_wgo")
    A("  s_sleep 16"); A("  s_branch L_wg")
    A("L_wgo:")
    def red32(op, t, u):
        for sh in (1, 2, 4, 8):
            A("  s_nop 1"); A(f"  {op}_dpp v{t}, v{t}, v{t} row_ror:{sh} row_mask:0xf bank_mask:0xf")
        A(f"  v_mov_b32 v{u}, v{t}"); A("  s_nop 1"); A(f"  v_permlane16_swap_b32 v{t}, v{u}"); A("  s_nop 0"); A(f"  {op} v{t}, v{t}, v{u}")
    A(f"  v_mov_b32 v{H+4}, v{H}")
    red32("v_max_f32", H+4, H+5)
    A(f"  v_sub_f32 v{H}, v{H}, v{H+4}"); A(f"  v_exp_f32 v{H}, v{H}"); A("  s_nop 0")
    A(f"  v_mul_f32 v{H+4}, v{H}, v{H+1}")
    red32("v_add_f32", H+4, H+5)
    A(f"  v_rcp_f32 v{H+4}, v{H+4}")
    A(f"  v_and_b32 v{vT1}, 7, v{vLane}"); A(f"  v_lshlrev_b32 v{vT1}, 4, v{vT1}"); A(f"  v_lshl_add_u32 v{vT1}, v{vT2}, 2, v{vT1}")
    A(f"  v_and_b32 v{vT2}, 24, v{vLane}"); A(f"  v_lshrrev_b32 v{vT2}, 1, v{vT2}"); A(f"  v_add_u32 v{vT1}, v{vT1}, v{vT2}")
    A(f"  v_mul_f32 v{H}, v{H}, v{H+4}")
    A(f"  ds_write_b32 v{vT1}, v{H} offset:{L_W}")
    A("  s_setpc_b64 s[60:61]")
    A("L_merge:")
    C("batch row s34: first call keeps its sums, second call folds both and leaves them in LDS")
    A(f"  v_lshrrev_b32 v{vT1}, 3, v{vLane}"); A(f"  v_and_b32 v{vT2}, 7, v{vLane}")
    A(f"  v_mul_u32_u24 v{vPa}, {OS}, v{vT1}"); A(f"  v_lshl_add_u32 v{vPa}, v{vT2}, 4, v{vPa}")
    A("  s_lshr_b32 s47, s4, 2"); A("  s_and_b32 s47, s47, 3"); A("  s_lshl_b32 s48, s34, 2"); A("  s_add_u32 s47, s47, s48")
    if not share: A("  s_lshr_b32 s48, s4, 4"); A("  s_lshl_b32 s48, s48, 3"); A("  s_add_u32 s47, s47, s48")
    A(f"  s_mul_i32 s47, s47, {32*OS}"); A(f"  s_mul_i32 s48, s3, {512*OS}"); A("  s_add_u32 s47, s47, s48")
    A("  s_and_b32 s48, s4, 3"); A("  s_lshl_b32 s48, s48, 7"); A("  s_add_u32 s47, s47, s48"); A(f"  s_add_u32 s64, s47, {W_O}")
    for k in range(1, 4): A(f"  s_add_u32 s{64+k}, s64, {k*8*OS}")
    A("  s_lshl_b32 s48, s34, 7"); A(f"  v_lshl_add_u32 v{vT1}, v{vT1}, 4, s48")
    A(f"  ds_read_b128 v[{vS}:{vS+3}], v{vT1} offset:{L_W}")
    A("  s_mov_b32 s22, 0x07060302"); A("  s_mov_b32 s23, 0xffff0000")
    A(f"  v_bfe_u32 v{vT1}, v{vLane}, 4, 1"); A(f"  v_lshl_add_u32 v{vT1}, v{vT2}, 1, v{vT1}")
    A(f"  v_and_b32 v{vT2}, 32, v{vLane}"); A(f"  v_lshlrev_b32 v{vT1}, 4, v{vT1}")
    A(f"  v_lshl_add_u32 v{vT1}, v{vT2}, 3, v{vT1}      ; (16*b + granule)*16")
    A(f"  s_mov_b32 s50, {SPIN}")
    A("L_gather:")
    for k in range(4): A(f"  buffer_load_dwordx4 v[{H+4*k}:{H+4*k+3}], v{vPa}, s[36:39], s{64+k} offen {gpol}")
    A("  s_mov_b64 s[48:49], 0")
    for k in range(4):
        A(f"  s_waitcnt vmcnt({3-k})")
        A(f"  v_perm_b32 v{vKV}, v{H+4*k+3}, v{H+4*k+1}, s22"); A(f"  v_cmp_ne_u32 vcc, s45, v{vKV}"); A("  s_or_b64 s[48:49], s[48:49], vcc")
    A("  s_sub_u32 s50, s50, 1"); A("  s_cbranch_scc1 L_ggo")
    A("  s_cmp_eq_u64 s[48:49], 0"); A("  s_cbranch_scc0 L_gather")
    A("L_ggo:")
    A("  s_waitcnt lgkmcnt(0)")
    M = H + 32
    Z = vB
    for k in range(4):
        for par in range(2):
            e0, e1 = H + 4*k + 2*par, H + 4*k + 2*par + 1
            A(f"  v_lshlrev_b32 v{vKV}, 16, v{e0}"); A(f"  v_and_b32 v{e0}, s23, v{e0}"); A(f"  v_lshlrev_b32 v{e1}, 16, v{e1}")
            for t, r in enumerate((vKV, e0, e1)):
                A(f"  {'v_mul_f32' if k == 0 else 'v_fmac_f32'} v{M+3*par+t}, v{vS+k}, v{r}")
    A("  s_cmp_eq_u32 s34, 0"); A("  s_cbranch_scc0 L_fold")
    for i in range(6): A(f"  v_mov_b32 v{Z+i}, v{M+i}")
    A("  s_setpc_b64 s[60:61]")
    A("L_fold:")
    A(";HOP 3")
    for i in range(6): A(f"  v_permlane32_swap_b32 v{Z+i}, v{M+i}")
    for i in range(6): A(f"  v_add_f32 v{Z+i}, v{Z+i}, v{M+i}")
    A("  s_nop 0")
    for i in range(3): A(f"  v_permlane16_swap_b32 v{Z+i}, v{Z+3+i}")
    A("  s_nop 0")
    for i in range(3): A(f"  v_add_f32 v{Z+i}, v{Z+i}, v{Z+3+i}")
    for i in range(3): A(f"  v_add_f32_dpp v{Z+i}, v{Z+i}, v{Z+i} row_ror:8 row_mask:0xf bank_mask:0xf")
    for i in range(3): A(f"  v_cvt_pk_bf16_f32 v{Z+i}, v{Z+i}, v{Z+i}")
    A(f"  v_mov_b32 v{Z+3}, s46")
    A(f"  ds_write_b128 v{vT1}, v[{Z}:{Z+3}] offset:{L_C}")
    A("  s_setpc_b64 s[60:61]")
    A("L_final:")
    stamp("h", "final0"); stamp("h", "ygot")
    if stamps: A("  s_waitcnt lgkmcnt(0)")
    A(f"  s_cmp_ge_u32 s2, 160"); A(f"  s_cbranch_scc1 {'L_hst' if stamps else 'L_end'}")
    A("  s_mov_b32 s52, 0x0c0c0400"); A("  s_mov_b32 s53, 0x04000c0c"); A("  s_mov_b32 s54, 0xffffff00")
    mk = [16, 18, 20, 22, 64, 66, 68, 70]
    for k in range(8): A(f"  s_mov_b64 s[{mk[k]}:{mk[k]+1}], -1")
    A(f"  s_mov_b32 s50, {SPIN}")
    if fslp1: A("  s_cmp_ge_u32 s4, 16"); A("  s_cbranch_scc1 L_fs"); A(f"  s_sleep {fslp1}"); A("L_fs:")
    if fslp2: A("  s_bitcmp0_b32 s2, 1"); A("  s_cbranch_scc1 L_fs2"); A(f"  s_sleep {fslp2}"); A("L_fs2:")
    if fslp0: A(f"  s_sleep {fslp0}")
    def yround():
        for k in range(8):
            A(f"  s_or_b64 exec, s[{mk[k]}:{mk[k]+1}], 1")
            A(f"  buffer_load_dwordx4 v[{H+4*k}:{H+4*k+3}], v{vCa}, s[36:39], s{72+k} offen {ylp}")
        A("  s_mov_b64 exec, -1")
    C("poll the 128 partial outputs; lanes that already hold their record drop out")
    for _ in range(pp - 1):
        yround(); A(f"  s_sleep {pstag}")
    A("L_fin:")
    yround()
    A(f"  s_waitcnt vmcnt({8*(pp-1)})")
    for k in range(8):
        A(f"  v_perm_b32 v{vS}, v{H+4*k+1}, v{H+4*k}, s52"); A(f"  v_perm_b32 v{vS+1}, v{H+4*k+3}, v{H+4*k+2}, s53")
        A(f"  v_or_b32 v{vS}, v{vS}, v{vS+1}"); A(f"  v_cmp_ne_u32 s[{mk[k]}:{mk[k]+1}], s46, v{vS}")
    A(f"  s_or_b64 s[48:49], s[{mk[0]}:{mk[0]+1}], s[{mk[1]}:{mk[1]+1}]")
    for k in range(2, 8): A(f"  s_or_b64 s[48:49], s[48:49], s[{mk[k]}:{mk[k]+1}]")
    A("  s_sub_u32 s50, s50, 1"); A("  s_cbranch_scc1 L_fgo")
    A("  s_cmp_eq_u64 s[48:49], 0"); A("  s_cbranch_scc0 L_fin")
    A("L_fgo:")
    stamp("h", "ygot")
    Y = H + 32
    for i in range(32): A(f"  v_and_b32 v{Y+i}, s54, v{H+i}")
    for st in (16, 8, 4):
        for i in range(0, st, 2): A(f"  v_pk_add_f32 v[{Y+i}:{Y+i+1}], v[{Y+i}:{Y+i+1}], v[{Y+st+i}:{Y+st+i+1}]")
    C("fold the four columns onto the four rows of lanes: row 0..3 = column 0,2,1,3")
    A("  s_nop 1")
    A(f"  v_permlane32_swap_b32 v{Y}, v{Y+1}"); A(f"  v_permlane32_swap_b32 v{Y+2}, v{Y+3}"); A("  s_nop 0")
    A(f"  v_add_f32 v{Y}, v{Y}, v{Y+1}"); A(f"  v_add_f32 v{Y+2}, v{Y+2}, v{Y+3}"); A("  s_nop 1")
    A(f"  v_permlane16_swap_b32 v{Y}, v{Y+2}"); A("  s_nop 0")
    A(f"  v_add_f32 v{Y}, v{Y}, v{Y+2}")
    for sh in (4, 8):
        A("  s_nop 1"); A(f"  v_add_f32_dpp v{Y}, v{Y}, v{Y} row_ror:{sh} row_mask:0xf bank_mask:0xf")
    A(f"  v_cvt_pk_bf16_f32 v{Y}, v{Y}, v{Y}")
    A("  s_mov_b32 exec_lo, 0x000f000f"); A("  s_mov_b32 exec_hi, 0x000f000f")
    A(f"  buffer_store_short v{Y}, v{vProg}, s[12:15], s35 offen")
    C("every workgroup has read the launch tag by now: leave the word as it was found")
    A("  s_cmp_lg_u32 s2, 0"); A("  s_cbranch_scc1 L_nz")
    A("  s_mov_b64 exec, -1" if atom else "  s_mov_b64 exec, 1")
    A(f"  buffer_store_dword v{vZero}, v{vQa if atom else vZero}, s[8:11], 0 offen sc1")
    A(";HOP 9")
    A("L_nz:")
    if stamps:
        A("L_hst:")
        A("  s_waitcnt vmcnt(0)")
        stamp("h", "hend")
        dump_stamps("h", 1)
        sn = names["s"]; hn = names["h"]
        L.insert(1, "; stamps: start id " + " ".join((sn[1:] + ["id"] * 6)[:6]) + " " + " ".join((hn + ["id"] * 8)[:7]) + " last")
    A("  s_endpgm")
    import re
    def isize(l):
        op = l.split()[0]
        if op == ";": return 0
        lit = any(not (-16 <= int(t, 0) <= 64) for t in re.findall(r"(?<![\w\[:])(-?(?:0x[0-9a-f]+|\d+))(?![\w\]:])", " ".join(l.split(";")[0].split()[1:])))
        if op in ("s_waitcnt", "s_nop", "s_barrier", "s_sleep", "s_branch", "s_endpgm") or op.startswith("s_cbranch") or op.startswith("s_cmpk") or op.startswith("s_addk"): return 4
        if op.startswith("s_load") or op.startswith("s_mem"): return 8
        if op.startswith("s_"): return 8 if lit else 4
        if op in ("v_and_b32", "v_add_u32", "v_readfirstlane_b32", "v_mov_b32"): return 8 if lit else 4
        return 8
    out = []; on = False; acc = 0; cnt = 0
    for l in L:
        if l.startswith(";HOP"):
            was = on; on = int(l.split()[1]) <= warm
            if on and not was: acc = hopb
            continue
        if on and l.startswith("  "):
            if acc >= hopb:
                out.append(f"L_hop_{cnt}:"); out.append(f"  s_cbranch_execz L_hop_{cnt+1}"); cnt += 1; acc = 4
            acc += isize(l)
        out.append(l)
    if warm: out.append(f"L_hop_{cnt}:"); out.append("  s_mov_b64 exec, -1"); out.append("  s_branch L_back")
    L[:] = out
    A('.section .rodata,"a"')
    A(".p2align 6"); A(f".amdhsa_kernel {KN}")
    A(f"  .amdhsa_next_free_vgpr {ACC + NA}"); A(f"  .amdhsa_next_free_sgpr 102"); A(f"  .amdhsa_accum_offset {ACC}")
    A("  .amdhsa_group_segment_fixed_size 0"); A("  .amdhsa_kernarg_size 104"); A("  .amdhsa_user_sgpr_count 2")
    A("  .amdhsa_user_sgpr_kernarg_segment_ptr 1"); A("  .amdhsa_system_sgpr_workgroup_id_x 1")
    A(".end_amdhsa_kernel")
    open(name, "w").write("\n".join(L) + "\n")
    return name
if __name__ == "__main__":
    if len(sys.argv) > 2:
        hdr = open("concat_heads__gqa_block_cached__mha_block_cached__decode.s.ref").read().split("; Override launch")[0]
        print(gen(name=sys.argv[2], header=hdr, **eval(sys.argv[1])))
    else:
        print(" ".join(gen(**kw) for kw in eval(sys.argv[1])))
```

```python
import sys, math, struct
KN = "concat_heads__gqa_block_cached__mha_block_cached__decode_kernel"
WS = 836768768
KVBYTES = 201326592
WBYTES = 7864320
def f32hex(x): return "0x%08x" % struct.unpack("<I", struct.pack("<f", x))[0]

DOC = """;
; ---------------------------------------------------------------------------------------------------------
; ---------------------------------------------------------------------------------------------------------"""

def gen(name="f.s", header="", stamps=0, curve=False,
        lev=(7, 300, 120, 15, -200), kap=205, slp=24, lper=8, dec=2, lin=0, gain=8, prio=0, flws=0, kd=1, gpol="sc1", bpol="sc1", warm=2, hopb=120, tlb=1, sstep=3, ep=True, ep0=8, epp=40, epw=2, ept=999, epp2=0, epend=215, atom=True,
        wqd=7, d0=5, dn=3, dl=5, ej=28, nslp0=4, nslp=8, nloc=24,
        t_q=16, t_a=165, t_c=184, t_ml=193, t_w=198, t_f=244, nfl=2, share=True, gj=16, hw=12, t_g=229,
        fslp0=13, fslp1=12, fslp2=0, ysp="sc1", ylp="sc1", pp=2, pstag=8, SPIN=200000, YS=2688, OS=640):
    L = []; A = L.append
    def C(txt): A("  ; " + txt)
    L_CTL = 0
    L_W = 64
    L_C = L_W + 256
    L_E = L_C + 512
    L_ML = L_E + 256
    L_Q = L_ML + 512
    L_P = L_Q + 17 * 384
    PROW = 272; PWAVE = 8 * PROW
    L_Y = L_P + 4 * PWAVE + 64
    L_O = L_Y + 4096
    LDS = L_O + 16 * 6144
    assert L_Y % 16 == 0 and L_O % 16 == 0 and L_Q % 16 == 0 and L_P % 16 == 0
    W_O = 2 << 20
    W_Q = 6 << 20
    W_ML = W_Q + (128 << 10)
    W_B = W_ML + (128 << 10)
    W_G = W_B + (128 << 10)
    QLOC = 512 << 10
    GEN = 0x5aa5c33c
    vLane, vKV, vW, vZero = 1, 2, 3, 4
    vT0, vT1, vT2, vT3 = 5, 6, 7, 8
    vPa, vQa, vDa, vMLa, vCa, vProg, vMode = 9, 10, 11, 12, 13, 14, 15
    vM = 16; vB = 20; vQ = 28; vS = 40; vD = 48; vRing = 60
    vX = vQ
    NV = vRing + 96
    if curve: vCv = NV; NV += 2
    ACC = (NV + 3) // 4 * 4
    NA = 80
    H = vRing
    def ring(s, t): return vRing + 12 * s + 4 * t
    names = {"s": [], "h": []}
    sets = {1: ("start", "preB1", "ring", "B2", "vend", "oready", "end", "nonce", "qtab", "flush0", "flushed", "ygot", "hend"),
            2: ("start", "vend", "woiss", "oready", "ystore", "end", "flush0", "flushed", "hready", "final0", "ygot", "hend")}
    def stamp(who, nm, again=False):
        if nm not in sets.get(stamps, ()): return
        if nm not in names[who]: names[who].append(nm)
        k = names[who].index(nm); assert k < 8
        A(f"  s_memrealtime s[{84+2*k}:{85+2*k}]")
    def dump_stamps(who, rec):
        n = len(names[who])
        A("  s_getreg_b32 s100, hwreg(HW_REG_XCC_ID)"); A("  s_getreg_b32 s101, hwreg(HW_REG_HW_ID)")
        A("  s_waitcnt vmcnt(0) lgkmcnt(0)")
        A(f"  s_lshl_b32 s47, s2, 7"); A(f"  s_add_u32 s47, s47, {WS - (1<<20) + 64*rec}")
        if who == "s": regs = [84, 85, 100, 101] + sum([[84+2*min(k, n-1), 85+2*min(k, n-1)] for k in range(1, 7)], [])
        else: regs = sum([[84+2*min(k, n-1), 85+2*min(k, n-1)] for k in range(8)], [])
        A("  s_mov_b64 exec, 1")
        for i in range(16): A(f"  v_mov_b32 v{vRing+i}, s{regs[i]}")
        for i in range(4): A(f"  buffer_store_dwordx4 v[{vRing+4*i}:{vRing+4*i+3}], v{vZero}, s[36:39], s47 offen offset:{16*i}")

    A(header + f"; @launch grid=(256,1,1) block=(320,1,1) lds={LDS}")
    A(DOC)
    A('.amdgcn_target "amdgcn-amd-amdhsa--gfx950"')
    A(".text"); A(f".globl {KN}"); A(".p2align 8"); A(f".type {KN},@function"); A(f"{KN}:")
    A("  s_cmp_ge_u32 s2, 256"); A("  s_cbranch_scc1 L_end")
    A("  s_load_dwordx16 s[64:79], s[0:1], 0")
    A("  s_load_dwordx4 s[80:83], s[0:1], 64")
    A("  s_load_dwordx4 s[40:43], s[0:1], 88")
    if curve: A("  s_memrealtime s[96:97]"); A(f"  v_mov_b32 v{vCv}, 0"); A(f"  v_mov_b32 v{vCv+1}, 0")
    stamp("s", "start"); names["h"] = ["hstart"] if stamps else []
    A(f"  v_lshrrev_b32 v{vT0}, 6, v0"); A(f"  v_and_b32 v{vLane}, 63, v0")
    A(f"  v_readfirstlane_b32 s5, v{vT0}     ; wave")
    A(f"  v_lshrrev_b32 v{vT1}, 3, v{vLane}    ; l/8"); A(f"  v_and_b32 v{vT2}, 7, v{vLane}        ; l%8")
    A("  s_and_b32 s3, s2, 7             ; x"); A("  s_lshr_b32 s4, s2, 3            ; j")
    A("  s_cmp_eq_u32 s5, 4"); A("  s_cbranch_scc1 L_tag")
    C("q item of workgroup j < 24: problem (j>>2)&1, head 8*(j&3)+x, 64-column block j>>3; rows 160*w + 20*(l/8) + i")
    A(f"  v_mul_u32_u24 v{vW}, {20*12288}, v{vT1}"); A(f"  v_lshl_add_u32 v{vW}, v{vT2}, 4, v{vW}")
    A("  s_and_b32 s28, s2, 31"); A("  s_mul_i32 s28, s28, 3"); A("  s_lshr_b32 s47, s2, 6"); A("  s_add_u32 s28, s28, s47"); A("  s_lshl_b32 s28, s28, 7")
    A(f"  s_mul_i32 s47, s5, {160*12288}"); A("  s_add_u32 s28, s28, s47")
    A(f"  s_mov_b32 s26, {WBYTES}"); A("  s_mov_b32 s27, 0x20000")
    A("  s_bitcmp1_b32 s2, 5")
    A("  s_waitcnt lgkmcnt(0)")
    A("  s_cselect_b32 s24, s80, s70"); A("  s_cselect_b32 s25, s81, s71")
    A("  s_cselect_b32 s32, s74, s64"); A("  s_cselect_b32 s33, s75, s65")
    def kv_load(n):
        s, t = divmod(n, 3)
        A(f"  buffer_load_dwordx4 v[{ring(s,t)}:{ring(s,t)+3}], v{vKV}, s[8:11], s12 offen offset:{128*t} nt")
        if t == 2 and s < 7:
            d = ((s + 1) * sstep % 8 - s * sstep % 8) * 393216
            A(f"  s_add_u32 s12, s12, {d}" if d > 0 else f"  s_sub_u32 s12, s12, {-d}")
    def kvsetup():
        A(f"  v_mul_u32_u24 v{vKV}, {384*kd}, v{vT1}"); A(f"  v_lshl_add_u32 v{vKV}, v{vT2}, 4, v{vKV}")
        A("  s_lshl_b32 s13, s4, 2"); A("  s_add_u32 s13, s13, s5")
        if kd == 1: A("  s_mul_i32 s13, s13, 3072")
        else:
            A(f"  s_and_b32 s47, s13, {kd-1}"); A("  s_sub_u32 s13, s13, s47"); A("  s_lshl_b32 s13, s13, 3"); A("  s_add_u32 s13, s13, s47"); A("  s_mul_i32 s13, s13, 384")
        A("  s_mul_i32 s47, s3, 3145728"); A("  s_add_u32 s13, s13, s47"); A("  s_mov_b32 s12, s13")
        A("  s_mov_b32 s8, s66"); A("  s_mov_b32 s9, s67"); A(f"  s_mov_b32 s10, {KVBYTES}"); A("  s_mov_b32 s11, 0x20000")
    def masks():
        C("masks that put a bf16 on the diagonal of the first MFMA operand")
        A(f"  v_and_b32 v{vT0}, 1, v{vT2}"); A(f"  v_lshlrev_b32 v{vT0}, 4, v{vT0}")
        A(f"  v_mov_b32 v{vT3}, 0xffff"); A(f"  v_lshlrev_b32 v{vT0}, v{vT0}, v{vT3}")
        A(f"  v_lshrrev_b32 v{vT3}, 1, v{vT2}")
        for q in range(4):
            A(f"  v_cmp_eq_u32 vcc, {q}, v{vT3}"); A("  s_nop 1"); A(f"  v_cndmask_b32 v{vM+q}, 0, v{vT0}, vcc")
    def consts():
        A(f"  v_mov_b32 v{vZero}, 0")
        masks()
        A("  s_mov_b32 s54, 0x00ff00ff"); A("  s_mov_b32 s55, 0xff00ff00")
    wosetup = ["  s_cmp_ge_u32 s4, 16", "  s_cselect_b32 s24, s82, s72", "  s_cselect_b32 s25, s83, s73",
               "  s_lshr_b32 s47, s4, 2", "  s_and_b32 s47, s47, 3", "  s_lshl_b32 s47, s47, 3", "  s_add_u32 s47, s47, s3", "  s_mul_i32 s47, s47, 12",
               "  s_and_b32 s48, s4, 3", "  s_add_u32 s47, s47, s48", f"  s_mul_i32 s47, s47, {16*1280}", "  s_lshl_b32 s48, s5, 8", "  s_add_u32 s28, s47, s48",
               f"  v_lshrrev_b32 v{vW}, 4, v{vLane}", f"  v_mul_u32_u24 v{vW}, 1280, v{vW}", f"  v_and_b32 v{vT3}, 15, v{vLane}", f"  v_lshl_add_u32 v{vW}, v{vT3}, 4, v{vW}"]
    def wo_load(i, wait):
        if wait is not None: A(f"  s_waitcnt vmcnt({wait})")
        A(f"  buffer_load_dwordx4 a[{4*i}:{4*i+3}], v{vW}, s[24:27], s28 offen nt")
        if i < 11: A("  s_addk_i32 s28, 5120" if i % 4 < 3 else f"  s_add_u32 s28, s28, {81920 - 3*5120}")
    if prio == 3: A("  s_setprio 3")
    A("  s_cmp_ge_u32 s4, 24"); A("  s_cbranch_scc1 L_noq")
    def wq_load(i):
        A(f"  buffer_load_dwordx4 a[{4*i}:{4*i+3}], v{vW}, s[24:27], s28 offen nt")
        if i < 19: A("  s_addk_i32 s28, 12288")
    nq = wqd; assert 2 * nq <= 20
    for i in range(nq): wq_load(i)
    A("  s_branch L_xld")
    A("L_tag:")
    C("helper wave: workgroup 0 publishes the launch tag")
    A("  s_memrealtime s[48:49]")
    A(f"  v_mov_b32 v{vZero}, 0")
    A("  s_mov_b32 s10, 256"); A("  s_mov_b32 s11, 0x20000")
    A("  s_waitcnt lgkmcnt(0)")
    A("  s_mov_b32 s8, s40"); A("  s_mov_b32 s9, s41")
    A("  s_or_b32 s46, s48, 1"); A("  s_mul_i32 s46, s46, 0x9e3779b1")
    A("  s_cmp_lg_u32 s2, 0"); A("  s_cbranch_scc1 L_helper")
    A(f"  v_mov_b32 v{vT0}, s46"); A("  s_mov_b64 exec, 1")
    A(f"  buffer_store_dword v{vT0}, v{vZero}, s[8:11], 0 offen sc1")
    A("  s_mov_b64 exec, -1"); A("  s_branch L_helper")
    A("L_xld:")
    A(f"  v_mul_u32_u24 v{vT0}, 40, v{vT1}"); A("  s_mul_i32 s29, s5, 320")
    A("  s_mov_b32 s34, 2560"); A("  s_mov_b32 s35, 0x20000")
    for b in range(2):
        A(f"  buffer_load_dwordx4 v[{vX+10*b}:{vX+10*b+3}], v{vT0}, s[32:35], s29 offen offset:{1280*b}")
        A(f"  buffer_load_dwordx4 v[{vX+10*b+4}:{vX+10*b+7}], v{vT0}, s[32:35], s29 offen offset:{1280*b+16}")
        A(f"  buffer_load_dwordx2 v[{vX+10*b+8}:{vX+10*b+9}], v{vT0}, s[32:35], s29 offen offset:{1280*b+32}")
    consts(); kvsetup()
    A("  s_mov_b32 s52, 0x01000100"); A("  s_mov_b32 s53, 0x03020302")
    def qstep(i):
        for b in range(2):
            A(f"  v_perm_b32 v{vT0}, v{vX+10*b+i//2}, v{vX+10*b+i//2}, s{52+(i&1)}")
            for q in range(4): A(f"  v_and_b32 v{vB+4*b+q}, v{vT0}, v{vM+q}")
        for b in range(2):
            if b == 1: A("  s_nop 0")
            c = f"v[{vD+4*b}:{vD+4*b+3}]" if i else "0"
            A(f"  v_mfma_f32_16x16x32_bf16 v[{vD+4*b}:{vD+4*b+3}], v[{vB+4*b}:{vB+4*b+3}], a[{4*i}:{4*i+3}], {c}")
    C("q projection for both batch rows; the first K tiles follow the wq rows")
    nk = 0; done = 0
    for i in range(20):
        A(f"  s_waitcnt vmcnt({nq - 1 - i + nk + (6 if i < wqd else 0)})")
        if nq < 20: wq_load(nq); nq += 1
        else:
            while (19 - i + nk) < d0: kv_load(nk); nk += 1
        if i >= wqd:
            for _ in range(2):
                if done <= i: qstep(done); done += 1
    assert done == 20 and nk == d0
    A(f"  v_lshrrev_b32 v{vT0}, 5, v{vLane}"); A(f"  v_lshlrev_b32 v{vT0}, 9, v{vT0}")
    A(f"  v_lshl_add_u32 v{vT0}, v{vT2}, 5, v{vT0}")
    A(f"  v_and_b32 v{vT3}, 16, v{vLane}"); A(f"  v_add_u32 v{vT0}, v{vT0}, v{vT3}")
    A("  s_lshl_b32 s47, s5, 10"); A(f"  v_add_u32 v{vT0}, s47, v{vT0}")
    A("  s_nop 0")
    A("  s_mov_b64 exec, s[54:55]")
    for b in range(2): A(f"  ds_write_b128 v{vT0}, v[{vD+4*b}:{vD+4*b+3}] offset:{L_Y + 256*b}")
    A("  s_mov_b64 exec, -1")
    stamp("s", "preB1")
    A("  s_waitcnt lgkmcnt(0)"); A("  s_barrier                       ; B1: q partials")
    A("  s_branch L_qdone")
    A("L_noq:")
    kvsetup()
    for n in range(dn): kv_load(n)
    consts()
    for n in range(dn, d0):
        A(f"  s_waitcnt vmcnt({dn-1})"); kv_load(n)
    stamp("s", "preB1")
    A("L_qdone:")
    C("fill the ring with the first head while q is exchanged")
    rest = []
    R = rest.append
    R([f"  s_mul_i32 s47, s5, {PWAVE}", f"  s_add_u32 s47, s47, {L_P}", f"  v_mul_u32_u24 v{vPa}, {PROW}, v{vT1}", f"  v_add_u32 v{vPa}, s47, v{vPa}"])
    R([f"  v_lshlrev_b32 v{vQa}, 4, v{vT2}", f"  s_lshl_b32 s47, s5, 3", f"  v_mov_b32 v{vMLa}, s47", f"  s_lshl_b32 s47, s5, 2", f"  v_mov_b32 v{vCa}, s47", f"  v_mov_b32 v{vProg}, 0"])
    R([f"  v_lshrrev_b32 v{vDa}, 5, v{vLane}", f"  v_mul_u32_u24 v{vDa}, 768, v{vDa}", f"  v_lshl_add_u32 v{vDa}, v{vT2}, 5, v{vDa}",
       f"  v_and_b32 v{vT3}, 16, v{vLane}", f"  v_add_u32 v{vDa}, v{vDa}, v{vT3}", "  s_mul_i32 s47, s5, 1536", f"  s_add_u32 s47, s47, {L_O}", f"  v_add_u32 v{vDa}, s47, v{vDa}"])
    R(["  s_mov_b32 s16, s68", "  s_mov_b32 s17, s69", "  s_mov_b32 s18, s76", "  s_mov_b32 s19, s77", "  s_mov_b32 s20, s78", "  s_mov_b32 s21, s79"])
    R(wosetup)
    R(["  s_mov_b32 s36, s42", "  s_mov_b32 s37, s43", f"  s_mov_b32 s38, {WS}", "  s_mov_b32 s39, 0x20000", "  s_mov_b32 s14, 0", "  s_mov_b32 s15, 0x20000"])
    R([f"  s_mov_b32 s58, {f32hex(192 ** -0.5 * math.log2(math.e))}      ; log2(e)/sqrt(192)", "  s_mov_b32 s44, 0", f"  s_mov_b32 s45, {lev[-2] + 1}", "  s_mov_b32 s30, 0"])
    A("  s_cmp_ge_u32 s4, 24"); A("  s_cselect_b64 vcc, -1, 0")
    A(f"  s_cmp_ge_u32 s4, {ej}"); A("  s_cselect_b64 vcc, 0, vcc")
    for n in range(d0, 24):
        A(f"  s_waitcnt vmcnt({d0-1})")
        A(f"  s_cbranch_vccz L_rf{n}"); A(f"  s_waitcnt vmcnt({dn-1})"); A(f"L_rf{n}:")
        kv_load(n)
        if rest:
            for x in rest.pop(0): A(x)
    assert not rest
    if ej < 32:
        C("workgroups that wait for the very last partial o fetch their wo rows now")
        A(f"  s_cmp_lt_u32 s4, {ej}"); A("  s_cbranch_scc1 L_noearly")
        for i in range(12): wo_load(i, d0 - 1)
        A("L_noearly:")
    stamp("s", "ring")
    A("  s_barrier")
    for t in range(3): A(f"  ds_read_b128 v[{vQ+4*t}:{vQ+4*t+3}], v{vQa} offset:{L_Q + 128*t}")
    stamp("s", "B2")
    A("  s_waitcnt lgkmcnt(0)")
    def throttle(tag):
        A(f"  s_waitcnt vmcnt({lev[0]})")
        for k, th in enumerate(lev[1:]):
            A(f"  s_cmpk_gt_i32 s45, {th & 0xffff:#x}"); A(f"  s_cbranch_scc1 {tag}"); A(f"  s_waitcnt vmcnt({lev[0]-1-k})")
        A(f"{tag}:")
    def switch(tag):
        C("round it consumes head it and fetches head it+1; every 8 rounds the next buffer")
        A("  s_add_u32 s47, s44, 1"); A("  s_and_b32 s47, s47, 7"); A(f"  s_cbranch_scc1 {tag}")
        A("  s_mov_b32 s8, s16"); A("  s_mov_b32 s9, s17")
        for k in range(4): A(f"  s_mov_b32 s{16+k}, s{18+k}")
        A(f"{tag}:")
        A(f"  s_mul_i32 s47, s47, {8*3145728}"); A("  s_add_u32 s12, s13, s47")
    def body(tag, gaps):
        for n in range(24):
            s, j = divmod(n, 3)
            for x in gaps.get(n, []): A(x)
            if j == 2:
                A("  s_waitcnt lgkmcnt(0)")
                A(f"  v_readfirstlane_b32 s31, v{vMode}")
                A(f"  s_mul_i32 s56, s56, {kap}"); A("  s_lshr_b32 s56, s56, 6"); A("  s_sub_u32 s56, s56, s30"); A("  s_addk_i32 s30, 128")
                A("  s_add_u32 s56, s56, s31"); A("  s_sext_i32_i16 s56, s56")
                A("  s_bitcmp0_b32 s31, 31"); A("  s_cselect_b32 s45, s56, s45")
            throttle(f"{tag}_{n}")
            kv_load(n)
            if j == 1:
                A(f"  ds_read_b32 v{vMode}, v{vZero} offset:{L_CTL+32}"); A("  s_memrealtime s[56:57]")
            if j == 2:
                A(f"  v_add_u32 v{vProg}, 1, v{vProg}"); A(f"  ds_write_b32 v{vCa}, v{vProg} offset:{L_CTL+16}")
    def xred(op, t, u):
        return [f"  s_nop 1", f"  {op}_dpp v{t}, v{t}, v{t} row_ror:8 row_mask:0xf bank_mask:0xf",
                f"  v_mov_b32 v{u}, v{t}", "  s_nop 1", f"  v_permlane16_swap_b32 v{t}, v{u}", "  s_nop 0", f"  {op} v{t}, v{t}, v{u}",
                f"  v_mov_b32 v{u}, v{t}", "  s_nop 1", f"  v_permlane32_swap_b32 v{t}, v{u}", "  s_nop 0", f"  {op} v{t}, v{t}, v{u}"]
    kg = {}
    for s in range(4):
        for j in range(2):
            T = 2 * s + j
            kg[3*s+j] = [f"  s_waitcnt vmcnt({3*(7-T) + 3*s + j})"] + \
                        [f"  v_dot2_f32_bf16 v{vS+T}, v{ring(T,0)+k}, v{vQ+k}, {('v%d' % (vS+T)) if k else '0'}" for k in range(12)]
        g = []
        for pat in ("quad_perm:[1,0,3,2]", "quad_perm:[2,3,0,1]", "row_half_mirror"):
            g += ["  s_nop 0"] + [f"  v_add_f32_dpp v{vS+T}, v{vS+T}, v{vS+T} {pat} row_mask:0xf bank_mask:0xf" for T in (2*s, 2*s+1)]
        kg[3*s+2] = g
    kg[12] = [f"  v_add_u32 v{vQa}, 384, v{vQa}",
              f"  v_max3_f32 v{vT0}, v{vS}, v{vS+1}, v{vS+2}", f"  v_max3_f32 v{vT0}, v{vT0}, v{vS+3}, v{vS+4}",
              f"  v_max3_f32 v{vT0}, v{vT0}, v{vS+5}, v{vS+6}", f"  v_max_f32 v{vT0}, v{vT0}, v{vS+7}"] + \
             [f"  ds_read_b128 v[{vQ+4*t}:{vQ+4*t+3}], v{vQa} offset:{L_Q + 128*t}" for t in range(3)]
    kg[13] = xred("v_max_f32", vT0, vT1) + [f"  v_mul_f32 v{vD}, s58, v{vT0}"]
    kg[14] = [f"  v_fma_f32 v{vS+i}, v{vS+i}, s58, -v{vD}" for i in range(8)]
    kg[15] = [f"  v_exp_f32 v{vS+i}, v{vS+i}" for i in range(8)]
    kg[16] = [f"  v_add_f32 v{vD+1}, v{vS}, v{vS+1}"] + [f"  v_add_f32 v{vD+1}, v{vD+1}, v{vS+i}" for i in range(2, 8)]
    kg[17] = [f"  v_cvt_pk_bf16_f32 v{vS+i}, v{vS+i}, v{vS+i}" for i in range(8)]
    kg[18] = [f"  ds_write_b128 v{vPa}, v[{vS}:{vS+3}]", f"  ds_write_b128 v{vPa}, v[{vS+4}:{vS+7}] offset:16", f"  v_add_u32 v{vPa}, 32, v{vPa}"]
    kg[19] = xred("v_add_f32", vD+1, vT1)
    kg[21] = [f"  ds_write_b64 v{vMLa}, v[{vD}:{vD+1}] offset:{L_ML}", f"  v_add_u32 v{vMLa}, 32, v{vMLa}"]
    def vtile(T, wait):
        b = vB + 4 * (T & 1)
        g = [f"  v_and_b32 v{b+q}, v{vS+T}, v{vM+q}" for q in range(4)] + [f"  s_waitcnt vmcnt({wait})", "  s_nop 0"]
        for t in range(3):
            c = f"v[{vD+4*t}:{vD+4*t+3}]" if T else "0"
            g.append(f"  v_mfma_f32_16x16x32_bf16 v[{vD+4*t}:{vD+4*t+3}], v[{b}:{b+3}], v[{ring(T,t)}:{ring(T,t)+3}], {c}")
        return g
    dump = ["  s_mov_b64 exec, s[54:55]"] + [f"  ds_write_b128 v{vDa}, v[{vD+4*t}:{vD+4*t+3}] offset:{256*t}" for t in range(3)] + ["  s_mov_b64 exec, -1"]
    pread = [f"  ds_read_b128 v[{vS}:{vS+3}], v{vPa}", f"  ds_read_b128 v[{vS+4}:{vS+7}], v{vPa} offset:16"]
    vg = {}
    for s in range(4):
        for j in range(2): vg[3*s+j] = vtile(2*s+j, 3*(7-(2*s+j)) + 3*s + j)
    vg[12] = ["  s_nop 7"] + dump + [f"  v_add_u32 v{vDa}, 6144, v{vDa}", f"  v_add_u32 v{vPa}, 32, v{vPa}"]
    vg[13] = pread
    def cstamp():
        if not curve: return
        A("  s_memrealtime s[98:99]"); A("  s_mov_b32 m0, s44"); A("  s_waitcnt lgkmcnt(0)")
        A(f"  v_writelane_b32 v{vCv}, s98, m0"); A(f"  v_writelane_b32 v{vCv+1}, s99, m0")
    A("L_kloop:")
    switch("L_ksw")
    body("L_k", kg); cstamp()
    A("  s_add_u32 s44, s44, 1"); A("  s_and_b32 s47, s44, 7"); A("  s_cbranch_scc1 L_kloop")
    A(";HOP 1")
    A(f"  v_subrev_u32 v{vPa}, 256, v{vPa}")
    for x in pread: A(x)
    A("  s_waitcnt lgkmcnt(0)")
    A("L_vloop:")
    switch("L_vsw")
    body("L_v", vg); cstamp()
    A("  s_add_u32 s44, s44, 1")
    A("  s_cmp_eq_u32 s44, 31"); A("  s_cbranch_scc1 L_last")
    A("  s_and_b32 s47, s44, 7"); A("  s_cbranch_scc1 L_vloop")
    A(f"  v_subrev_u32 v{vPa}, 256, v{vPa}")
    A("  s_branch L_kloop")
    A(";HOP 2")
    A("L_last:")
    C("last round: the wo rows are the end of the stream and cover the exchange of the last partial o")
    def last(m):
        sched = {1: [0, 1], 2: [2, 3], 3: [4, 5], dl - 1: [6], dl: [7]}
        for k in range(max(m, dl + 1)):
            for T in sched.get(k, []):
                for x in vtile(T, 3*(7-T) + min(k, m)): A(x)
            if k == dl:
                A(f"  v_add_u32 v{vProg}, 8, v{vProg}"); A("  s_nop 5")
                for x in dump: A(x)
                A(f"  ds_write_b32 v{vCa}, v{vProg} offset:{L_CTL+16}")
                stamp("s", "vend")
            if k < m: wo_load(k, dl - 1)
        stamp("s", "woiss")
    if ej < 32:
        A(f"  s_cmp_lt_u32 s4, {ej}"); A("  s_cbranch_scc1 L_last1")
        last(0)
        A("  s_branch L_proj")
        A("L_last1:")
    last(12)
    A("L_proj:")
    C("all five waves: y[2][128 columns] = o[2][48 rows] * wo")
    A(f"  v_and_b32 v{vT0}, 8, v{vLane}"); A(f"  v_and_b32 v{vT1}, 48, v{vLane}"); A(f"  v_lshl_add_u32 v{vT0}, v{vT0}, 5, v{vT1}      ; (16*b + g)*16")
    A(f"  v_lshrrev_b32 v{vT1}, 5, v{vLane}"); A(f"  v_mul_u32_u24 v{vT1}, {128*YS - 512}, v{vT1}"); A(f"  v_lshl_add_u32 v{vT1}, v{vLane}, 4, v{vT1}")
    A("  s_lshr_b32 s47, s4, 4"); A(f"  s_mul_i32 s47, s47, {256*YS}")
    A("  s_and_b32 s48, s2, 127"); A(f"  s_mul_i32 s48, s48, {YS}"); A("  s_add_u32 s47, s47, s48")
    A("  s_lshl_b32 s48, s5, 9"); A("  s_add_u32 s47, s47, s48")
    for i in range(4): A(f"  s_mov_b32 s{52+i}, 0x0706050{i}")
    A("  s_waitcnt lgkmcnt(0)")
    A("  s_barrier")
    G = vRing
    for u in range(4): A(f"  ds_read_b128 v[{G+4*u}:{G+4*u+3}], v{vT0} offset:{L_C + 64*u}")
    if stamps:
        A("  s_cmp_eq_u32 s5, 4"); A("  s_cbranch_scc1 L_nost"); stamp("s", "oready"); A("L_nost:")
    A("  s_waitcnt lgkmcnt(0)")
    def diag(i):
        tp, u = divmod(i, 4)
        for q in range(4): A(f"  v_and_b32 v{G+16+4*i+q}, v{G+4*u+tp}, v{vM+q}")
    diag(0); diag(1)
    nd = 2
    for i in range(12):
        A(f"  s_waitcnt vmcnt({11-i})")
        cc = f"v[{vD}:{vD+3}]" if i else "0"
        A(f"  v_mfma_f32_16x16x32_bf16 v[{vD}:{vD+3}], v[{G+16+4*i}:{G+19+4*i}], a[{4*i}:{4*i+3}], {cc}")
        for _ in range(2 if i >= 2 else 1):
            if nd < 12: diag(nd); nd += 1
    A("  s_nop 7")
    C("the low byte of each value carries one byte of the launch tag")
    for r in range(4): A(f"  v_perm_b32 v{vD+r}, v{vD+r}, v{G+3}, s{52+r}")
    A(f"  buffer_store_dwordx4 v[{vD}:{vD+3}], v{vT1}, s[36:39], s47 offen {ysp}")
    A("  s_cmp_eq_u32 s5, 4"); A("  s_cbranch_scc1 L_final")
    A(";HOP 9")
    if curve:
        A("  s_cmp_lg_u32 s5, 0"); A("  s_cbranch_scc1 L_end")
        A("  s_getreg_b32 s100, hwreg(HW_REG_XCC_ID)")
        A(f"  s_mul_i32 s47, s2, {144 if curve == 1 else 264}"); A(f"  s_add_u32 s47, s47, {WS - (1<<20)}")
        A(f"  v_lshlrev_b32 v{vT0}, {2 if curve == 1 else 3}, v{vLane}"); A(f"  v_add_u32 v{vT0}, 16, v{vT0}")
        A(f"  s_mov_b32 exec_lo, {0x55555555 if curve == 1 else 0x7fffffff:#x}"); A("  s_mov_b32 exec_hi, 0")
        A(f"  buffer_store_dwordx2 v[{vCv}:{vCv+1}], v{vT0}, s[36:39], s47 offen")
        A("  s_mov_b64 exec, 1")
        A(f"  v_mov_b32 v{vRing}, s96"); A(f"  v_mov_b32 v{vRing+1}, s97"); A(f"  v_mov_b32 v{vRing+2}, s100"); A(f"  v_mov_b32 v{vRing+3}, 0")
        A(f"  buffer_store_dwordx4 v[{vRing}:{vRing+3}], v{vZero}, s[36:39], s47 offen")
    if stamps:
        A("  s_cmp_lg_u32 s5, 0"); A("  s_cbranch_scc1 L_end")
        stamp("s", "ystore")
        A("  s_waitcnt vmcnt(0)")
        stamp("s", "end")
        dump_stamps("s", 0)
    A("L_end:"); A("  s_endpgm")
    vE = vD + 2
    A("L_helper:")
    if prio == 1: A("  s_setprio 3")
    A(f"  v_mov_b32 v{H}, 0"); A(f"  v_mov_b32 v{H+1}, 0"); A(f"  v_mov_b32 v{H+2}, 0"); A(f"  v_mov_b32 v{H+3}, 0"); A(f"  v_mov_b32 v{H+4}, -1")
    A(f"  ds_write_b128 v{vZero}, v[{H}:{H+3}] offset:{L_CTL+16}"); A(f"  ds_write_b32 v{vZero}, v{H+4} offset:{L_CTL+32}")
    A("  s_mov_b32 s36, s42"); A("  s_mov_b32 s37, s43"); A(f"  s_mov_b32 s38, {WS}"); A("  s_mov_b32 s39, 0x20000")
    masks()
    for x in wosetup: A(x)
    A(f"  s_mov_b32 s26, {WBYTES}"); A("  s_mov_b32 s27, 0x20000")
    A(f"  v_lshlrev_b32 v{vT0}, 3, v{vLane}"); A(f"  v_lshlrev_b32 v{vT3}, 4, v{vLane}"); A(f"  v_lshlrev_b32 v{vQa}, 2, v{vLane}")
    A(f"  s_mul_i32 s12, s3, {24*512}"); A(f"  s_add_u32 s12, s12, {W_Q}")
    A("  s_and_b32 s13, s4, 7"); A("  s_mul_i32 s13, s13, 3"); A("  s_lshr_b32 s14, s4, 3"); A("  s_add_u32 s13, s13, s14")
    A("  s_lshl_b32 s13, s13, 9"); A("  s_add_u32 s13, s13, s12")
    A("  s_add_u32 s14, s12, 4096"); A("  s_add_u32 s15, s12, 8192")
    def tlbtouch():
        C("touch the pages of round j (and of this workgroup's wo rows) once, so that their translations are cached in time")
        A("  s_bitcmp1_b32 s4, 3"); A("  s_cselect_b32 s20, s68, s66"); A("  s_cselect_b32 s21, s69, s67"); A("  s_cselect_b32 s22, s78, s76"); A("  s_cselect_b32 s23, s79, s77")
        A("  s_bitcmp1_b32 s4, 4"); A("  s_cselect_b32 s20, s22, s20"); A("  s_cselect_b32 s21, s23, s21")
        A("  s_and_b32 s47, s2, 63"); A("  s_mul_i32 s47, s47, 3145728")
        A("  s_add_u32 s20, s20, s47"); A("  s_addc_u32 s21, s21, 0")
        A("  s_load_dword s52, s[20:21], 0"); A("  s_load_dword s53, s[20:21], 0xffffc")
        A("  s_add_u32 s22, s20, 0x200000"); A("  s_addc_u32 s23, s21, 0")
        A("  s_load_dword s54, s[22:23], 0"); A("  s_load_dword s55, s[22:23], 0xffffc")
        A("  s_add_u32 s16, s24, s28"); A("  s_addc_u32 s17, s25, 0"); A("  s_load_dword s56, s[16:17], 0")
        C("(words of d_ws that nothing else uses, one per page; the values are ignored)")
        assert share
        A(f"  s_add_u32 s18, s42, {W_O - 4}"); A("  s_addc_u32 s19, s43, 0"); A("  s_load_dword s57, s[18:19], 0"); A(f"  s_load_dword s58, s[18:19], {9*32*OS + 4}")
        A(f"  s_add_u32 s30, s42, {W_Q - 4}"); A("  s_addc_u32 s31, s43, 0"); A("  s_load_dword s59, s[30:31], 0"); A("  s_load_dword s62, s[30:31], 0xf0004")
        A("  s_waitcnt lgkmcnt(0)")
    if tlb == 1: tlbtouch()
    A("  s_cmp_eq_u32 s2, 0"); A("  s_cbranch_scc1 L_nhave")
    A(f"  s_mov_b32 s50, {SPIN}")
    C("wait for the launch tag (the sleeps are poll back-off: polls that come too early slow the writer down)")
    if nslp0: A(f"  s_sleep {nslp0}")
    A("L_nloop:")
    A(f"  buffer_load_dword v{H}, v{vZero}, s[8:11], 0 offen sc1"); A("  s_waitcnt vmcnt(0)")
    A(f"  v_readfirstlane_b32 s46, v{H}")
    A("  s_sub_u32 s50, s50, 1"); A("  s_cbranch_scc1 L_nhave")
    A("  s_cmp_lg_u32 s46, 0"); A("  s_cbranch_scc1 L_nhave")
    A(f"  s_sleep {nslp}"); A("  s_branch L_nloop")
    A("L_nhave:")
    stamp("h", "nonce")
    A("  s_waitcnt lgkmcnt(0)")
    A("  s_cmp_ge_u32 s4, 24"); A("  s_cbranch_scc1 L_hq2")
    A("  s_barrier                       ; B1")
    for k in range(8): A(f"  ds_read_b64 v[{H+2*k}:{H+2*k+1}], v{vT0} offset:{L_Y + 512*k}")
    for k in range(1, 8):
        A(f"  s_waitcnt lgkmcnt({7-k})")
        for r in range(2): A(f"  v_add_f32 v{H+r}, v{H+r}, v{H+2*k+r}")
    A(f"  v_cvt_pk_bf16_f32 v{vD}, v{H}, v{H+1}"); A(f"  v_mov_b32 v{vD+1}, s46")
    def qglob(tag):
        A("  s_cmp_ge_u32 s4, 24"); A(f"  s_cbranch_scc1 {tag}")
        A(f"  buffer_store_dwordx2 v[{vD}:{vD+1}], v{vT0}, s[36:39], s13 offen sc1")
        A(f"{tag}:")
    A(f"  s_add_u32 s47, s13, {QLOC}")
    A(f"  buffer_store_dwordx2 v[{vD}:{vD+1}], v{vT0}, s[36:39], s47 offen")
    A("L_hq2:")
    A(f"  v_and_b32 v{vT1}, 16, v{vLane}"); A(f"  v_mul_u32_u24 v{vT1}, 96, v{vT1}")
    A(f"  v_and_b32 v{vT2}, 15, v{vLane}"); A(f"  v_lshl_add_u32 v{vT1}, v{vT2}, 3, v{vT1}")
    A(f"  v_lshrrev_b32 v{vT2}, 5, v{vLane}"); A(f"  v_lshl_add_u32 v{vT1}, v{vT2}, 7, v{vT1}")
    A(f"  s_mov_b32 s50, {SPIN}")
    A("L_qg:")
    C("the first tries read the copy that a producer on this die left in L2, later ones alternate with the device-wide copy")
    A(f"  s_cmp_lg_u32 s50, {SPIN - nloc}"); A("  s_cbranch_scc1 L_qg1"); qglob("L_qg1")
    A(f"  s_cmp_gt_u32 s50, {SPIN - nloc}"); A(f"  s_cselect_b32 s47, {QLOC}, 0")
    A("  s_bitcmp1_b32 s50, 0"); A(f"  s_cselect_b32 s47, {QLOC}, s47")
    A(f"  v_add_u32 v{vDa}, s47, v{vT3}")
    for k in range(12):
        A(f"  buffer_load_dwordx4 v[{H+4*k}:{H+4*k+3}], v{vDa}, s[36:39], s{(12,14,15)[k//4]} offen offset:{1024*(k%4)} sc1")
    A("  s_mov_b64 s[48:49], 0")
    for k in range(12):
        A(f"  s_waitcnt vmcnt({11-k})")
        for r in (1, 3):
            A(f"  v_cmp_ne_u32 vcc, s46, v{H+4*k+r}"); A("  s_or_b64 s[48:49], s[48:49], vcc")
    A("  s_sub_u32 s50, s50, 1"); A("  s_cbranch_scc1 L_qgo")
    A("  s_cmp_eq_u64 s[48:49], 0"); A("  s_cbranch_scc0 L_qg")
    A("L_qgo:")
    def qconst(item):
        sg, c = divmod(item, 3); return ((sg >> 2) * 8 + (sg & 3)) * 384 + c * 128
    for k in range(12):
        assert qconst(2*k+1) - qconst(2*k) == 128
        A(f"  v_mov_b32 v{H+4*k+1}, v{H+4*k+2}")
        A(f"  ds_write_b64 v{vT1}, v[{H+4*k}:{H+4*k+1}] offset:{L_Q + qconst(2*k)}")
    A("  s_waitcnt lgkmcnt(0)")
    stamp("h", "qtab")
    A("  s_barrier                       ; B2")
    if tlb == 2: tlbtouch()
    C("set-up of the progress board and of the flush state")
    A("  s_getreg_b32 s56, hwreg(HW_REG_XCC_ID)"); A("  s_and_b32 s56, s56, 7")
    A("  s_lshl_b32 s57, s56, 3"); A("  s_add_u32 s57, s57, s3"); A("  s_mul_i32 s57, s57, 1152"); A(f"  s_add_u32 s57, s57, {W_B}")
    A("  s_lshl_b32 s59, s4, 3"); A("  s_add_u32 s59, s59, s57")
    A("  s_mov_b32 s31, 0")
    A(f"  v_mov_b32 v{vE+1}, s46")
    if not atom:
        A("  s_lshl_b32 s62, s56, 2"); A(f"  s_add_u32 s62, s62, {W_G}"); A(f"  s_mov_b32 s29, {lper-1}")
        A(f"  s_add_u32 s16, s42, {W_G}"); A("  s_addc_u32 s17, s43, 0")
        A("  s_and_b32 s51, s46, 0xffff0000")
    A("  s_mov_b32 s18, -1"); A("  s_mov_b32 s19, 1")
    A("  s_mov_b32 s30, 0"); A("  s_mov_b32 s32, 0")
    A(f"  v_add_u32 v{vDa}, {L_O}, v{vQa}"); A(f"  v_mov_b32 v{vMLa}, {L_E}")
    A("  s_mov_b32 s33, 0xffff")
    if atom: A("  s_mov_b32 s62, 124")
    if ep: A(f"  s_mov_b32 s29, {ep0}"); A("  s_mov_b32 s80, 0"); A("  s_mov_b32 s81, 0")
    A(f"  s_mul_i32 s58, s3, {512*OS}"); A(f"  s_mul_i32 s48, s4, {OS}"); A("  s_add_u32 s58, s58, s48"); A(f"  s_add_u32 s58, s58, {W_O}")
    def otag(reg):
        A(f"  v_and_b32 v{vMode}, 1, v{vLane}"); A(f"  v_lshlrev_b32 v{vMode}, 4, v{vMode}"); A(f"  v_lshrrev_b32 v{vMode}, v{vMode}, {reg}"); A(f"  v_lshlrev_b32 v{vMode}, 16, v{vMode}")
    otag("s46")
    A("  s_mov_b32 s45, s46")
    def call(l): A(f"  s_call_b64 s[60:61], {l}")
    def pace(t): A(f"  s_mov_b32 s44, {t}"); call("L_pace")
    def drain(n): A(f"  s_mov_b32 s32, {n}"); call("L_drain")
    pace(t_q)
    if warm:
        C("bring the code of the V rounds into the instruction cache: with EXEC = 0 only the chain of branches runs")
        A("  s_mov_b64 exec, 0"); A("  s_branch L_hop_0"); A("L_back:")
    A("  s_load_dwordx2 s[6:7], s[0:1], 80      ; out"); A("  s_waitcnt lgkmcnt(0)")
    C("without proof that the group shares a die, leave a device-wide copy of q")
    A("  s_cmp_eq_u32 s31, 1"); A("  s_cbranch_scc1 L_qg2"); qglob("L_qg2")
    if share:
        C("problem A: publish (M, l) and the partial o; its projectors merge them before anyone reuses the slots")
        pace(t_a)
        A("  s_mov_b32 s34, 0x00ff"); call("L_ml"); A("  s_mov_b32 s32, 8")
        pace(t_c); drain(8)
        A("  s_cmp_ge_u32 s4, 16"); A("  s_cbranch_scc1 L_s1")
        A("  s_mov_b32 s34, 0"); call("L_wt"); call("L_merge"); A("  s_mov_b32 s34, 1"); call("L_merge")
        A("L_s1:")
        pace(t_ml)
        A("  s_mov_b32 s34, 0xff00"); call("L_ml")
        pace(t_w)
        C("the (M, l) records of problem B also tell that their writers are done with the slots")
        A("  s_mov_b32 s34, 8"); call("L_wt")
        A(f"  s_xor_b32 s45, s46, {GEN:#x}"); otag("s45"); A(f"  s_sub_u32 s58, s58, {8*32*OS}")
        A("  s_mov_b32 s32, 15")
    else:
        pace(t_ml)
        A("  s_mov_b32 s34, 0xffff"); call("L_ml"); A("  s_mov_b32 s32, 15")
        pace(t_w)
        A("  s_lshr_b32 s34, s4, 4"); A("  s_lshl_b32 s34, s34, 3"); call("L_wt")
    pace(t_g); drain(12); A("  s_mov_b32 s32, 15")
    if share: A("  s_cmp_lt_u32 s4, 16"); A("  s_cbranch_scc1 L_s4")
    A("  s_mov_b32 s34, 0"); call("L_merge")
    A("L_s4:")
    A("  s_mov_b32 s34, 1")
    pace(t_f)
    stamp("h", "flush0")
    if prio == 2: A("  s_setprio 3")
    for i in range(hw): wo_load(i, None)
    C("final-reduction role of workgroups 0..159: (problem, batch) = id&3, block of 4 granules = id>>2")
    A("  s_and_b32 s20, s2, 3"); A("  s_lshr_b32 s21, s2, 2")
    A(f"  v_lshrrev_b32 v{vCa}, 2, v{vLane}"); A(f"  v_and_b32 v{vProg}, 3, v{vLane}")
    A(f"  v_mul_u32_u24 v{vCa}, {YS}, v{vCa}"); A(f"  v_lshl_add_u32 v{vCa}, v{vProg}, 4, v{vCa}"); A(f"  v_lshlrev_b32 v{vProg}, 4, v{vProg}")
    A(f"  v_bfe_u32 v{vT1}, v{vLane}, 4, 1"); A(f"  v_lshl_add_u32 v{vProg}, v{vT1}, 2, v{vProg}")
    A(f"  v_lshrrev_b32 v{vT1}, 5, v{vLane}"); A(f"  v_lshl_add_u32 v{vProg}, v{vT1}, 1, v{vProg}")
    A(f"  s_mul_i32 s72, s20, {128*YS}"); A("  s_lshl_b32 s22, s21, 6"); A("  s_add_u32 s72, s72, s22")
    for k in range(1, 8): A(f"  s_add_u32 s{72+k}, s72, {16*k*YS}")
    A("  s_and_b32 s22, s20, 1"); A("  s_mul_i32 s35, s22, 2560"); A("  s_lshr_b32 s22, s20, 1"); A("  s_mul_i32 s22, s22, 1280"); A("  s_add_u32 s35, s35, s22")
    A("  s_lshr_b32 s22, s21, 3"); A("  s_lshl_b32 s22, s22, 8"); A("  s_add_u32 s35, s35, s22")
    A("  s_and_b32 s22, s21, 3"); A("  s_lshl_b32 s22, s22, 6"); A("  s_add_u32 s35, s35, s22")
    A("  s_and_b32 s22, s21, 4"); A("  s_lshl_b32 s22, s22, 1"); A("  s_add_u32 s35, s35, s22")
    A("  s_mov_b32 s12, s6"); A("  s_mov_b32 s13, s7"); A("  s_mov_b32 s14, 5120"); A("  s_mov_b32 s15, 0x20000")
    lo_j = 16 if share else 0
    if gj > lo_j:
        drain(15)
        if share: A("  s_cmp_lt_u32 s4, 16"); A("  s_cbranch_scc1 L_s2")
        A(f"  s_cmp_ge_u32 s4, {gj}"); A("  s_cbranch_scc1 L_s2")
        call("L_merge")
        A("L_s2:")
    drain(16)
    stamp("h", "flushed")
    for i in range(hw, 12): wo_load(i, None)
    A(f"  s_cmp_lt_u32 s4, {max(gj, lo_j)}"); A("  s_cbranch_scc1 L_s3")
    call("L_merge")
    A("L_s3:")
    stamp("h", "hready")
    A("  s_branch L_proj")
    def pub(instr, tag):
        A("  s_cmp_eq_u32 s31, 1"); A(f"  s_cbranch_scc1 {tag}a")
        A(instr + " sc1")
        A(f"  s_branch {tag}b"); A(f"{tag}a:"); A(instr); A(f"{tag}b:")
    A("L_pace:")
    C("subroutine: until every wave has passed s44, refresh the mean lead and publish finished heads (period ~1.4 us)")
    A(f"  s_sleep {slp}")
    A("  s_memrealtime s[22:23]")
    A(f"  ds_read_b128 v[{H}:{H+3}], v{vZero} offset:{L_CTL+16}"); A("  s_waitcnt lgkmcnt(0)")
    A(f"  v_min3_u32 v{H+4}, v{H}, v{H+1}, v{H+2}"); A(f"  v_min_u32 v{H+4}, v{H+4}, v{H+3}")
    A(f"  v_add3_u32 v{H+5}, v{H}, v{H+1}, v{H+2}"); A(f"  v_add_u32 v{H+5}, v{H+5}, v{H+3}")
    A(f"  v_readfirstlane_b32 s20, v{H+4}")
    A("  s_cmp_ge_u32 s20, s44"); A("  s_cbranch_scc1 L_ret")
    A(f"  v_readfirstlane_b32 s21, v{H+5}")
    A(f"  s_mul_i32 s22, s22, {kap}"); A("  s_lshr_b32 s22, s22, 6")
    A("  s_lshl_b32 s21, s21, 5"); A("  s_sub_u32 s21, s21, s22"); A("  s_and_b32 s21, s21, 0xffff")
    A(f"  v_mov_b32 v{vE}, s21"); A(f"  v_mov_b32 v{H+8}, 0"); A(f"  v_mov_b32 v{H+9}, 0")
    A("  s_mov_b64 exec, 1")
    A(f"  buffer_store_dwordx2 v[{vE}:{vE+1}], v{vZero}, s[36:39], s59 offen")
    A("  s_mov_b64 exec, s[18:19]")
    A(f"  buffer_load_dwordx2 v[{H+8}:{H+9}], v{vT0}, s[36:39], s57 offen {bpol}")
    A("  s_mov_b64 exec, -1")
    A("  s_waitcnt vmcnt(0)")
    A(f"  v_readlane_b32 s22, v{H+8}, 32")
    A(f"  v_cmp_eq_u32 vcc, s46, v{H+9}")
    A(f"  v_subrev_u32 v{H+7}, s21, v{H+8}"); A(f"  v_bfe_i32 v{H+7}, v{H+7}, 0, 16")
    A(f"  v_cndmask_b32 v{H+7}, 0, v{H+7}, vcc")
    A("  s_cmp_eq_u32 vcc_lo, -1"); A("  s_cselect_b32 s31, 1, s31")
    for sh in (1, 2, 4, 8):
        A("  s_nop 1"); A(f"  v_add_u32_dpp v{H+7}, v{H+7}, v{H+7} row_ror:{sh} row_mask:0xf bank_mask:0xf")
    A("  s_bitcmp1_b32 vcc_hi, 0"); A("  s_cselect_b32 s22, s22, 0")
    A(f"  v_readlane_b32 s23, v{H+7}, 0"); A(f"  v_readlane_b32 s47, v{H+7}, 16")
    A("  s_add_u32 s23, s23, s47"); A("  s_ashr_i32 s23, s23, 5"); A("  s_add_u32 s23, s23, s21")
    A("  s_add_u32 s47, s23, s22")
    A("  s_and_b32 s47, s47, 0xffff"); A(f"  v_mov_b32 v{H+6}, s47")
    A(f"  ds_write_b32 v{vZero}, v{H+6} offset:{L_CTL+32}")
    A("  s_cmp_lg_u32 s4, 0"); A("  s_cbranch_scc1 L_paced")
    C("first workgroup of a group: now and then compare with the other groups")
    if lin: A(f"  s_min_i32 s48, s22, {lin}"); A(f"  s_max_i32 s48, s48, {-lin}")
    else: A(f"  s_ashr_i32 s48, s22, {dec}")
    A("  s_sub_u32 s48, s22, s48"); A("  s_mov_b64 exec, 1")
    if ep:
        C("all groups add their mean to a counter in d_debug at the same points of progress and read the sum a little later")
        A("  s_cmp_lt_u32 s20, s29"); A("  s_cbranch_scc1 L_ep1")
        if epp2: A(f"  s_cmp_ge_u32 s29, {ept}"); A(f"  s_cselect_b32 s47, {epp2}, {epp}"); A("  s_add_u32 s29, s29, s47")
        else: A(f"  s_add_u32 s29, s29, {epp}")
        if epend < 999: A(f"  s_cmp_gt_u32 s29, {epend}"); A("  s_cselect_b32 s29, 999, s29")
        A(f"  s_mov_b32 s81, {epw}"); A("  s_and_b32 s80, s23, 0xffff")
        if atom:
            A("  s_add_u32 s62, s62, 4"); A("  s_or_b32 s47, s80, 0x1000000"); A(f"  v_mov_b32 v{H+6}, s47")
            A(f"  buffer_atomic_add v{H+6}, v{vZero}, s[8:11], s62 offen")
        else:
            A("  s_add_u32 s51, s51, 0x10000"); A("  s_or_b32 s47, s80, s51"); A(f"  v_mov_b32 v{H+6}, s47")
            A(f"  buffer_store_dword v{H+6}, v{vZero}, s[36:39], s62 offen sc1")
        A("  s_branch L_dst")
        A("L_ep1:")
        A("  s_sub_u32 s81, s81, 1"); A("  s_cmp_lg_u32 s81, 0"); A("  s_cbranch_scc1 L_dst")
        if atom:
            A("  s_load_dword s64, s[40:41], s62 glc"); A("  s_waitcnt lgkmcnt(0)")
            A("  s_lshr_b32 s65, s64, 24"); A("  s_mul_i32 s65, s65, s80"); A("  s_sub_u32 s48, s64, s65"); A("  s_sext_i32_i16 s48, s48")
        else:
            A("  s_load_dwordx8 s[64:71], s[16:17], 0 glc")
            A("  s_mov_b32 s23, s80")
            A("  s_waitcnt lgkmcnt(0)")
    else:
        A("  s_add_u32 s29, s29, 1"); A(f"  s_cmp_lt_u32 s29, {lper}"); A("  s_cbranch_scc1 L_dst")
        A("  s_mov_b32 s29, 0")
        A("  s_load_dwordx8 s[64:71], s[16:17], 0 glc")
        A("  s_and_b32 s23, s23, 0xffff")
        A("  s_or_b32 s47, s23, s51"); A(f"  v_mov_b32 v{H+6}, s47")
        A("  s_waitcnt lgkmcnt(0)")
        A(f"  buffer_store_dword v{H+6}, v{vZero}, s[36:39], s62 offen sc1")
    if not atom: A("  s_mov_b32 s48, 0")
    for k in range(0 if atom else 8):
        A(f"  s_xor_b32 s{64+k}, s{64+k}, s51"); A(f"  s_cmp_lt_u32 s{64+k}, 0x10000"); A(f"  s_cselect_b32 s{64+k}, s{64+k}, s23")
        A(f"  s_sub_u32 s{64+k}, s{64+k}, s23"); A(f"  s_sext_i32_i16 s{64+k}, s{64+k}"); A(f"  s_add_u32 s48, s48, s{64+k}")
    if gain != 8: A(f"  s_mul_i32 s48, s48, {gain}"); A("  s_ashr_i32 s48, s48, 6")
    else: A("  s_ashr_i32 s48, s48, 3")
    A("L_dst:")
    A(f"  v_mov_b32 v{vE}, s48")
    A(f"  buffer_store_dwordx2 v[{vE}:{vE+1}], v{vZero}, s[36:39], s57 offen offset:256")
    A("  s_mov_b64 exec, -1")
    A("L_paced:")
    A(f"  s_mov_b32 s63, {nfl}"); A("  s_branch L_fl")
    A("L_drain:")
    C("entry: flush up to the limit, waiting for the waves")
    A("  s_mov_b32 s63, -1")
    A("L_fl:")
    C("head i (round 8+i, or 16+i from 8 on) is in LDS once every wave's progress is >= 8*round+5")
    A("  s_cmp_ge_u32 s30, 8"); A("  s_cselect_b32 s48, 16, 8"); A("  s_add_u32 s48, s48, s30"); A("  s_lshl_b32 s48, s48, 3"); A("  s_add_u32 s48, s48, 5")
    A("  s_cmp_lt_i32 s63, 0"); A("  s_cbranch_scc0 L_fl0")
    A("  s_cmp_ge_u32 s30, s32"); A("  s_cbranch_scc0 L_fl1")
    A("L_ret:")
    A("  s_setpc_b64 s[60:61]")
    A("L_fl0:")
    A("  s_cmp_ge_u32 s30, s32"); A("  s_cbranch_scc1 L_pace")
    A("  s_cmp_lt_u32 s20, s48"); A("  s_cbranch_scc1 L_pace")
    A("  s_sub_u32 s63, s63, 1"); A("  s_cbranch_scc1 L_pace")
    A("L_fl1:")
    A(f"  ds_read_b128 v[{H+28}:{H+31}], v{vMLa}")
    A("L_flw:")
    if flws: A(f"  s_sleep {flws}")
    A(f"  ds_read_b128 v[{H}:{H+3}], v{vZero} offset:{L_CTL+16}"); A("  s_waitcnt lgkmcnt(0)")
    A(f"  v_min3_u32 v{H+4}, v{H}, v{H+1}, v{H+2}"); A(f"  v_min_u32 v{H+4}, v{H+4}, v{H+3}"); A("  s_nop 0")
    A(f"  v_readfirstlane_b32 s20, v{H+4}")
    A("  s_cmp_lt_u32 s20, s48"); A("  s_cbranch_scc1 L_flw")
    for k in range(12): A(f"  ds_read2st64_b32 v[{H+2*k}:{H+2*k+1}], v{vDa} offset0:{2*k} offset1:{2*k+1}")
    for w in range(4):
        A(f"  s_waitcnt lgkmcnt({9-3*w})")
        for t in range(3): A(f"  v_add_f32 v{H+6*w+t}, v{H+6*w+t}, v{H+6*w+3+t}")
        for t in range(3):
            A(f"  v_mul_f32 v{H+32+t}, v{H+28}, v{H+t}" if w == 0 else f"  v_fmac_f32 v{H+32+t}, v{H+28+w}, v{H+6*w+t}")
    C("lane l: o[l], o[l+64], o[l+128] and one half of the tag")
    A(f"  v_cvt_pk_bf16_f32 v{H+32}, v{H+32}, v{H+33}"); A(f"  v_cvt_pk_bf16_f32 v{H+33}, v{H+34}, v{H+34}")
    A(f"  v_and_or_b32 v{H+33}, v{H+33}, s33, v{vMode}")
    pub(f"  buffer_store_dwordx2 v[{H+32}:{H+33}], v{vT0}, s[36:39], s58 offen", "L_po")
    A(f"  v_add_u32 v{vDa}, 6144, v{vDa}"); A(f"  v_add_u32 v{vMLa}, 16, v{vMLa}")
    A(f"  s_add_u32 s58, s58, {32*OS}"); A("  s_add_u32 s30, s30, 1"); A("  s_branch L_fl")
    A("L_ml:")
    C("subroutine: lane = head; max and sum over the four waves, wave weights; publishes the heads in mask s34")
    A(f"  v_and_b32 v{vT1}, 15, v{vLane}"); A(f"  v_lshlrev_b32 v{vT2}, 5, v{vT1}"); A(f"  v_lshlrev_b32 v{vT1}, 4, v{vT1}")
    A(f"  ds_read_b128 v[{H}:{H+3}], v{vT2} offset:{L_ML}"); A(f"  ds_read_b128 v[{H+4}:{H+7}], v{vT2} offset:{L_ML+16}")
    A("  s_lshl_b32 s47, s3, 5"); A("  s_add_u32 s47, s47, s4"); A("  s_lshl_b32 s47, s47, 8"); A(f"  s_add_u32 s47, s47, {W_ML}")
    A("  s_waitcnt lgkmcnt(0)")
    A(f"  v_max3_f32 v{H+8}, v{H}, v{H+2}, v{H+4}"); A(f"  v_max_f32 v{H+8}, v{H+8}, v{H+6}")
    for w in range(4): A(f"  v_sub_f32 v{H+12+w}, v{H+2*w}, v{H+8}")
    for w in range(4): A(f"  v_exp_f32 v{H+12+w}, v{H+12+w}")
    A(f"  v_mov_b32 v{H+10}, 0"); A(f"  v_mov_b32 v{H+11}, s46")
    A(f"  v_mul_f32 v{H+9}, v{H+12}, v{H+1}")
    for w in range(1, 4): A(f"  v_fmac_f32 v{H+9}, v{H+12+w}, v{H+2*w+1}")
    A("  s_mov_b32 exec_lo, s34"); A("  s_mov_b32 exec_hi, 0")
    A(f"  ds_write_b128 v{vT1}, v[{H+12}:{H+15}] offset:{L_E}")
    pub(f"  buffer_store_dwordx4 v[{H+8}:{H+11}], v{vT1}, s[36:39], s47 offen", "L_pm")
    A("  s_mov_b64 exec, -1")
    A("  s_setpc_b64 s[60:61]")
    A("L_wt:")
    C("subroutine: lane = (batch, producer); softmax weights exp(M_j - M)/L of the partial o of heads s34+hh, s34+4+hh")
    A(f"  v_and_b32 v{vT1}, 31, v{vLane}"); A(f"  v_lshlrev_b32 v{vT1}, 8, v{vT1}")
    A(f"  v_and_b32 v{vT2}, 32, v{vLane}"); A(f"  v_lshl_add_u32 v{vT1}, v{vT2}, 1, v{vT1}      ; producer*256 + b*64")
    A("  s_lshr_b32 s48, s4, 2"); A("  s_and_b32 s48, s48, 3"); A("  s_add_u32 s47, s34, s48")
    A("  s_lshl_b32 s47, s47, 4"); A("  s_lshl_b32 s48, s3, 13"); A("  s_add_u32 s47, s47, s48"); A(f"  s_add_u32 s47, s47, {W_ML}")
    A(f"  s_mov_b32 s50, {SPIN}")
    A("L_wg:")
    A(f"  buffer_load_dwordx4 v[{H}:{H+3}], v{vT1}, s[36:39], s47 offen {gpol}"); A("  s_waitcnt vmcnt(0)")
    A(f"  v_cmp_ne_u32 vcc, s46, v{H+3}")
    A("  s_sub_u32 s50, s50, 1"); A("  s_cbranch_scc1 L_wgo")
    A("  s_cmp_eq_u64 vcc, 0"); A("  s_cbranch_scc1 L_wgo")
    A("  s_sleep 16"); A("  s_branch L_wg")
    A("L_wgo:")
    def red32(op, t, u):
        for sh in (1, 2, 4, 8):
            A("  s_nop 1"); A(f"  {op}_dpp v{t}, v{t}, v{t} row_ror:{sh} row_mask:0xf bank_mask:0xf")
        A(f"  v_mov_b32 v{u}, v{t}"); A("  s_nop 1"); A(f"  v_permlane16_swap_b32 v{t}, v{u}"); A("  s_nop 0"); A(f"  {op} v{t}, v{t}, v{u}")
    A(f"  v_mov_b32 v{H+4}, v{H}")
    red32("v_max_f32", H+4, H+5)
    A(f"  v_sub_f32 v{H}, v{H}, v{H+4}"); A(f"  v_exp_f32 v{H}, v{H}"); A("  s_nop 0")
    A(f"  v_mul_f32 v{H+4}, v{H}, v{H+1}")
    red32("v_add_f32", H+4, H+5)
    A(f"  v_rcp_f32 v{H+4}, v{H+4}")
    A(f"  v_and_b32 v{vT1}, 7, v{vLane}"); A(f"  v_lshlrev_b32 v{vT1}, 4, v{vT1}"); A(f"  v_lshl_add_u32 v{vT1}, v{vT2}, 2, v{vT1}")
    A(f"  v_and_b32 v{vT2}, 24, v{vLane}"); A(f"  v_lshrrev_b32 v{vT2}, 1, v{vT2}"); A(f"  v_add_u32 v{vT1}, v{vT1}, v{vT2}")
    A(f"  v_mul_f32 v{H}, v{H}, v{H+4}")
    A(f"  ds_write_b32 v{vT1}, v{H} offset:{L_W}")
    A("  s_setpc_b64 s[60:61]")
    A("L_merge:")
    C("batch row s34: first call keeps its sums, second call folds both and leaves them in LDS")
    A(f"  v_lshrrev_b32 v{vT1}, 3, v{vLane}"); A(f"  v_and_b32 v{vT2}, 7, v{vLane}")
    A(f"  v_mul_u32_u24 v{vPa}, {OS}, v{vT1}"); A(f"  v_lshl_add_u32 v{vPa}, v{vT2}, 4, v{vPa}")
    A("  s_lshr_b32 s47, s4, 2"); A("  s_and_b32 s47, s47, 3"); A("  s_lshl_b32 s48, s34, 2"); A("  s_add_u32 s47, s47, s48")
    if not share: A("  s_lshr_b32 s48, s4, 4"); A("  s_lshl_b32 s48, s48, 3"); A("  s_add_u32 s47, s47, s48")
    A(f"  s_mul_i32 s47, s47, {32*OS}"); A(f"  s_mul_i32 s48, s3, {512*OS}"); A("  s_add_u32 s47, s47, s48")
    A("  s_and_b32 s48, s4, 3"); A("  s_lshl_b32 s48, s48, 7"); A("  s_add_u32 s47, s47, s48"); A(f"  s_add_u32 s64, s47, {W_O}")
    for k in range(1, 4): A(f"  s_add_u32 s{64+k}, s64, {k*8*OS}")
    A("  s_lshl_b32 s48, s34, 7"); A(f"  v_lshl_add_u32 v{vT1}, v{vT1}, 4, s48")
    A(f"  ds_read_b128 v[{vS}:{vS+3}], v{vT1} offset:{L_W}")
    A("  s_mov_b32 s22, 0x07060302"); A("  s_mov_b32 s23, 0xffff0000")
    A(f"  v_bfe_u32 v{vT1}, v{vLane}, 4, 1"); A(f"  v_lshl_add_u32 v{vT1}, v{vT2}, 1, v{vT1}")
    A(f"  v_and_b32 v{vT2}, 32, v{vLane}"); A(f"  v_lshlrev_b32 v{vT1}, 4, v{vT1}")
    A(f"  v_lshl_add_u32 v{vT1}, v{vT2}, 3, v{vT1}      ; (16*b + granule)*16")
    A(f"  s_mov_b32 s50, {SPIN}")
    A("L_gather:")
    for k in range(4): A(f"  buffer_load_dwordx4 v[{H+4*k}:{H+4*k+3}], v{vPa}, s[36:39], s{64+k} offen {gpol}")
    A("  s_mov_b64 s[48:49], 0")
    for k in range(4):
        A(f"  s_waitcnt vmcnt({3-k})")
        A(f"  v_perm_b32 v{vKV}, v{H+4*k+3}, v{H+4*k+1}, s22"); A(f"  v_cmp_ne_u32 vcc, s45, v{vKV}"); A("  s_or_b64 s[48:49], s[48:49], vcc")
    A("  s_sub_u32 s50, s50, 1"); A("  s_cbranch_scc1 L_ggo")
    A("  s_cmp_eq_u64 s[48:49], 0"); A("  s_cbranch_scc0 L_gather")
    A("L_ggo:")
    A("  s_waitcnt lgkmcnt(0)")
    M = H + 32
    Z = vB
    for k in range(4):
        for par in range(2):
            e0, e1 = H + 4*k + 2*par, H + 4*k + 2*par + 1
            A(f"  v_lshlrev_b32 v{vKV}, 16, v{e0}"); A(f"  v_and_b32 v{e0}, s23, v{e0}"); A(f"  v_lshlrev_b32 v{e1}, 16, v{e1}")
            for t, r in enumerate((vKV, e0, e1)):
                A(f"  {'v_mul_f32' if k == 0 else 'v_fmac_f32'} v{M+3*par+t}, v{vS+k}, v{r}")
    A("  s_cmp_eq_u32 s34, 0"); A("  s_cbranch_scc0 L_fold")
    for i in range(6): A(f"  v_mov_b32 v{Z+i}, v{M+i}")
    A("  s_setpc_b64 s[60:61]")
    A("L_fold:")
    A(";HOP 3")
    for i in range(6): A(f"  v_permlane32_swap_b32 v{Z+i}, v{M+i}")
    for i in range(6): A(f"  v_add_f32 v{Z+i}, v{Z+i}, v{M+i}")
    A("  s_nop 0")
    for i in range(3): A(f"  v_permlane16_swap_b32 v{Z+i}, v{Z+3+i}")
    A("  s_nop 0")
    for i in range(3): A(f"  v_add_f32 v{Z+i}, v{Z+i}, v{Z+3+i}")
    for i in range(3): A(f"  v_add_f32_dpp v{Z+i}, v{Z+i}, v{Z+i} row_ror:8 row_mask:0xf bank_mask:0xf")
    for i in range(3): A(f"  v_cvt_pk_bf16_f32 v{Z+i}, v{Z+i}, v{Z+i}")
    A(f"  v_mov_b32 v{Z+3}, s46")
    A(f"  ds_write_b128 v{vT1}, v[{Z}:{Z+3}] offset:{L_C}")
    A("  s_setpc_b64 s[60:61]")
    A("L_final:")
    stamp("h", "final0"); stamp("h", "ygot")
    if stamps: A("  s_waitcnt lgkmcnt(0)")
    A(f"  s_cmp_ge_u32 s2, 160"); A(f"  s_cbranch_scc1 {'L_hst' if stamps else 'L_end'}")
    A("  s_mov_b32 s52, 0x0c0c0400"); A("  s_mov_b32 s53, 0x04000c0c"); A("  s_mov_b32 s54, 0xffffff00")
    mk = [16, 18, 20, 22, 64, 66, 68, 70]
    for k in range(8): A(f"  s_mov_b64 s[{mk[k]}:{mk[k]+1}], -1")
    A(f"  s_mov_b32 s50, {SPIN}")
    C("poll back-off: the other workgroups' records take about this long to arrive")
    if fslp1: A("  s_cmp_ge_u32 s4, 16"); A("  s_cbranch_scc1 L_fs"); A(f"  s_sleep {fslp1}"); A("L_fs:")
    if fslp2: A("  s_bitcmp0_b32 s2, 1"); A("  s_cbranch_scc1 L_fs2"); A(f"  s_sleep {fslp2}"); A("L_fs2:")
    if fslp0: A(f"  s_sleep {fslp0}")
    def yround():
        for k in range(8):
            A(f"  s_or_b64 exec, s[{mk[k]}:{mk[k]+1}], 1")
            A(f"  buffer_load_dwordx4 v[{H+4*k}:{H+4*k+3}], v{vCa}, s[36:39], s{72+k} offen {ylp}")
        A("  s_mov_b64 exec, -1")
    C("poll the 128 partial outputs; lanes that already hold their record drop out")
    for _ in range(pp - 1):
        yround(); A(f"  s_sleep {pstag}")
    A("L_fin:")
    yround()
    A(f"  s_waitcnt vmcnt({8*(pp-1)})")
    for k in range(8):
        A(f"  v_perm_b32 v{vS}, v{H+4*k+1}, v{H+4*k}, s52"); A(f"  v_perm_b32 v{vS+1}, v{H+4*k+3}, v{H+4*k+2}, s53")
        A(f"  v_or_b32 v{vS}, v{vS}, v{vS+1}"); A(f"  v_cmp_ne_u32 s[{mk[k]}:{mk[k]+1}], s46, v{vS}")
    A(f"  s_or_b64 s[48:49], s[{mk[0]}:{mk[0]+1}], s[{mk[1]}:{mk[1]+1}]")
    for k in range(2, 8): A(f"  s_or_b64 s[48:49], s[48:49], s[{mk[k]}:{mk[k]+1}]")
    A("  s_sub_u32 s50, s50, 1"); A("  s_cbranch_scc1 L_fgo")
    A("  s_cmp_eq_u64 s[48:49], 0"); A("  s_cbranch_scc0 L_fin")
    A("L_fgo:")
    stamp("h", "ygot")
    Y = H + 32
    for i in range(32): A(f"  v_and_b32 v{Y+i}, s54, v{H+i}")
    for st in (16, 8, 4):
        for i in range(0, st, 2): A(f"  v_pk_add_f32 v[{Y+i}:{Y+i+1}], v[{Y+i}:{Y+i+1}], v[{Y+st+i}:{Y+st+i+1}]")
    C("fold the four columns onto the four rows of lanes: row 0..3 = column 0,2,1,3")
    A("  s_nop 1")
    A(f"  v_permlane32_swap_b32 v{Y}, v{Y+1}"); A(f"  v_permlane32_swap_b32 v{Y+2}, v{Y+3}"); A("  s_nop 0")
    A(f"  v_add_f32 v{Y}, v{Y}, v{Y+1}"); A(f"  v_add_f32 v{Y+2}, v{Y+2}, v{Y+3}"); A("  s_nop 1")
    A(f"  v_permlane16_swap_b32 v{Y}, v{Y+2}"); A("  s_nop 0")
    A(f"  v_add_f32 v{Y}, v{Y}, v{Y+2}")
    for sh in (4, 8):
        A("  s_nop 1"); A(f"  v_add_f32_dpp v{Y}, v{Y}, v{Y} row_ror:{sh} row_mask:0xf bank_mask:0xf")
    A(f"  v_cvt_pk_bf16_f32 v{Y}, v{Y}, v{Y}")
    A("  s_mov_b32 exec_lo, 0x000f000f"); A("  s_mov_b32 exec_hi, 0x000f000f")
    A(f"  buffer_store_short v{Y}, v{vProg}, s[12:15], s35 offen")
    C("every workgroup is done with d_debug by now: leave it as it was found")
    A("  s_cmp_lg_u32 s2, 0"); A("  s_cbranch_scc1 L_nz")
    A("  s_mov_b64 exec, -1" if atom else "  s_mov_b64 exec, 1")
    A(f"  buffer_store_dword v{vZero}, v{vQa if atom else vZero}, s[8:11], 0 offen sc1")
    A(";HOP 9")
    A("L_nz:")
    if stamps:
        A("L_hst:")
        A("  s_waitcnt vmcnt(0)")
        stamp("h", "hend")
        dump_stamps("h", 1)
        sn = names["s"]; hn = names["h"]
        L.insert(1, "; stamps: start id " + " ".join((sn[1:] + ["id"] * 6)[:6]) + " " + " ".join((hn + ["id"] * 8)[:7]) + " last")
    A("  s_endpgm")
    import re
    def isize(l):
        op = l.split()[0]
        if op == ";": return 0
        lit = any(not (-16 <= int(t, 0) <= 64) for t in re.findall(r"(?<![\w\[:])(-?(?:0x[0-9a-f]+|\d+))(?![\w\]:])", " ".join(l.split(";")[0].split()[1:])))
        if op in ("s_waitcnt", "s_nop", "s_barrier", "s_sleep", "s_branch", "s_endpgm") or op.startswith("s_cbranch") or op.startswith("s_cmpk") or op.startswith("s_addk"): return 4
        if op.startswith("s_load") or op.startswith("s_mem"): return 8
        if op.startswith("s_"): return 8 if lit else 4
        if op in ("v_and_b32", "v_add_u32", "v_readfirstlane_b32", "v_mov_b32"): return 8 if lit else 4
        return 8
    out = []; on = False; acc = 0; cnt = 0
    for l in L:
        if l.startswith(";HOP"):
            was = on; on = int(l.split()[1]) <= warm
            if on and not was: acc = hopb
            continue
        if on and l.startswith("  "):
            if acc >= hopb:
                out.append(f"L_hop_{cnt}:"); out.append(f"  s_cbranch_execz L_hop_{cnt+1}"); cnt += 1; acc = 4
            acc += isize(l)
        out.append(l)
    if warm: out.append(f"L_hop_{cnt}:"); out.append("  s_mov_b64 exec, -1"); out.append("  s_branch L_back")
    L[:] = out
    A('.section .rodata,"a"')
    A(".p2align 6"); A(f".amdhsa_kernel {KN}")
    A(f"  .amdhsa_next_free_vgpr {ACC + NA}"); A(f"  .amdhsa_next_free_sgpr 102"); A(f"  .amdhsa_accum_offset {ACC}")
    A("  .amdhsa_group_segment_fixed_size 0"); A("  .amdhsa_kernarg_size 104"); A("  .amdhsa_user_sgpr_count 2")
    A("  .amdhsa_user_sgpr_kernarg_segment_ptr 1"); A("  .amdhsa_system_sgpr_workgroup_id_x 1")
    A(".end_amdhsa_kernel")
    open(name, "w").write("\n".join(L) + "\n")
    return name
if __name__ == "__main__":
    if len(sys.argv) > 2:
        hdr = open("concat_heads__gqa_block_cached__mha_block_cached__decode.s.ref").read().split("; Override launch")[0]
        print(gen(name=sys.argv[2], header=hdr, **eval(sys.argv[1])))
    else:
        print(" ".join(gen(**kw) for kw in eval(sys.argv[1])))
```

```python
import sys, math, struct
KN = "concat_heads__gqa_block_cached__mha_block_cached__decode_kernel"
WS = 836768768
KVBYTES = 201326592
WBYTES = 7864320
def f32hex(x): return "0x%08x" % struct.unpack("<I", struct.pack("<f", x))[0]

DOC = """;
; ---------------------------------------------------------------------------------------------------------
; ---------------------------------------------------------------------------------------------------------"""

def gen(name="f.s", header="", stamps=0, curve=False,
        lev=(7, 300, 120, 15, -200), kap=205, slp=24, lper=8, dec=2, lin=0, gain=8, prio=0, flws=0, kd=1, gpol="sc1", bpol="sc1", warm=2, hopb=120, tlb=1, order=None, srot=0, sxor=False, jrot=0, hwt=3, dl2=None, b4=2, zpol="", opol="", rmap=1, drift=0, dz=0, sstep=3, ep=True, ep0=8, epp=40, epw=2, ept=999, epp2=0, epend=215, atom=True,
        wqd=7, d0=5, dn=4, dl=5, ej=28, nslp0=0, nslp=8, nloc=24,
        t_q=16, t_a=165, t_c=184, t_ml=193, t_w=198, t_f=244, nfl=2, share=True, gj=16, hw=12, t_g=229,
        fslp0=0, fslp1=0, fslp2=0, ysp="sc1", ylp="sc1", pp=1, pstag=8, SPIN=200000, YS=2688, OS=640):
    L = []; A = L.append
    def C(txt): A("  ; " + txt)
    L_CTL = 0
    L_W = 64
    L_C = L_W + 256
    L_E = L_C + 512
    L_ML = L_E + 256
    L_Q = L_ML + 512
    L_P = L_Q + 17 * 384
    PROW = 272; PWAVE = 8 * PROW
    L_Y = L_P + 4 * PWAVE + 64
    L_O = L_Y + 4096
    LDS = L_O + 16 * 6144
    assert L_Y % 16 == 0 and L_O % 16 == 0 and L_Q % 16 == 0 and L_P % 16 == 0
    W_O = 2 << 20
    W_Q = 6 << 20
    W_ML = W_Q + (128 << 10)
    W_B = W_ML + (128 << 10)
    W_G = W_B + (128 << 10)
    QLOC = 512 << 10
    GEN = 0x5aa5c33c
    vLane, vKV, vW, vZero = 1, 2, 3, 4
    vT0, vT1, vT2, vT3 = 5, 6, 7, 8
    vPa, vQa, vDa, vMLa, vCa, vProg, vMode = 9, 10, 11, 12, 13, 14, 15
    vM = 16; vB = 20; vQ = 28; vS = 40; vD = 48; vRing = 60
    vX = vQ
    NV = vRing + 96
    if curve: vCv = NV; NV += 2
    ACC = (NV + 3) // 4 * 4
    NA = 80
    H = vRing
    def ring(s, t): return vRing + 12 * s + 4 * t
    names = {"s": [], "h": []}
    sets = {1: ("start", "preB1", "ring", "B2", "vend", "oready", "end", "nonce", "qtab", "flush0", "flushed", "ygot", "hend"),
            2: ("start", "vend", "woiss", "oready", "ystore", "end", "flush0", "flushed", "hready", "final0", "ygot", "hend")}
    def stamp(who, nm, again=False):
        if nm not in sets.get(stamps, ()): return
        if nm not in names[who]: names[who].append(nm)
        k = names[who].index(nm); assert k < 8
        A(f"  s_memrealtime s[{84+2*k}:{85+2*k}]")
    def dump_stamps(who, rec):
        n = len(names[who])
        A("  s_getreg_b32 s100, hwreg(HW_REG_XCC_ID)"); A("  s_getreg_b32 s101, hwreg(HW_REG_HW_ID)")
        A("  s_waitcnt vmcnt(0) lgkmcnt(0)")
        A(f"  s_lshl_b32 s47, s2, 7"); A(f"  s_add_u32 s47, s47, {WS - (1<<20) + 64*rec}")
        if who == "s": regs = [84, 85, 100, 101] + sum([[84+2*min(k, n-1), 85+2*min(k, n-1)] for k in range(1, 7)], [])
        else: regs = sum([[84+2*min(k, n-1), 85+2*min(k, n-1)] for k in range(8)], [])
        A("  s_mov_b64 exec, 1")
        for i in range(16): A(f"  v_mov_b32 v{vRing+i}, s{regs[i]}")
        for i in range(4): A(f"  buffer_store_dwordx4 v[{vRing+4*i}:{vRing+4*i+3}], v{vZero}, s[36:39], s47 offen offset:{16*i}")

    A(header + f"; @launch grid=(256,1,1) block=(320,1,1) lds={LDS}")
    A(DOC)
    A('.amdgcn_target "amdgcn-amd-amdhsa--gfx950"')
    A(".text"); A(f".globl {KN}"); A(".p2align 8"); A(f".type {KN},@function"); A(f"{KN}:")
    A("  s_cmp_ge_u32 s2, 256"); A("  s_cbranch_scc1 L_end")
    A("  s_load_dwordx16 s[64:79], s[0:1], 0")
    A("  s_load_dwordx4 s[80:83], s[0:1], 64")
    A("  s_load_dwordx4 s[40:43], s[0:1], 88")
    if curve: A("  s_memrealtime s[96:97]"); A(f"  v_mov_b32 v{vCv}, 0"); A(f"  v_mov_b32 v{vCv+1}, 0")
    stamp("s", "start"); names["h"] = ["hstart"] if stamps else []
    A(f"  v_lshrrev_b32 v{vT0}, 6, v0"); A(f"  v_and_b32 v{vLane}, 63, v0")
    A(f"  v_readfirstlane_b32 s5, v{vT0}     ; wave")
    A(f"  v_lshrrev_b32 v{vT1}, 3, v{vLane}    ; l/8"); A(f"  v_and_b32 v{vT2}, 7, v{vLane}        ; l%8")
    A("  s_and_b32 s3, s2, 7             ; x"); A("  s_lshr_b32 s4, s2, 3            ; j")
    A("  s_cmp_eq_u32 s5, 4"); A("  s_cbranch_scc1 L_tag")
    C("q item of workgroup j < 24: problem (j>>2)&1, head 8*(j&3)+x, 64-column block j>>3; rows 160*w + 20*(l/8) + i")
    A(f"  v_mul_u32_u24 v{vW}, {20*12288}, v{vT1}"); A(f"  v_lshl_add_u32 v{vW}, v{vT2}, 4, v{vW}")
    A("  s_and_b32 s28, s2, 31"); A("  s_mul_i32 s28, s28, 3"); A("  s_lshr_b32 s47, s2, 6"); A("  s_add_u32 s28, s28, s47"); A("  s_lshl_b32 s28, s28, 7")
    A(f"  s_mul_i32 s47, s5, {160*12288}"); A("  s_add_u32 s28, s28, s47")
    A(f"  s_mov_b32 s26, {WBYTES}"); A("  s_mov_b32 s27, 0x20000")
    A("  s_bitcmp1_b32 s2, 5")
    A("  s_waitcnt lgkmcnt(0)")
    A("  s_cselect_b32 s24, s80, s70"); A("  s_cselect_b32 s25, s81, s71")
    A("  s_cselect_b32 s32, s74, s64"); A("  s_cselect_b32 s33, s75, s65")
    order = order or [(k * sstep) % 8 for k in range(8)]
    tab = bool(srot or jrot); assert order[0] == 0 and not (tab and stamps)
    def kv_load(n):
        s, t = divmod(n, 3)
        A(f"  buffer_load_dwordx4 v[{ring(s,t)}:{ring(s,t)+3}], v{vKV}, s[8:11], s12 offen offset:{128*t} nt")
        if t == 2 and s < 7:
            if tab: A(f"  s_add_u32 s12, s22, s{85+s}")
            else:
                d = (order[s+1] - order[s]) * 393216
                A(f"  s_add_u32 s12, s12, {d}" if d > 0 else f"  s_sub_u32 s12, s12, {-d}")
    def kvsetup():
        A(f"  v_mul_u32_u24 v{vKV}, {384*kd}, v{vT1}"); A(f"  v_lshl_add_u32 v{vKV}, v{vT2}, 4, v{vKV}")
        A("  s_lshl_b32 s13, s4, 2"); A("  s_add_u32 s13, s13, s5")
        if kd == 1: A("  s_mul_i32 s13, s13, 3072")
        else:
            A(f"  s_and_b32 s47, s13, {kd-1}"); A("  s_sub_u32 s13, s13, s47"); A("  s_lshl_b32 s13, s13, 3"); A("  s_add_u32 s13, s13, s47"); A("  s_mul_i32 s13, s13, 384")
        A("  s_mul_i32 s47, s3, 3145728"); A("  s_add_u32 s13, s13, s47"); A("  s_mov_b32 s12, s13")
        if tab:
            A(f"  s_mul_i32 s47, s3, {srot}")
            if jrot: A(f"  s_lshr_b32 s48, s4, {jrot[0]}"); A(f"  s_mul_i32 s48, s48, {jrot[1]}"); A("  s_add_u32 s47, s47, s48")
            for k in range(8):
                A(f"  {'s_xor_b32' if sxor else 's_add_u32'} s48, s47, {order[k]}"); A("  s_and_b32 s48, s48, 7"); A(f"  s_mul_i32 s{84+k}, s48, 393216")
            A("  s_mov_b32 s22, s13"); A("  s_add_u32 s12, s22, s84")
        A("  s_mov_b32 s8, s66"); A("  s_mov_b32 s9, s67"); A(f"  s_mov_b32 s10, {KVBYTES}"); A("  s_mov_b32 s11, 0x20000")
    def masks():
        C("masks that put a bf16 on the diagonal of the first MFMA operand")
        A(f"  v_and_b32 v{vT0}, 1, v{vT2}"); A(f"  v_lshlrev_b32 v{vT0}, 4, v{vT0}")
        A(f"  v_mov_b32 v{vT3}, 0xffff"); A(f"  v_lshlrev_b32 v{vT0}, v{vT0}, v{vT3}")
        A(f"  v_lshrrev_b32 v{vT3}, 1, v{vT2}")
        for q in range(4):
            A(f"  v_cmp_eq_u32 vcc, {q}, v{vT3}"); A("  s_nop 1"); A(f"  v_cndmask_b32 v{vM+q}, 0, v{vT0}, vcc")
    def consts():
        A(f"  v_mov_b32 v{vZero}, 0")
        masks()
        A("  s_mov_b32 s54, 0x00ff00ff"); A("  s_mov_b32 s55, 0xff00ff00")
    wosetup = ["  s_cmp_ge_u32 s4, 16", "  s_cselect_b32 s24, s82, s72", "  s_cselect_b32 s25, s83, s73",
               "  s_lshr_b32 s47, s4, 2", "  s_and_b32 s47, s47, 3", "  s_lshl_b32 s47, s47, 3", "  s_add_u32 s47, s47, s3", "  s_mul_i32 s47, s47, 12",
               "  s_and_b32 s48, s4, 3", "  s_add_u32 s47, s47, s48", f"  s_mul_i32 s47, s47, {16*1280}", "  s_lshl_b32 s48, s5, 8", "  s_add_u32 s28, s47, s48",
               f"  v_lshrrev_b32 v{vW}, 4, v{vLane}", f"  v_mul_u32_u24 v{vW}, 1280, v{vW}", f"  v_and_b32 v{vT3}, 15, v{vLane}", f"  v_lshl_add_u32 v{vW}, v{vT3}, 4, v{vW}"]
    def wo_load(i, wait):
        if wait is not None: A(f"  s_waitcnt vmcnt({wait})")
        A(f"  buffer_load_dwordx4 a[{4*i}:{4*i+3}], v{vW}, s[24:27], s28 offen nt")
        if i < 11: A("  s_addk_i32 s28, 5120" if i % 4 < 3 else f"  s_add_u32 s28, s28, {81920 - 3*5120}")
    if prio == 3: A("  s_setprio 3")
    A("  s_cmp_ge_u32 s4, 24"); A("  s_cbranch_scc1 L_noq")
    def wq_load(i):
        A(f"  buffer_load_dwordx4 a[{4*i}:{4*i+3}], v{vW}, s[24:27], s28 offen nt")
        if i < 19: A("  s_addk_i32 s28, 12288")
    nq = wqd; assert 2 * nq <= 20
    for i in range(nq): wq_load(i)
    A("  s_branch L_xld")
    A("L_tag:")
    C("helper wave: workgroup 0 publishes the launch tag")
    A("  s_memrealtime s[48:49]")
    A(f"  v_mov_b32 v{vZero}, 0")
    A("  s_mov_b32 s10, 256"); A("  s_mov_b32 s11, 0x20000")
    A("  s_waitcnt lgkmcnt(0)")
    A("  s_mov_b32 s8, s40"); A("  s_mov_b32 s9, s41")
    A("  s_or_b32 s46, s48, 1"); A("  s_mul_i32 s46, s46, 0x9e3779b1")
    A("  s_cmp_lg_u32 s2, 0"); A("  s_cbranch_scc1 L_helper")
    A(f"  v_mov_b32 v{vT0}, s46"); A("  s_mov_b64 exec, 1")
    A(f"  buffer_store_dword v{vT0}, v{vZero}, s[8:11], 0 offen sc1")
    A("  s_mov_b64 exec, -1"); A("  s_branch L_helper")
    A("L_xld:")
    A(f"  v_mul_u32_u24 v{vT0}, 40, v{vT1}"); A("  s_mul_i32 s29, s5, 320")
    A("  s_mov_b32 s34, 2560"); A("  s_mov_b32 s35, 0x20000")
    for b in range(2):
        A(f"  buffer_load_dwordx4 v[{vX+10*b}:{vX+10*b+3}], v{vT0}, s[32:35], s29 offen offset:{1280*b}")
        A(f"  buffer_load_dwordx4 v[{vX+10*b+4}:{vX+10*b+7}], v{vT0}, s[32:35], s29 offen offset:{1280*b+16}")
        A(f"  buffer_load_dwordx2 v[{vX+10*b+8}:{vX+10*b+9}], v{vT0}, s[32:35], s29 offen offset:{1280*b+32}")
    consts(); kvsetup()
    A("  s_mov_b32 s52, 0x01000100"); A("  s_mov_b32 s53, 0x03020302")
    def qstep(i):
        for b in range(2):
            A(f"  v_perm_b32 v{vT0}, v{vX+10*b+i//2}, v{vX+10*b+i//2}, s{52+(i&1)}")
            for q in range(4): A(f"  v_and_b32 v{vB+4*b+q}, v{vT0}, v{vM+q}")
        for b in range(2):
            if b == 1: A("  s_nop 0")
            c = f"v[{vD+4*b}:{vD+4*b+3}]" if i else "0"
            A(f"  v_mfma_f32_16x16x32_bf16 v[{vD+4*b}:{vD+4*b+3}], v[{vB+4*b}:{vB+4*b+3}], a[{4*i}:{4*i+3}], {c}")
    C("q projection for both batch rows; the first K tiles follow the wq rows")
    nk = 0; done = 0
    for i in range(20):
        A(f"  s_waitcnt vmcnt({nq - 1 - i + nk + (6 if i < wqd else 0)})")
        if nq < 20: wq_load(nq); nq += 1
        else:
            while (19 - i + nk) < d0: kv_load(nk); nk += 1
        if i >= wqd:
            for _ in range(2):
                if done <= i: qstep(done); done += 1
    assert done == 20 and nk == d0
    A(f"  v_lshrrev_b32 v{vT0}, 5, v{vLane}"); A(f"  v_lshlrev_b32 v{vT0}, 9, v{vT0}")
    A(f"  v_lshl_add_u32 v{vT0}, v{vT2}, 5, v{vT0}")
    A(f"  v_and_b32 v{vT3}, 16, v{vLane}"); A(f"  v_add_u32 v{vT0}, v{vT0}, v{vT3}")
    A("  s_lshl_b32 s47, s5, 10"); A(f"  v_add_u32 v{vT0}, s47, v{vT0}")
    A("  s_nop 0")
    A("  s_mov_b64 exec, s[54:55]")
    for b in range(2): A(f"  ds_write_b128 v{vT0}, v[{vD+4*b}:{vD+4*b+3}] offset:{L_Y + 256*b}")
    A("  s_mov_b64 exec, -1")
    stamp("s", "preB1")
    A("  s_waitcnt lgkmcnt(0)"); A("  s_barrier                       ; B1: q partials")
    A("  s_branch L_qdone")
    A("L_noq:")
    kvsetup()
    for n in range(dn): kv_load(n)
    consts()
    for n in range(dn, d0):
        A(f"  s_waitcnt vmcnt({dn-1})"); kv_load(n)
    stamp("s", "preB1")
    A("L_qdone:")
    C("fill the ring with the first head while q is exchanged")
    rest = []
    R = rest.append
    R([f"  s_mul_i32 s47, s5, {PWAVE}", f"  s_add_u32 s47, s47, {L_P}", f"  v_mul_u32_u24 v{vPa}, {PROW}, v{vT1}", f"  v_add_u32 v{vPa}, s47, v{vPa}"])
    R([f"  v_lshlrev_b32 v{vQa}, 4, v{vT2}", f"  s_lshl_b32 s47, s5, 3", f"  v_mov_b32 v{vMLa}, s47", f"  s_lshl_b32 s47, s5, 2", f"  v_mov_b32 v{vCa}, s47", f"  v_mov_b32 v{vProg}, 0"])
    R([f"  v_lshrrev_b32 v{vDa}, 5, v{vLane}", f"  v_mul_u32_u24 v{vDa}, 768, v{vDa}", f"  v_lshl_add_u32 v{vDa}, v{vT2}, 5, v{vDa}",
       f"  v_and_b32 v{vT3}, 16, v{vLane}", f"  v_add_u32 v{vDa}, v{vDa}, v{vT3}", "  s_mul_i32 s47, s5, 1536", f"  s_add_u32 s47, s47, {L_O}", f"  v_add_u32 v{vDa}, s47, v{vDa}"])
    R(["  s_mov_b32 s16, s68", "  s_mov_b32 s17, s69", "  s_mov_b32 s18, s76", "  s_mov_b32 s19, s77", "  s_mov_b32 s20, s78", "  s_mov_b32 s21, s79"])
    R(wosetup)
    R(["  s_mov_b32 s36, s42", "  s_mov_b32 s37, s43", f"  s_mov_b32 s38, {WS}", "  s_mov_b32 s39, 0x20000", "  s_mov_b32 s14, 0", "  s_mov_b32 s15, 0x20000"])
    R([f"  s_mov_b32 s58, {f32hex(192 ** -0.5 * math.log2(math.e))}      ; log2(e)/sqrt(192)", "  s_mov_b32 s44, 0", f"  s_mov_b32 s45, {lev[-2] + 1}", "  s_mov_b32 s30, 0"])
    A("  s_cmp_ge_u32 s4, 24"); A("  s_cselect_b64 vcc, -1, 0")
    A(f"  s_cmp_ge_u32 s4, {ej}"); A("  s_cselect_b64 vcc, 0, vcc")
    for n in range(d0, 24):
        A(f"  s_waitcnt vmcnt({d0-1})")
        A(f"  s_cbranch_vccz L_rf{n}"); A(f"  s_waitcnt vmcnt({dn-1})"); A(f"L_rf{n}:")
        kv_load(n)
        if rest:
            for x in rest.pop(0): A(x)
    assert not rest
    if ej < 32:
        C("workgroups that wait for the very last partial o fetch their wo rows now")
        A(f"  s_cmp_lt_u32 s4, {ej}"); A("  s_cbranch_scc1 L_noearly")
        for i in range(12): wo_load(i, d0 - 1)
        A("L_noearly:")
    stamp("s", "ring")
    A("  s_barrier")
    for t in range(3): A(f"  ds_read_b128 v[{vQ+4*t}:{vQ+4*t+3}], v{vQa} offset:{L_Q + 128*t}")
    stamp("s", "B2")
    A("  s_waitcnt lgkmcnt(0)")
    def throttle(tag):
        A(f"  s_waitcnt vmcnt({lev[0]})")
        for k, th in enumerate(lev[1:]):
            A(f"  s_cmpk_gt_i32 s45, {th & 0xffff:#x}"); A(f"  s_cbranch_scc1 {tag}"); A(f"  s_waitcnt vmcnt({lev[0]-1-k})")
        A(f"{tag}:")
    def switch(tag):
        C("round it consumes head it and fetches head it+1; every 8 rounds the next buffer")
        A("  s_add_u32 s47, s44, 1"); A("  s_and_b32 s47, s47, 7"); A(f"  s_cbranch_scc1 {tag}")
        A("  s_mov_b32 s8, s16"); A("  s_mov_b32 s9, s17")
        for k in range(4): A(f"  s_mov_b32 s{16+k}, s{18+k}")
        A(f"{tag}:")
        A(f"  s_mul_i32 s47, s47, {8*3145728}"); A("  s_add_u32 s12, s13, s47")
        if tab: A("  s_mov_b32 s22, s12"); A("  s_add_u32 s12, s22, s84")
    def body(tag, gaps):
        for n in range(24):
            s, j = divmod(n, 3)
            for x in gaps.get(n, []): A(x)
            if j == 2:
                A("  s_waitcnt lgkmcnt(0)")
                A(f"  v_readfirstlane_b32 s31, v{vMode}")
                A(f"  s_mul_i32 s56, s56, {kap}"); A("  s_lshr_b32 s56, s56, 6"); A("  s_sub_u32 s56, s56, s30"); A("  s_addk_i32 s30, 128")
                A("  s_add_u32 s56, s56, s31"); A("  s_sext_i32_i16 s56, s56")
                A("  s_bitcmp0_b32 s31, 31"); A("  s_cselect_b32 s45, s56, s45")
            throttle(f"{tag}_{n}")
            kv_load(n)
            if j == 1:
                A(f"  ds_read_b32 v{vMode}, v{vZero} offset:{L_CTL+32}"); A("  s_memrealtime s[56:57]")
            if j == 2:
                A(f"  v_add_u32 v{vProg}, 1, v{vProg}"); A(f"  ds_write_b32 v{vCa}, v{vProg} offset:{L_CTL+16}")
    def xred(op, t, u):
        return [f"  s_nop 1", f"  {op}_dpp v{t}, v{t}, v{t} row_ror:8 row_mask:0xf bank_mask:0xf",
                f"  v_mov_b32 v{u}, v{t}", "  s_nop 1", f"  v_permlane16_swap_b32 v{t}, v{u}", "  s_nop 0", f"  {op} v{t}, v{t}, v{u}",
                f"  v_mov_b32 v{u}, v{t}", "  s_nop 1", f"  v_permlane32_swap_b32 v{t}, v{u}", "  s_nop 0", f"  {op} v{t}, v{t}, v{u}"]
    kg = {}
    for s in range(4):
        for j in range(2):
            T = 2 * s + j
            kg[3*s+j] = [f"  s_waitcnt vmcnt({3*(7-T) + 3*s + j})"] + \
                        [f"  v_dot2_f32_bf16 v{vS+T}, v{ring(T,0)+k}, v{vQ+k}, {('v%d' % (vS+T)) if k else '0'}" for k in range(12)]
        g = []
        for pat in ("quad_perm:[1,0,3,2]", "quad_perm:[2,3,0,1]", "row_half_mirror"):
            g += ["  s_nop 0"] + [f"  v_add_f32_dpp v{vS+T}, v{vS+T}, v{vS+T} {pat} row_mask:0xf bank_mask:0xf" for T in (2*s, 2*s+1)]
        kg[3*s+2] = g
    kg[12] = [f"  v_add_u32 v{vQa}, 384, v{vQa}",
              f"  v_max3_f32 v{vT0}, v{vS}, v{vS+1}, v{vS+2}", f"  v_max3_f32 v{vT0}, v{vT0}, v{vS+3}, v{vS+4}",
              f"  v_max3_f32 v{vT0}, v{vT0}, v{vS+5}, v{vS+6}", f"  v_max_f32 v{vT0}, v{vT0}, v{vS+7}"] + \
             [f"  ds_read_b128 v[{vQ+4*t}:{vQ+4*t+3}], v{vQa} offset:{L_Q + 128*t}" for t in range(3)]
    kg[13] = xred("v_max_f32", vT0, vT1) + [f"  v_mul_f32 v{vD}, s58, v{vT0}"]
    kg[14] = [f"  v_fma_f32 v{vS+i}, v{vS+i}, s58, -v{vD}" for i in range(8)]
    kg[15] = [f"  v_exp_f32 v{vS+i}, v{vS+i}" for i in range(8)]
    kg[16] = [f"  v_add_f32 v{vD+1}, v{vS}, v{vS+1}"] + [f"  v_add_f32 v{vD+1}, v{vD+1}, v{vS+i}" for i in range(2, 8)]
    kg[17] = [f"  v_cvt_pk_bf16_f32 v{vS+i}, v{vS+i}, v{vS+i}" for i in range(8)]
    kg[18] = [f"  ds_write_b128 v{vPa}, v[{vS}:{vS+3}]", f"  ds_write_b128 v{vPa}, v[{vS+4}:{vS+7}] offset:16", f"  v_add_u32 v{vPa}, 32, v{vPa}"]
    kg[19] = xred("v_add_f32", vD+1, vT1)
    kg[21] = [f"  ds_write_b64 v{vMLa}, v[{vD}:{vD+1}] offset:{L_ML}", f"  v_add_u32 v{vMLa}, 32, v{vMLa}"]
    def vtile(T, wait):
        b = vB + 4 * (T & 1)
        g = [f"  v_and_b32 v{b+q}, v{vS+T}, v{vM+q}" for q in range(4)] + [f"  s_waitcnt vmcnt({wait})", "  s_nop 0"]
        for t in range(3):
            c = f"v[{vD+4*t}:{vD+4*t+3}]" if T else "0"
            g.append(f"  v_mfma_f32_16x16x32_bf16 v[{vD+4*t}:{vD+4*t+3}], v[{b}:{b+3}], v[{ring(T,t)}:{ring(T,t)+3}], {c}")
        return g
    dump = ["  s_mov_b64 exec, s[54:55]"] + [f"  ds_write_b128 v{vDa}, v[{vD+4*t}:{vD+4*t+3}] offset:{256*t}" for t in range(3)] + ["  s_mov_b64 exec, -1"]
    pread = [f"  ds_read_b128 v[{vS}:{vS+3}], v{vPa}", f"  ds_read_b128 v[{vS+4}:{vS+7}], v{vPa} offset:16"]
    vg = {}
    for s in range(4):
        for j in range(2): vg[3*s+j] = vtile(2*s+j, 3*(7-(2*s+j)) + 3*s + j)
    vg[12] = ["  s_nop 7"] + dump + [f"  v_add_u32 v{vDa}, 6144, v{vDa}", f"  v_add_u32 v{vPa}, 32, v{vPa}"]
    vg[13] = pread
    def cstamp():
        if not curve: return
        A("  s_memrealtime s[98:99]"); A("  s_mov_b32 m0, s44"); A("  s_waitcnt lgkmcnt(0)")
        A(f"  v_writelane_b32 v{vCv}, s98, m0"); A(f"  v_writelane_b32 v{vCv+1}, s99, m0")
    A("L_kloop:")
    switch("L_ksw")
    body("L_k", kg); cstamp()
    A("  s_add_u32 s44, s44, 1"); A("  s_and_b32 s47, s44, 7"); A("  s_cbranch_scc1 L_kloop")
    A(";HOP 1")
    A(f"  v_subrev_u32 v{vPa}, 256, v{vPa}")
    for x in pread: A(x)
    A("  s_waitcnt lgkmcnt(0)")
    A("L_vloop:")
    switch("L_vsw")
    body("L_v", vg); cstamp()
    A("  s_add_u32 s44, s44, 1")
    A("  s_cmp_eq_u32 s44, 31"); A("  s_cbranch_scc1 L_last")
    A("  s_and_b32 s47, s44, 7"); A("  s_cbranch_scc1 L_vloop")
    A(f"  v_subrev_u32 v{vPa}, 256, v{vPa}")
    A("  s_branch L_kloop")
    A(";HOP 2")
    A("L_last:")
    C("last round: the wo rows are the end of the stream and cover the exchange of the last partial o")
    def last(m):
        sched = {1: [0, 1], 2: [2, 3], 3: [4, 5], dl - 1: [6], dl: [7]}
        if dl < 5:
            sched = {0: [0, 1, 2, 3, 4, 5]}; sched.setdefault(dl - 1, []).append(6); sched.setdefault(dl, []).append(7)
        for k in range(max(m, dl + 1)):
            for T in sched.get(k, []):
                for x in vtile(T, 3*(7-T) + min(k, m)): A(x)
            if k == dl:
                A(f"  v_add_u32 v{vProg}, 8, v{vProg}"); A("  s_nop 5")
                for x in dump: A(x)
                A(f"  ds_write_b32 v{vCa}, v{vProg} offset:{L_CTL+16}")
                stamp("s", "vend")
            if k < m: wo_load(k, (dl if k < dl or not dl2 else dl2) - 1)
        stamp("s", "woiss")
    if ej < 32:
        A(f"  s_cmp_lt_u32 s4, {ej}"); A("  s_cbranch_scc1 L_last1")
        last(0)
        A("  s_branch L_proj")
        A("L_last1:")
    last(12)
    A("L_proj:")
    C("all five waves: y[2][128 columns] = o[2][48 rows] * wo")
    A(f"  v_and_b32 v{vT0}, 8, v{vLane}"); A(f"  v_and_b32 v{vT1}, 48, v{vLane}"); A(f"  v_lshl_add_u32 v{vT0}, v{vT0}, 5, v{vT1}      ; (16*b + g)*16")
    A(f"  v_lshrrev_b32 v{vT1}, 5, v{vLane}"); A(f"  v_mul_u32_u24 v{vT1}, {128*YS - 512}, v{vT1}"); A(f"  v_lshl_add_u32 v{vT1}, v{vLane}, 4, v{vT1}")
    A("  s_lshr_b32 s47, s4, 4"); A(f"  s_mul_i32 s47, s47, {256*YS}")
    A("  s_and_b32 s48, s2, 127"); A(f"  s_mul_i32 s48, s48, {YS}"); A("  s_add_u32 s47, s47, s48")
    A("  s_lshl_b32 s48, s5, 9"); A("  s_add_u32 s47, s47, s48")
    for i in range(4): A(f"  s_mov_b32 s{52+i}, 0x0706050{i}")
    A("  s_waitcnt lgkmcnt(0)")
    A("  s_barrier")
    G = vRing
    for u in range(4): A(f"  ds_read_b128 v[{G+4*u}:{G+4*u+3}], v{vT0} offset:{L_C + 64*u}")
    if stamps:
        A("  s_cmp_eq_u32 s5, 4"); A("  s_cbranch_scc1 L_nost"); stamp("s", "oready"); A("L_nost:")
    A("  s_waitcnt lgkmcnt(0)")
    def diag(i):
        tp, u = divmod(i, 4)
        for q in range(4): A(f"  v_and_b32 v{G+16+4*i+q}, v{G+4*u+tp}, v{vM+q}")
    diag(0); diag(1)
    nd = 2
    for i in range(12):
        A(f"  s_waitcnt vmcnt({11-i})")
        cc = f"v[{vD}:{vD+3}]" if i else "0"
        A(f"  v_mfma_f32_16x16x32_bf16 v[{vD}:{vD+3}], v[{G+16+4*i}:{G+19+4*i}], a[{4*i}:{4*i+3}], {cc}")
        for _ in range(2 if i >= 2 else 1):
            if nd < 12: diag(nd); nd += 1
    A("  s_nop 7")
    C("the low byte of each value carries one byte of the launch tag")
    for r in range(4): A(f"  v_perm_b32 v{vD+r}, v{vD+r}, v{G+3}, s{52+r}")
    A(f"  buffer_store_dwordx4 v[{vD}:{vD+3}], v{vT1}, s[36:39], s47 offen {ysp}")
    if b4 == 2: A("  s_waitcnt vmcnt(0)")
    if b4: A("  s_barrier")
    A("  s_cmp_eq_u32 s5, 4"); A("  s_cbranch_scc1 L_final")
    A(";HOP 9")
    if curve:
        A("  s_cmp_lg_u32 s5, 0"); A("  s_cbranch_scc1 L_end")
        A("  s_getreg_b32 s100, hwreg(HW_REG_XCC_ID)")
        A(f"  s_mul_i32 s47, s2, {144 if curve == 1 else 264}"); A(f"  s_add_u32 s47, s47, {WS - (1<<20)}")
        A(f"  v_lshlrev_b32 v{vT0}, {2 if curve == 1 else 3}, v{vLane}"); A(f"  v_add_u32 v{vT0}, 16, v{vT0}")
        A(f"  s_mov_b32 exec_lo, {0x55555555 if curve == 1 else 0x7fffffff:#x}"); A("  s_mov_b32 exec_hi, 0")
        A(f"  buffer_store_dwordx2 v[{vCv}:{vCv+1}], v{vT0}, s[36:39], s47 offen")
        A("  s_mov_b64 exec, 1")
        A(f"  v_mov_b32 v{vRing}, s96"); A(f"  v_mov_b32 v{vRing+1}, s97"); A(f"  v_mov_b32 v{vRing+2}, s100"); A(f"  v_mov_b32 v{vRing+3}, 0")
        A(f"  buffer_store_dwordx4 v[{vRing}:{vRing+3}], v{vZero}, s[36:39], s47 offen")
    if stamps:
        A("  s_cmp_lg_u32 s5, 0"); A("  s_cbranch_scc1 L_end")
        stamp("s", "ystore")
        A("  s_waitcnt vmcnt(0)")
        stamp("s", "end")
        dump_stamps("s", 0)
    A("L_end:"); A("  s_endpgm")
    vE = vD + 2
    A("L_helper:")
    if prio == 1: A("  s_setprio 3")
    A(f"  v_mov_b32 v{H}, 0"); A(f"  v_mov_b32 v{H+1}, 0"); A(f"  v_mov_b32 v{H+2}, 0"); A(f"  v_mov_b32 v{H+3}, 0"); A(f"  v_mov_b32 v{H+4}, -1")
    A(f"  ds_write_b128 v{vZero}, v[{H}:{H+3}] offset:{L_CTL+16}"); A(f"  ds_write_b32 v{vZero}, v{H+4} offset:{L_CTL+32}")
    A("  s_mov_b32 s36, s42"); A("  s_mov_b32 s37, s43"); A(f"  s_mov_b32 s38, {WS}"); A("  s_mov_b32 s39, 0x20000")
    masks()
    for x in wosetup: A(x)
    A(f"  s_mov_b32 s26, {WBYTES}"); A("  s_mov_b32 s27, 0x20000")
    A(f"  v_lshlrev_b32 v{vT0}, 3, v{vLane}"); A(f"  v_lshlrev_b32 v{vT3}, 4, v{vLane}"); A(f"  v_lshlrev_b32 v{vQa}, 2, v{vLane}")
    A(f"  s_mul_i32 s12, s3, {24*512}"); A(f"  s_add_u32 s12, s12, {W_Q}")
    A("  s_and_b32 s13, s4, 7"); A("  s_mul_i32 s13, s13, 3"); A("  s_lshr_b32 s14, s4, 3"); A("  s_add_u32 s13, s13, s14")
    A("  s_lshl_b32 s13, s13, 9"); A("  s_add_u32 s13, s13, s12")
    A("  s_add_u32 s14, s12, 4096"); A("  s_add_u32 s15, s12, 8192")
    def tlbtouch():
        C("touch the pages of round j (and of this workgroup's wo rows) once, so that their translations are cached in time")
        A("  s_bitcmp1_b32 s4, 3"); A("  s_cselect_b32 s20, s68, s66"); A("  s_cselect_b32 s21, s69, s67"); A("  s_cselect_b32 s22, s78, s76"); A("  s_cselect_b32 s23, s79, s77")
        A("  s_bitcmp1_b32 s4, 4"); A("  s_cselect_b32 s20, s22, s20"); A("  s_cselect_b32 s21, s23, s21")
        A("  s_and_b32 s47, s2, 63"); A("  s_mul_i32 s47, s47, 3145728")
        A("  s_add_u32 s20, s20, s47"); A("  s_addc_u32 s21, s21, 0")
        A("  s_load_dword s52, s[20:21], 0"); A("  s_load_dword s53, s[20:21], 0xffffc")
        A("  s_add_u32 s22, s20, 0x200000"); A("  s_addc_u32 s23, s21, 0")
        A("  s_load_dword s54, s[22:23], 0"); A("  s_load_dword s55, s[22:23], 0xffffc")
        A("  s_add_u32 s16, s24, s28"); A("  s_addc_u32 s17, s25, 0"); A("  s_load_dword s56, s[16:17], 0")
        C("(words of d_ws that nothing else uses, one per page; the values are ignored)")
        assert share
        A(f"  s_add_u32 s18, s42, {W_O - 4}"); A("  s_addc_u32 s19, s43, 0"); A("  s_load_dword s57, s[18:19], 0"); A(f"  s_load_dword s58, s[18:19], {9*32*OS + 4}")
        A(f"  s_add_u32 s30, s42, {W_Q - 4}"); A("  s_addc_u32 s31, s43, 0"); A("  s_load_dword s59, s[30:31], 0"); A("  s_load_dword s62, s[30:31], 0xf0004")
        A("  s_waitcnt lgkmcnt(0)")
    if tlb == 1: tlbtouch()
    A("  s_cmp_eq_u32 s2, 0"); A("  s_cbranch_scc1 L_nhave")
    A(f"  s_mov_b32 s50, {SPIN}")
    C("wait for the launch tag")
    if nslp0: A(f"  s_sleep {nslp0}")
    A("L_nloop:")
    A(f"  buffer_load_dword v{H}, v{vZero}, s[8:11], 0 offen sc1"); A("  s_waitcnt vmcnt(0)")
    A(f"  v_readfirstlane_b32 s46, v{H}")
    A("  s_sub_u32 s50, s50, 1"); A("  s_cbranch_scc1 L_nhave")
    A("  s_cmp_lg_u32 s46, 0"); A("  s_cbranch_scc1 L_nhave")
    A(f"  s_sleep {nslp}"); A("  s_branch L_nloop")
    A("L_nhave:")
    stamp("h", "nonce")
    A("  s_waitcnt lgkmcnt(0)")
    A("  s_cmp_ge_u32 s4, 24"); A("  s_cbranch_scc1 L_hq2")
    A("  s_barrier                       ; B1")
    for k in range(8): A(f"  ds_read_b64 v[{H+2*k}:{H+2*k+1}], v{vT0} offset:{L_Y + 512*k}")
    for k in range(1, 8):
        A(f"  s_waitcnt lgkmcnt({7-k})")
        for r in range(2): A(f"  v_add_f32 v{H+r}, v{H+r}, v{H+2*k+r}")
    A(f"  v_cvt_pk_bf16_f32 v{vD}, v{H}, v{H+1}"); A(f"  v_mov_b32 v{vD+1}, s46")
    def qglob(tag):
        A("  s_cmp_ge_u32 s4, 24"); A(f"  s_cbranch_scc1 {tag}")
        A(f"  buffer_store_dwordx2 v[{vD}:{vD+1}], v{vT0}, s[36:39], s13 offen sc1")
        A(f"{tag}:")
    A(f"  s_add_u32 s47, s13, {QLOC}")
    A(f"  buffer_store_dwordx2 v[{vD}:{vD+1}], v{vT0}, s[36:39], s47 offen")
    A("L_hq2:")
    A(f"  v_and_b32 v{vT1}, 16, v{vLane}"); A(f"  v_mul_u32_u24 v{vT1}, 96, v{vT1}")
    A(f"  v_and_b32 v{vT2}, 15, v{vLane}"); A(f"  v_lshl_add_u32 v{vT1}, v{vT2}, 3, v{vT1}")
    A(f"  v_lshrrev_b32 v{vT2}, 5, v{vLane}"); A(f"  v_lshl_add_u32 v{vT1}, v{vT2}, 7, v{vT1}")
    A(f"  s_mov_b32 s50, {SPIN}")
    A("L_qg:")
    C("the first tries read the copy that a producer on this die left in L2, later ones alternate with the device-wide copy")
    A(f"  s_cmp_lg_u32 s50, {SPIN - nloc}"); A("  s_cbranch_scc1 L_qg1"); qglob("L_qg1")
    A(f"  s_cmp_gt_u32 s50, {SPIN - nloc}"); A(f"  s_cselect_b32 s47, {QLOC}, 0")
    A("  s_bitcmp1_b32 s50, 0"); A(f"  s_cselect_b32 s47, {QLOC}, s47")
    A(f"  v_add_u32 v{vDa}, s47, v{vT3}")
    for k in range(12):
        A(f"  buffer_load_dwordx4 v[{H+4*k}:{H+4*k+3}], v{vDa}, s[36:39], s{(12,14,15)[k//4]} offen offset:{1024*(k%4)} sc1")
    A("  s_mov_b64 s[48:49], 0")
    for k in range(12):
        A(f"  s_waitcnt vmcnt({11-k})")
        for r in (1, 3):
            A(f"  v_cmp_ne_u32 vcc, s46, v{H+4*k+r}"); A("  s_or_b64 s[48:49], s[48:49], vcc")
    A("  s_sub_u32 s50, s50, 1"); A("  s_cbranch_scc1 L_qgo")
    A("  s_cmp_eq_u64 s[48:49], 0"); A("  s_cbranch_scc0 L_qg")
    A("L_qgo:")
    def qconst(item):
        sg, c = divmod(item, 3); return ((sg >> 2) * 8 + (sg & 3)) * 384 + c * 128
    for k in range(12):
        assert qconst(2*k+1) - qconst(2*k) == 128
        A(f"  v_mov_b32 v{H+4*k+1}, v{H+4*k+2}")
        A(f"  ds_write_b64 v{vT1}, v[{H+4*k}:{H+4*k+1}] offset:{L_Q + qconst(2*k)}")
    A("  s_waitcnt lgkmcnt(0)")
    stamp("h", "qtab")
    if hwt == 3:
        for i in range(hw): wo_load(i, None)
    A("  s_barrier                       ; B2")
    if tlb == 2: tlbtouch()
    C("set-up of the progress board and of the flush state")
    A("  s_getreg_b32 s56, hwreg(HW_REG_XCC_ID)"); A("  s_and_b32 s56, s56, 7")
    A("  s_lshl_b32 s57, s56, 3"); A("  s_add_u32 s57, s57, s3"); A("  s_mul_i32 s57, s57, 1152"); A(f"  s_add_u32 s57, s57, {W_B}")
    A("  s_lshl_b32 s59, s4, 3"); A("  s_add_u32 s59, s59, s57")
    A("  s_mov_b32 s31, 0")
    A(f"  v_mov_b32 v{vE+1}, s46")
    if not atom:
        A("  s_lshl_b32 s62, s56, 2"); A(f"  s_add_u32 s62, s62, {W_G}"); A(f"  s_mov_b32 s29, {lper-1}")
        A(f"  s_add_u32 s16, s42, {W_G}"); A("  s_addc_u32 s17, s43, 0")
        A("  s_and_b32 s51, s46, 0xffff0000")
    A("  s_mov_b32 s18, -1"); A("  s_mov_b32 s19, 1")
    A("  s_mov_b32 s30, 0"); A("  s_mov_b32 s32, 0")
    A(f"  v_add_u32 v{vDa}, {L_O}, v{vQa}"); A(f"  v_mov_b32 v{vMLa}, {L_E}")
    A("  s_mov_b32 s33, 0xffff")
    if drift: A("  s_mov_b32 s82, 0"); A("  s_mov_b32 s83, 0")
    if atom: A("  s_mov_b32 s62, 124")
    if ep: A(f"  s_mov_b32 s29, {ep0}"); A("  s_mov_b32 s80, 0"); A("  s_mov_b32 s81, 0")
    A(f"  s_mul_i32 s58, s3, {512*OS}"); A(f"  s_mul_i32 s48, s4, {OS}"); A("  s_add_u32 s58, s58, s48"); A(f"  s_add_u32 s58, s58, {W_O}")
    def otag(reg):
        A(f"  v_and_b32 v{vMode}, 1, v{vLane}"); A(f"  v_lshlrev_b32 v{vMode}, 4, v{vMode}"); A(f"  v_lshrrev_b32 v{vMode}, v{vMode}, {reg}"); A(f"  v_lshlrev_b32 v{vMode}, 16, v{vMode}")
    otag("s46")
    A("  s_mov_b32 s45, s46")
    def call(l): A(f"  s_call_b64 s[60:61], {l}")
    def pace(t): A(f"  s_mov_b32 s44, {t}"); call("L_pace")
    def drain(n): A(f"  s_mov_b32 s32, {n}"); call("L_drain")
    pace(t_q)
    if warm:
        C("bring the code of the V rounds into the instruction cache: with EXEC = 0 only the chain of branches runs")
        A("  s_mov_b64 exec, 0"); A("  s_branch L_hop_0"); A("L_back:")
    A("  s_load_dwordx2 s[6:7], s[0:1], 80      ; out"); A("  s_waitcnt lgkmcnt(0)")
    if hwt == 2:
        for i in range(hw): wo_load(i, 1 if i > 1 else None)
    C("without proof that the group shares a die, leave a device-wide copy of q")
    A("  s_cmp_eq_u32 s31, 1"); A("  s_cbranch_scc1 L_qg2"); qglob("L_qg2")
    if share:
        C("problem A: publish (M, l) and the partial o; its projectors merge them before anyone reuses the slots")
        pace(t_a)
        A("  s_mov_b32 s34, 0x00ff"); call("L_ml"); A("  s_mov_b32 s32, 8")
        pace(t_c); drain(8)
        A("  s_cmp_ge_u32 s4, 16"); A("  s_cbranch_scc1 L_s1")
        A("  s_mov_b32 s34, 0"); call("L_wt"); call("L_merge"); A("  s_mov_b32 s34, 1"); call("L_merge")
        A("L_s1:")
        pace(t_ml)
        A("  s_mov_b32 s34, 0xff00"); call("L_ml")
        pace(t_w)
        C("the (M, l) records of problem B also tell that their writers are done with the slots")
        A("  s_mov_b32 s34, 8"); call("L_wt")
        A(f"  s_xor_b32 s45, s46, {GEN:#x}"); otag("s45"); A(f"  s_sub_u32 s58, s58, {8*32*OS}")
        A("  s_mov_b32 s32, 15")
    else:
        pace(t_ml)
        A("  s_mov_b32 s34, 0xffff"); call("L_ml"); A("  s_mov_b32 s32, 15")
        pace(t_w)
        A("  s_lshr_b32 s34, s4, 4"); A("  s_lshl_b32 s34, s34, 3"); call("L_wt")
    pace(t_g); drain(12); A("  s_mov_b32 s32, 15")
    if share: A("  s_cmp_lt_u32 s4, 16"); A("  s_cbranch_scc1 L_s4")
    A("  s_mov_b32 s34, 0"); call("L_merge")
    A("L_s4:")
    if hwt == 1:
        for i in range(hw): wo_load(i, 1 if i > 1 else None)
    A("  s_mov_b32 s34, 1")
    pace(t_f)
    stamp("h", "flush0")
    if prio == 2: A("  s_setprio 3")
    if hwt == 0:
        for i in range(hw): wo_load(i, None)
    C("final-reduction role of workgroups 0..159: (problem, batch) = id&3, block of 4 granules = id>>2")
    A("  s_and_b32 s20, s2, 3")
    if rmap:
        C("(bits 2 and 3 swapped: the two readers of a cache line are in the same group)")
        A("  s_lshr_b32 s21, s2, 4"); A("  s_lshl_b32 s21, s21, 2"); A("  s_and_b32 s22, s2, 4"); A("  s_lshr_b32 s22, s22, 1"); A("  s_or_b32 s21, s21, s22")
        A("  s_and_b32 s22, s4, 1"); A("  s_or_b32 s21, s21, s22")
    else: A("  s_lshr_b32 s21, s2, 2")
    A(f"  v_lshrrev_b32 v{vCa}, 2, v{vLane}"); A(f"  v_and_b32 v{vProg}, 3, v{vLane}")
    A(f"  v_mul_u32_u24 v{vCa}, {YS}, v{vCa}"); A(f"  v_lshl_add_u32 v{vCa}, v{vProg}, 4, v{vCa}"); A(f"  v_lshlrev_b32 v{vProg}, 4, v{vProg}")
    A(f"  v_bfe_u32 v{vT1}, v{vLane}, 4, 1"); A(f"  v_lshl_add_u32 v{vProg}, v{vT1}, 2, v{vProg}")
    A(f"  v_lshrrev_b32 v{vT1}, 5, v{vLane}"); A(f"  v_lshl_add_u32 v{vProg}, v{vT1}, 1, v{vProg}")
    A(f"  s_mul_i32 s72, s20, {128*YS}"); A("  s_lshl_b32 s22, s21, 6"); A("  s_add_u32 s72, s72, s22")
    for k in range(1, 8): A(f"  s_add_u32 s{72+k}, s72, {16*k*YS}")
    A("  s_and_b32 s22, s20, 1"); A("  s_mul_i32 s35, s22, 2560"); A("  s_lshr_b32 s22, s20, 1"); A("  s_mul_i32 s22, s22, 1280"); A("  s_add_u32 s35, s35, s22")
    A("  s_lshr_b32 s22, s21, 3"); A("  s_lshl_b32 s22, s22, 8"); A("  s_add_u32 s35, s35, s22")
    A("  s_and_b32 s22, s21, 3"); A("  s_lshl_b32 s22, s22, 6"); A("  s_add_u32 s35, s35, s22")
    A("  s_and_b32 s22, s21, 4"); A("  s_lshl_b32 s22, s22, 1"); A("  s_add_u32 s35, s35, s22")
    A("  s_mov_b32 s12, s6"); A("  s_mov_b32 s13, s7"); A("  s_mov_b32 s14, 5120"); A("  s_mov_b32 s15, 0x20000")
    lo_j = 16 if share else 0
    if gj > lo_j:
        drain(15)
        if share: A("  s_cmp_lt_u32 s4, 16"); A("  s_cbranch_scc1 L_s2")
        A(f"  s_cmp_ge_u32 s4, {gj}"); A("  s_cbranch_scc1 L_s2")
        call("L_merge")
        A("L_s2:")
    drain(16)
    stamp("h", "flushed")
    for i in range(hw, 12): wo_load(i, None)
    A(f"  s_cmp_lt_u32 s4, {max(gj, lo_j)}"); A("  s_cbranch_scc1 L_s3")
    call("L_merge")
    A("L_s3:")
    stamp("h", "hready")
    A("  s_branch L_proj")
    def pub(instr, tag):
        A("  s_cmp_eq_u32 s31, 1"); A(f"  s_cbranch_scc1 {tag}a")
        A(instr + " sc1")
        A(f"  s_branch {tag}b"); A(f"{tag}a:"); A(instr); A(f"{tag}b:")
    A("L_pace:")
    C("subroutine: until every wave has passed s44, refresh the mean lead and publish finished heads (period ~1.4 us)")
    A(f"  s_sleep {slp}")
    A("  s_memrealtime s[22:23]")
    A(f"  ds_read_b128 v[{H}:{H+3}], v{vZero} offset:{L_CTL+16}"); A("  s_waitcnt lgkmcnt(0)")
    A(f"  v_min3_u32 v{H+4}, v{H}, v{H+1}, v{H+2}"); A(f"  v_min_u32 v{H+4}, v{H+4}, v{H+3}")
    A(f"  v_add3_u32 v{H+5}, v{H}, v{H+1}, v{H+2}"); A(f"  v_add_u32 v{H+5}, v{H+5}, v{H+3}")
    A(f"  v_readfirstlane_b32 s20, v{H+4}")
    A("  s_cmp_ge_u32 s20, s44"); A("  s_cbranch_scc1 L_ret")
    A(f"  v_readfirstlane_b32 s21, v{H+5}")
    A(f"  s_mul_i32 s22, s22, {kap}"); A("  s_lshr_b32 s22, s22, 6")
    A("  s_lshl_b32 s21, s21, 5"); A("  s_sub_u32 s21, s21, s22"); A("  s_and_b32 s21, s21, 0xffff")
    A(f"  v_mov_b32 v{vE}, s21"); A(f"  v_mov_b32 v{H+8}, 0"); A(f"  v_mov_b32 v{H+9}, 0")
    A("  s_mov_b64 exec, 1")
    A(f"  buffer_store_dwordx2 v[{vE}:{vE+1}], v{vZero}, s[36:39], s59 offen")
    A("  s_mov_b64 exec, s[18:19]")
    A(f"  buffer_load_dwordx2 v[{H+8}:{H+9}], v{vT0}, s[36:39], s57 offen {bpol}")
    A("  s_mov_b64 exec, -1")
    A("  s_waitcnt vmcnt(0)")
    A(f"  v_readlane_b32 s22, v{H+8}, 32")
    A(f"  v_cmp_eq_u32 vcc, s46, v{H+9}")
    A(f"  v_subrev_u32 v{H+7}, s21, v{H+8}"); A(f"  v_bfe_i32 v{H+7}, v{H+7}, 0, 16")
    A(f"  v_cndmask_b32 v{H+7}, 0, v{H+7}, vcc")
    A("  s_cmp_eq_u32 vcc_lo, -1"); A("  s_cselect_b32 s31, 1, s31")
    for sh in (1, 2, 4, 8):
        A("  s_nop 1"); A(f"  v_add_u32_dpp v{H+7}, v{H+7}, v{H+7} row_ror:{sh} row_mask:0xf bank_mask:0xf")
    A("  s_bitcmp1_b32 vcc_hi, 0"); A("  s_cselect_b32 s22, s22, 0")
    A(f"  v_readlane_b32 s23, v{H+7}, 0"); A(f"  v_readlane_b32 s47, v{H+7}, 16")
    A("  s_add_u32 s23, s23, s47"); A("  s_ashr_i32 s23, s23, 5"); A("  s_add_u32 s23, s23, s21")
    A("  s_add_u32 s47, s23, s22")
    if drift:
        C("a common slow-down makes the mean fall between samples: carry that fall forward so that it does not read as lag")
        A("  s_sub_u32 s48, s23, s82"); A("  s_sext_i32_i16 s48, s48"); A("  s_mov_b32 s82, s23")
        if dz: A(f"  s_add_u32 s48, s48, {dz}")
        A("  s_max_i32 s48, s48, s83"); A("  s_min_i32 s48, s48, 0"); A(f"  s_mul_i32 s48, s48, {drift}"); A("  s_ashr_i32 s48, s48, 2"); A("  s_add_u32 s47, s47, s48")
        A("  s_movk_i32 s83, 0xff80")
    A("  s_and_b32 s47, s47, 0xffff"); A(f"  v_mov_b32 v{H+6}, s47")
    A(f"  ds_write_b32 v{vZero}, v{H+6} offset:{L_CTL+32}")
    A("  s_cmp_lg_u32 s4, 0"); A("  s_cbranch_scc1 L_paced")
    C("first workgroup of a group: now and then compare with the other groups")
    if lin: A(f"  s_min_i32 s48, s22, {lin}"); A(f"  s_max_i32 s48, s48, {-lin}")
    else: A(f"  s_ashr_i32 s48, s22, {dec}")
    A("  s_sub_u32 s48, s22, s48"); A("  s_mov_b64 exec, 1")
    if ep:
        C("all groups add their mean to a counter in d_debug at the same points of progress and read the sum a little later")
        A("  s_cmp_lt_u32 s20, s29"); A("  s_cbranch_scc1 L_ep1")
        if epp2: A(f"  s_cmp_ge_u32 s29, {ept}"); A(f"  s_cselect_b32 s47, {epp2}, {epp}"); A("  s_add_u32 s29, s29, s47")
        else: A(f"  s_add_u32 s29, s29, {epp}")
        if epend < 999: A(f"  s_cmp_gt_u32 s29, {epend}"); A("  s_cselect_b32 s29, 999, s29")
        A(f"  s_mov_b32 s81, {epw}"); A("  s_and_b32 s80, s23, 0xffff")
        if atom:
            A("  s_add_u32 s62, s62, 4"); A("  s_or_b32 s47, s80, 0x1000000"); A(f"  v_mov_b32 v{H+6}, s47")
            A(f"  buffer_atomic_add v{H+6}, v{vZero}, s[8:11], s62 offen")
        else:
            A("  s_add_u32 s51, s51, 0x10000"); A("  s_or_b32 s47, s80, s51"); A(f"  v_mov_b32 v{H+6}, s47")
            A(f"  buffer_store_dword v{H+6}, v{vZero}, s[36:39], s62 offen sc1")
        A("  s_branch L_dst")
        A("L_ep1:")
        A("  s_sub_u32 s81, s81, 1"); A("  s_cmp_lg_u32 s81, 0"); A("  s_cbranch_scc1 L_dst")
        if atom:
            A("  s_load_dword s64, s[40:41], s62 glc"); A("  s_waitcnt lgkmcnt(0)")
            A("  s_lshr_b32 s65, s64, 24"); A("  s_mul_i32 s65, s65, s80"); A("  s_sub_u32 s48, s64, s65"); A("  s_sext_i32_i16 s48, s48")
        else:
            A("  s_load_dwordx8 s[64:71], s[16:17], 0 glc")
            A("  s_mov_b32 s23, s80")
            A("  s_waitcnt lgkmcnt(0)")
    else:
        A("  s_add_u32 s29, s29, 1"); A(f"  s_cmp_lt_u32 s29, {lper}"); A("  s_cbranch_scc1 L_dst")
        A("  s_mov_b32 s29, 0")
        A("  s_load_dwordx8 s[64:71], s[16:17], 0 glc")
        A("  s_and_b32 s23, s23, 0xffff")
        A("  s_or_b32 s47, s23, s51"); A(f"  v_mov_b32 v{H+6}, s47")
        A("  s_waitcnt lgkmcnt(0)")
        A(f"  buffer_store_dword v{H+6}, v{vZero}, s[36:39], s62 offen sc1")
    if not atom: A("  s_mov_b32 s48, 0")
    for k in range(0 if atom else 8):
        A(f"  s_xor_b32 s{64+k}, s{64+k}, s51"); A(f"  s_cmp_lt_u32 s{64+k}, 0x10000"); A(f"  s_cselect_b32 s{64+k}, s{64+k}, s23")
        A(f"  s_sub_u32 s{64+k}, s{64+k}, s23"); A(f"  s_sext_i32_i16 s{64+k}, s{64+k}"); A(f"  s_add_u32 s48, s48, s{64+k}")
    if gain != 8: A(f"  s_mul_i32 s48, s48, {gain}"); A("  s_ashr_i32 s48, s48, 6")
    else: A("  s_ashr_i32 s48, s48, 3")
    A("L_dst:")
    A(f"  v_mov_b32 v{vE}, s48")
    A(f"  buffer_store_dwordx2 v[{vE}:{vE+1}], v{vZero}, s[36:39], s57 offen offset:256")
    A("  s_mov_b64 exec, -1")
    A("L_paced:")
    A(f"  s_mov_b32 s63, {nfl}"); A("  s_branch L_fl")
    A("L_drain:")
    C("entry: flush up to the limit, waiting for the waves")
    A("  s_mov_b32 s63, -1")
    A("L_fl:")
    C("head i (round 8+i, or 16+i from 8 on) is in LDS once every wave's progress is >= 8*round+5")
    A("  s_cmp_ge_u32 s30, 8"); A("  s_cselect_b32 s48, 16, 8"); A("  s_add_u32 s48, s48, s30"); A("  s_lshl_b32 s48, s48, 3"); A("  s_add_u32 s48, s48, 5")
    A("  s_cmp_lt_i32 s63, 0"); A("  s_cbranch_scc0 L_fl0")
    A("  s_cmp_ge_u32 s30, s32"); A("  s_cbranch_scc0 L_fl1")
    A("L_ret:")
    A("  s_setpc_b64 s[60:61]")
    A("L_fl0:")
    A("  s_cmp_ge_u32 s30, s32"); A("  s_cbranch_scc1 L_pace")
    A("  s_cmp_lt_u32 s20, s48"); A("  s_cbranch_scc1 L_pace")
    A("  s_sub_u32 s63, s63, 1"); A("  s_cbranch_scc1 L_pace")
    A("L_fl1:")
    A(f"  ds_read_b128 v[{H+28}:{H+31}], v{vMLa}")
    A("L_flw:")
    if flws: A(f"  s_sleep {flws}")
    A(f"  ds_read_b128 v[{H}:{H+3}], v{vZero} offset:{L_CTL+16}"); A("  s_waitcnt lgkmcnt(0)")
    A(f"  v_min3_u32 v{H+4}, v{H}, v{H+1}, v{H+2}"); A(f"  v_min_u32 v{H+4}, v{H+4}, v{H+3}"); A("  s_nop 0")
    A(f"  v_readfirstlane_b32 s20, v{H+4}")
    A("  s_cmp_lt_u32 s20, s48"); A("  s_cbranch_scc1 L_flw")
    for k in range(12): A(f"  ds_read2st64_b32 v[{H+2*k}:{H+2*k+1}], v{vDa} offset0:{2*k} offset1:{2*k+1}")
    for w in range(4):
        A(f"  s_waitcnt lgkmcnt({9-3*w})")
        for t in range(3): A(f"  v_add_f32 v{H+6*w+t}, v{H+6*w+t}, v{H+6*w+3+t}")
        for t in range(3):
            A(f"  v_mul_f32 v{H+32+t}, v{H+28}, v{H+t}" if w == 0 else f"  v_fmac_f32 v{H+32+t}, v{H+28+w}, v{H+6*w+t}")
    C("lane l: o[l], o[l+64], o[l+128] and one half of the tag")
    A(f"  v_cvt_pk_bf16_f32 v{H+32}, v{H+32}, v{H+33}"); A(f"  v_cvt_pk_bf16_f32 v{H+33}, v{H+34}, v{H+34}")
    A(f"  v_and_or_b32 v{H+33}, v{H+33}, s33, v{vMode}")
    pub(f"  buffer_store_dwordx2 v[{H+32}:{H+33}], v{vT0}, s[36:39], s58 offen", "L_po")
    A(f"  v_add_u32 v{vDa}, 6144, v{vDa}"); A(f"  v_add_u32 v{vMLa}, 16, v{vMLa}")
    A(f"  s_add_u32 s58, s58, {32*OS}"); A("  s_add_u32 s30, s30, 1"); A("  s_branch L_fl")
    A("L_ml:")
    C("subroutine: lane = head; max and sum over the four waves, wave weights; publishes the heads in mask s34")
    A(f"  v_and_b32 v{vT1}, 15, v{vLane}"); A(f"  v_lshlrev_b32 v{vT2}, 5, v{vT1}"); A(f"  v_lshlrev_b32 v{vT1}, 4, v{vT1}")
    A(f"  ds_read_b128 v[{H}:{H+3}], v{vT2} offset:{L_ML}"); A(f"  ds_read_b128 v[{H+4}:{H+7}], v{vT2} offset:{L_ML+16}")
    A("  s_lshl_b32 s47, s3, 5"); A("  s_add_u32 s47, s47, s4"); A("  s_lshl_b32 s47, s47, 8"); A(f"  s_add_u32 s47, s47, {W_ML}")
    A("  s_waitcnt lgkmcnt(0)")
    A(f"  v_max3_f32 v{H+8}, v{H}, v{H+2}, v{H+4}"); A(f"  v_max_f32 v{H+8}, v{H+8}, v{H+6}")
    for w in range(4): A(f"  v_sub_f32 v{H+12+w}, v{H+2*w}, v{H+8}")
    for w in range(4): A(f"  v_exp_f32 v{H+12+w}, v{H+12+w}")
    A(f"  v_mov_b32 v{H+10}, 0"); A(f"  v_mov_b32 v{H+11}, s46")
    A(f"  v_mul_f32 v{H+9}, v{H+12}, v{H+1}")
    for w in range(1, 4): A(f"  v_fmac_f32 v{H+9}, v{H+12+w}, v{H+2*w+1}")
    A("  s_mov_b32 exec_lo, s34"); A("  s_mov_b32 exec_hi, 0")
    A(f"  ds_write_b128 v{vT1}, v[{H+12}:{H+15}] offset:{L_E}")
    pub(f"  buffer_store_dwordx4 v[{H+8}:{H+11}], v{vT1}, s[36:39], s47 offen", "L_pm")
    A("  s_mov_b64 exec, -1")
    A("  s_setpc_b64 s[60:61]")
    A("L_wt:")
    C("subroutine: lane = (batch, producer); softmax weights exp(M_j - M)/L of the partial o of heads s34+hh, s34+4+hh")
    A(f"  v_and_b32 v{vT1}, 31, v{vLane}"); A(f"  v_lshlrev_b32 v{vT1}, 8, v{vT1}")
    A(f"  v_and_b32 v{vT2}, 32, v{vLane}"); A(f"  v_lshl_add_u32 v{vT1}, v{vT2}, 1, v{vT1}      ; producer*256 + b*64")
    A("  s_lshr_b32 s48, s4, 2"); A("  s_and_b32 s48, s48, 3"); A("  s_add_u32 s47, s34, s48")
    A("  s_lshl_b32 s47, s47, 4"); A("  s_lshl_b32 s48, s3, 13"); A("  s_add_u32 s47, s47, s48"); A(f"  s_add_u32 s47, s47, {W_ML}")
    A(f"  s_mov_b32 s50, {SPIN}")
    A("L_wg:")
    A(f"  buffer_load_dwordx4 v[{H}:{H+3}], v{vT1}, s[36:39], s47 offen {gpol}"); A("  s_waitcnt vmcnt(0)")
    A(f"  v_cmp_ne_u32 vcc, s46, v{H+3}")
    A("  s_sub_u32 s50, s50, 1"); A("  s_cbranch_scc1 L_wgo")
    A("  s_cmp_eq_u64 vcc, 0"); A("  s_cbranch_scc1 L_wgo")
    A("  s_sleep 16"); A("  s_branch L_wg")
    A("L_wgo:")
    def red32(op, t, u):
        for sh in (1, 2, 4, 8):
            A("  s_nop 1"); A(f"  {op}_dpp v{t}, v{t}, v{t} row_ror:{sh} row_mask:0xf bank_mask:0xf")
        A(f"  v_mov_b32 v{u}, v{t}"); A("  s_nop 1"); A(f"  v_permlane16_swap_b32 v{t}, v{u}"); A("  s_nop 0"); A(f"  {op} v{t}, v{t}, v{u}")
    A(f"  v_mov_b32 v{H+4}, v{H}")
    red32("v_max_f32", H+4, H+5)
    A(f"  v_sub_f32 v{H}, v{H}, v{H+4}"); A(f"  v_exp_f32 v{H}, v{H}"); A("  s_nop 0")
    A(f"  v_mul_f32 v{H+4}, v{H}, v{H+1}")
    red32("v_add_f32", H+4, H+5)
    A(f"  v_rcp_f32 v{H+4}, v{H+4}")
    A(f"  v_and_b32 v{vT1}, 7, v{vLane}"); A(f"  v_lshlrev_b32 v{vT1}, 4, v{vT1}"); A(f"  v_lshl_add_u32 v{vT1}, v{vT2}, 2, v{vT1}")
    A(f"  v_and_b32 v{vT2}, 24, v{vLane}"); A(f"  v_lshrrev_b32 v{vT2}, 1, v{vT2}"); A(f"  v_add_u32 v{vT1}, v{vT1}, v{vT2}")
    A(f"  v_mul_f32 v{H}, v{H}, v{H+4}")
    A(f"  ds_write_b32 v{vT1}, v{H} offset:{L_W}")
    A("  s_setpc_b64 s[60:61]")
    A("L_merge:")
    C("batch row s34: first call keeps its sums, second call folds both and leaves them in LDS")
    A(f"  v_lshrrev_b32 v{vT1}, 3, v{vLane}"); A(f"  v_and_b32 v{vT2}, 7, v{vLane}")
    A(f"  v_mul_u32_u24 v{vPa}, {OS}, v{vT1}"); A(f"  v_lshl_add_u32 v{vPa}, v{vT2}, 4, v{vPa}")
    A("  s_lshr_b32 s47, s4, 2"); A("  s_and_b32 s47, s47, 3"); A("  s_lshl_b32 s48, s34, 2"); A("  s_add_u32 s47, s47, s48")
    if not share: A("  s_lshr_b32 s48, s4, 4"); A("  s_lshl_b32 s48, s48, 3"); A("  s_add_u32 s47, s47, s48")
    A(f"  s_mul_i32 s47, s47, {32*OS}"); A(f"  s_mul_i32 s48, s3, {512*OS}"); A("  s_add_u32 s47, s47, s48")
    A("  s_and_b32 s48, s4, 3"); A("  s_lshl_b32 s48, s48, 7"); A("  s_add_u32 s47, s47, s48"); A(f"  s_add_u32 s64, s47, {W_O}")
    for k in range(1, 4): A(f"  s_add_u32 s{64+k}, s64, {k*8*OS}")
    A("  s_lshl_b32 s48, s34, 7"); A(f"  v_lshl_add_u32 v{vT1}, v{vT1}, 4, s48")
    A(f"  ds_read_b128 v[{vS}:{vS+3}], v{vT1} offset:{L_W}")
    A("  s_mov_b32 s22, 0x07060302"); A("  s_mov_b32 s23, 0xffff0000")
    A(f"  v_bfe_u32 v{vT1}, v{vLane}, 4, 1"); A(f"  v_lshl_add_u32 v{vT1}, v{vT2}, 1, v{vT1}")
    A(f"  v_and_b32 v{vT2}, 32, v{vLane}"); A(f"  v_lshlrev_b32 v{vT1}, 4, v{vT1}")
    A(f"  v_lshl_add_u32 v{vT1}, v{vT2}, 3, v{vT1}      ; (16*b + granule)*16")
    A(f"  s_mov_b32 s50, {SPIN}")
    A("L_gather:")
    for k in range(4): A(f"  buffer_load_dwordx4 v[{H+4*k}:{H+4*k+3}], v{vPa}, s[36:39], s{64+k} offen {gpol}")
    A("  s_mov_b64 s[48:49], 0")
    for k in range(4):
        A(f"  s_waitcnt vmcnt({3-k})")
        A(f"  v_perm_b32 v{vKV}, v{H+4*k+3}, v{H+4*k+1}, s22"); A(f"  v_cmp_ne_u32 vcc, s45, v{vKV}"); A("  s_or_b64 s[48:49], s[48:49], vcc")
    A("  s_sub_u32 s50, s50, 1"); A("  s_cbranch_scc1 L_ggo")
    A("  s_cmp_eq_u64 s[48:49], 0"); A("  s_cbranch_scc0 L_gather")
    A("L_ggo:")
    A("  s_waitcnt lgkmcnt(0)")
    M = H + 32
    Z = vB
    for k in range(4):
        for par in range(2):
            e0, e1 = H + 4*k + 2*par, H + 4*k + 2*par + 1
            A(f"  v_lshlrev_b32 v{vKV}, 16, v{e0}"); A(f"  v_and_b32 v{e0}, s23, v{e0}"); A(f"  v_lshlrev_b32 v{e1}, 16, v{e1}")
            for t, r in enumerate((vKV, e0, e1)):
                A(f"  {'v_mul_f32' if k == 0 else 'v_fmac_f32'} v{M+3*par+t}, v{vS+k}, v{r}")
    A("  s_cmp_eq_u32 s34, 0"); A("  s_cbranch_scc0 L_fold")
    for i in range(6): A(f"  v_mov_b32 v{Z+i}, v{M+i}")
    A("  s_setpc_b64 s[60:61]")
    A("L_fold:")
    A(";HOP 3")
    for i in range(6): A(f"  v_permlane32_swap_b32 v{Z+i}, v{M+i}")
    for i in range(6): A(f"  v_add_f32 v{Z+i}, v{Z+i}, v{M+i}")
    A("  s_nop 0")
    for i in range(3): A(f"  v_permlane16_swap_b32 v{Z+i}, v{Z+3+i}")
    A("  s_nop 0")
    for i in range(3): A(f"  v_add_f32 v{Z+i}, v{Z+i}, v{Z+3+i}")
    for i in range(3): A(f"  v_add_f32_dpp v{Z+i}, v{Z+i}, v{Z+i} row_ror:8 row_mask:0xf bank_mask:0xf")
    for i in range(3): A(f"  v_cvt_pk_bf16_f32 v{Z+i}, v{Z+i}, v{Z+i}")
    A(f"  v_mov_b32 v{Z+3}, s46")
    A(f"  ds_write_b128 v{vT1}, v[{Z}:{Z+3}] offset:{L_C}")
    A("  s_setpc_b64 s[60:61]")
    A("L_final:")
    stamp("h", "final0"); stamp("h", "ygot")
    if stamps: A("  s_waitcnt lgkmcnt(0)")
    A(f"  s_cmp_ge_u32 s2, 160"); A(f"  s_cbranch_scc1 {'L_hst' if stamps else 'L_end'}")
    A("  s_mov_b32 s52, 0x0c0c0400"); A("  s_mov_b32 s53, 0x04000c0c"); A("  s_mov_b32 s54, 0xffffff00")
    mk = [16, 18, 20, 22, 64, 66, 68, 70]
    for k in range(8): A(f"  s_mov_b64 s[{mk[k]}:{mk[k]+1}], -1")
    A(f"  s_mov_b32 s50, {SPIN}")
    if fslp0 or fslp1: C("poll back-off: the other workgroups' records take about this long to arrive")
    if fslp1: A("  s_cmp_ge_u32 s4, 16"); A("  s_cbranch_scc1 L_fs"); A(f"  s_sleep {fslp1}"); A("L_fs:")
    if fslp2: A("  s_bitcmp0_b32 s2, 1"); A("  s_cbranch_scc1 L_fs2"); A(f"  s_sleep {fslp2}"); A("L_fs2:")
    if fslp0: A(f"  s_sleep {fslp0}")
    def yround():
        for k in range(8):
            A(f"  s_or_b64 exec, s[{mk[k]}:{mk[k]+1}], 1")
            A(f"  buffer_load_dwordx4 v[{H+4*k}:{H+4*k+3}], v{vCa}, s[36:39], s{72+k} offen {ylp}")
        A("  s_mov_b64 exec, -1")
    C("poll the 128 partial outputs; lanes that already hold their record drop out")
    for _ in range(pp - 1):
        yround(); A(f"  s_sleep {pstag}")
    A("L_fin:")
    yround()
    A(f"  s_waitcnt vmcnt({8*(pp-1)})")
    for k in range(8):
        A(f"  v_perm_b32 v{vS}, v{H+4*k+1}, v{H+4*k}, s52"); A(f"  v_perm_b32 v{vS+1}, v{H+4*k+3}, v{H+4*k+2}, s53")
        A(f"  v_or_b32 v{vS}, v{vS}, v{vS+1}"); A(f"  v_cmp_ne_u32 s[{mk[k]}:{mk[k]+1}], s46, v{vS}")
    A(f"  s_or_b64 s[48:49], s[{mk[0]}:{mk[0]+1}], s[{mk[1]}:{mk[1]+1}]")
    for k in range(2, 8): A(f"  s_or_b64 s[48:49], s[48:49], s[{mk[k]}:{mk[k]+1}]")
    A("  s_sub_u32 s50, s50, 1"); A("  s_cbranch_scc1 L_fgo")
    A("  s_cmp_eq_u64 s[48:49], 0"); A("  s_cbranch_scc0 L_fin")
    A("L_fgo:")
    stamp("h", "ygot")
    Y = H + 32
    for i in range(32): A(f"  v_and_b32 v{Y+i}, s54, v{H+i}")
    for st in (16, 8, 4):
        for i in range(0, st, 2): A(f"  v_pk_add_f32 v[{Y+i}:{Y+i+1}], v[{Y+i}:{Y+i+1}], v[{Y+st+i}:{Y+st+i+1}]")
    C("fold the four columns onto the four rows of lanes: row 0..3 = column 0,2,1,3")
    A("  s_nop 1")
    A(f"  v_permlane32_swap_b32 v{Y}, v{Y+1}"); A(f"  v_permlane32_swap_b32 v{Y+2}, v{Y+3}"); A("  s_nop 0")
    A(f"  v_add_f32 v{Y}, v{Y}, v{Y+1}"); A(f"  v_add_f32 v{Y+2}, v{Y+2}, v{Y+3}"); A("  s_nop 1")
    A(f"  v_permlane16_swap_b32 v{Y}, v{Y+2}"); A("  s_nop 0")
    A(f"  v_add_f32 v{Y}, v{Y}, v{Y+2}")
    for sh in (4, 8):
        A("  s_nop 1"); A(f"  v_add_f32_dpp v{Y}, v{Y}, v{Y} row_ror:{sh} row_mask:0xf bank_mask:0xf")
    A(f"  v_cvt_pk_bf16_f32 v{Y}, v{Y}, v{Y}")
    A("  s_mov_b32 exec_lo, 0x000f000f"); A("  s_mov_b32 exec_hi, 0x000f000f")
    A(f"  buffer_store_short v{Y}, v{vProg}, s[12:15], s35 offen {opol}")
    C("every workgroup is done with d_debug by now: leave it as it was found")
    A("  s_cmp_lg_u32 s2, 0"); A("  s_cbranch_scc1 L_nz")
    A("  s_mov_b64 exec, -1" if atom else "  s_mov_b64 exec, 1")
    A(f"  buffer_store_dword v{vZero}, v{vQa if atom else vZero}, s[8:11], 0 offen {zpol}")
    A(";HOP 9")
    A("L_nz:")
    if stamps:
        A("L_hst:")
        A("  s_waitcnt vmcnt(0)")
        stamp("h", "hend")
        dump_stamps("h", 1)
        sn = names["s"]; hn = names["h"]
        L.insert(1, "; stamps: start id " + " ".join((sn[1:] + ["id"] * 6)[:6]) + " " + " ".join((hn + ["id"] * 8)[:7]) + " last")
    A("  s_endpgm")
    import re
    def isize(l):
        op = l.split()[0]
        if op == ";": return 0
        lit = any(not (-16 <= int(t, 0) <= 64) for t in re.findall(r"(?<![\w\[:])(-?(?:0x[0-9a-f]+|\d+))(?![\w\]:])", " ".join(l.split(";")[0].split()[1:])))
        if op in ("s_waitcnt", "s_nop", "s_barrier", "s_sleep", "s_branch", "s_endpgm") or op.startswith("s_cbranch") or op.startswith("s_cmpk") or op.startswith("s_addk"): return 4
        if op.startswith("s_load") or op.startswith("s_mem"): return 8
        if op.startswith("s_"): return 8 if lit else 4
        if op in ("v_and_b32", "v_add_u32", "v_readfirstlane_b32", "v_mov_b32"): return 8 if lit else 4
        return 8
    out = []; on = False; acc = 0; cnt = 0
    for l in L:
        if l.startswith(";HOP"):
            was = on; on = int(l.split()[1]) <= warm
            if on and not was: acc = hopb
            continue
        if on and l.startswith("  "):
            if acc >= hopb:
                out.append(f"L_hop_{cnt}:"); out.append(f"  s_cbranch_execz L_hop_{cnt+1}"); cnt += 1; acc = 4
            acc += isize(l)
        out.append(l)
    if warm: out.append(f"L_hop_{cnt}:"); out.append("  s_mov_b64 exec, -1"); out.append("  s_branch L_back")
    L[:] = out
    A('.section .rodata,"a"')
    A(".p2align 6"); A(f".amdhsa_kernel {KN}")
    A(f"  .amdhsa_next_free_vgpr {ACC + NA}"); A(f"  .amdhsa_next_free_sgpr 102"); A(f"  .amdhsa_accum_offset {ACC}")
    A("  .amdhsa_group_segment_fixed_size 0"); A("  .amdhsa_kernarg_size 104"); A("  .amdhsa_user_sgpr_count 2")
    A("  .amdhsa_user_sgpr_kernarg_segment_ptr 1"); A("  .amdhsa_system_sgpr_workgroup_id_x 1")
    A(".end_amdhsa_kernel")
    open(name, "w").write("\n".join(L) + "\n")
    return name
if __name__ == "__main__":
    if len(sys.argv) > 2:
        hdr = open("concat_heads__gqa_block_cached__mha_block_cached__decode.s.ref").read().split("; Override launch")[0]
        print(gen(name=sys.argv[2], header=hdr, **eval(sys.argv[1])))
    else:
        print(" ".join(gen(**kw) for kw in eval(sys.argv[1])))
```

```python
import sys, math, struct
KN = "concat_heads__gqa_block_cached__mha_block_cached__decode_kernel"
WS = 836768768
KVBYTES = 201326592
WBYTES = 7864320
def f32hex(x): return "0x%08x" % struct.unpack("<I", struct.pack("<f", x))[0]

DOC = """;
; ---------------------------------------------------------------------------------------------------------
; ---------------------------------------------------------------------------------------------------------"""

def gen(name="f.s", header="", stamps=0, curve=False,
        lev=(7, 300, 120, 15, -200), kap=205, slp=24, lper=8, dec=2, lin=0, gain=8, prio=0, flws=0, kd=1, gpol="sc1", bpol="sc1", warm=2, hopb=120, tlb=1, order=None, srot=0, sxor=False, jrot=0, hwt=3, dl2=None, b4=2, zpol="", opol="", rmap=1, drift=0, dz=0, clean=0, fakey=0, sstep=3, ep=True, ep0=8, epp=40, epw=2, ept=999, epp2=0, epend=215, atom=True,
        wqd=7, d0=5, dn=4, dl=5, ej=28, nslp0=0, nslp=8, nloc=24,
        t_q=16, t_a=165, t_c=184, t_ml=193, t_w=198, t_f=244, nfl=2, share=True, gj=16, hw=12, t_g=229,
        fslp0=0, fslp1=0, fslp2=0, ysp="sc1", ylp="sc1", pp=1, pstag=8, SPIN=200000, YS=2688, OS=640):
    L = []; A = L.append
    def C(txt): A("  ; " + txt)
    L_CTL = 0
    L_W = 64
    L_C = L_W + 256
    L_E = L_C + 512
    L_ML = L_E + 256
    L_Q = L_ML + 512
    L_P = L_Q + 17 * 384
    PROW = 272; PWAVE = 8 * PROW
    L_Y = L_P + 4 * PWAVE + 64
    L_O = L_Y + 4096
    LDS = L_O + 16 * 6144
    assert L_Y % 16 == 0 and L_O % 16 == 0 and L_Q % 16 == 0 and L_P % 16 == 0
    W_O = 2 << 20
    W_Q = 6 << 20
    W_ML = W_Q + (128 << 10)
    W_B = W_ML + (128 << 10)
    W_G = W_B + (128 << 10)
    QLOC = 512 << 10
    GEN = 0x5aa5c33c
    vLane, vKV, vW, vZero = 1, 2, 3, 4
    vT0, vT1, vT2, vT3 = 5, 6, 7, 8
    vPa, vQa, vDa, vMLa, vCa, vProg, vMode = 9, 10, 11, 12, 13, 14, 15
    vM = 16; vB = 20; vQ = 28; vS = 40; vD = 48; vRing = 60
    vX = vQ
    NV = vRing + 96
    if curve: vCv = NV; NV += 2
    ACC = (NV + 3) // 4 * 4
    NA = 80
    H = vRing
    def ring(s, t): return vRing + 12 * s + 4 * t
    names = {"s": [], "h": []}
    sets = {1: ("start", "preB1", "ring", "B2", "vend", "oready", "end", "nonce", "qtab", "flush0", "flushed", "ygot", "hend"),
            2: ("start", "vend", "woiss", "oready", "ystore", "end", "flush0", "flushed", "hready", "final0", "ygot", "hend")}
    def stamp(who, nm, again=False):
        if nm not in sets.get(stamps, ()): return
        if nm not in names[who]: names[who].append(nm)
        k = names[who].index(nm); assert k < 8
        A(f"  s_memrealtime s[{84+2*k}:{85+2*k}]")
    def dump_stamps(who, rec):
        n = len(names[who])
        A("  s_getreg_b32 s100, hwreg(HW_REG_XCC_ID)"); A("  s_getreg_b32 s101, hwreg(HW_REG_HW_ID)")
        A("  s_waitcnt vmcnt(0) lgkmcnt(0)")
        A(f"  s_lshl_b32 s47, s2, 7"); A(f"  s_add_u32 s47, s47, {WS - (1<<20) + 64*rec}")
        if who == "s": regs = [84, 85, 100, 101] + sum([[84+2*min(k, n-1), 85+2*min(k, n-1)] for k in range(1, 7)], [])
        else: regs = sum([[84+2*min(k, n-1), 85+2*min(k, n-1)] for k in range(8)], [])
        A("  s_mov_b64 exec, 1")
        for i in range(16): A(f"  v_mov_b32 v{vRing+i}, s{regs[i]}")
        for i in range(4): A(f"  buffer_store_dwordx4 v[{vRing+4*i}:{vRing+4*i+3}], v{vZero}, s[36:39], s47 offen offset:{16*i}")

    A(header + f"; @launch grid=(256,1,1) block=(320,1,1) lds={LDS}")
    A(DOC)
    A('.amdgcn_target "amdgcn-amd-amdhsa--gfx950"')
    A(".text"); A(f".globl {KN}"); A(".p2align 8"); A(f".type {KN},@function"); A(f"{KN}:")
    A("  s_cmp_ge_u32 s2, 256"); A("  s_cbranch_scc1 L_end")
    A("  s_load_dwordx16 s[64:79], s[0:1], 0")
    A("  s_load_dwordx4 s[80:83], s[0:1], 64")
    A("  s_load_dwordx4 s[40:43], s[0:1], 88")
    if curve: A("  s_memrealtime s[96:97]"); A(f"  v_mov_b32 v{vCv}, 0"); A(f"  v_mov_b32 v{vCv+1}, 0")
    stamp("s", "start"); names["h"] = ["hstart"] if stamps else []
    A(f"  v_lshrrev_b32 v{vT0}, 6, v0"); A(f"  v_and_b32 v{vLane}, 63, v0")
    A(f"  v_readfirstlane_b32 s5, v{vT0}     ; wave")
    A(f"  v_lshrrev_b32 v{vT1}, 3, v{vLane}    ; l/8"); A(f"  v_and_b32 v{vT2}, 7, v{vLane}        ; l%8")
    A("  s_and_b32 s3, s2, 7             ; x"); A("  s_lshr_b32 s4, s2, 3            ; j")
    A("  s_cmp_eq_u32 s5, 4"); A("  s_cbranch_scc1 L_tag")
    C("q item of workgroup j < 24: problem (j>>2)&1, head 8*(j&3)+x, 64-column block j>>3; rows 160*w + 20*(l/8) + i")
    A(f"  v_mul_u32_u24 v{vW}, {20*12288}, v{vT1}"); A(f"  v_lshl_add_u32 v{vW}, v{vT2}, 4, v{vW}")
    A("  s_and_b32 s28, s2, 31"); A("  s_mul_i32 s28, s28, 3"); A("  s_lshr_b32 s47, s2, 6"); A("  s_add_u32 s28, s28, s47"); A("  s_lshl_b32 s28, s28, 7")
    A(f"  s_mul_i32 s47, s5, {160*12288}"); A("  s_add_u32 s28, s28, s47")
    A(f"  s_mov_b32 s26, {WBYTES}"); A("  s_mov_b32 s27, 0x20000")
    A("  s_bitcmp1_b32 s2, 5")
    A("  s_waitcnt lgkmcnt(0)")
    A("  s_cselect_b32 s24, s80, s70"); A("  s_cselect_b32 s25, s81, s71")
    A("  s_cselect_b32 s32, s74, s64"); A("  s_cselect_b32 s33, s75, s65")
    order = order or [(k * sstep) % 8 for k in range(8)]
    tab = bool(srot or jrot); assert order[0] == 0 and not (tab and stamps)
    def kv_load(n):
        s, t = divmod(n, 3)
        A(f"  buffer_load_dwordx4 v[{ring(s,t)}:{ring(s,t)+3}], v{vKV}, s[8:11], s12 offen offset:{128*t} nt")
        if t == 2 and s < 7:
            if tab: A(f"  s_add_u32 s12, s22, s{85+s}")
            else:
                d = (order[s+1] - order[s]) * 393216
                A(f"  s_add_u32 s12, s12, {d}" if d > 0 else f"  s_sub_u32 s12, s12, {-d}")
    def kvsetup():
        A(f"  v_mul_u32_u24 v{vKV}, {384*kd}, v{vT1}"); A(f"  v_lshl_add_u32 v{vKV}, v{vT2}, 4, v{vKV}")
        A("  s_lshl_b32 s13, s4, 2"); A("  s_add_u32 s13, s13, s5")
        if kd == 1: A("  s_mul_i32 s13, s13, 3072")
        else:
            A(f"  s_and_b32 s47, s13, {kd-1}"); A("  s_sub_u32 s13, s13, s47"); A("  s_lshl_b32 s13, s13, 3"); A("  s_add_u32 s13, s13, s47"); A("  s_mul_i32 s13, s13, 384")
        A("  s_mul_i32 s47, s3, 3145728"); A("  s_add_u32 s13, s13, s47"); A("  s_mov_b32 s12, s13")
        if tab:
            A(f"  s_mul_i32 s47, s3, {srot}")
            if jrot: A(f"  s_lshr_b32 s48, s4, {jrot[0]}"); A(f"  s_mul_i32 s48, s48, {jrot[1]}"); A("  s_add_u32 s47, s47, s48")
            for k in range(8):
                A(f"  {'s_xor_b32' if sxor else 's_add_u32'} s48, s47, {order[k]}"); A("  s_and_b32 s48, s48, 7"); A(f"  s_mul_i32 s{84+k}, s48, 393216")
            A("  s_mov_b32 s22, s13"); A("  s_add_u32 s12, s22, s84")
        A("  s_mov_b32 s8, s66"); A("  s_mov_b32 s9, s67"); A(f"  s_mov_b32 s10, {KVBYTES}"); A("  s_mov_b32 s11, 0x20000")
    def masks():
        C("masks that put a bf16 on the diagonal of the first MFMA operand")
        A(f"  v_and_b32 v{vT0}, 1, v{vT2}"); A(f"  v_lshlrev_b32 v{vT0}, 4, v{vT0}")
        A(f"  v_mov_b32 v{vT3}, 0xffff"); A(f"  v_lshlrev_b32 v{vT0}, v{vT0}, v{vT3}")
        A(f"  v_lshrrev_b32 v{vT3}, 1, v{vT2}")
        for q in range(4):
            A(f"  v_cmp_eq_u32 vcc, {q}, v{vT3}"); A("  s_nop 1"); A(f"  v_cndmask_b32 v{vM+q}, 0, v{vT0}, vcc")
    def consts():
        A(f"  v_mov_b32 v{vZero}, 0")
        masks()
        A("  s_mov_b32 s54, 0x00ff00ff"); A("  s_mov_b32 s55, 0xff00ff00")
    wosetup = ["  s_cmp_ge_u32 s4, 16", "  s_cselect_b32 s24, s82, s72", "  s_cselect_b32 s25, s83, s73",
               "  s_lshr_b32 s47, s4, 2", "  s_and_b32 s47, s47, 3", "  s_lshl_b32 s47, s47, 3", "  s_add_u32 s47, s47, s3", "  s_mul_i32 s47, s47, 12",
               "  s_and_b32 s48, s4, 3", "  s_add_u32 s47, s47, s48", f"  s_mul_i32 s47, s47, {16*1280}", "  s_lshl_b32 s48, s5, 8", "  s_add_u32 s28, s47, s48",
               f"  v_lshrrev_b32 v{vW}, 4, v{vLane}", f"  v_mul_u32_u24 v{vW}, 1280, v{vW}", f"  v_and_b32 v{vT3}, 15, v{vLane}", f"  v_lshl_add_u32 v{vW}, v{vT3}, 4, v{vW}"]
    def wo_load(i, wait):
        if wait is not None: A(f"  s_waitcnt vmcnt({wait})")
        A(f"  buffer_load_dwordx4 a[{4*i}:{4*i+3}], v{vW}, s[24:27], s28 offen nt")
        if i < 11: A("  s_addk_i32 s28, 5120" if i % 4 < 3 else f"  s_add_u32 s28, s28, {81920 - 3*5120}")
    if prio == 3: A("  s_setprio 3")
    A("  s_cmp_ge_u32 s4, 24"); A("  s_cbranch_scc1 L_noq")
    def wq_load(i):
        A(f"  buffer_load_dwordx4 a[{4*i}:{4*i+3}], v{vW}, s[24:27], s28 offen nt")
        if i < 19: A("  s_addk_i32 s28, 12288")
    nq = wqd; assert 2 * nq <= 20
    for i in range(nq): wq_load(i)
    A("  s_branch L_xld")
    A("L_tag:")
    C("helper wave: workgroup 0 publishes the launch tag")
    A("  s_memrealtime s[48:49]")
    A(f"  v_mov_b32 v{vZero}, 0")
    A("  s_mov_b32 s10, 256"); A("  s_mov_b32 s11, 0x20000")
    A("  s_waitcnt lgkmcnt(0)")
    A("  s_mov_b32 s8, s40"); A("  s_mov_b32 s9, s41")
    A("  s_or_b32 s46, s48, 1"); A("  s_mul_i32 s46, s46, 0x9e3779b1")
    A("  s_cmp_lg_u32 s2, 0"); A("  s_cbranch_scc1 L_helper")
    A(f"  v_mov_b32 v{vT0}, s46"); A("  s_mov_b64 exec, 1")
    A(f"  buffer_store_dword v{vT0}, v{vZero}, s[8:11], 0 offen sc1")
    A("  s_mov_b64 exec, -1"); A("  s_branch L_helper")
    A("L_xld:")
    A(f"  v_mul_u32_u24 v{vT0}, 40, v{vT1}"); A("  s_mul_i32 s29, s5, 320")
    A("  s_mov_b32 s34, 2560"); A("  s_mov_b32 s35, 0x20000")
    for b in range(2):
        A(f"  buffer_load_dwordx4 v[{vX+10*b}:{vX+10*b+3}], v{vT0}, s[32:35], s29 offen offset:{1280*b}")
        A(f"  buffer_load_dwordx4 v[{vX+10*b+4}:{vX+10*b+7}], v{vT0}, s[32:35], s29 offen offset:{1280*b+16}")
        A(f"  buffer_load_dwordx2 v[{vX+10*b+8}:{vX+10*b+9}], v{vT0}, s[32:35], s29 offen offset:{1280*b+32}")
    consts(); kvsetup()
    A("  s_mov_b32 s52, 0x01000100"); A("  s_mov_b32 s53, 0x03020302")
    def qstep(i):
        for b in range(2):
            A(f"  v_perm_b32 v{vT0}, v{vX+10*b+i//2}, v{vX+10*b+i//2}, s{52+(i&1)}")
            for q in range(4): A(f"  v_and_b32 v{vB+4*b+q}, v{vT0}, v{vM+q}")
        for b in range(2):
            if b == 1: A("  s_nop 0")
            c = f"v[{vD+4*b}:{vD+4*b+3}]" if i else "0"
            A(f"  v_mfma_f32_16x16x32_bf16 v[{vD+4*b}:{vD+4*b+3}], v[{vB+4*b}:{vB+4*b+3}], a[{4*i}:{4*i+3}], {c}")
    C("q projection for both batch rows; the first K tiles follow the wq rows")
    nk = 0; done = 0
    for i in range(20):
        A(f"  s_waitcnt vmcnt({nq - 1 - i + nk + (6 if i < wqd else 0)})")
        if nq < 20: wq_load(nq); nq += 1
        else:
            while (19 - i + nk) < d0: kv_load(nk); nk += 1
        if i >= wqd:
            for _ in range(2):
                if done <= i: qstep(done); done += 1
    assert done == 20 and nk == d0
    A(f"  v_lshrrev_b32 v{vT0}, 5, v{vLane}"); A(f"  v_lshlrev_b32 v{vT0}, 9, v{vT0}")
    A(f"  v_lshl_add_u32 v{vT0}, v{vT2}, 5, v{vT0}")
    A(f"  v_and_b32 v{vT3}, 16, v{vLane}"); A(f"  v_add_u32 v{vT0}, v{vT0}, v{vT3}")
    A("  s_lshl_b32 s47, s5, 10"); A(f"  v_add_u32 v{vT0}, s47, v{vT0}")
    A("  s_nop 0")
    A("  s_mov_b64 exec, s[54:55]")
    for b in range(2): A(f"  ds_write_b128 v{vT0}, v[{vD+4*b}:{vD+4*b+3}] offset:{L_Y + 256*b}")
    A("  s_mov_b64 exec, -1")
    stamp("s", "preB1")
    A("  s_waitcnt lgkmcnt(0)"); A("  s_barrier                       ; B1: q partials")
    A("  s_branch L_qdone")
    A("L_noq:")
    kvsetup()
    for n in range(dn): kv_load(n)
    consts()
    for n in range(dn, d0):
        A(f"  s_waitcnt vmcnt({dn-1})"); kv_load(n)
    stamp("s", "preB1")
    A("L_qdone:")
    C("fill the ring with the first head while q is exchanged")
    rest = []
    R = rest.append
    R([f"  s_mul_i32 s47, s5, {PWAVE}", f"  s_add_u32 s47, s47, {L_P}", f"  v_mul_u32_u24 v{vPa}, {PROW}, v{vT1}", f"  v_add_u32 v{vPa}, s47, v{vPa}"])
    R([f"  v_lshlrev_b32 v{vQa}, 4, v{vT2}", f"  s_lshl_b32 s47, s5, 3", f"  v_mov_b32 v{vMLa}, s47", f"  s_lshl_b32 s47, s5, 2", f"  v_mov_b32 v{vCa}, s47", f"  v_mov_b32 v{vProg}, 0"])
    R([f"  v_lshrrev_b32 v{vDa}, 5, v{vLane}", f"  v_mul_u32_u24 v{vDa}, 768, v{vDa}", f"  v_lshl_add_u32 v{vDa}, v{vT2}, 5, v{vDa}",
       f"  v_and_b32 v{vT3}, 16, v{vLane}", f"  v_add_u32 v{vDa}, v{vDa}, v{vT3}", "  s_mul_i32 s47, s5, 1536", f"  s_add_u32 s47, s47, {L_O}", f"  v_add_u32 v{vDa}, s47, v{vDa}"])
    R(["  s_mov_b32 s16, s68", "  s_mov_b32 s17, s69", "  s_mov_b32 s18, s76", "  s_mov_b32 s19, s77", "  s_mov_b32 s20, s78", "  s_mov_b32 s21, s79"])
    R(wosetup)
    R(["  s_mov_b32 s36, s42", "  s_mov_b32 s37, s43", f"  s_mov_b32 s38, {WS}", "  s_mov_b32 s39, 0x20000", "  s_mov_b32 s14, 0", "  s_mov_b32 s15, 0x20000"])
    R([f"  s_mov_b32 s58, {f32hex(192 ** -0.5 * math.log2(math.e))}      ; log2(e)/sqrt(192)", "  s_mov_b32 s44, 0", f"  s_mov_b32 s45, {lev[-2] + 1}", "  s_mov_b32 s30, 0"])
    A("  s_cmp_ge_u32 s4, 24"); A("  s_cselect_b64 vcc, -1, 0")
    A(f"  s_cmp_ge_u32 s4, {ej}"); A("  s_cselect_b64 vcc, 0, vcc")
    for n in range(d0, 24):
        A(f"  s_waitcnt vmcnt({d0-1})")
        A(f"  s_cbranch_vccz L_rf{n}"); A(f"  s_waitcnt vmcnt({dn-1})"); A(f"L_rf{n}:")
        kv_load(n)
        if rest:
            for x in rest.pop(0): A(x)
    assert not rest
    if ej < 32:
        C("workgroups that wait for the very last partial o fetch their wo rows now")
        A(f"  s_cmp_lt_u32 s4, {ej}"); A("  s_cbranch_scc1 L_noearly")
        for i in range(12): wo_load(i, d0 - 1)
        A("L_noearly:")
    stamp("s", "ring")
    A("  s_barrier")
    for t in range(3): A(f"  ds_read_b128 v[{vQ+4*t}:{vQ+4*t+3}], v{vQa} offset:{L_Q + 128*t}")
    stamp("s", "B2")
    A("  s_waitcnt lgkmcnt(0)")
    def throttle(tag):
        A(f"  s_waitcnt vmcnt({lev[0]})")
        for k, th in enumerate(lev[1:]):
            A(f"  s_cmpk_gt_i32 s45, {th & 0xffff:#x}"); A(f"  s_cbranch_scc1 {tag}"); A(f"  s_waitcnt vmcnt({lev[0]-1-k})")
        A(f"{tag}:")
    def switch(tag):
        C("round it consumes head it and fetches head it+1; every 8 rounds the next buffer")
        A("  s_add_u32 s47, s44, 1"); A("  s_and_b32 s47, s47, 7"); A(f"  s_cbranch_scc1 {tag}")
        A("  s_mov_b32 s8, s16"); A("  s_mov_b32 s9, s17")
        for k in range(4): A(f"  s_mov_b32 s{16+k}, s{18+k}")
        A(f"{tag}:")
        A(f"  s_mul_i32 s47, s47, {8*3145728}"); A("  s_add_u32 s12, s13, s47")
        if tab: A("  s_mov_b32 s22, s12"); A("  s_add_u32 s12, s22, s84")
    def body(tag, gaps):
        for n in range(24):
            s, j = divmod(n, 3)
            for x in gaps.get(n, []): A(x)
            if j == 2:
                A("  s_waitcnt lgkmcnt(0)")
                A(f"  v_readfirstlane_b32 s31, v{vMode}")
                A(f"  s_mul_i32 s56, s56, {kap}"); A("  s_lshr_b32 s56, s56, 6"); A("  s_sub_u32 s56, s56, s30"); A("  s_addk_i32 s30, 128")
                A("  s_add_u32 s56, s56, s31"); A("  s_sext_i32_i16 s56, s56")
                A("  s_bitcmp0_b32 s31, 31"); A("  s_cselect_b32 s45, s56, s45")
            throttle(f"{tag}_{n}")
            kv_load(n)
            if j == 1:
                A(f"  ds_read_b32 v{vMode}, v{vZero} offset:{L_CTL+32}"); A("  s_memrealtime s[56:57]")
            if j == 2:
                A(f"  v_add_u32 v{vProg}, 1, v{vProg}"); A(f"  ds_write_b32 v{vCa}, v{vProg} offset:{L_CTL+16}")
    def xred(op, t, u):
        return [f"  s_nop 1", f"  {op}_dpp v{t}, v{t}, v{t} row_ror:8 row_mask:0xf bank_mask:0xf",
                f"  v_mov_b32 v{u}, v{t}", "  s_nop 1", f"  v_permlane16_swap_b32 v{t}, v{u}", "  s_nop 0", f"  {op} v{t}, v{t}, v{u}",
                f"  v_mov_b32 v{u}, v{t}", "  s_nop 1", f"  v_permlane32_swap_b32 v{t}, v{u}", "  s_nop 0", f"  {op} v{t}, v{t}, v{u}"]
    kg = {}
    for s in range(4):
        for j in range(2):
            T = 2 * s + j
            kg[3*s+j] = [f"  s_waitcnt vmcnt({3*(7-T) + 3*s + j})"] + \
                        [f"  v_dot2_f32_bf16 v{vS+T}, v{ring(T,0)+k}, v{vQ+k}, {('v%d' % (vS+T)) if k else '0'}" for k in range(12)]
        g = []
        for pat in ("quad_perm:[1,0,3,2]", "quad_perm:[2,3,0,1]", "row_half_mirror"):
            g += ["  s_nop 0"] + [f"  v_add_f32_dpp v{vS+T}, v{vS+T}, v{vS+T} {pat} row_mask:0xf bank_mask:0xf" for T in (2*s, 2*s+1)]
        kg[3*s+2] = g
    kg[12] = [f"  v_add_u32 v{vQa}, 384, v{vQa}",
              f"  v_max3_f32 v{vT0}, v{vS}, v{vS+1}, v{vS+2}", f"  v_max3_f32 v{vT0}, v{vT0}, v{vS+3}, v{vS+4}",
              f"  v_max3_f32 v{vT0}, v{vT0}, v{vS+5}, v{vS+6}", f"  v_max_f32 v{vT0}, v{vT0}, v{vS+7}"] + \
             [f"  ds_read_b128 v[{vQ+4*t}:{vQ+4*t+3}], v{vQa} offset:{L_Q + 128*t}" for t in range(3)]
    kg[13] = xred("v_max_f32", vT0, vT1) + [f"  v_mul_f32 v{vD}, s58, v{vT0}"]
    kg[14] = [f"  v_fma_f32 v{vS+i}, v{vS+i}, s58, -v{vD}" for i in range(8)]
    kg[15] = [f"  v_exp_f32 v{vS+i}, v{vS+i}" for i in range(8)]
    kg[16] = [f"  v_add_f32 v{vD+1}, v{vS}, v{vS+1}"] + [f"  v_add_f32 v{vD+1}, v{vD+1}, v{vS+i}" for i in range(2, 8)]
    kg[17] = [f"  v_cvt_pk_bf16_f32 v{vS+i}, v{vS+i}, v{vS+i}" for i in range(8)]
    kg[18] = [f"  ds_write_b128 v{vPa}, v[{vS}:{vS+3}]", f"  ds_write_b128 v{vPa}, v[{vS+4}:{vS+7}] offset:16", f"  v_add_u32 v{vPa}, 32, v{vPa}"]
    kg[19] = xred("v_add_f32", vD+1, vT1)
    kg[21] = [f"  ds_write_b64 v{vMLa}, v[{vD}:{vD+1}] offset:{L_ML}", f"  v_add_u32 v{vMLa}, 32, v{vMLa}"]
    def vtile(T, wait):
        b = vB + 4 * (T & 1)
        g = [f"  v_and_b32 v{b+q}, v{vS+T}, v{vM+q}" for q in range(4)] + [f"  s_waitcnt vmcnt({wait})", "  s_nop 0"]
        for t in range(3):
            c = f"v[{vD+4*t}:{vD+4*t+3}]" if T else "0"
            g.append(f"  v_mfma_f32_16x16x32_bf16 v[{vD+4*t}:{vD+4*t+3}], v[{b}:{b+3}], v[{ring(T,t)}:{ring(T,t)+3}], {c}")
        return g
    dump = ["  s_mov_b64 exec, s[54:55]"] + [f"  ds_write_b128 v{vDa}, v[{vD+4*t}:{vD+4*t+3}] offset:{256*t}" for t in range(3)] + ["  s_mov_b64 exec, -1"]
    pread = [f"  ds_read_b128 v[{vS}:{vS+3}], v{vPa}", f"  ds_read_b128 v[{vS+4}:{vS+7}], v{vPa} offset:16"]
    vg = {}
    for s in range(4):
        for j in range(2): vg[3*s+j] = vtile(2*s+j, 3*(7-(2*s+j)) + 3*s + j)
    vg[12] = ["  s_nop 7"] + dump + [f"  v_add_u32 v{vDa}, 6144, v{vDa}", f"  v_add_u32 v{vPa}, 32, v{vPa}"]
    vg[13] = pread
    def cstamp():
        if not curve: return
        A("  s_memrealtime s[98:99]"); A("  s_mov_b32 m0, s44"); A("  s_waitcnt lgkmcnt(0)")
        A(f"  v_writelane_b32 v{vCv}, s98, m0"); A(f"  v_writelane_b32 v{vCv+1}, s99, m0")
    A("L_kloop:")
    switch("L_ksw")
    body("L_k", kg); cstamp()
    A("  s_add_u32 s44, s44, 1"); A("  s_and_b32 s47, s44, 7"); A("  s_cbranch_scc1 L_kloop")
    A(";HOP 1")
    A(f"  v_subrev_u32 v{vPa}, 256, v{vPa}")
    for x in pread: A(x)
    A("  s_waitcnt lgkmcnt(0)")
    A("L_vloop:")
    switch("L_vsw")
    body("L_v", vg); cstamp()
    A("  s_add_u32 s44, s44, 1")
    A("  s_cmp_eq_u32 s44, 31"); A("  s_cbranch_scc1 L_last")
    A("  s_and_b32 s47, s44, 7"); A("  s_cbranch_scc1 L_vloop")
    A(f"  v_subrev_u32 v{vPa}, 256, v{vPa}")
    A("  s_branch L_kloop")
    A(";HOP 2")
    A("L_last:")
    C("last round: the wo rows are the end of the stream and cover the exchange of the last partial o")
    def last(m):
        sched = {1: [0, 1], 2: [2, 3], 3: [4, 5], dl - 1: [6], dl: [7]}
        if dl < 5:
            sched = {0: [0, 1, 2, 3, 4, 5]}; sched.setdefault(dl - 1, []).append(6); sched.setdefault(dl, []).append(7)
        for k in range(max(m, dl + 1)):
            for T in sched.get(k, []):
                for x in vtile(T, 3*(7-T) + min(k, m)): A(x)
            if k == dl:
                A(f"  v_add_u32 v{vProg}, 8, v{vProg}"); A("  s_nop 5")
                for x in dump: A(x)
                A(f"  ds_write_b32 v{vCa}, v{vProg} offset:{L_CTL+16}")
                stamp("s", "vend")
            if k < m: wo_load(k, (dl if k < dl or not dl2 else dl2) - 1)
        stamp("s", "woiss")
    if ej < 32:
        A(f"  s_cmp_lt_u32 s4, {ej}"); A("  s_cbranch_scc1 L_last1")
        last(0)
        A("  s_branch L_proj")
        A("L_last1:")
    last(12)
    A("L_proj:")
    C("all five waves: y[2][128 columns] = o[2][48 rows] * wo")
    A(f"  v_and_b32 v{vT0}, 8, v{vLane}"); A(f"  v_and_b32 v{vT1}, 48, v{vLane}"); A(f"  v_lshl_add_u32 v{vT0}, v{vT0}, 5, v{vT1}      ; (16*b + g)*16")
    A(f"  v_lshrrev_b32 v{vT1}, 5, v{vLane}"); A(f"  v_mul_u32_u24 v{vT1}, {128*YS - 512}, v{vT1}"); A(f"  v_lshl_add_u32 v{vT1}, v{vLane}, 4, v{vT1}")
    A("  s_lshr_b32 s47, s4, 4"); A(f"  s_mul_i32 s47, s47, {256*YS}")
    A("  s_and_b32 s48, s2, 127"); A(f"  s_mul_i32 s48, s48, {YS}"); A("  s_add_u32 s47, s47, s48")
    A("  s_lshl_b32 s48, s5, 9"); A("  s_add_u32 s47, s47, s48")
    for i in range(4): A(f"  s_mov_b32 s{52+i}, 0x0706050{i}")
    A("  s_waitcnt lgkmcnt(0)")
    A("  s_barrier")
    G = vRing
    for u in range(4): A(f"  ds_read_b128 v[{G+4*u}:{G+4*u+3}], v{vT0} offset:{L_C + 64*u}")
    if stamps:
        A("  s_cmp_eq_u32 s5, 4"); A("  s_cbranch_scc1 L_nost"); stamp("s", "oready"); A("L_nost:")
    A("  s_waitcnt lgkmcnt(0)")
    def diag(i):
        tp, u = divmod(i, 4)
        for q in range(4): A(f"  v_and_b32 v{G+16+4*i+q}, v{G+4*u+tp}, v{vM+q}")
    diag(0); diag(1)
    nd = 2
    for i in range(12):
        A(f"  s_waitcnt vmcnt({11-i})")
        cc = f"v[{vD}:{vD+3}]" if i else "0"
        A(f"  v_mfma_f32_16x16x32_bf16 v[{vD}:{vD+3}], v[{G+16+4*i}:{G+19+4*i}], a[{4*i}:{4*i+3}], {cc}")
        for _ in range(2 if i >= 2 else 1):
            if nd < 12: diag(nd); nd += 1
    A("  s_nop 7")
    C("the low byte of each value carries one byte of the launch tag")
    for r in range(4): A(f"  v_perm_b32 v{vD+r}, v{vD+r}, v{G+3}, s{52+r}")
    if fakey: A(f"  s_mov_b32 exec_lo, {-1 if fakey == 1 else 0xffff if fakey == 2 else 0xff}"); A("  s_mov_b32 exec_hi, 0")
    A(f"  buffer_store_dwordx4 v[{vD}:{vD+3}], v{vT1}, s[36:39], s47 offen {ysp}")
    if fakey: A("  s_mov_b64 exec, -1")
    if b4 == 2: A("  s_waitcnt vmcnt(0)")
    if b4: A("  s_barrier")
    A("  s_cmp_eq_u32 s5, 4"); A("  s_cbranch_scc1 L_final")
    if clean:
        C("write the last o records through now, while the partial outputs travel, instead of at the end of the launch")
        for r in range(clean):
            A(f"  s_mul_i32 s47, s5, 6144"); A(f"  s_add_u32 s47, s47, {L_O + (12-4*r)*6144}"); A(f"  v_lshl_add_u32 v{vT0}, v{vLane}, 4, s47")
            A(f"  ds_read_b128 v[{vS}:{vS+3}], v{vT0}")
            A(f"  s_mul_i32 s47, s3, {512*OS}"); A(f"  s_mul_i32 s48, s4, {OS}"); A("  s_add_u32 s47, s47, s48")
            A(f"  s_mul_i32 s48, s5, {32*OS}"); A("  s_add_u32 s47, s47, s48"); A(f"  s_add_u32 s47, s47, {W_O + (4-4*r)*32*OS}")
            A(f"  v_lshlrev_b32 v{vT0}, 4, v{vLane}")
            A("  s_waitcnt lgkmcnt(0)"); A("  s_mov_b32 exec_hi, 0")
            A(f"  buffer_store_dwordx4 v[{vS}:{vS+3}], v{vT0}, s[36:39], s47 offen sc1")
            A("  s_nop 1")
    A(";HOP 9")
    if curve:
        A("  s_cmp_lg_u32 s5, 0"); A("  s_cbranch_scc1 L_end")
        A("  s_getreg_b32 s100, hwreg(HW_REG_XCC_ID)")
        A(f"  s_mul_i32 s47, s2, {144 if curve == 1 else 264}"); A(f"  s_add_u32 s47, s47, {WS - (1<<20)}")
        A(f"  v_lshlrev_b32 v{vT0}, {2 if curve == 1 else 3}, v{vLane}"); A(f"  v_add_u32 v{vT0}, 16, v{vT0}")
        A(f"  s_mov_b32 exec_lo, {0x55555555 if curve == 1 else 0x7fffffff:#x}"); A("  s_mov_b32 exec_hi, 0")
        A(f"  buffer_store_dwordx2 v[{vCv}:{vCv+1}], v{vT0}, s[36:39], s47 offen")
        A("  s_mov_b64 exec, 1")
        A(f"  v_mov_b32 v{vRing}, s96"); A(f"  v_mov_b32 v{vRing+1}, s97"); A(f"  v_mov_b32 v{vRing+2}, s100"); A(f"  v_mov_b32 v{vRing+3}, 0")
        A(f"  buffer_store_dwordx4 v[{vRing}:{vRing+3}], v{vZero}, s[36:39], s47 offen")
    if stamps:
        A("  s_cmp_lg_u32 s5, 0"); A("  s_cbranch_scc1 L_end")
        stamp("s", "ystore")
        A("  s_waitcnt vmcnt(0)")
        stamp("s", "end")
        dump_stamps("s", 0)
    A("L_end:"); A("  s_endpgm")
    vE = vD + 2
    A("L_helper:")
    if prio == 1: A("  s_setprio 3")
    A(f"  v_mov_b32 v{H}, 0"); A(f"  v_mov_b32 v{H+1}, 0"); A(f"  v_mov_b32 v{H+2}, 0"); A(f"  v_mov_b32 v{H+3}, 0"); A(f"  v_mov_b32 v{H+4}, -1")
    A(f"  ds_write_b128 v{vZero}, v[{H}:{H+3}] offset:{L_CTL+16}"); A(f"  ds_write_b32 v{vZero}, v{H+4} offset:{L_CTL+32}")
    A("  s_mov_b32 s36, s42"); A("  s_mov_b32 s37, s43"); A(f"  s_mov_b32 s38, {WS}"); A("  s_mov_b32 s39, 0x20000")
    masks()
    for x in wosetup: A(x)
    A(f"  s_mov_b32 s26, {WBYTES}"); A("  s_mov_b32 s27, 0x20000")
    A(f"  v_lshlrev_b32 v{vT0}, 3, v{vLane}"); A(f"  v_lshlrev_b32 v{vT3}, 4, v{vLane}"); A(f"  v_lshlrev_b32 v{vQa}, 2, v{vLane}")
    A(f"  s_mul_i32 s12, s3, {24*512}"); A(f"  s_add_u32 s12, s12, {W_Q}")
    A("  s_and_b32 s13, s4, 7"); A("  s_mul_i32 s13, s13, 3"); A("  s_lshr_b32 s14, s4, 3"); A("  s_add_u32 s13, s13, s14")
    A("  s_lshl_b32 s13, s13, 9"); A("  s_add_u32 s13, s13, s12")
    A("  s_add_u32 s14, s12, 4096"); A("  s_add_u32 s15, s12, 8192")
    def tlbtouch():
        C("touch the pages of round j (and of this workgroup's wo rows) once, so that their translations are cached in time")
        A("  s_bitcmp1_b32 s4, 3"); A("  s_cselect_b32 s20, s68, s66"); A("  s_cselect_b32 s21, s69, s67"); A("  s_cselect_b32 s22, s78, s76"); A("  s_cselect_b32 s23, s79, s77")
        A("  s_bitcmp1_b32 s4, 4"); A("  s_cselect_b32 s20, s22, s20"); A("  s_cselect_b32 s21, s23, s21")
        A("  s_and_b32 s47, s2, 63"); A("  s_mul_i32 s47, s47, 3145728")
        A("  s_add_u32 s20, s20, s47"); A("  s_addc_u32 s21, s21, 0")
        A("  s_load_dword s52, s[20:21], 0"); A("  s_load_dword s53, s[20:21], 0xffffc")
        A("  s_add_u32 s22, s20, 0x200000"); A("  s_addc_u32 s23, s21, 0")
        A("  s_load_dword s54, s[22:23], 0"); A("  s_load_dword s55, s[22:23], 0xffffc")
        A("  s_add_u32 s16, s24, s28"); A("  s_addc_u32 s17, s25, 0"); A("  s_load_dword s56, s[16:17], 0")
        C("(words of d_ws that nothing else uses, one per page; the values are ignored)")
        assert share
        A(f"  s_add_u32 s18, s42, {W_O - 4}"); A("  s_addc_u32 s19, s43, 0"); A("  s_load_dword s57, s[18:19], 0"); A(f"  s_load_dword s58, s[18:19], {9*32*OS + 4}")
        A(f"  s_add_u32 s30, s42, {W_Q - 4}"); A("  s_addc_u32 s31, s43, 0"); A("  s_load_dword s59, s[30:31], 0"); A("  s_load_dword s62, s[30:31], 0xf0004")
        A("  s_waitcnt lgkmcnt(0)")
    if tlb == 1: tlbtouch()
    A("  s_cmp_eq_u32 s2, 0"); A("  s_cbranch_scc1 L_nhave")
    A(f"  s_mov_b32 s50, {SPIN}")
    C("wait for the launch tag")
    if nslp0: A(f"  s_sleep {nslp0}")
    A("L_nloop:")
    A(f"  buffer_load_dword v{H}, v{vZero}, s[8:11], 0 offen sc1"); A("  s_waitcnt vmcnt(0)")
    A(f"  v_readfirstlane_b32 s46, v{H}")
    A("  s_sub_u32 s50, s50, 1"); A("  s_cbranch_scc1 L_nhave")
    A("  s_cmp_lg_u32 s46, 0"); A("  s_cbranch_scc1 L_nhave")
    A(f"  s_sleep {nslp}"); A("  s_branch L_nloop")
    A("L_nhave:")
    stamp("h", "nonce")
    A("  s_waitcnt lgkmcnt(0)")
    A("  s_cmp_ge_u32 s4, 24"); A("  s_cbranch_scc1 L_hq2")
    A("  s_barrier                       ; B1")
    for k in range(8): A(f"  ds_read_b64 v[{H+2*k}:{H+2*k+1}], v{vT0} offset:{L_Y + 512*k}")
    for k in range(1, 8):
        A(f"  s_waitcnt lgkmcnt({7-k})")
        for r in range(2): A(f"  v_add_f32 v{H+r}, v{H+r}, v{H+2*k+r}")
    A(f"  v_cvt_pk_bf16_f32 v{vD}, v{H}, v{H+1}"); A(f"  v_mov_b32 v{vD+1}, s46")
    def qglob(tag):
        A("  s_cmp_ge_u32 s4, 24"); A(f"  s_cbranch_scc1 {tag}")
        A(f"  buffer_store_dwordx2 v[{vD}:{vD+1}], v{vT0}, s[36:39], s13 offen sc1")
        A(f"{tag}:")
    A(f"  s_add_u32 s47, s13, {QLOC}")
    A(f"  buffer_store_dwordx2 v[{vD}:{vD+1}], v{vT0}, s[36:39], s47 offen")
    A("L_hq2:")
    A(f"  v_and_b32 v{vT1}, 16, v{vLane}"); A(f"  v_mul_u32_u24 v{vT1}, 96, v{vT1}")
    A(f"  v_and_b32 v{vT2}, 15, v{vLane}"); A(f"  v_lshl_add_u32 v{vT1}, v{vT2}, 3, v{vT1}")
    A(f"  v_lshrrev_b32 v{vT2}, 5, v{vLane}"); A(f"  v_lshl_add_u32 v{vT1}, v{vT2}, 7, v{vT1}")
    A(f"  s_mov_b32 s50, {SPIN}")
    A("L_qg:")
    C("the first tries read the copy that a producer on this die left in L2, later ones alternate with the device-wide copy")
    A(f"  s_cmp_lg_u32 s50, {SPIN - nloc}"); A("  s_cbranch_scc1 L_qg1"); qglob("L_qg1")
    A(f"  s_cmp_gt_u32 s50, {SPIN - nloc}"); A(f"  s_cselect_b32 s47, {QLOC}, 0")
    A("  s_bitcmp1_b32 s50, 0"); A(f"  s_cselect_b32 s47, {QLOC}, s47")
    A(f"  v_add_u32 v{vDa}, s47, v{vT3}")
    for k in range(12):
        A(f"  buffer_load_dwordx4 v[{H+4*k}:{H+4*k+3}], v{vDa}, s[36:39], s{(12,14,15)[k//4]} offen offset:{1024*(k%4)} sc1")
    A("  s_mov_b64 s[48:49], 0")
    for k in range(12):
        A(f"  s_waitcnt vmcnt({11-k})")
        for r in (1, 3):
            A(f"  v_cmp_ne_u32 vcc, s46, v{H+4*k+r}"); A("  s_or_b64 s[48:49], s[48:49], vcc")
    A("  s_sub_u32 s50, s50, 1"); A("  s_cbranch_scc1 L_qgo")
    A("  s_cmp_eq_u64 s[48:49], 0"); A("  s_cbranch_scc0 L_qg")
    A("L_qgo:")
    def qconst(item):
        sg, c = divmod(item, 3); return ((sg >> 2) * 8 + (sg & 3)) * 384 + c * 128
    for k in range(12):
        assert qconst(2*k+1) - qconst(2*k) == 128
        A(f"  v_mov_b32 v{H+4*k+1}, v{H+4*k+2}")
        A(f"  ds_write_b64 v{vT1}, v[{H+4*k}:{H+4*k+1}] offset:{L_Q + qconst(2*k)}")
    A("  s_waitcnt lgkmcnt(0)")
    stamp("h", "qtab")
    if hwt == 3:
        for i in range(hw): wo_load(i, None)
    A("  s_barrier                       ; B2")
    if tlb == 2: tlbtouch()
    C("set-up of the progress board and of the flush state")
    A("  s_getreg_b32 s56, hwreg(HW_REG_XCC_ID)"); A("  s_and_b32 s56, s56, 7")
    A("  s_lshl_b32 s57, s56, 3"); A("  s_add_u32 s57, s57, s3"); A("  s_mul_i32 s57, s57, 1152"); A(f"  s_add_u32 s57, s57, {W_B}")
    A("  s_lshl_b32 s59, s4, 3"); A("  s_add_u32 s59, s59, s57")
    A("  s_mov_b32 s31, 0")
    A(f"  v_mov_b32 v{vE+1}, s46")
    if not atom:
        A("  s_lshl_b32 s62, s56, 2"); A(f"  s_add_u32 s62, s62, {W_G}"); A(f"  s_mov_b32 s29, {lper-1}")
        A(f"  s_add_u32 s16, s42, {W_G}"); A("  s_addc_u32 s17, s43, 0")
        A("  s_and_b32 s51, s46, 0xffff0000")
    A("  s_mov_b32 s18, -1"); A("  s_mov_b32 s19, 1")
    A("  s_mov_b32 s30, 0"); A("  s_mov_b32 s32, 0")
    A(f"  v_add_u32 v{vDa}, {L_O}, v{vQa}"); A(f"  v_mov_b32 v{vMLa}, {L_E}")
    A("  s_mov_b32 s33, 0xffff")
    if drift: A("  s_mov_b32 s82, 0"); A("  s_mov_b32 s83, 0")
    if atom: A("  s_mov_b32 s62, 124")
    if ep: A(f"  s_mov_b32 s29, {ep0}"); A("  s_mov_b32 s80, 0"); A("  s_mov_b32 s81, 0")
    A(f"  s_mul_i32 s58, s3, {512*OS}"); A(f"  s_mul_i32 s48, s4, {OS}"); A("  s_add_u32 s58, s58, s48"); A(f"  s_add_u32 s58, s58, {W_O}")
    def otag(reg):
        A(f"  v_and_b32 v{vMode}, 1, v{vLane}"); A(f"  v_lshlrev_b32 v{vMode}, 4, v{vMode}"); A(f"  v_lshrrev_b32 v{vMode}, v{vMode}, {reg}"); A(f"  v_lshlrev_b32 v{vMode}, 16, v{vMode}")
    otag("s46")
    A("  s_mov_b32 s45, s46")
    def call(l): A(f"  s_call_b64 s[60:61], {l}")
    def pace(t): A(f"  s_mov_b32 s44, {t}"); call("L_pace")
    def drain(n): A(f"  s_mov_b32 s32, {n}"); call("L_drain")
    pace(t_q)
    if warm:
        C("bring the code of the V rounds into the instruction cache: with EXEC = 0 only the chain of branches runs")
        A("  s_mov_b64 exec, 0"); A("  s_branch L_hop_0"); A("L_back:")
    A("  s_load_dwordx2 s[6:7], s[0:1], 80      ; out"); A("  s_waitcnt lgkmcnt(0)")
    if hwt == 2:
        for i in range(hw): wo_load(i, 1 if i > 1 else None)
    C("without proof that the group shares a die, leave a device-wide copy of q")
    A("  s_cmp_eq_u32 s31, 1"); A("  s_cbranch_scc1 L_qg2"); qglob("L_qg2")
    if share:
        C("problem A: publish (M, l) and the partial o; its projectors merge them before anyone reuses the slots")
        pace(t_a)
        A("  s_mov_b32 s34, 0x00ff"); call("L_ml"); A("  s_mov_b32 s32, 8")
        pace(t_c); drain(8)
        A("  s_cmp_ge_u32 s4, 16"); A("  s_cbranch_scc1 L_s1")
        A("  s_mov_b32 s34, 0"); call("L_wt"); call("L_merge"); A("  s_mov_b32 s34, 1"); call("L_merge")
        A("L_s1:")
        pace(t_ml)
        A("  s_mov_b32 s34, 0xff00"); call("L_ml")
        pace(t_w)
        C("the (M, l) records of problem B also tell that their writers are done with the slots")
        A("  s_mov_b32 s34, 8"); call("L_wt")
        A(f"  s_xor_b32 s45, s46, {GEN:#x}"); otag("s45"); A(f"  s_sub_u32 s58, s58, {8*32*OS}")
        A("  s_mov_b32 s32, 15")
    else:
        pace(t_ml)
        A("  s_mov_b32 s34, 0xffff"); call("L_ml"); A("  s_mov_b32 s32, 15")
        pace(t_w)
        A("  s_lshr_b32 s34, s4, 4"); A("  s_lshl_b32 s34, s34, 3"); call("L_wt")
    pace(t_g); drain(12); A("  s_mov_b32 s32, 15")
    if share: A("  s_cmp_lt_u32 s4, 16"); A("  s_cbranch_scc1 L_s4")
    A("  s_mov_b32 s34, 0"); call("L_merge")
    A("L_s4:")
    if hwt == 1:
        for i in range(hw): wo_load(i, 1 if i > 1 else None)
    A("  s_mov_b32 s34, 1")
    pace(t_f)
    stamp("h", "flush0")
    if prio == 2: A("  s_setprio 3")
    if hwt == 0:
        for i in range(hw): wo_load(i, None)
    C("final-reduction role of workgroups 0..159: (problem, batch) = id&3, block of 4 granules = id>>2")
    A("  s_and_b32 s20, s2, 3")
    if rmap:
        C("(bits 2 and 3 swapped: the two readers of a cache line are in the same group)")
        A("  s_lshr_b32 s21, s2, 4"); A("  s_lshl_b32 s21, s21, 2"); A("  s_and_b32 s22, s2, 4"); A("  s_lshr_b32 s22, s22, 1"); A("  s_or_b32 s21, s21, s22")
        A("  s_and_b32 s22, s4, 1"); A("  s_or_b32 s21, s21, s22")
    else: A("  s_lshr_b32 s21, s2, 2")
    A(f"  v_lshrrev_b32 v{vCa}, 2, v{vLane}"); A(f"  v_and_b32 v{vProg}, 3, v{vLane}")
    A(f"  v_mul_u32_u24 v{vCa}, {YS}, v{vCa}"); A(f"  v_lshl_add_u32 v{vCa}, v{vProg}, 4, v{vCa}"); A(f"  v_lshlrev_b32 v{vProg}, 4, v{vProg}")
    A(f"  v_bfe_u32 v{vT1}, v{vLane}, 4, 1"); A(f"  v_lshl_add_u32 v{vProg}, v{vT1}, 2, v{vProg}")
    A(f"  v_lshrrev_b32 v{vT1}, 5, v{vLane}"); A(f"  v_lshl_add_u32 v{vProg}, v{vT1}, 1, v{vProg}")
    if fakey:
        A("  s_and_b32 s72, s20, 2"); A(f"  s_mul_i32 s72, s72, {128*YS}"); A(f"  s_and_b32 s22, s21, {(-1, -1, -5, -7)[fakey]}"); A("  s_lshl_b32 s22, s22, 6"); A("  s_add_u32 s72, s72, s22")
    else:
        A(f"  s_mul_i32 s72, s20, {128*YS}"); A("  s_lshl_b32 s22, s21, 6"); A("  s_add_u32 s72, s72, s22")
    for k in range(1, 8): A(f"  s_add_u32 s{72+k}, s72, {16*k*YS}")
    A("  s_and_b32 s22, s20, 1"); A("  s_mul_i32 s35, s22, 2560"); A("  s_lshr_b32 s22, s20, 1"); A("  s_mul_i32 s22, s22, 1280"); A("  s_add_u32 s35, s35, s22")
    A("  s_lshr_b32 s22, s21, 3"); A("  s_lshl_b32 s22, s22, 8"); A("  s_add_u32 s35, s35, s22")
    A("  s_and_b32 s22, s21, 3"); A("  s_lshl_b32 s22, s22, 6"); A("  s_add_u32 s35, s35, s22")
    A("  s_and_b32 s22, s21, 4"); A("  s_lshl_b32 s22, s22, 1"); A("  s_add_u32 s35, s35, s22")
    A("  s_mov_b32 s12, s6"); A("  s_mov_b32 s13, s7"); A("  s_mov_b32 s14, 5120"); A("  s_mov_b32 s15, 0x20000")
    lo_j = 16 if share else 0
    if gj > lo_j:
        drain(15)
        if share: A("  s_cmp_lt_u32 s4, 16"); A("  s_cbranch_scc1 L_s2")
        A(f"  s_cmp_ge_u32 s4, {gj}"); A("  s_cbranch_scc1 L_s2")
        call("L_merge")
        A("L_s2:")
    drain(16)
    stamp("h", "flushed")
    for i in range(hw, 12): wo_load(i, None)
    A(f"  s_cmp_lt_u32 s4, {max(gj, lo_j)}"); A("  s_cbranch_scc1 L_s3")
    call("L_merge")
    A("L_s3:")
    stamp("h", "hready")
    A("  s_branch L_proj")
    def pub(instr, tag):
        A("  s_cmp_eq_u32 s31, 1"); A(f"  s_cbranch_scc1 {tag}a")
        A(instr + " sc1")
        A(f"  s_branch {tag}b"); A(f"{tag}a:"); A(instr); A(f"{tag}b:")
    A("L_pace:")
    C("subroutine: until every wave has passed s44, refresh the mean lead and publish finished heads (period ~1.4 us)")
    A(f"  s_sleep {slp}")
    A("  s_memrealtime s[22:23]")
    A(f"  ds_read_b128 v[{H}:{H+3}], v{vZero} offset:{L_CTL+16}"); A("  s_waitcnt lgkmcnt(0)")
    A(f"  v_min3_u32 v{H+4}, v{H}, v{H+1}, v{H+2}"); A(f"  v_min_u32 v{H+4}, v{H+4}, v{H+3}")
    A(f"  v_add3_u32 v{H+5}, v{H}, v{H+1}, v{H+2}"); A(f"  v_add_u32 v{H+5}, v{H+5}, v{H+3}")
    A(f"  v_readfirstlane_b32 s20, v{H+4}")
    A("  s_cmp_ge_u32 s20, s44"); A("  s_cbranch_scc1 L_ret")
    A(f"  v_readfirstlane_b32 s21, v{H+5}")
    A(f"  s_mul_i32 s22, s22, {kap}"); A("  s_lshr_b32 s22, s22, 6")
    A("  s_lshl_b32 s21, s21, 5"); A("  s_sub_u32 s21, s21, s22"); A("  s_and_b32 s21, s21, 0xffff")
    A(f"  v_mov_b32 v{vE}, s21"); A(f"  v_mov_b32 v{H+8}, 0"); A(f"  v_mov_b32 v{H+9}, 0")
    A("  s_mov_b64 exec, 1")
    A(f"  buffer_store_dwordx2 v[{vE}:{vE+1}], v{vZero}, s[36:39], s59 offen")
    A("  s_mov_b64 exec, s[18:19]")
    A(f"  buffer_load_dwordx2 v[{H+8}:{H+9}], v{vT0}, s[36:39], s57 offen {bpol}")
    A("  s_mov_b64 exec, -1")
    A("  s_waitcnt vmcnt(0)")
    A(f"  v_readlane_b32 s22, v{H+8}, 32")
    A(f"  v_cmp_eq_u32 vcc, s46, v{H+9}")
    A(f"  v_subrev_u32 v{H+7}, s21, v{H+8}"); A(f"  v_bfe_i32 v{H+7}, v{H+7}, 0, 16")
    A(f"  v_cndmask_b32 v{H+7}, 0, v{H+7}, vcc")
    A("  s_cmp_eq_u32 vcc_lo, -1"); A("  s_cselect_b32 s31, 1, s31")
    for sh in (1, 2, 4, 8):
        A("  s_nop 1"); A(f"  v_add_u32_dpp v{H+7}, v{H+7}, v{H+7} row_ror:{sh} row_mask:0xf bank_mask:0xf")
    A("  s_bitcmp1_b32 vcc_hi, 0"); A("  s_cselect_b32 s22, s22, 0")
    A(f"  v_readlane_b32 s23, v{H+7}, 0"); A(f"  v_readlane_b32 s47, v{H+7}, 16")
    A("  s_add_u32 s23, s23, s47"); A("  s_ashr_i32 s23, s23, 5"); A("  s_add_u32 s23, s23, s21")
    A("  s_add_u32 s47, s23, s22")
    if drift:
        C("a common slow-down makes the mean fall between samples: carry that fall forward so that it does not read as lag")
        A("  s_sub_u32 s48, s23, s82"); A("  s_sext_i32_i16 s48, s48"); A("  s_mov_b32 s82, s23")
        if dz: A(f"  s_add_u32 s48, s48, {dz}")
        A("  s_max_i32 s48, s48, s83"); A("  s_min_i32 s48, s48, 0"); A(f"  s_mul_i32 s48, s48, {drift}"); A("  s_ashr_i32 s48, s48, 2"); A("  s_add_u32 s47, s47, s48")
        A("  s_movk_i32 s83, 0xff80")
    A("  s_and_b32 s47, s47, 0xffff"); A(f"  v_mov_b32 v{H+6}, s47")
    A(f"  ds_write_b32 v{vZero}, v{H+6} offset:{L_CTL+32}")
    A("  s_cmp_lg_u32 s4, 0"); A("  s_cbranch_scc1 L_paced")
    C("first workgroup of a group: now and then compare with the other groups")
    if lin: A(f"  s_min_i32 s48, s22, {lin}"); A(f"  s_max_i32 s48, s48, {-lin}")
    else: A(f"  s_ashr_i32 s48, s22, {dec}")
    A("  s_sub_u32 s48, s22, s48"); A("  s_mov_b64 exec, 1")
    if ep:
        C("all groups add their mean to a counter in d_debug at the same points of progress and read the sum a little later")
        A("  s_cmp_lt_u32 s20, s29"); A("  s_cbranch_scc1 L_ep1")
        if epp2: A(f"  s_cmp_ge_u32 s29, {ept}"); A(f"  s_cselect_b32 s47, {epp2}, {epp}"); A("  s_add_u32 s29, s29, s47")
        else: A(f"  s_add_u32 s29, s29, {epp}")
        if epend < 999: A(f"  s_cmp_gt_u32 s29, {epend}"); A("  s_cselect_b32 s29, 999, s29")
        A(f"  s_mov_b32 s81, {epw}"); A("  s_and_b32 s80, s23, 0xffff")
        if atom:
            A("  s_add_u32 s62, s62, 4"); A("  s_or_b32 s47, s80, 0x1000000"); A(f"  v_mov_b32 v{H+6}, s47")
            A(f"  buffer_atomic_add v{H+6}, v{vZero}, s[8:11], s62 offen")
        else:
            A("  s_add_u32 s51, s51, 0x10000"); A("  s_or_b32 s47, s80, s51"); A(f"  v_mov_b32 v{H+6}, s47")
            A(f"  buffer_store_dword v{H+6}, v{vZero}, s[36:39], s62 offen sc1")
        A("  s_branch L_dst")
        A("L_ep1:")
        A("  s_sub_u32 s81, s81, 1"); A("  s_cmp_lg_u32 s81, 0"); A("  s_cbranch_scc1 L_dst")
        if atom:
            A("  s_load_dword s64, s[40:41], s62 glc"); A("  s_waitcnt lgkmcnt(0)")
            A("  s_lshr_b32 s65, s64, 24"); A("  s_mul_i32 s65, s65, s80"); A("  s_sub_u32 s48, s64, s65"); A("  s_sext_i32_i16 s48, s48")
        else:
            A("  s_load_dwordx8 s[64:71], s[16:17], 0 glc")
            A("  s_mov_b32 s23, s80")
            A("  s_waitcnt lgkmcnt(0)")
    else:
        A("  s_add_u32 s29, s29, 1"); A(f"  s_cmp_lt_u32 s29, {lper}"); A("  s_cbranch_scc1 L_dst")
        A("  s_mov_b32 s29, 0")
        A("  s_load_dwordx8 s[64:71], s[16:17], 0 glc")
        A("  s_and_b32 s23, s23, 0xffff")
        A("  s_or_b32 s47, s23, s51"); A(f"  v_mov_b32 v{H+6}, s47")
        A("  s_waitcnt lgkmcnt(0)")
        A(f"  buffer_store_dword v{H+6}, v{vZero}, s[36:39], s62 offen sc1")
    if not atom: A("  s_mov_b32 s48, 0")
    for k in range(0 if atom else 8):
        A(f"  s_xor_b32 s{64+k}, s{64+k}, s51"); A(f"  s_cmp_lt_u32 s{64+k}, 0x10000"); A(f"  s_cselect_b32 s{64+k}, s{64+k}, s23")
        A(f"  s_sub_u32 s{64+k}, s{64+k}, s23"); A(f"  s_sext_i32_i16 s{64+k}, s{64+k}"); A(f"  s_add_u32 s48, s48, s{64+k}")
    if gain != 8: A(f"  s_mul_i32 s48, s48, {gain}"); A("  s_ashr_i32 s48, s48, 6")
    else: A("  s_ashr_i32 s48, s48, 3")
    A("L_dst:")
    A(f"  v_mov_b32 v{vE}, s48")
    A(f"  buffer_store_dwordx2 v[{vE}:{vE+1}], v{vZero}, s[36:39], s57 offen offset:256")
    A("  s_mov_b64 exec, -1")
    A("L_paced:")
    A(f"  s_mov_b32 s63, {nfl}"); A("  s_branch L_fl")
    A("L_drain:")
    C("entry: flush up to the limit, waiting for the waves")
    A("  s_mov_b32 s63, -1")
    A("L_fl:")
    C("head i (round 8+i, or 16+i from 8 on) is in LDS once every wave's progress is >= 8*round+5")
    A("  s_cmp_ge_u32 s30, 8"); A("  s_cselect_b32 s48, 16, 8"); A("  s_add_u32 s48, s48, s30"); A("  s_lshl_b32 s48, s48, 3"); A("  s_add_u32 s48, s48, 5")
    A("  s_cmp_lt_i32 s63, 0"); A("  s_cbranch_scc0 L_fl0")
    A("  s_cmp_ge_u32 s30, s32"); A("  s_cbranch_scc0 L_fl1")
    A("L_ret:")
    A("  s_setpc_b64 s[60:61]")
    A("L_fl0:")
    A("  s_cmp_ge_u32 s30, s32"); A("  s_cbranch_scc1 L_pace")
    A("  s_cmp_lt_u32 s20, s48"); A("  s_cbranch_scc1 L_pace")
    A("  s_sub_u32 s63, s63, 1"); A("  s_cbranch_scc1 L_pace")
    A("L_fl1:")
    A(f"  ds_read_b128 v[{H+28}:{H+31}], v{vMLa}")
    A("L_flw:")
    if flws: A(f"  s_sleep {flws}")
    A(f"  ds_read_b128 v[{H}:{H+3}], v{vZero} offset:{L_CTL+16}"); A("  s_waitcnt lgkmcnt(0)")
    A(f"  v_min3_u32 v{H+4}, v{H}, v{H+1}, v{H+2}"); A(f"  v_min_u32 v{H+4}, v{H+4}, v{H+3}"); A("  s_nop 0")
    A(f"  v_readfirstlane_b32 s20, v{H+4}")
    A("  s_cmp_lt_u32 s20, s48"); A("  s_cbranch_scc1 L_flw")
    for k in range(12): A(f"  ds_read2st64_b32 v[{H+2*k}:{H+2*k+1}], v{vDa} offset0:{2*k} offset1:{2*k+1}")
    for w in range(4):
        A(f"  s_waitcnt lgkmcnt({9-3*w})")
        for t in range(3): A(f"  v_add_f32 v{H+6*w+t}, v{H+6*w+t}, v{H+6*w+3+t}")
        for t in range(3):
            A(f"  v_mul_f32 v{H+32+t}, v{H+28}, v{H+t}" if w == 0 else f"  v_fmac_f32 v{H+32+t}, v{H+28+w}, v{H+6*w+t}")
    C("lane l: o[l], o[l+64], o[l+128] and one half of the tag")
    A(f"  v_cvt_pk_bf16_f32 v{H+32}, v{H+32}, v{H+33}"); A(f"  v_cvt_pk_bf16_f32 v{H+33}, v{H+34}, v{H+34}")
    A(f"  v_and_or_b32 v{H+33}, v{H+33}, s33, v{vMode}")
    pub(f"  buffer_store_dwordx2 v[{H+32}:{H+33}], v{vT0}, s[36:39], s58 offen", "L_po")
    if clean: A(f"  v_add_u32 v{vKV}, v{vDa}, v{vQa}"); A(f"  ds_write_b64 v{vKV}, v[{H+32}:{H+33}]")
    A(f"  v_add_u32 v{vDa}, 6144, v{vDa}"); A(f"  v_add_u32 v{vMLa}, 16, v{vMLa}")
    A(f"  s_add_u32 s58, s58, {32*OS}"); A("  s_add_u32 s30, s30, 1"); A("  s_branch L_fl")
    A("L_ml:")
    C("subroutine: lane = head; max and sum over the four waves, wave weights; publishes the heads in mask s34")
    A(f"  v_and_b32 v{vT1}, 15, v{vLane}"); A(f"  v_lshlrev_b32 v{vT2}, 5, v{vT1}"); A(f"  v_lshlrev_b32 v{vT1}, 4, v{vT1}")
    A(f"  ds_read_b128 v[{H}:{H+3}], v{vT2} offset:{L_ML}"); A(f"  ds_read_b128 v[{H+4}:{H+7}], v{vT2} offset:{L_ML+16}")
    A("  s_lshl_b32 s47, s3, 5"); A("  s_add_u32 s47, s47, s4"); A("  s_lshl_b32 s47, s47, 8"); A(f"  s_add_u32 s47, s47, {W_ML}")
    A("  s_waitcnt lgkmcnt(0)")
    A(f"  v_max3_f32 v{H+8}, v{H}, v{H+2}, v{H+4}"); A(f"  v_max_f32 v{H+8}, v{H+8}, v{H+6}")
    for w in range(4): A(f"  v_sub_f32 v{H+12+w}, v{H+2*w}, v{H+8}")
    for w in range(4): A(f"  v_exp_f32 v{H+12+w}, v{H+12+w}")
    A(f"  v_mov_b32 v{H+10}, 0"); A(f"  v_mov_b32 v{H+11}, s46")
    A(f"  v_mul_f32 v{H+9}, v{H+12}, v{H+1}")
    for w in range(1, 4): A(f"  v_fmac_f32 v{H+9}, v{H+12+w}, v{H+2*w+1}")
    A("  s_mov_b32 exec_lo, s34"); A("  s_mov_b32 exec_hi, 0")
    A(f"  ds_write_b128 v{vT1}, v[{H+12}:{H+15}] offset:{L_E}")
    pub(f"  buffer_store_dwordx4 v[{H+8}:{H+11}], v{vT1}, s[36:39], s47 offen", "L_pm")
    A("  s_mov_b64 exec, -1")
    A("  s_setpc_b64 s[60:61]")
    A("L_wt:")
    C("subroutine: lane = (batch, producer); softmax weights exp(M_j - M)/L of the partial o of heads s34+hh, s34+4+hh")
    A(f"  v_and_b32 v{vT1}, 31, v{vLane}"); A(f"  v_lshlrev_b32 v{vT1}, 8, v{vT1}")
    A(f"  v_and_b32 v{vT2}, 32, v{vLane}"); A(f"  v_lshl_add_u32 v{vT1}, v{vT2}, 1, v{vT1}      ; producer*256 + b*64")
    A("  s_lshr_b32 s48, s4, 2"); A("  s_and_b32 s48, s48, 3"); A("  s_add_u32 s47, s34, s48")
    A("  s_lshl_b32 s47, s47, 4"); A("  s_lshl_b32 s48, s3, 13"); A("  s_add_u32 s47, s47, s48"); A(f"  s_add_u32 s47, s47, {W_ML}")
    A(f"  s_mov_b32 s50, {SPIN}")
    A("L_wg:")
    A(f"  buffer_load_dwordx4 v[{H}:{H+3}], v{vT1}, s[36:39], s47 offen {gpol}"); A("  s_waitcnt vmcnt(0)")
    A(f"  v_cmp_ne_u32 vcc, s46, v{H+3}")
    A("  s_sub_u32 s50, s50, 1"); A("  s_cbranch_scc1 L_wgo")
    A("  s_cmp_eq_u64 vcc, 0"); A("  s_cbranch_scc1 L_wgo")
    A("  s_sleep 16"); A("  s_branch L_wg")
    A("L_wgo:")
    def red32(op, t, u):
        for sh in (1, 2, 4, 8):
            A("  s_nop 1"); A(f"  {op}_dpp v{t}, v{t}, v{t} row_ror:{sh} row_mask:0xf bank_mask:0xf")
        A(f"  v_mov_b32 v{u}, v{t}"); A("  s_nop 1"); A(f"  v_permlane16_swap_b32 v{t}, v{u}"); A("  s_nop 0"); A(f"  {op} v{t}, v{t}, v{u}")
    A(f"  v_mov_b32 v{H+4}, v{H}")
    red32("v_max_f32", H+4, H+5)
    A(f"  v_sub_f32 v{H}, v{H}, v{H+4}"); A(f"  v_exp_f32 v{H}, v{H}"); A("  s_nop 0")
    A(f"  v_mul_f32 v{H+4}, v{H}, v{H+1}")
    red32("v_add_f32", H+4, H+5)
    A(f"  v_rcp_f32 v{H+4}, v{H+4}")
    A(f"  v_and_b32 v{vT1}, 7, v{vLane}"); A(f"  v_lshlrev_b32 v{vT1}, 4, v{vT1}"); A(f"  v_lshl_add_u32 v{vT1}, v{vT2}, 2, v{vT1}")
    A(f"  v_and_b32 v{vT2}, 24, v{vLane}"); A(f"  v_lshrrev_b32 v{vT2}, 1, v{vT2}"); A(f"  v_add_u32 v{vT1}, v{vT1}, v{vT2}")
    A(f"  v_mul_f32 v{H}, v{H}, v{H+4}")
    A(f"  ds_write_b32 v{vT1}, v{H} offset:{L_W}")
    A("  s_setpc_b64 s[60:61]")
    A("L_merge:")
    C("batch row s34: first call keeps its sums, second call folds both and leaves them in LDS")
    A(f"  v_lshrrev_b32 v{vT1}, 3, v{vLane}"); A(f"  v_and_b32 v{vT2}, 7, v{vLane}")
    A(f"  v_mul_u32_u24 v{vPa}, {OS}, v{vT1}"); A(f"  v_lshl_add_u32 v{vPa}, v{vT2}, 4, v{vPa}")
    A("  s_lshr_b32 s47, s4, 2"); A("  s_and_b32 s47, s47, 3"); A("  s_lshl_b32 s48, s34, 2"); A("  s_add_u32 s47, s47, s48")
    if not share: A("  s_lshr_b32 s48, s4, 4"); A("  s_lshl_b32 s48, s48, 3"); A("  s_add_u32 s47, s47, s48")
    A(f"  s_mul_i32 s47, s47, {32*OS}"); A(f"  s_mul_i32 s48, s3, {512*OS}"); A("  s_add_u32 s47, s47, s48")
    A("  s_and_b32 s48, s4, 3"); A("  s_lshl_b32 s48, s48, 7"); A("  s_add_u32 s47, s47, s48"); A(f"  s_add_u32 s64, s47, {W_O}")
    for k in range(1, 4): A(f"  s_add_u32 s{64+k}, s64, {k*8*OS}")
    A("  s_lshl_b32 s48, s34, 7"); A(f"  v_lshl_add_u32 v{vT1}, v{vT1}, 4, s48")
    A(f"  ds_read_b128 v[{vS}:{vS+3}], v{vT1} offset:{L_W}")
    A("  s_mov_b32 s22, 0x07060302"); A("  s_mov_b32 s23, 0xffff0000")
    A(f"  v_bfe_u32 v{vT1}, v{vLane}, 4, 1"); A(f"  v_lshl_add_u32 v{vT1}, v{vT2}, 1, v{vT1}")
    A(f"  v_and_b32 v{vT2}, 32, v{vLane}"); A(f"  v_lshlrev_b32 v{vT1}, 4, v{vT1}")
    A(f"  v_lshl_add_u32 v{vT1}, v{vT2}, 3, v{vT1}      ; (16*b + granule)*16")
    A(f"  s_mov_b32 s50, {SPIN}")
    A("L_gather:")
    for k in range(4): A(f"  buffer_load_dwordx4 v[{H+4*k}:{H+4*k+3}], v{vPa}, s[36:39], s{64+k} offen {gpol}")
    A("  s_mov_b64 s[48:49], 0")
    for k in range(4):
        A(f"  s_waitcnt vmcnt({3-k})")
        A(f"  v_perm_b32 v{vKV}, v{H+4*k+3}, v{H+4*k+1}, s22"); A(f"  v_cmp_ne_u32 vcc, s45, v{vKV}"); A("  s_or_b64 s[48:49], s[48:49], vcc")
    A("  s_sub_u32 s50, s50, 1"); A("  s_cbranch_scc1 L_ggo")
    A("  s_cmp_eq_u64 s[48:49], 0"); A("  s_cbranch_scc0 L_gather")
    A("L_ggo:")
    A("  s_waitcnt lgkmcnt(0)")
    M = H + 32
    Z = vB
    for k in range(4):
        for par in range(2):
            e0, e1 = H + 4*k + 2*par, H + 4*k + 2*par + 1
            A(f"  v_lshlrev_b32 v{vKV}, 16, v{e0}"); A(f"  v_and_b32 v{e0}, s23, v{e0}"); A(f"  v_lshlrev_b32 v{e1}, 16, v{e1}")
            for t, r in enumerate((vKV, e0, e1)):
                A(f"  {'v_mul_f32' if k == 0 else 'v_fmac_f32'} v{M+3*par+t}, v{vS+k}, v{r}")
    A("  s_cmp_eq_u32 s34, 0"); A("  s_cbranch_scc0 L_fold")
    for i in range(6): A(f"  v_mov_b32 v{Z+i}, v{M+i}")
    A("  s_setpc_b64 s[60:61]")
    A("L_fold:")
    A(";HOP 3")
    for i in range(6): A(f"  v_permlane32_swap_b32 v{Z+i}, v{M+i}")
    for i in range(6): A(f"  v_add_f32 v{Z+i}, v{Z+i}, v{M+i}")
    A("  s_nop 0")
    for i in range(3): A(f"  v_permlane16_swap_b32 v{Z+i}, v{Z+3+i}")
    A("  s_nop 0")
    for i in range(3): A(f"  v_add_f32 v{Z+i}, v{Z+i}, v{Z+3+i}")
    for i in range(3): A(f"  v_add_f32_dpp v{Z+i}, v{Z+i}, v{Z+i} row_ror:8 row_mask:0xf bank_mask:0xf")
    for i in range(3): A(f"  v_cvt_pk_bf16_f32 v{Z+i}, v{Z+i}, v{Z+i}")
    A(f"  v_mov_b32 v{Z+3}, s46")
    A(f"  ds_write_b128 v{vT1}, v[{Z}:{Z+3}] offset:{L_C}")
    A("  s_setpc_b64 s[60:61]")
    A("L_final:")
    stamp("h", "final0"); stamp("h", "ygot")
    if stamps: A("  s_waitcnt lgkmcnt(0)")
    A(f"  s_cmp_ge_u32 s2, 160"); A(f"  s_cbranch_scc1 {'L_hst' if stamps else 'L_end'}")
    A("  s_mov_b32 s52, 0x0c0c0400"); A("  s_mov_b32 s53, 0x04000c0c"); A("  s_mov_b32 s54, 0xffffff00")
    mk = [16, 18, 20, 22, 64, 66, 68, 70]
    for k in range(8): A(f"  s_mov_b64 s[{mk[k]}:{mk[k]+1}], -1")
    A(f"  s_mov_b32 s50, {SPIN}")
    if fslp0 or fslp1: C("poll back-off: the other workgroups' records take about this long to arrive")
    if fslp1: A("  s_cmp_ge_u32 s4, 16"); A("  s_cbranch_scc1 L_fs"); A(f"  s_sleep {fslp1}"); A("L_fs:")
    if fslp2: A("  s_bitcmp0_b32 s2, 1"); A("  s_cbranch_scc1 L_fs2"); A(f"  s_sleep {fslp2}"); A("L_fs2:")
    if fslp0: A(f"  s_sleep {fslp0}")
    def yround():
        for k in range(8):
            A(f"  s_or_b64 exec, s[{mk[k]}:{mk[k]+1}], 1")
            A(f"  buffer_load_dwordx4 v[{H+4*k}:{H+4*k+3}], v{vCa}, s[36:39], s{72+k} offen {ylp}")
        A("  s_mov_b64 exec, -1")
    C("poll the 128 partial outputs; lanes that already hold their record drop out")
    for _ in range(pp - 1):
        yround(); A(f"  s_sleep {pstag}")
    A("L_fin:")
    yround()
    A(f"  s_waitcnt vmcnt({8*(pp-1)})")
    for k in range(8):
        A(f"  v_perm_b32 v{vS}, v{H+4*k+1}, v{H+4*k}, s52"); A(f"  v_perm_b32 v{vS+1}, v{H+4*k+3}, v{H+4*k+2}, s53")
        A(f"  v_or_b32 v{vS}, v{vS}, v{vS+1}"); A(f"  v_cmp_ne_u32 s[{mk[k]}:{mk[k]+1}], s46, v{vS}")
    A(f"  s_or_b64 s[48:49], s[{mk[0]}:{mk[0]+1}], s[{mk[1]}:{mk[1]+1}]")
    for k in range(2, 8): A(f"  s_or_b64 s[48:49], s[48:49], s[{mk[k]}:{mk[k]+1}]")
    A("  s_sub_u32 s50, s50, 1"); A("  s_cbranch_scc1 L_fgo")
    A("  s_cmp_eq_u64 s[48:49], 0"); A("  s_cbranch_scc0 L_fin")
    A("L_fgo:")
    stamp("h", "ygot")
    Y = H + 32
    for i in range(32): A(f"  v_and_b32 v{Y+i}, s54, v{H+i}")
    for st in (16, 8, 4):
        for i in range(0, st, 2): A(f"  v_pk_add_f32 v[{Y+i}:{Y+i+1}], v[{Y+i}:{Y+i+1}], v[{Y+st+i}:{Y+st+i+1}]")
    C("fold the four columns onto the four rows of lanes: row 0..3 = column 0,2,1,3")
    A("  s_nop 1")
    A(f"  v_permlane32_swap_b32 v{Y}, v{Y+1}"); A(f"  v_permlane32_swap_b32 v{Y+2}, v{Y+3}"); A("  s_nop 0")
    A(f"  v_add_f32 v{Y}, v{Y}, v{Y+1}"); A(f"  v_add_f32 v{Y+2}, v{Y+2}, v{Y+3}"); A("  s_nop 1")
    A(f"  v_permlane16_swap_b32 v{Y}, v{Y+2}"); A("  s_nop 0")
    A(f"  v_add_f32 v{Y}, v{Y}, v{Y+2}")
    for sh in (4, 8):
        A("  s_nop 1"); A(f"  v_add_f32_dpp v{Y}, v{Y}, v{Y} row_ror:{sh} row_mask:0xf bank_mask:0xf")
    A(f"  v_cvt_pk_bf16_f32 v{Y}, v{Y}, v{Y}")
    A("  s_mov_b32 exec_lo, 0x000f000f"); A("  s_mov_b32 exec_hi, 0x000f000f")
    A(f"  buffer_store_short v{Y}, v{vProg}, s[12:15], s35 offen {opol}")
    C("every workgroup is done with d_debug by now: leave it as it was found")
    A("  s_cmp_lg_u32 s2, 0"); A("  s_cbranch_scc1 L_nz")
    A("  s_mov_b64 exec, -1" if atom else "  s_mov_b64 exec, 1")
    A(f"  buffer_store_dword v{vZero}, v{vQa if atom else vZero}, s[8:11], 0 offen {zpol}")
    A(";HOP 9")
    A("L_nz:")
    if stamps:
        A("L_hst:")
        A("  s_waitcnt vmcnt(0)")
        stamp("h", "hend")
        dump_stamps("h", 1)
        sn = names["s"]; hn = names["h"]
        L.insert(1, "; stamps: start id " + " ".join((sn[1:] + ["id"] * 6)[:6]) + " " + " ".join((hn + ["id"] * 8)[:7]) + " last")
    A("  s_endpgm")
    import re
    def isize(l):
        op = l.split()[0]
        if op == ";": return 0
        lit = any(not (-16 <= int(t, 0) <= 64) for t in re.findall(r"(?<![\w\[:])(-?(?:0x[0-9a-f]+|\d+))(?![\w\]:])", " ".join(l.split(";")[0].split()[1:])))
        if op in ("s_waitcnt", "s_nop", "s_barrier", "s_sleep", "s_branch", "s_endpgm") or op.startswith("s_cbranch") or op.startswith("s_cmpk") or op.startswith("s_addk"): return 4
        if op.startswith("s_load") or op.startswith("s_mem"): return 8
        if op.startswith("s_"): return 8 if lit else 4
        if op in ("v_and_b32", "v_add_u32", "v_readfirstlane_b32", "v_mov_b32"): return 8 if lit else 4
        return 8
    out = []; on = False; acc = 0; cnt = 0
    for l in L:
        if l.startswith(";HOP"):
            was = on; on = int(l.split()[1]) <= warm
            if on and not was: acc = hopb
            continue
        if on and l.startswith("  "):
            if acc >= hopb:
                out.append(f"L_hop_{cnt}:"); out.append(f"  s_cbranch_execz L_hop_{cnt+1}"); cnt += 1; acc = 4
            acc += isize(l)
        out.append(l)
    if warm: out.append(f"L_hop_{cnt}:"); out.append("  s_mov_b64 exec, -1"); out.append("  s_branch L_back")
    L[:] = out
    A('.section .rodata,"a"')
    A(".p2align 6"); A(f".amdhsa_kernel {KN}")
    A(f"  .amdhsa_next_free_vgpr {ACC + NA}"); A(f"  .amdhsa_next_free_sgpr 102"); A(f"  .amdhsa_accum_offset {ACC}")
    A("  .amdhsa_group_segment_fixed_size 0"); A("  .amdhsa_kernarg_size 104"); A("  .amdhsa_user_sgpr_count 2")
    A("  .amdhsa_user_sgpr_kernarg_segment_ptr 1"); A("  .amdhsa_system_sgpr_workgroup_id_x 1")
    A(".end_amdhsa_kernel")
    open(name, "w").write("\n".join(L) + "\n")
    return name
if __name__ == "__main__":
    if len(sys.argv) > 2:
        hdr = open("concat_heads__gqa_block_cached__mha_block_cached__decode.s.ref").read().split("; Override launch")[0]
        print(gen(name=sys.argv[2], header=hdr, **eval(sys.argv[1])))
    else:
        print(" ".join(gen(**kw) for kw in eval(sys.argv[1])))
```
